```python
import torch

def _softmax(x, axis=-1):
    return torch.softmax(x, dim=axis)
def _gelu(x):
    return torch.nn.functional.gelu(x, approximate="tanh")
def _silu(x):
    return torch.nn.functional.silu(x)
def _sigmoid(x):
    return torch.sigmoid(x)
def _layernorm(x, axis=-1, eps=1e-5):
    m = x.mean(dim=axis, keepdim=True)
    v = x.var(dim=axis, keepdim=True, unbiased=False)
    return (x - m) / torch.sqrt(v + eps)
def _scatter_add(tgt, idx, src, axis=0):
    return tgt.clone().index_add_(axis, idx, src)
def _segment_sum(src, seg, n):
    out = torch.zeros((n,) + src.shape[1:], dtype=src.dtype)
    return out.index_add_(0, seg, src)
def _pad(x, pw):
    flat = tuple(v for pair in reversed(pw) for v in pair)
    return torch.nn.functional.pad(x, flat)

kernel_name = 'interleave_layers__ssm_conv_h3__ssm_conv_h3__prompt'

def setup_inputs():

    _w = (lambda a: (lambda t: t.to(torch.bfloat16) if t.is_floating_point() else t)(torch.as_tensor(a)))
    def _A_setup():
        B, S, D = 1, 2048, 576
        ks = 4
        return {
            "q": _w((lambda *s: torch.randn(*s, dtype=torch.bfloat16) * 0.05)(B, S, D)),
            "k": _w((lambda *s: torch.randn(*s, dtype=torch.bfloat16) * 0.2)(B, S, D)),
            "v": _w((lambda *s: torch.randn(*s, dtype=torch.bfloat16) * 0.2)(B, S, D)),
            "shift_k": _w((lambda *s: torch.randn(*s, dtype=torch.bfloat16) * 0.2)(D, ks) * 0.5),
            "ssm_k": _w((lambda *s: torch.randn(*s, dtype=torch.bfloat16) * 0.4)(D, S) * (1.0 / S ** 0.5)),
            "ssm_D": _w((lambda *s: torch.randn(*s, dtype=torch.bfloat16) * 0.2)(D)),
        }
    _A_in = _A_setup()

    def _B_setup():
        B, S, D = 1, 2048, 576
        ks = 4
        return {
            "q": _w((lambda *s: torch.randn(*s, dtype=torch.bfloat16) * 0.05)(B, S, D)),
            "k": _w((lambda *s: torch.randn(*s, dtype=torch.bfloat16) * 0.2)(B, S, D)),
            "v": _w((lambda *s: torch.randn(*s, dtype=torch.bfloat16) * 0.2)(B, S, D)),
            "shift_k": _w((lambda *s: torch.randn(*s, dtype=torch.bfloat16) * 0.2)(D, ks) * 0.5),
            "ssm_k": _w((lambda *s: torch.randn(*s, dtype=torch.bfloat16) * 0.4)(D, S) * (1.0 / S ** 0.5)),
            "ssm_D": _w((lambda *s: torch.randn(*s, dtype=torch.bfloat16) * 0.2)(D)),
        }
    _B_in = _B_setup()

    return {
        "A_q": _A_in["q"],
        "A_k": _A_in["k"],
        "A_v": _A_in["v"],
        "A_shift_k": _A_in["shift_k"],
        "A_ssm_k": _A_in["ssm_k"],
        "A_ssm_D": _A_in["ssm_D"],
        "B_q": _B_in["q"],
        "B_k": _B_in["k"],
        "B_v": _B_in["v"],
        "B_shift_k": _B_in["shift_k"],
        "B_ssm_k": _B_in["ssm_k"],
        "B_ssm_D": _B_in["ssm_D"],
    }

def reference(A_q, A_k, A_v, A_shift_k, A_ssm_k, A_ssm_D, B_q, B_k, B_v, B_shift_k, B_ssm_k, B_ssm_D):
    def _A_ref(q, k, v, shift_k, ssm_k, ssm_D):
        B, S, D = q.shape
        ks = shift_k.shape[-1]
        k_pad = _pad(k, ((0, 0), (ks - 1, 0), (0, 0)))
        k_shift = torch.zeros_like(k)
        for t in range(ks):
            k_shift = k_shift + k_pad[:, t:t + S, :] * shift_k[:, ks - 1 - t][None, None, :]
        kv = k_shift * v
        L = 2 * S
        kv_pad = _pad(kv, ((0, 0), (0, S), (0, 0)))
        kf_pad = _pad(ssm_k, ((0, 0), (0, S)))
        kv_f = (lambda x, axes=(-2,-1): torch.fft.rfft2(x.float(), dim=axes))(kv_pad[:, None, :, :], axes=(1, 2))
        kf_f = (lambda x, axes=(-2,-1): torch.fft.rfft2(x.float(), dim=axes))(kf_pad[:, None, :], axes=(1, 2))
        kf_f = (lambda x, *d: x.permute(*d))(kf_f, 1, 2, 0)
        y_f = kv_f * kf_f[None, :, :, :]
        y = (lambda x, s, axes=(-2,-1): torch.fft.irfft2(x, s=s, dim=axes).to(torch.bfloat16))(y_f, (1, L), axes=(1, 2))[:, 0, :S, :]
        y = y + kv * ssm_D[None, None, :]
        return q * y

    def _B_ref(q, k, v, shift_k, ssm_k, ssm_D):
        B, S, D = q.shape
        ks = shift_k.shape[-1]
        k_pad = _pad(k, ((0, 0), (ks - 1, 0), (0, 0)))
        k_shift = torch.zeros_like(k)
        for t in range(ks):
            k_shift = k_shift + k_pad[:, t:t + S, :] * shift_k[:, ks - 1 - t][None, None, :]
        kv = k_shift * v
        L = 2 * S
        kv_pad = _pad(kv, ((0, 0), (0, S), (0, 0)))
        kf_pad = _pad(ssm_k, ((0, 0), (0, S)))
        kv_f = (lambda x, axes=(-2,-1): torch.fft.rfft2(x.float(), dim=axes))(kv_pad[:, None, :, :], axes=(1, 2))
        kf_f = (lambda x, axes=(-2,-1): torch.fft.rfft2(x.float(), dim=axes))(kf_pad[:, None, :], axes=(1, 2))
        kf_f = (lambda x, *d: x.permute(*d))(kf_f, 1, 2, 0)
        y_f = kv_f * kf_f[None, :, :, :]
        y = (lambda x, s, axes=(-2,-1): torch.fft.irfft2(x, s=s, dim=axes).to(torch.bfloat16))(y_f, (1, L), axes=(1, 2))[:, 0, :S, :]
        y = y + kv * ssm_D[None, None, :]
        return q * y

    x = A_q
    x = x + _A_ref(_layernorm(x, axis=-1), A_k, A_v, A_shift_k, A_ssm_k, A_ssm_D)
    x = x + _B_ref(_layernorm(x, axis=-1), B_k, B_v, B_shift_k, B_ssm_k, B_ssm_D)
    x = x + _A_ref(_layernorm(x, axis=-1), A_k, A_v, A_shift_k, A_ssm_k, A_ssm_D)
    x = x + _B_ref(_layernorm(x, axis=-1), B_k, B_v, B_shift_k, B_ssm_k, B_ssm_D)
    return x
```

```python
import sys
NAME = "interleave_layers__ssm_conv_h3__ssm_conv_h3__prompt"
REF = f"cdna_kernels/{NAME}.s.ref"

S, D = 2048, 576
ROWB = D * 2
TENS = S * ROWB
U_OFF = 0
U_BYTES = 2 * D * 4096
Y_OFF = U_BYTES
Y_BYTES = 256 * 18432
CS = 4160
HB = 4 * CS
H_BASE = 0
US = 4608
U_BASE = 5 * HB
LDS_P1 = U_BASE + 5 * US
Y_LDS = 0

class A:
    def __init__(self): self.l = []
    def __call__(self, s): self.l.append("    " + s)
    def label(self, s): self.l.append(s + ":")
    def c(self, s): self.l.append("    ; " + s)
    def text(self): return "\n".join(self.l) + "\n"

def srd(a, d, lo, hi, size, add=None):
    if add:
        a(f"s_add_u32 s{d}, s{lo}, {add}")
        a(f"s_addc_u32 s{d+1}, s{hi}, 0")
    else:
        a(f"s_mov_b32 s{d}, s{lo}")
        a(f"s_mov_b32 s{d+1}, s{hi}")
    a(f"s_mov_b32 s{d+2}, {size}")
    a(f"s_mov_b32 s{d+3}, 0x00020000")

SK, SV, SSH, SH, SU, SY, SX, SO, SF = 24, 28, 32, 36, 40, 44, 48, 52, 56
sX, sI, sB, sCB, sW = 60, 61, 62, 63, 64

def prologue(a, end):
    a(f"s_cmp_ge_u32 s2, 256")
    a(f"s_cbranch_scc1 {end}")
    a(f"s_and_b32 s{sX}, s2, 7")
    a(f"s_lshr_b32 s{sI}, s2, 3")
    a(f"s_lshr_b32 s{sB}, s{sX}, 2")
    a(f"s_and_b32 s{sCB}, s{sX}, 3")
    a(f"s_mul_i32 s3, s{sB}, 48")
    a(f"s_add_u32 s22, s0, s3")
    a(f"s_addc_u32 s23, s1, 0")
    a(f"s_load_dwordx8 s[4:11], s[22:23], 8")
    a(f"s_load_dwordx2 s[12:13], s[22:23], 40")
    a(f"s_load_dwordx2 s[14:15], s[0:1], 0")
    a(f"s_load_dwordx4 s[16:19], s[0:1], 96")
    a(f"s_load_dwordx2 s[20:21], s[0:1], 112")
    a(f"v_lshrrev_b32 v1, 6, v0")
    a(f"s_nop 0")
    a(f"v_readfirstlane_b32 s{sW}, v1")
    a(f"s_waitcnt lgkmcnt(0)")

def p0_issue(a, ldflag):
    srd(a, SK, 4, 5, TENS)
    srd(a, SV, 6, 7, TENS)
    srd(a, SSH, 8, 9, D * 8)
    a("v_lshrrev_b32 v5, 3, v0")
    a("v_and_b32 v6, 7, v0")
    a(f"s_mul_i32 s65, s{sI}, {64*ROWB}")
    a(f"s_mul_i32 s66, s{sCB}, 288")
    a("s_add_u32 s65, s65, s66")
    a(f"v_mul_u32_u24 v1, {8*ROWB}, v6")
    a("v_mul_u32_u24 v7, 12, v5")
    a("v_add3_u32 v1, v1, v7, s65")
    a(f"v_add_u32 v2, {4*ROWB}, v1")
    a(f"v_subrev_u32 v3, {3*ROWB}, v1")
    a(f"s_mul_i32 s66, s{sCB}, {144*8}")
    a("v_mul_u32_u24 v7, 48, v5")
    a("v_add_u32 v7, s66, v7")
    for q in range(3):
        a(f"buffer_load_dwordx4 v[{84+4*q}:{87+4*q}], v7, s[{SSH}:{SSH+3}], 0 offen offset:{16*q}")
    def kreg(j): return 8 + 4 * j
    def vreg(t): return 52 + 4 * t
    for j in range(3):
        a(f"buffer_load_dwordx3 v[{kreg(j)}:{kreg(j)+2}], v3, s[{SK}:{SK+3}], 0 offen offset:{j*ROWB} {ldflag}")
    for t in range(8):
        base, off = ("v1", t * ROWB) if t < 4 else ("v2", (t - 4) * ROWB)
        a(f"buffer_load_dwordx3 v[{kreg(t+3)}:{kreg(t+3)+2}], {base}, s[{SK}:{SK+3}], 0 offen offset:{off} {ldflag}")
        a(f"buffer_load_dwordx3 v[{vreg(t)}:{vreg(t)+2}], {base}, s[{SV}:{SV+3}], 0 offen offset:{off} {ldflag}")
    a(f"s_mul_i32 s65, s{sB}, 576")
    a(f"s_mul_i32 s66, s{sCB}, 144")
    a("s_add_u32 s65, s65, s66")
    a("s_lshl_b32 s65, s65, 12")
    a("s_add_u32 s65, s65, 4080")
    a(f"s_lshl_b32 s66, s{sI}, 7")
    a("s_sub_u32 s65, s65, s66")
    a(f"v_mul_u32_u24 v4, {6*4096}, v5")
    a("v_lshlrev_b32 v6, 4, v6")
    a("v_sub_u32 v4, v4, v6")
    a("v_add_u32 v4, s65, v4")
    return 3 + 3 + 16

def unpack(a, dlo, dhi, src):
    a(f"v_lshlrev_b32 v{dlo}, 16, v{src}")
    a(f"v_and_b32 v{dhi}, 0xffff0000, v{src}")

def p0_compute(a, later, stflag):
    def kreg(j): return 8 + 4 * j
    def vreg(t): return 52 + 4 * t
    def W(p, j): return 96 + 8 * p + 2 * j
    def Kf(j, c): return 120 + 6 * j + c
    def U(t, c): return 186 + 6 * t + c
    a(f"s_waitcnt vmcnt({min(63, later + 19)})")
    for c in range(6):
        p, h = c >> 1, c & 1
        a(f"v_lshlrev_b32 v{W(p,0)+h}, 16, v{84+2*c}")
        a(f"v_and_b32 v{W(p,1)+h}, 0xffff0000, v{84+2*c}")
        a(f"v_lshlrev_b32 v{W(p,2)+h}, 16, v{85+2*c}")
        a(f"v_and_b32 v{W(p,3)+h}, 0xffff0000, v{85+2*c}")
    a(f"s_waitcnt vmcnt({min(63, later + 16)})")
    for j in range(3):
        for p in range(3):
            unpack(a, Kf(j, 2*p), Kf(j, 2*p+1), kreg(j) + p)
    for t in range(8):
        a(f"s_waitcnt vmcnt({min(63, later + 14 - 2*t)})")
        for p in range(3):
            unpack(a, Kf(t+3, 2*p), Kf(t+3, 2*p+1), kreg(t+3) + p)
            unpack(a, 234 + 2*p, 235 + 2*p, vreg(t) + p)
        for p in range(3):
            u = U(t, 2*p)
            a(f"v_pk_mul_f32 v[{u}:{u+1}], v[{Kf(t,2*p)}:{Kf(t,2*p)+1}], v[{W(p,3)}:{W(p,3)+1}]")
        for jj in (2, 1, 0):
            for p in range(3):
                u = U(t, 2*p); k = Kf(t + 3 - jj, 2*p)
                a(f"v_pk_fma_f32 v[{u}:{u+1}], v[{k}:{k+1}], v[{W(p,jj)}:{W(p,jj)+1}], v[{u}:{u+1}]")
        for p in range(3):
            u = U(t, 2*p)
            a(f"v_pk_mul_f32 v[{u}:{u+1}], v[{u}:{u+1}], v[{234+2*p}:{235+2*p}]")
    srd(a, SU, 20, 21, U_BYTES, U_OFF)
    for c in range(1, 6):
        a(f"s_mov_b32 s{65+c}, {4096*c}")
    for c in range(6):
        o = 8 + 4 * c
        for q in range(4):
            a(f"v_cvt_pk_bf16_f32 v{o+q}, v{U(7-2*q, c)}, v{U(6-2*q, c)}")
        so = "0" if c == 0 else f"s{65+c}"
        a(f"buffer_store_dwordx4 v[{o}:{o+3}], v4, s[{SU}:{SU+3}], {so} offen {stflag}")

ACC, ACCE, PD, PDE, FB = 8, 40, 44, 48, 56
sCH, sCE, sJE, sHB, sUB = 72, 73, 74, 75, 76

def p1_ids(a):
    a(f"s_lshr_b32 s65, s{sI}, 1")
    a("s_mul_i32 s65, s65, 9")
    a(f"s_mul_i32 s66, s{sCB}, 144")
    a("s_add_u32 s65, s65, s66")
    a(f"s_add_u32 s{sCE}, s65, 4")
    a(f"s_and_b32 s66, s{sI}, 1")
    a("s_mul_i32 s67, s66, 5")
    a("s_add_u32 s65, s65, s67")
    a(f"s_add_u32 s{sCH}, s65, s{sW}")
    a(f"s_lshl_b32 s{sJE}, s{sW}, 1")
    a(f"s_add_u32 s{sJE}, s{sJE}, s66")
    a(f"s_mul_i32 s{sHB}, s{sW}, {HB}")
    a(f"s_mul_i32 s{sUB}, s{sW}, {US}")
    a(f"s_add_u32 s{sUB}, s{sUB}, {U_BASE}")

def p1_h_issue(a, ldflag):
    srd(a, SH, 10, 11, TENS)
    a("v_and_b32 v52, 63, v0")
    a("v_lshlrev_b32 v53, 4, v52")
    a(f"s_lshl_b32 s65, s{sCH}, 12")
    a(f"s_lshl_b32 s66, s{sCE}, 12")
    a("v_mov_b32 v54, s65")
    a("v_mov_b32 v55, s66")
    a("v_cmp_gt_u32 vcc, 4, v52")
    a("s_nop 1")
    a("v_cndmask_b32 v54, v55, v54, vcc")
    a(f"buffer_load_dwordx2 v[122:123], v54, s[{SH}:{SH+3}], 0 offen")
    for sg in range(4):
        a(f"s_add_u32 s67, s65, {2*(1+sg)}")
        a(f"s_add_u32 s68, s{sHB}, {sg*CS + 32}")
        a("s_mov_b32 m0, s68")
        a("s_nop 0")
        for q in range(4):
            a(f"buffer_load_dwordx4 v53, s[{SH}:{SH+3}], s67 offen offset:{1024*q} {ldflag} lds")
    a(f"s_lshl_b32 s67, s{sW}, 1")
    a("s_add_u32 s67, s67, 2")
    a("s_add_u32 s67, s67, s66")
    a(f"s_mul_i32 s68, s{sW}, {CS}")
    a(f"s_add_u32 s68, s68, {4*HB + 32}")
    a("s_mov_b32 m0, s68")
    a("s_nop 0")
    for q in range(4):
        a(f"buffer_load_dwordx4 v53, s[{SH}:{SH+3}], s67 offen offset:{1024*q} {ldflag} lds")
    a(f"s_lshr_b32 s67, s{sCH}, 1")
    a("s_lshl_b32 s67, s67, 2")
    a(f"s_lshr_b32 s68, s{sCE}, 1")
    a("s_lshl_b32 s68, s68, 2")
    a("s_load_dword s77, s[12:13], s67")
    a("s_load_dword s78, s[12:13], s68")
    return 1 + 16 + 4

def p1_prep(a, after_head):
    for r in range(124, 128): a(f"v_mov_b32 v{r}, 0")
    a(f"v_add_u32 v54, s{sUB}, v53")
    a(f"s_lshl_b32 s65, s{sW}, 7")
    a(f"s_add_u32 s65, s65, {U_BASE + 4*US - 512}")
    a("v_add_u32 v55, s65, v53")
    a("v_cmp_gt_u32 vcc, 32, v52")
    a("s_nop 1")
    a("v_cndmask_b32 v54, v55, v54, vcc")
    a("v_cmp_gt_u32 vcc, 40, v52")
    a("s_and_saveexec_b64 s[80:81], vcc")
    a("ds_write_b128 v54, v[124:127] offset:4096")
    a("s_mov_b64 exec, s[80:81]")
    a("s_waitcnt lgkmcnt(0)")
    for ch, sv in ((sCH, 77), (sCE, 78)):
        a(f"s_and_b32 s65, s{ch}, 1")
        a("s_lshl_b32 s65, s65, 4")
        a(f"s_lshr_b32 s{sv}, s{sv}, s65")
        a(f"s_and_b32 s{sv}, s{sv}, 0xffff")
    a("v_and_b32 v1, 15, v52")
    a("v_lshrrev_b32 v2, 4, v52")
    a("v_lshlrev_b32 v3, 3, v2")
    a("v_add_u32 v3, v3, v1")
    a("v_sub_u32 v3, 15, v3")
    a("v_and_b32 v4, 1, v3")
    a("v_lshlrev_b32 v4, 4, v4")
    a("v_ashrrev_i32 v3, 1, v3")
    a("v_lshlrev_b32 v5, v4, s77")
    a("v_lshlrev_b32 v6, v4, s78")
    for q in range(4):
        a(f"v_cmp_eq_u32 vcc, {q}, v3")
        a("s_nop 1")
        a(f"v_cndmask_b32 v{PD+q}, 0, v5, vcc")
        a(f"v_cndmask_b32 v{PDE+q}, 0, v6, vcc")
    a(f"s_waitcnt vmcnt({min(63, after_head)})")
    a("v_and_b32 v3, 3, v52")
    a("v_sub_u32 v4, 3, v3")
    a("v_lshlrev_b32 v4, 4, v4")
    a("v_lshlrev_b64 v[122:123], v4, v[122:123]")
    a("v_mov_b32 v120, 0")
    a("v_mov_b32 v121, 0")
    a(f"v_mul_u32_u24 v3, {CS}, v3")
    a(f"v_add_u32 v4, s{sHB}, v3")
    a(f"v_add_u32 v5, {4*HB}, v3")
    a("v_cmp_gt_u32 vcc, 4, v52")
    a("s_nop 1")
    a("v_cndmask_b32 v4, v5, v4, vcc")
    a("v_cmp_gt_u32 vcc, 8, v52")
    a("s_and_saveexec_b64 s[80:81], vcc")
    a("ds_write_b128 v4, v[124:127]")
    a("ds_write_b128 v4, v[120:123] offset:16")
    a("s_mov_b64 exec, s[80:81]")
    a("v_and_b32 v3, 3, v1")
    a(f"v_mul_u32_u24 v3, {CS}, v3")
    a("v_and_b32 v4, 12, v1")
    a("v_lshlrev_b32 v4, 1, v4")
    a("v_add_u32 v3, v3, v4")
    a("v_lshl_add_u32 v3, v2, 4, v3")
    a(f"v_add_u32 v5, s{sHB}, v3")
    a(f"v_add_u32 v6, {4*HB}, v3")
    a("v_lshlrev_b32 v3, 4, v2")
    a("v_lshlrev_b32 v4, 5, v1")
    a("v_sub_u32 v3, v3, v4")
    a("v_add_u32 v3, 480, v3")
    a(f"v_add_u32 v7, s{sUB}, v3")
    a(f"s_sub_u32 s65, 7, s{sJE}")
    a("s_lshl_b32 s65, s65, 9")
    a(f"s_add_u32 s65, s65, {U_BASE + 4*US}")
    a("v_add_u32 v54, s65, v3")

def p1_aload(a):
    for ks in range(64):
        a(f"ds_read_b64 a[{4*ks}:{4*ks+1}], v5 offset:{64*ks}")
        a(f"ds_read_b64 a[{4*ks+2}:{4*ks+3}], v5 offset:{64*ks+8}")

def p1_u_issue_dma(a, flag):
    srd(a, SU, 20, 21, U_BYTES, U_OFF)
    a(f"s_mul_i32 s65, s{sB}, 576")
    a(f"s_add_u32 s66, s65, s{sCH}")
    a("s_lshl_b32 s66, s66, 12")
    a(f"s_add_u32 s67, s65, s{sCE}")
    a("s_lshl_b32 s67, s67, 12")
    a(f"s_lshl_b32 s68, s{sW}, 10")
    a("s_add_u32 s67, s67, s68")
    a(f"s_mov_b32 m0, s{sUB}")
    a("s_nop 0")
    for q in range(4):
        a(f"buffer_load_dwordx4 v53, s[{SU}:{SU+3}], s66 offen offset:{1024*q} {flag} lds")
    a(f"s_add_u32 s68, s68, {U_BASE + 4*US}")
    a("s_mov_b32 m0, s68")
    a("s_nop 0")
    a(f"buffer_load_dwordx4 v53, s[{SU}:{SU+3}], s67 offen {flag} lds")
    return 5

def F(bank, c): return FB + 32 * bank + 4 * c
def vr(r, n=4): return f"v[{r}:{r+n-1}]"
def ar(r, n=4): return f"a[{r}:{r+n-1}]"

def p1_main(a, tag, stflag):
    mf = "v_mfma_f32_16x16x32_bf16"
    for c in range(8):
        a(f"ds_read_b128 {vr(F(0,c))}, v7 offset:{512*(7-c)}")
    for r in range(8):
        bank = r & 1
        fill = []
        if r < 7:
            for c in range(8):
                fill.append(f"ds_read_b128 {vr(F(bank^1,c))}, v7 offset:{64*(r+1) + 512*(7-c)}")
        else:
            for rr in range(8):
                fill.append(f"ds_read_b128 {vr(F(0,rr))}, v54 offset:{64*rr}")
        if r > 0:
            for aa in range(8):
                ks = 8 * aa + r - 1
                fill.append(f"ds_read_b64 a[{4*ks}:{4*ks+1}], v6 offset:{64*ks}")
                fill.append(f"ds_read_b64 a[{4*ks+2}:{4*ks+3}], v6 offset:{64*ks+8}")
        a("s_waitcnt lgkmcnt(0)")
        for c in range(8):
            for j in range(c, 8):
                if r == 0 and j == c:
                    a(f"{mf} {vr(ACC+4*j)}, {vr(PD)}, {vr(F(bank,c))}, " + ("0" if False else ("0" if c == 0 else vr(ACC+4*j))))
                ks = 8 * (j - c) + r
                first = (r == 0 and c == 0 and j > 0)
                a(f"{mf} {vr(ACC+4*j)}, {ar(4*ks)}, {vr(F(bank,c))}, " + ("0" if first else vr(ACC+4*j)))
                if fill: a(fill.pop(0))
        assert not fill
    for aa in range(8):
        ks = 8 * aa + 7
        a(f"ds_read_b64 a[{4*ks}:{4*ks+1}], v6 offset:{64*ks}")
        a(f"ds_read_b64 a[{4*ks+2}:{4*ks+3}], v6 offset:{64*ks+8}")
    srd(a, SY, 20, 21, Y_BYTES, Y_OFF)
    def slot(dst, ch):
        a(f"s_and_b32 s65, s{ch}, 7")
        a("s_lshl_b32 s65, s65, 6")
        a(f"s_lshr_b32 s66, s{ch}, 3")
        a("s_add_u32 s65, s65, s66")
        a(f"s_cmp_lt_u32 s{ch}, 512")
        a(f"s_cselect_b32 s65, s65, s{ch}")
        a("s_lshl_b32 s65, s65, 4")
        a(f"s_mul_i32 s66, s{sB}, 9216")
        a(f"s_add_u32 s{dst}, s65, s66")
    slot(82, sCH)
    slot(83, sCE)
    a("v_and_b32 v3, 1, v2")
    a("v_lshlrev_b32 v3, 5, v3")
    a("v_lshl_add_u32 v3, v1, 1, v3")
    a("v_lshrrev_b32 v4, 1, v2")
    a("v_add_u32 v3, v3, v4")
    a("v_mul_u32_u24 v3, 18432, v3")
    a("v_lshl_add_u32 v4, v1, 1, v4")
    a("v_mul_u32_u24 v4, 18432, v4")
    a(f"s_mul_i32 s65, s{sJE}, {32*18432}")
    a("s_add_u32 s83, s83, s65")
    E = 88
    for jp in range(4):
        j = 2 * jp; o = E + 4 * jp
        a(f"v_cvt_pk_bf16_f32 v{o}, v{ACC+4*j}, v{ACC+4*j+1}")
        a(f"v_cvt_pk_bf16_f32 v{o+1}, v{ACC+4*j+2}, v{ACC+4*j+3}")
        a(f"v_cvt_pk_bf16_f32 v{o+2}, v{ACC+4*j+4}, v{ACC+4*j+5}")
        a(f"v_cvt_pk_bf16_f32 v{o+3}, v{ACC+4*j+6}, v{ACC+4*j+7}")
    a("s_nop 1")
    for jp in range(4):
        o = E + 4 * jp
        a(f"v_permlane16_swap_b32 v{o}, v{o+2}")
        a(f"v_permlane16_swap_b32 v{o+1}, v{o+3}")
    for jp in range(4):
        o = E + 4 * jp
        a(f"s_add_u32 s65, s82, {jp*64*18432}")
        a(f"buffer_store_dwordx4 {vr(o)}, v3, s[{SY}:{SY+3}], s65 offen {stflag}")
    def FE(bank, rr): return (FB + 4 * rr) if bank == 0 else (ACC + 4 * rr)
    a("s_waitcnt lgkmcnt(0)")
    for aa in range(8):
        bank = aa & 1
        for rr in range(8):
            if aa == 0 and rr == 0:
                a(f"{mf} {vr(ACCE)}, {vr(PDE)}, {vr(FE(0,0))}, 0")
            a(f"{mf} {vr(ACCE)}, {ar(4*(8*aa+rr))}, {vr(FE(bank,rr))}, {vr(ACCE)}")
            if aa < 7:
                a(f"ds_read_b128 {vr(FE(bank^1,rr))}, v54 offset:{64*rr + 512*(aa+1)}")
        if aa < 7:
            a(f"s_cmp_eq_u32 s{sJE}, {aa}")
            a(f"s_cbranch_scc1 {tag}_exdone")
            a("s_waitcnt lgkmcnt(0)")
    a.label(f"{tag}_exdone")
    a("s_waitcnt lgkmcnt(0)")
    a("s_nop 7")
    a(f"v_cvt_pk_bf16_f32 v104, v{ACCE}, v{ACCE+1}")
    a(f"v_cvt_pk_bf16_f32 v105, v{ACCE+2}, v{ACCE+3}")
    a("v_mov_b32 v106, v104")
    a("v_mov_b32 v107, v105")
    a("s_nop 1")
    a("v_permlane16_swap_b32 v104, v106")
    a("v_permlane16_swap_b32 v105, v107")
    a("v_and_b32 v55, 1, v2")
    a("v_cmp_eq_u32 vcc, 0, v55")
    a("s_and_saveexec_b64 s[80:81], vcc")
    a(f"buffer_store_dwordx4 v[104:107], v4, s[{SY}:{SY+3}], s83 offen {stflag}")
    a("s_mov_b64 exec, s[80:81]")

Z, YA, YB, G = 128, 146, 164, 182
XR = 240
def pr(r): return f"v[{r}:{r+1}]"

def p2_x_issue(a, flag):
    srd(a, SX, 14, 15, TENS)
    a("v_and_b32 v250, 63, v0")
    a(f"s_lshl_b32 s84, s2, 3")
    a(f"s_lshl_b32 s85, s{sW}, 1")
    a("s_add_u32 s84, s84, s85")
    a(f"s_mul_i32 s84, s84, {ROWB}")
    a("v_lshlrev_b32 v251, 4, v250")
    a("v_lshlrev_b32 v252, 1, v250")
    a(f"buffer_load_dwordx4 v[240:243], v251, s[{SX}:{SX+3}], s84 offen {flag}")
    a(f"buffer_load_dwordx4 v[244:247], v251, s[{SX}:{SX+3}], s84 offen offset:{ROWB} {flag}")
    a(f"buffer_load_ushort v248, v252, s[{SX}:{SX+3}], s84 offen offset:1024 {flag}")
    a(f"buffer_load_ushort v249, v252, s[{SX}:{SX+3}], s84 offen offset:{1024+ROWB} {flag}")
    return 4

SS, QQ, RS, ND, C0 = 200, 202, 204, 206, 208
def p2_sums(a):
    a(f"v_pk_add_f32 {pr(SS)}, {pr(Z)}, {pr(Z+2)}")
    a(f"v_pk_mul_f32 {pr(QQ)}, {pr(Z)}, {pr(Z)}")
    a(f"v_pk_fma_f32 {pr(QQ)}, {pr(Z+2)}, {pr(Z+2)}, {pr(QQ)}")
    for e in range(2, 9):
        a(f"v_pk_add_f32 {pr(SS)}, {pr(SS)}, {pr(Z+2*e)}")
        a(f"v_pk_fma_f32 {pr(QQ)}, {pr(Z+2*e)}, {pr(Z+2*e)}, {pr(QQ)}")

def p2_chain(a, fill):
    fill = list(fill)
    def gap(n):
        for _ in range(n):
            if fill: a(fill.pop(0))
            else: a("s_nop 0")
    T, Uq = 210, 211
    gap(2)
    a(f"v_permlane32_swap_b32 v{SS}, v{SS+1}")
    a(f"v_permlane32_swap_b32 v{QQ}, v{QQ+1}")
    a(f"v_add_f32 v{SS}, v{SS}, v{SS+1}")
    a(f"v_add_f32 v{QQ}, v{QQ}, v{QQ+1}")
    gap(2)
    a(f"v_permlane16_swap_b32 v{SS}, v{QQ}")
    a(f"v_add_f32 v{T}, v{SS}, v{QQ}")
    for m in ("quad_perm:[1,0,3,2]", "quad_perm:[2,3,0,1]", "row_half_mirror", "row_mirror"):
        gap(2)
        a(f"v_add_f32_dpp v{T}, v{T}, v{T} {m} row_mask:0xf bank_mask:0xf")
    a(f"v_mov_b32 v{Uq}, v{T}")
    gap(2)
    a(f"v_permlane16_swap_b32 v{T}, v{Uq}")
    a(f"v_mul_f32 v{T}, s86, v{T}")
    a(f"v_mul_f32 v{Uq}, s86, v{Uq}")
    a(f"v_fma_f32 v{Uq}, -v{T}, v{T}, v{Uq}")
    a(f"v_max_f32 v{Uq}, 0, v{Uq}")
    a(f"v_add_f32 v{Uq}, s87, v{Uq}")
    a(f"v_rsq_f32 v{RS}, v{Uq}")
    gap(1)
    a(f"v_mul_f32 v{ND}, v{RS}, v{T}")
    a(f"v_mov_b32 v{RS+1}, v{RS}")
    a(f"v_mov_b32 v{ND+1}, v{ND}")
    gap(2)
    a(f"v_permlane32_swap_b32 v{RS}, v{RS+1}")
    a(f"v_permlane32_swap_b32 v{ND}, v{ND+1}")
    while fill: a(fill.pop(0))

def p2_first(a, later):
    a("s_mov_b32 s86, 0x3ae38e39")
    a("s_mov_b32 s87, 0x3727c5ac")
    a(f"s_waitcnt vmcnt({min(63, later)})")
    for q in range(4):
        for row in range(2):
            a(f"v_lshlrev_b32 v{Z+4*q+row}, 16, v{XR+4*row+q}")
            a(f"v_and_b32 v{Z+4*q+2+row}, 0xffff0000, v{XR+4*row+q}")
    a(f"v_lshlrev_b32 v{Z+16}, 16, v248")
    a(f"v_lshlrev_b32 v{Z+17}, 16, v249")
    a(f"v_readfirstlane_b32 s88, v{Z}")
    a(f"v_readfirstlane_b32 s89, v{Z+1}")
    a("s_nop 1")
    a(f"v_mov_b32 v{C0}, s88")
    a(f"v_mov_b32 v{C0+1}, s89")
    for e in range(9):
        a(f"v_pk_add_f32 {pr(Z+2*e)}, {pr(Z+2*e)}, {pr(C0)} neg_lo:[0,1] neg_hi:[0,1]")
    p2_sums(a)
    p2_chain(a, [])

def p2_y_issue_dma(a, flag):
    srd(a, SY, 20, 21, Y_BYTES, Y_OFF)
    a("s_mul_i32 s90, s2, 18432")
    a(f"s_lshl_b32 s91, s{sW}, 12")
    a("s_add_u32 s92, s90, s91")
    a(f"s_add_u32 s93, s91, {Y_LDS}")
    a("s_mov_b32 m0, s93")
    a("s_nop 0")
    for q in range(4):
        a(f"buffer_load_dwordx4 v251, s[{SY}:{SY+3}], s92 offen offset:{1024*q} {flag} lds")
    a(f"s_lshl_b32 s91, s{sW}, 9")
    a("s_add_u32 s91, s91, 16384")
    a("s_add_u32 s92, s90, s91")
    a(f"s_add_u32 s93, s91, {Y_LDS}")
    a("s_mov_b32 m0, s93")
    a("s_mov_b32 exec_hi, 0")
    a(f"buffer_load_dwordx4 v251, s[{SY}:{SY+3}], s92 offen {flag} lds")
    a("s_mov_b64 exec, -1")

def p2_rest(a, stflag):
    a(f"s_lshr_b32 s90, s{sW}, 1")
    a("s_lshl_b32 s90, s90, 3")
    a(f"s_add_u32 s90, s90, {Y_LDS}")
    a("v_add_u32 v253, s90, v251")
    for b in range(2):
        for e in range(9):
            r = 56 + 2 * (9 * b + e)
            a(f"ds_read_b64 {pr(r)}, v253 offset:{9216*b + 1024*e}")
    a(f"s_and_b32 s90, s{sW}, 1")
    a("s_mul_i32 s90, s90, 0x04040000")
    a("s_add_u32 s91, s90, 0x03020c0c")
    a("s_add_u32 s90, s90, 0x01000c0c")
    def unp(b, e):
        r = 56 + 2 * (9 * b + e); y = (YA if b == 0 else YB) + 2 * e
        return [f"v_perm_b32 v{y}, v{r+1}, v{r}, s90", f"v_perm_b32 v{y+1}, v{r+1}, v{r}, s91"]
    a("s_waitcnt lgkmcnt(9)")
    for e in range(9):
        for s_ in unp(0, e): a(s_)
    for e in range(9):
        a(f"v_pk_mul_f32 {pr(G+2*e)}, {pr(Z+2*e)}, {pr(YA+2*e)}")
    def post(Y, src=None):
        for e in range(9):
            a(f"v_pk_fma_f32 {pr(Z+2*e)}, {pr(G+2*e)}, {pr(RS)}, {pr(Z+2*e)}")
        for e in range(9):
            a(f"v_pk_fma_f32 {pr(Z+2*e)}, {pr(Y+2*e)}, {pr(ND)}, {pr(Z+2*e)} neg_lo:[0,1,0] neg_hi:[0,1,0]")
    post(YA)
    a("s_waitcnt lgkmcnt(0)")
    for e in range(9):
        for s_ in unp(1, e): a(s_)
    for layer, Y in ((2, YB), (3, YA), (4, YB)):
        p2_sums(a)
        fill = [f"v_pk_mul_f32 {pr(G+2*e)}, {pr(Z+2*e)}, {pr(Y+2*e)}" for e in range(9)]
        if layer == 4:
            fill += [f"v_pk_add_f32 {pr(Z+2*e)}, {pr(Z+2*e)}, {pr(C0)}" for e in range(9)]
        p2_chain(a, fill)
        a("s_nop 0")
        post(Y)
    srd(a, SO, 16, 17, TENS)
    for row in range(2):
        for q in range(4):
            a(f"v_cvt_pk_bf16_f32 v{XR+4*row+q}, v{Z+4*q+row}, v{Z+4*q+2+row}")
    a(f"v_cvt_pk_bf16_f32 v248, v{Z+16}, v{Z+17}")
    a(f"buffer_store_dwordx4 v[240:243], v251, s[{SO}:{SO+3}], s84 offen {stflag}")
    a(f"buffer_store_dwordx4 v[244:247], v251, s[{SO}:{SO+3}], s84 offen offset:{ROWB} {stflag}")
    a(f"buffer_store_short v248, v252, s[{SO}:{SO+3}], s84 offen offset:1024 {stflag}")
    a(f"buffer_store_short_d16_hi v248, v252, s[{SO}:{SO+3}], s84 offen offset:{1024+ROWB} {stflag}")

def kernel(name, body, vgpr, accum):
    return f""".text
.globl {name}
.p2align 8
.type {name},@function
{name}:
{body}{name}_end:
    s_endpgm
.section .rodata,"a"
.p2align 6
.amdhsa_kernel {name}
  .amdhsa_next_free_vgpr {vgpr}
  .amdhsa_next_free_sgpr 102
  .amdhsa_accum_offset {accum}
  .amdhsa_group_segment_fixed_size 0
  .amdhsa_kernarg_size 120
  .amdhsa_user_sgpr_count 2
  .amdhsa_user_sgpr_kernarg_segment_ptr 1
  .amdhsa_system_sgpr_workgroup_id_x 1
.end_amdhsa_kernel
"""

def header(launches):
    hdr = [l for l in open(REF).read().split("\n") if l.startswith(";") and "@launch" not in l]
    return "\n".join(hdr) + "\n" + "\n".join(launches) + '\n.amdgcn_target "amdgcn-amd-amdhsa--gfx950"\n'

def gen_3k():
    out = header(["; @launch kernel=p0_kernel grid=(256,1,1) block=(192,1,1) lds=0",
                  f"; @launch kernel=p1_kernel grid=(256,1,1) block=(256,1,1) lds={LDS_P1}",
                  "; @launch kernel=p2_kernel grid=(256,1,1) block=(256,1,1) lds=18432"])
    a = A(); prologue(a, "p0_kernel_end"); p0_issue(a, "nt"); p0_compute(a, 0, "")
    out += kernel("p0_kernel", a.text(), 256, 256)
    a = A(); prologue(a, "p1_kernel_end"); p1_ids(a)
    n = p1_h_issue(a, "nt"); n2 = p1_u_issue_dma(a, "")
    p1_prep(a, n - 1 + n2)
    a(f"s_waitcnt vmcnt({4 + n2}) lgkmcnt(0)")
    p1_aload(a)
    a("s_waitcnt vmcnt(0) lgkmcnt(0)")
    a("s_barrier")
    p1_main(a, "p1", "")
    out += kernel("p1_kernel", a.text(), 512, 256)
    a = A(); prologue(a, "p2_kernel_end")
    p2_x_issue(a, "nt"); p2_y_issue_dma(a, "")
    p2_first(a, 5)
    a("s_waitcnt vmcnt(0)")
    a("s_barrier")
    p2_rest(a, "")
    out += kernel("p2_kernel", a.text(), 256, 256)
    return out

if __name__ == "__main__":
    mode = sys.argv[1]; path = sys.argv[2]
    open(path, "w").write({"3k": gen_3k}[mode]())
```

```python
import sys
NAME = "interleave_layers__ssm_conv_h3__ssm_conv_h3__prompt"
REF = f"cdna_kernels/{NAME}.s.ref"
OPT = {}
STAMPS = False

S, D = 2048, 576
ROWB = D * 2
TENS = S * ROWB
U_OFF = 0;            U_BYTES = 2 * D * 4096
YM_OFF = U_BYTES;     YM_BYTES = 256 * 16384
YE_OFF = YM_BYTES;    YE_BYTES = 64 * 8192
Y_BYTES = YM_BYTES + YE_BYTES
F_OFF = YM_OFF + Y_BYTES
F2 = 16384; EP = 32768; F_BYTES = 32768 + 64
ST_OFF = 0xA00000
CS = 4160; HB = 4 * CS
US = 4608; U_BASE = 5 * HB
LDS_TOT = U_BASE + 5 * US
Y_LDS = 0; YR = 1040; YBR = 9 * YR
T_LDS = 20480; TR = 144
E_LDS = 40960

class A:
    def __init__(self): self.l = []
    def __call__(self, s): self.l.append("    " + s)
    def label(self, s): self.l.append(s + ":")
    def text(self): return "\n".join(self.l) + "\n"

def srd(a, d, lo, hi, size, add=None):
    if add:
        a(f"s_add_u32 s{d}, s{lo}, {add}")
        a(f"s_addc_u32 s{d+1}, s{hi}, 0")
    else:
        a(f"s_mov_b32 s{d}, s{lo}")
        a(f"s_mov_b32 s{d+1}, s{hi}")
    a(f"s_mov_b32 s{d+2}, {size}")
    a(f"s_mov_b32 s{d+3}, 0x00020000")

SK, SV, SSH, SH, SU, SY, SX, SO, SF = 24, 28, 32, 36, 40, 44, 48, 52, 56
sX, sQ, sB, sP, sW = 60, 61, 62, 63, 64
sB0, sCF, sRB = 69, 70, 71
sCH, sCE, sJE, sHB, sUB, sDM, sDE, sFI, sHF, sTAG = 72, 73, 74, 75, 76, 77, 78, 79, 82, 83
vLANE, vL16, vL2 = 250, 251, 252

def stamp(a, idx, cyc=False):
    if not STAMPS: return
    a(("s_memtime" if cyc else "s_memrealtime") + " s[94:95]")
    a("s_waitcnt lgkmcnt(0)")
    a(f"v_writelane_b32 v255, s94, {idx}")
def stamp_flush(a):
    if not STAMPS: return
    srd(a, 96, 20, 21, 0x100000, ST_OFF)
    a("s_lshl_b32 s94, s2, 2")
    a(f"s_add_u32 s94, s94, s{sW}")
    a("s_lshl_b32 s94, s94, 7")
    a(f"v_lshlrev_b32 v254, 2, v{vLANE}")
    a("s_mov_b32 exec_hi, 0")
    a("buffer_store_dword v255, v254, s[96:99], s94 offen")

def vr(r, n=4): return f"v[{r}:{r+n-1}]"
def ar(r, n=4): return f"a[{r}:{r+n-1}]"
def pr(r): return f"v[{r}:{r+1}]"
def sq(r): return f"s[{r}:{r+3}]"

def prologue(a, end):
    a("s_cmp_ge_u32 s2, 256")
    a(f"s_cbranch_scc1 {end}")
    a(f"s_lshr_b32 s{sB0}, s2, 7")
    a(f"s_mul_i32 s3, s{sB0}, 48")
    a("s_add_u32 s22, s0, s3")
    a("s_addc_u32 s23, s1, 0")
    a("s_load_dwordx4 s[4:7], s[22:23], 8")
    a("s_load_dwordx2 s[8:9], s[22:23], 24")
    a(f"s_and_b32 s{sX}, s2, 7")
    a(f"s_lshr_b32 s{sQ}, s2, 3")
    a(f"s_lshr_b32 s{sB}, s{sX}, 2")
    a(f"s_mul_i32 s3, s{sB}, 48")
    a("s_add_u32 s22, s0, s3")
    a("s_addc_u32 s23, s1, 0")
    a("s_load_dwordx4 s[10:13], s[22:23], 32") if False else None
    a("s_load_dwordx2 s[10:11], s[22:23], 32")
    a("s_load_dwordx2 s[12:13], s[22:23], 40")
    a("s_load_dwordx2 s[14:15], s[0:1], 0")
    a("s_load_dwordx4 s[16:19], s[0:1], 96")
    a("s_load_dwordx2 s[20:21], s[0:1], 112")
    a("v_lshrrev_b32 v1, 6, v0")
    a(f"v_and_b32 v{vLANE}, 63, v0")
    a(f"v_readfirstlane_b32 s{sW}, v1")
    a(f"v_lshlrev_b32 v{vL16}, 4, v{vLANE}")
    a(f"v_lshlrev_b32 v{vL2}, 1, v{vLANE}")
    a(f"s_and_b32 s{sCF}, s{sQ}, 1")
    a(f"s_lshr_b32 s{sRB}, s{sQ}, 1")
    a(f"s_and_b32 s{sRB}, s{sRB}, 7")
    a(f"s_lshl_b32 s3, s{sX}, 3")
    a(f"s_add_u32 s{sRB}, s{sRB}, s3")
    a(f"s_lshl_b32 s{sFI}, s{sB0}, 7")
    a(f"s_lshl_b32 s3, s{sCF}, 6")
    a(f"s_add_u32 s{sFI}, s{sFI}, s3")
    a(f"s_add_u32 s{sFI}, s{sFI}, s{sRB}")
    a(f"s_and_b32 s{sP}, s{sX}, 3")
    a(f"s_lshl_b32 s{sP}, s{sP}, 4")
    a(f"s_lshr_b32 s3, s{sQ}, 1")
    a(f"s_add_u32 s{sP}, s{sP}, s3")
    a(f"s_and_b32 s{sHF}, s{sQ}, 1")
    a(f"s_lshl_b32 s{sCH}, s{sP}, 3")
    a(f"s_lshl_b32 s3, s{sHF}, 2")
    a(f"s_add_u32 s{sCH}, s{sCH}, s3")
    a(f"s_add_u32 s{sCH}, s{sCH}, s{sW}")
    a(f"s_add_u32 s{sCE}, s{sP}, 512")
    a(f"s_lshl_b32 s{sJE}, s{sW}, 1")
    a(f"s_add_u32 s{sJE}, s{sJE}, s{sHF}")
    a(f"s_mul_i32 s{sHB}, s{sW}, {HB}")
    a(f"s_mul_i32 s{sUB}, s{sW}, {US}")
    a(f"s_add_u32 s{sUB}, s{sUB}, {U_BASE}")

def kreg(j): return 8 + 4 * j
def vreg(t): return 52 + 4 * t
def p0_addr(a):
    a("v_lshrrev_b32 v5, 2, v0")
    a("v_and_b32 v6, 3, v0")
    a(f"s_mul_i32 s65, s{sRB}, {32*ROWB}")
    a(f"s_mul_i32 s66, s{sCF}, 576")
    a("s_add_u32 s65, s65, s66")
    a(f"v_mul_u32_u24 v1, {8*ROWB}, v6")
    a("v_mul_u32_u24 v7, 12, v5")
    a("v_add3_u32 v1, v1, v7, s65")
    a(f"v_add_u32 v2, {4*ROWB}, v1")
    a(f"v_subrev_u32 v3, {3*ROWB}, v1")
    a(f"s_mul_i32 s66, s{sCF}, {288*8}")
    a("v_mul_u32_u24 v7, 48, v5")
    a("v_add_u32 v7, s66, v7")
    a(f"s_mul_i32 s65, s{sB0}, 576")
    a(f"s_mul_i32 s66, s{sCF}, 288")
    a("s_add_u32 s65, s65, s66")
    a("s_lshl_b32 s65, s65, 12")
    a("s_add_u32 s65, s65, 4080")
    a(f"s_lshl_b32 s66, s{sRB}, 6")
    a("s_sub_u32 s65, s65, s66")
    a(f"v_mul_u32_u24 v4, {6*4096}, v5")
    a("v_lshlrev_b32 v6, 4, v6")
    a("v_sub_u32 v4, v4, v6")
    a("v_add_u32 v4, s65, v4")

def p0_issue(a, fl):
    srd(a, SK, 4, 5, TENS)
    srd(a, SV, 6, 7, TENS)
    srd(a, SSH, 8, 9, D * 8)
    for j in range(3):
        a(f"buffer_load_dwordx3 v[{kreg(j)}:{kreg(j)+2}], v3, {sq(SK)}, 0 offen offset:{j*ROWB} {fl}")
    for t in range(8):
        base, off = ("v1", t * ROWB) if t < 4 else ("v2", (t - 4) * ROWB)
        a(f"buffer_load_dwordx3 v[{kreg(t+3)}:{kreg(t+3)+2}], {base}, {sq(SK)}, 0 offen offset:{off} {fl}")
        a(f"buffer_load_dwordx3 v[{vreg(t)}:{vreg(t)+2}], {base}, {sq(SV)}, 0 offen offset:{off} {fl}")
        if t == 0:
            for q in range(3):
                a(f"buffer_load_dwordx4 v[{84+4*q}:{87+4*q}], v7, {sq(SSH)}, 0 offen offset:{16*q}")

def unpack(a, dlo, dhi, src):
    a(f"v_lshlrev_b32 v{dlo}, 16, v{src}")
    a(f"v_and_b32 v{dhi}, 0xffff0000, v{src}")

def p0_compute(a, later, stflag):
    def W(p, j): return 96 + 8 * p + 2 * j
    def Kf(j, c): return 120 + 6 * j + c
    def U(t, c): return 186 + 6 * t + c
    a(f"s_waitcnt vmcnt({later + 19})")
    for j in range(3):
        for p in range(3):
            unpack(a, Kf(j, 2*p), Kf(j, 2*p+1), kreg(j) + p)
    a(f"s_waitcnt vmcnt({later + 14})")
    stamp(a, 16)
    for c in range(6):
        p, h = c >> 1, c & 1
        a(f"v_lshlrev_b32 v{W(p,0)+h}, 16, v{84+2*c}")
        a(f"v_and_b32 v{W(p,1)+h}, 0xffff0000, v{84+2*c}")
        a(f"v_lshlrev_b32 v{W(p,2)+h}, 16, v{85+2*c}")
        a(f"v_and_b32 v{W(p,3)+h}, 0xffff0000, v{85+2*c}")
    for t in range(8):
        if t: a(f"s_waitcnt vmcnt({later + 14 - 2*t})")
        if t == 7: stamp(a, 17)
        for p in range(3):
            unpack(a, Kf(t+3, 2*p), Kf(t+3, 2*p+1), kreg(t+3) + p)
            unpack(a, 234 + 2*p, 235 + 2*p, vreg(t) + p)
        for p in range(3):
            u = U(t, 2*p)
            a(f"v_pk_mul_f32 {pr(u)}, {pr(Kf(t,2*p))}, {pr(W(p,3))}")
        for jj in (2, 1, 0):
            for p in range(3):
                u = U(t, 2*p); k = Kf(t + 3 - jj, 2*p)
                a(f"v_pk_fma_f32 {pr(u)}, {pr(k)}, {pr(W(p,jj))}, {pr(u)}")
        for p in range(3):
            u = U(t, 2*p)
            a(f"v_pk_mul_f32 {pr(u)}, {pr(u)}, {pr(234+2*p)}")
    for c in range(1, 6):
        a(f"s_mov_b32 s{64+c}, {4096*c}")
    for c in range(6):
        o = 8 + 4 * c
        for q in range(4):
            a(f"v_cvt_pk_bf16_f32 v{o+q}, v{U(7-2*q, c)}, v{U(6-2*q, c)}")
        so = "0" if c == 0 else f"s{64+c}"
        a(f"buffer_store_dwordx4 {vr(o)}, v4, {sq(SU)}, {so} offen {stflag}")

ACC, ACCE, PD, PDE, FB = 8, 40, 44, 48, 56
def h_dma(a, ch, ldsbase_s, ldsconst, flag):
    a(f"s_lshl_b32 s3, s{ch}, 12")
    if ldsbase_s is not None:
        a(f"s_add_u32 s90, s{ldsbase_s}, {ldsconst + 3*CS + 32}")
        a("s_mov_b32 m0, s90")
    else:
        a(f"s_mov_b32 m0, {ldsconst + 3*CS + 32}")
    a("s_nop 0")
    for q in range(4):
        a(f"buffer_load_dwordx4 v{vL16}, {sq(SH)}, s3 offen offset:{1024*q} {flag} lds")

def h_copies(a, vR):
    Dq = lambda q: 56 + 8 * q
    for q in range(4):
        a(f"ds_read_b128 {vr(Dq(q))}, v{vR} offset:{3*CS + 32 + 1024*q}")
        a(f"ds_read_b64 {pr(Dq(q)+4)}, v{vR} offset:{3*CS + 48 + 1024*q}")
    a(f"v_sub_u32 v120, v{vR}, v{vL16}")
    a(f"ds_read_b64 v[122:123], v120 offset:{3*CS + 32}")
    for q in range(4):
        d = Dq(q); o = 16 * (q & 1); T0, T1, T2, O4 = 88 + o, 92 + o, 96 + o, 100 + o
        a(f"s_waitcnt lgkmcnt({7 + q})")
        for i in range(4):
            a(f"v_alignbit_b32 v{T0+i}, v{d+i+1}, v{d+i}, 16")
        a(f"v_alignbit_b32 v{O4}, v{d+5}, v{d+4}, 16")
        a(f"v_pk_mov_b32 {pr(T1)}, {pr(d)}, {pr(d+2)} op_sel:[1,0]")
        a(f"v_pk_mov_b32 {pr(T1+2)}, {pr(d+2)}, {pr(d+4)} op_sel:[1,0]")
        a(f"v_pk_mov_b32 {pr(T2)}, {pr(T0)}, {pr(T0+2)} op_sel:[1,0]")
        a(f"v_pk_mov_b32 {pr(T2+2)}, {pr(T0+2)}, {pr(O4)} op_sel:[1,0]")
        a(f"ds_write_b128 v{vR}, {vr(T0)} offset:{32 + 1024*q}")
        a(f"ds_write_b128 v{vR}, {vr(T1)} offset:{CS + 32 + 1024*q}")
        a(f"ds_write_b128 v{vR}, {vr(T2)} offset:{2*CS + 32 + 1024*q}")
    a(f"v_sub_u32 v121, 3, v{vLANE}")
    a("v_lshlrev_b32 v121, 4, v121")
    a("s_waitcnt lgkmcnt(12)")
    a("v_lshlrev_b64 v[122:123], v121, v[122:123]")
    a(f"v_cmp_eq_u32 vcc, 3, v{vLANE}")
    a(f"v_mul_u32_u24 v121, {CS}, v{vLANE}")
    a("v_add_u32 v118, v121, v120")
    a("v_cndmask_b32 v122, v122, 0, vcc")
    a("v_cndmask_b32 v123, v123, 0, vcc")
    a("v_mov_b32 v120, 0")
    a("v_mov_b32 v121, 0")
    a("s_mov_b64 exec, 15")
    a("ds_write_b128 v118, v[124:127]")
    a("ds_write_b128 v118, v[120:123] offset:16")
    a("s_mov_b64 exec, -1")

def p1_prep(a):
    a(f"v_add_u32 v54, s{sUB}, v{vL16}")
    a(f"s_lshl_b32 s3, s{sW}, 7")
    a(f"s_add_u32 s3, s3, {U_BASE + 4*US - 512}")
    a(f"v_add_u32 v55, s3, v{vL16}")
    a(f"v_cmp_gt_u32 vcc, 32, v{vLANE}")
    a("s_mov_b32 exec_hi, 0xff")
    a("s_nop 0")
    a("v_cndmask_b32 v54, v55, v54, vcc")
    a("ds_write_b128 v54, v[124:127] offset:4096")
    a("s_mov_b64 exec, -1")
    for ch, sv in ((sCH, sDM), (sCE, sDE)):
        a(f"s_and_b32 s3, s{ch}, 1")
        a("s_lshl_b32 s3, s3, 4")
        a(f"s_lshr_b32 s{sv}, s{sv}, s3")
        a(f"s_and_b32 s{sv}, s{sv}, 0xffff")
    a(f"v_and_b32 v1, 15, v{vLANE}")
    a(f"v_lshrrev_b32 v2, 4, v{vLANE}")
    a("v_lshlrev_b32 v3, 3, v2")
    a("v_add_u32 v3, v3, v1")
    a("v_sub_u32 v3, 15, v3")
    a("v_and_b32 v4, 1, v3")
    a("v_lshlrev_b32 v4, 4, v4")
    a("v_ashrrev_i32 v3, 1, v3")
    a(f"v_lshlrev_b32 v5, v4, s{sDM}")
    a(f"v_lshlrev_b32 v6, v4, s{sDE}")
    for q in range(4):
        a(f"v_cmp_eq_u32 vcc, {q}, v3")
        a("s_nop 1")
        a(f"v_cndmask_b32 v{PD+q}, 0, v5, vcc")
        a(f"v_cndmask_b32 v{PDE+q}, 0, v6, vcc")
    a("v_and_b32 v3, 3, v1")
    a("v_cmp_eq_u32 vcc, 3, v3")
    a(f"v_mul_u32_u24 v3, {CS}, v3")
    a("v_and_b32 v4, 12, v1")
    a("v_lshlrev_b32 v4, 1, v4")
    a("v_add_u32 v3, v3, v4")
    a("v_cndmask_b32 v4, 0, 8, vcc")
    a("v_add_u32 v3, v3, v4")
    a("v_lshl_add_u32 v3, v2, 4, v3")
    a(f"v_add_u32 v5, s{sHB}, v3")
    a(f"v_add_u32 v6, {4*HB}, v3")
    a("v_lshlrev_b32 v3, 4, v2")
    a("v_lshlrev_b32 v4, 5, v1")
    a("v_sub_u32 v3, v3, v4")
    a("v_add_u32 v3, 480, v3")
    a(f"v_add_u32 v7, s{sUB}, v3")
    a(f"s_sub_u32 s3, 7, s{sJE}")
    a("s_lshl_b32 s3, s3, 9")
    a(f"s_add_u32 s3, s3, {U_BASE + 4*US}")
    a("v_add_u32 v54, s3, v3")
    a(f"v_mul_u32_u24 v52, {TR}, v1")
    a("v_lshrrev_b32 v3, 1, v2")
    a("v_lshl_add_u32 v52, v3, 6, v52")
    a("v_and_b32 v3, 1, v2")
    a("v_lshl_add_u32 v52, v3, 3, v52")
    a(f"s_lshl_b32 s3, s{sW}, 4")
    a(f"s_add_u32 s3, s3, {T_LDS}")
    a("v_add_u32 v52, s3, v52")
    a(f"v_lshrrev_b32 v3, 3, v{vLANE}")
    a(f"v_mul_u32_u24 v53, {TR}, v3")
    a(f"v_and_b32 v3, 7, v{vLANE}")
    a("v_lshl_add_u32 v53, v3, 4, v53")
    a(f"s_mul_i32 s3, s{sW}, {32*TR}")
    a(f"s_add_u32 s3, s3, {T_LDS}")
    a("v_add_u32 v53, s3, v53")
    a(f"v_lshrrev_b32 v4, 2, v{vLANE}")
    a(f"v_and_b32 v55, 3, v{vLANE}")
    a("v_lshlrev_b32 v55, 4, v55")
    a("v_lshl_add_u32 v3, v4, 14, v55")
    a("v_lshl_add_u32 v4, v4, 13, v55")
    a(f"s_lshl_b32 s80, s{sW}, 20")
    a(f"s_lshl_b32 s3, s{sB}, 13")
    a("s_add_u32 s80, s80, s3")
    a(f"s_sub_u32 s3, s{sCH}, s{sW}")
    a("s_lshl_b32 s3, s3, 4")
    a("s_add_u32 s80, s80, s3")
    a(f"s_lshl_b32 s81, s{sJE}, 16")
    a(f"s_lshl_b32 s3, s{sB}, 12")
    a("s_add_u32 s81, s81, s3")
    a(f"s_lshl_b32 s3, s{sP}, 6")
    a("s_add_u32 s81, s81, s3")
    a(f"s_add_u32 s81, s81, {YE_OFF}")
    a("v_lshlrev_b32 v55, 5, v1")
    a("v_lshl_add_u32 v55, v2, 3, v55")
    a(f"s_lshl_b32 s3, s{sW}, 9")
    a(f"s_add_u32 s93, s3, {E_LDS}")
    a("v_add_u32 v55, s93, v55")
    a(f"v_add_u32 v253, s93, v{vL16}")

def p1_aload(a):
    for ks in range(64):
        a(f"ds_read_b64 a[{4*ks}:{4*ks+1}], v5 offset:{64*ks}")
        a(f"ds_read_b64 a[{4*ks+2}:{4*ks+3}], v5 offset:{64*ks+8}")

def u_load(a):
    a(f"s_mul_i32 s3, s{sB}, 576")
    a(f"s_add_u32 s90, s3, s{sCH}")
    a("s_lshl_b32 s90, s90, 12")
    a(f"s_add_u32 s91, s3, s{sCE}")
    a("s_lshl_b32 s91, s91, 12")
    a(f"s_lshl_b32 s3, s{sW}, 10")
    a("s_add_u32 s91, s91, s3")
    a(f"s_add_u32 s3, s3, {U_BASE + 4*US}")
def u_load_go(a):
    if OPT.get("udma", "0") == "1":
        a(f"s_mov_b32 m0, s{sUB}")
        a("s_nop 0")
        for q in range(4):
            a(f"buffer_load_dwordx4 v{vL16}, {sq(SU)}, s90 offen offset:{1024*q} sc1 lds")
        a("s_mov_b32 m0, s3")
        a("s_nop 0")
        a(f"buffer_load_dwordx4 v{vL16}, {sq(SU)}, s91 offen sc1 lds")
        a("s_waitcnt vmcnt(0)")
        return
    for q in range(4):
        a(f"buffer_load_dwordx4 {vr(88+4*q)}, v{vL16}, {sq(SU)}, s90 offen offset:{1024*q} sc1")
    a(f"buffer_load_dwordx4 v[104:107], v{vL16}, {sq(SU)}, s91 offen sc1")
    a(f"v_add_u32 v108, s{sUB}, v{vL16}")
    a(f"v_add_u32 v109, s3, v{vL16}")
    for q in range(4):
        a(f"s_waitcnt vmcnt({4-q})")
        a(f"ds_write_b128 v108, {vr(88+4*q)} offset:{1024*q}")
    a("s_waitcnt vmcnt(0)")
    a("ds_write_b128 v109, v[104:107]")
    a("s_waitcnt lgkmcnt(0)")

def F(bank, c): return FB + 32 * bank + 4 * c
def p1_main(a, stflag):
    mf = "v_mfma_f32_16x16x32_bf16"
    for c in range(8):
        a(f"ds_read_b128 {vr(F(0,c))}, v7 offset:{512*(7-c)}")
    for r in range(8):
        bank = r & 1
        fill = []
        if r < 7:
            for c in range(8):
                fill.append(f"ds_read_b128 {vr(F(bank^1,c))}, v7 offset:{64*(r+1) + 512*(7-c)}")
        else:
            for rr in range(8):
                fill.append(f"ds_read_b128 {vr(F(0,rr))}, v54 offset:{64*rr}")
        if r > 0:
            for aa in range(8):
                ks = 8 * aa + r - 1
                fill.append(f"ds_read_b64 a[{4*ks}:{4*ks+1}], v6 offset:{64*ks}")
                fill.append(f"ds_read_b64 a[{4*ks+2}:{4*ks+3}], v6 offset:{64*ks+8}")
        a("s_waitcnt lgkmcnt(0)")
        for c in range(8):
            for j in range(c, 8):
                if r == 0 and j == c:
                    a(f"{mf} {vr(ACC+4*j)}, {vr(PD)}, {vr(F(bank,c))}, " + ("0" if c == 0 else vr(ACC+4*j)))
                ks = 8 * (j - c) + r
                first = (r == 0 and c == 0 and j > 0)
                a(f"{mf} {vr(ACC+4*j)}, {ar(4*ks)}, {vr(F(bank,c))}, " + ("0" if first else vr(ACC+4*j)))
                if fill: a(fill.pop(0))
        assert not fill
    stamp(a, 7); stamp(a, 25, True)
    for aa in range(8):
        ks = 8 * aa + 7
        a(f"ds_read_b64 a[{4*ks}:{4*ks+1}], v6 offset:{64*ks}")
        a(f"ds_read_b64 a[{4*ks+2}:{4*ks+3}], v6 offset:{64*ks+8}")
    E = 88
    for j in range(8):
        a(f"v_cvt_pk_bf16_f32 v{E+2*j}, v{ACC+4*j}, v{ACC+4*j+1}")
        a(f"v_cvt_pk_bf16_f32 v{E+2*j+1}, v{ACC+4*j+2}, v{ACC+4*j+3}")
        a(f"ds_write_b64 v52, {pr(E+2*j)} offset:{16*TR*j}")
    a("s_waitcnt lgkmcnt(0)")
    a("s_barrier")
    for q in range(4):
        a(f"ds_read_b128 {vr(104+4*q)}, v53 offset:{8*TR*q}")
    def FE(bank, rr): return (FB + 4 * rr) if bank == 0 else (ACC + 4 * rr)
    pend = []
    for q in range(4):
        pend.append([f"s_add_u32 s3, s80, {q*16*16384}",
                     f"buffer_store_dwordx4 {vr(104+4*q)}, v3, {sq(SY)}, s3 offen {stflag}"])
    stamp(a, 8); stamp(a, 26, True)
    for aa in range(8):
        bank = aa & 1
        for rr in range(8):
            if aa == 0 and rr == 0:
                a(f"{mf} {vr(ACCE)}, {vr(PDE)}, {vr(FE(0,0))}, 0")
            a(f"{mf} {vr(ACCE)}, {ar(4*(8*aa+rr))}, {vr(FE(bank,rr))}, {vr(ACCE)}")
            if aa < 7:
                a(f"ds_read_b128 {vr(FE(bank^1,rr))}, v54 offset:{64*rr + 512*(aa+1)}")
            if aa == 0 and rr >= 3 and pend:
                q = 4 - len(pend)
                a(f"s_waitcnt lgkmcnt({rr + 1 + 3 - q})")
                for s_ in pend.pop(0): a(s_)
            if aa > 0 and rr < 7:
                a(f"s_waitcnt lgkmcnt({7 if aa < 7 else 6 - rr})")
        if aa < 7:
            a(f"s_cmp_eq_u32 s{sJE}, {aa}")
            a("s_cbranch_scc1 exdone")
            a("s_waitcnt lgkmcnt(7)")
    a.label("exdone")
    a("s_nop 7")
    a(f"v_cvt_pk_bf16_f32 v88, v{ACCE}, v{ACCE+1}")
    a(f"v_cvt_pk_bf16_f32 v89, v{ACCE+2}, v{ACCE+3}")
    a("ds_write_b64 v55, v[88:89]")
    a("s_mov_b32 exec_hi, 0")
    a("ds_read_b128 v[92:95], v253")
    a("s_waitcnt lgkmcnt(0)")
    a(f"buffer_store_dwordx4 v[92:95], v4, {sq(SY)}, s81 offen {stflag}")
    a("s_mov_b64 exec, -1")

Z, YA, YB, G = 128, 146, 164, 182
XR = 240
SS, QQ, RS, ND, C0 = 200, 202, 204, 206, 208
def p2_x_issue(a, flag):
    srd(a, SX, 14, 15, TENS)
    a("s_lshl_b32 s84, s2, 3")
    a(f"s_lshl_b32 s3, s{sW}, 1")
    a("s_add_u32 s84, s84, s3")
    a(f"s_mul_i32 s84, s84, {ROWB}")
    a(f"buffer_load_dwordx4 v[240:243], v{vL16}, {sq(SX)}, s84 offen {flag}")
    a(f"buffer_load_dwordx4 v[244:247], v{vL16}, {sq(SX)}, s84 offen offset:{ROWB} {flag}")
    a(f"buffer_load_ushort v248, v{vL2}, {sq(SX)}, s84 offen offset:1024 {flag}")
    a(f"buffer_load_ushort v249, v{vL2}, {sq(SX)}, s84 offen offset:{1024+ROWB} {flag}")
    return 4

def p2_sums(a):
    a(f"v_pk_add_f32 {pr(SS)}, {pr(Z)}, {pr(Z+2)}")
    a(f"v_pk_mul_f32 {pr(QQ)}, {pr(Z)}, {pr(Z)}")
    a(f"v_pk_fma_f32 {pr(QQ)}, {pr(Z+2)}, {pr(Z+2)}, {pr(QQ)}")
    for e in range(2, 9):
        a(f"v_pk_add_f32 {pr(SS)}, {pr(SS)}, {pr(Z+2*e)}")
        a(f"v_pk_fma_f32 {pr(QQ)}, {pr(Z+2*e)}, {pr(Z+2*e)}, {pr(QQ)}")

def p2_chain(a, fill):
    fill = list(fill)
    def gap(n):
        for _ in range(n):
            if fill: a(fill.pop(0))
            else: a("s_nop 0")
    T, Uq = 210, 211
    gap(2)
    a(f"v_permlane32_swap_b32 v{SS}, v{SS+1}")
    a(f"v_permlane32_swap_b32 v{QQ}, v{QQ+1}")
    a(f"v_add_f32 v{SS}, v{SS}, v{SS+1}")
    a(f"v_add_f32 v{QQ}, v{QQ}, v{QQ+1}")
    gap(2)
    a(f"v_permlane16_swap_b32 v{SS}, v{QQ}")
    a(f"v_add_f32 v{T}, v{SS}, v{QQ}")
    for m in ("quad_perm:[1,0,3,2]", "quad_perm:[2,3,0,1]", "row_half_mirror", "row_mirror"):
        gap(2)
        a(f"v_add_f32_dpp v{T}, v{T}, v{T} {m} row_mask:0xf bank_mask:0xf")
    a(f"v_mov_b32 v{Uq}, v{T}")
    gap(2)
    a(f"v_permlane16_swap_b32 v{T}, v{Uq}")
    a(f"v_mul_f32 v{T}, s86, v{T}")
    a(f"v_mul_f32 v{Uq}, s86, v{Uq}")
    a(f"v_fma_f32 v{Uq}, -v{T}, v{T}, v{Uq}")
    a(f"v_max_f32 v{Uq}, 0, v{Uq}")
    a(f"v_add_f32 v{Uq}, s87, v{Uq}")
    a(f"v_rsq_f32 v{RS}, v{Uq}")
    gap(1)
    a(f"v_mul_f32 v{ND}, v{RS}, v{T}")
    a(f"v_mov_b32 v{RS+1}, v{RS}")
    a(f"v_mov_b32 v{ND+1}, v{ND}")
    gap(2)
    a(f"v_permlane32_swap_b32 v{RS}, v{RS+1}")
    a(f"v_permlane32_swap_b32 v{ND}, v{ND+1}")
    while fill: a(fill.pop(0))

def p2_first(a):
    a("s_mov_b32 s86, 0x3ae38e39")
    a("s_mov_b32 s87, 0x3727c5ac")
    for q in range(4):
        for row in range(2):
            a(f"v_lshlrev_b32 v{Z+4*q+row}, 16, v{XR+4*row+q}")
            a(f"v_and_b32 v{Z+4*q+2+row}, 0xffff0000, v{XR+4*row+q}")
    a(f"v_lshlrev_b32 v{Z+16}, 16, v248")
    a(f"v_lshlrev_b32 v{Z+17}, 16, v249")
    a(f"v_readfirstlane_b32 s88, v{Z}")
    a(f"v_readfirstlane_b32 s89, v{Z+1}")
    a("s_nop 1")
    a(f"v_mov_b32 v{C0}, s88")
    a(f"v_mov_b32 v{C0+1}, s89")
    for e in range(9):
        a(f"v_pk_add_f32 {pr(Z+2*e)}, {pr(Z+2*e)}, {pr(C0)} neg_lo:[0,1] neg_hi:[0,1]")
    p2_sums(a)
    p2_chain(a, [])
    a(f"v_and_b32 v212, 7, v{vLANE}")
    a(f"v_mul_u32_u24 v212, {YR}, v212")
    a(f"v_lshrrev_b32 v213, 3, v{vLANE}")
    a("v_lshl_add_u32 v212, v213, 4, v212")
    a(f"s_lshr_b32 s88, s{sW}, 1")
    a(f"s_mul_i32 s89, s88, {YBR}")
    a(f"s_and_b32 s3, s{sW}, 1")
    a("s_lshl_b32 s3, s3, 9")
    a("s_add_u32 s89, s89, s3")
    a(f"s_add_u32 s89, s89, {Y_LDS}")
    a("v_add_u32 v212, s89, v212")
    a(f"s_add_u32 s89, s89, {8*YR}")
    a(f"v_add_u32 v213, s89, v{vL16}")
    a(f"v_lshlrev_b32 v214, 6, v{vLANE}")
    a("s_lshl_b32 s88, s88, 3")
    a(f"s_add_u32 s88, s88, {Y_LDS}")
    a(f"v_add_u32 v215, s88, v{vL16}")
    a("s_lshl_b32 s88, s2, 14")
    a(f"s_lshl_b32 s3, s{sW}, 12")
    a("s_add_u32 s88, s88, s3")
    a("s_lshr_b32 s89, s2, 2")
    a("s_lshl_b32 s89, s89, 13")
    a(f"s_lshl_b32 s3, s{sW}, 11")
    a("s_add_u32 s89, s89, s3")
    a("s_and_b32 s3, s2, 3")
    a("s_lshl_b32 s3, s3, 4")
    a("s_add_u32 s89, s89, s3")
    a(f"s_add_u32 s89, s89, {YE_OFF}")

def y_load(a):
    a("s_mov_b32 exec_hi, 0")
    a(f"buffer_load_dwordx4 v[24:27], v214, {sq(SY)}, s89 offen sc1")
    a("s_mov_b64 exec, -1")
    for q in range(4):
        a(f"buffer_load_dwordx4 {vr(8+4*q)}, v{vL16}, {sq(SY)}, s88 offen offset:{1024*q} sc1")
    a("s_waitcnt vmcnt(4)")
    a("s_mov_b32 exec_hi, 0")
    a("ds_write_b128 v213, v[24:27]")
    a("s_mov_b64 exec, -1")
    for q in range(4):
        a(f"s_waitcnt vmcnt({3-q})")
        a(f"ds_write_b128 v212, {vr(8+4*q)} offset:{128*q}")
    a("s_waitcnt lgkmcnt(0)")

def p2_rest(a, stflag):
    for b in range(2):
        for e in range(9):
            r = 56 + 2 * (9 * b + e)
            a(f"ds_read_b64 {pr(r)}, v215 offset:{YBR*b + YR*e}")
    a(f"s_and_b32 s90, s{sW}, 1")
    a("s_mul_i32 s90, s90, 0x04040000")
    a("s_add_u32 s91, s90, 0x03020c0c")
    a("s_add_u32 s90, s90, 0x01000c0c")
    def unp(b, e):
        r = 56 + 2 * (9 * b + e); y = (YA if b == 0 else YB) + 2 * e
        return [f"v_perm_b32 v{y}, v{r+1}, v{r}, s90", f"v_perm_b32 v{y+1}, v{r+1}, v{r}, s91"]
    for e in range(9):
        a(f"s_waitcnt lgkmcnt({min(15, 17 - e)})")
        for s_ in unp(0, e): a(s_)
        a(f"v_pk_mul_f32 {pr(G+2*e)}, {pr(Z+2*e)}, {pr(YA+2*e)}")
    def post(Y):
        for e in range(9):
            a(f"v_pk_fma_f32 {pr(Z+2*e)}, {pr(G+2*e)}, {pr(RS)}, {pr(Z+2*e)}")
        for e in range(9):
            a(f"v_pk_fma_f32 {pr(Z+2*e)}, {pr(Y+2*e)}, {pr(ND)}, {pr(Z+2*e)} neg_lo:[0,1,0] neg_hi:[0,1,0]")
    post(YA)
    a("s_waitcnt lgkmcnt(0)")
    for layer, Y in ((2, YB), (3, YA), (4, YB)):
        p2_sums(a)
        fill = []
        for e in range(9):
            if layer == 2: fill += unp(1, e)
            fill.append(f"v_pk_mul_f32 {pr(G+2*e)}, {pr(Z+2*e)}, {pr(Y+2*e)}")
        if layer == 4:
            fill += [f"v_pk_add_f32 {pr(Z+2*e)}, {pr(Z+2*e)}, {pr(C0)}" for e in range(9)]
        p2_chain(a, fill)
        a("s_nop 0")
        post(Y)
    for row in range(2):
        for q in range(4):
            a(f"v_cvt_pk_bf16_f32 v{XR+4*row+q}, v{Z+4*q+row}, v{Z+4*q+2+row}")
    a(f"v_cvt_pk_bf16_f32 v248, v{Z+16}, v{Z+17}")
    a(f"buffer_store_dwordx4 v[240:243], v{vL16}, {sq(SO)}, s84 offen {stflag}")
    a(f"buffer_store_dwordx4 v[244:247], v{vL16}, {sq(SO)}, s84 offen offset:{ROWB} {stflag}")
    a(f"buffer_store_short v248, v{vL2}, {sq(SO)}, s84 offen offset:1024 {stflag}")
    a(f"buffer_store_short_d16_hi v248, v{vL2}, {sq(SO)}, s84 offen offset:{1024+ROWB} {stflag}")

def signal(a, off_s):
    a(f"v_mov_b32 v216, s{off_s}")
    a(f"v_mov_b32 v217, s{sTAG}")
    a("s_mov_b64 exec, 1")
    a(f"buffer_store_dword v217, v216, {sq(SF)}, 0 offen sc1")
    a("s_mov_b64 exec, -1")

def poll(a, tag, vaddr, nd, mask_hi):
    a("s_mov_b32 s92, 0x20000")
    if not mask_hi: a("s_mov_b32 exec_hi, 0")
    a.label(f"{tag}_poll")
    a(f"buffer_load_dwordx{nd} v[220:{220+nd-1}], v{vaddr}, {sq(SF)}, 0 offen sc1")
    a("s_waitcnt vmcnt(0)")
    for i in range(nd):
        a(f"v_xor_b32 v{220+i}, s{sTAG}, v{220+i}")
    a("v_or3_b32 v220, v220, v221, v222")
    if nd == 4: a("v_or_b32 v220, v220, v223")
    a("v_cmp_ne_u32 vcc, 0, v220")
    a("s_and_b64 exec, exec, vcc")
    a(f"s_cbranch_execz {tag}_ok")
    if int(OPT.get("sleep", "0")): a(f"s_sleep {OPT['sleep']}")
    a("s_sub_u32 s92, s92, 1")
    a("s_cmp_lg_u32 s92, 0")
    a(f"s_cbranch_scc1 {tag}_poll")
    a.label(f"{tag}_ok")
    a("s_mov_b64 exec, -1")

def epoch_issue(a):
    a(f"v_mov_b32 v253, {EP}")
    a(f"buffer_load_dword v254, v253, {sq(SF)}, 0 offen sc1")
def epoch_use(a):
    a(f"v_readfirstlane_b32 s{sTAG}, v254")
    a(f"s_mul_i32 s{sTAG}, s{sTAG}, 0x9E3779B1")
    a(f"s_add_u32 s{sTAG}, s{sTAG}, 0x7F4A7C15")

def kernel(name, body, vgpr, accum):
    return f""".text
.globl {name}
.p2align 8
.type {name},@function
{name}:
{body}{name}_end:
    s_endpgm
.section .rodata,"a"
.p2align 6
.amdhsa_kernel {name}
  .amdhsa_next_free_vgpr {vgpr}
  .amdhsa_next_free_sgpr 102
  .amdhsa_accum_offset {accum}
  .amdhsa_group_segment_fixed_size 0
  .amdhsa_kernarg_size 120
  .amdhsa_user_sgpr_count 2
  .amdhsa_user_sgpr_kernarg_segment_ptr 1
  .amdhsa_system_sgpr_workgroup_id_x 1
.end_amdhsa_kernel
"""
def header(launches):
    hdr = [l for l in open(REF).read().split("\n") if l.startswith(";") and "@launch" not in l]
    return "\n".join(hdr) + "\n" + "\n".join(launches) + '\n.amdgcn_target "amdgcn-amd-amdhsa--gfx950"\n'

def gen_fused():
    K = NAME + "_kernel"
    out = header([f"; @launch grid=(256,1,1) block=(256,1,1) lds={LDS_TOT}"])
    a = A()
    hl = OPT.get("hld", "nt")
    stamp(a, 0)
    prologue(a, K + "_end")
    a(f"s_cmp_eq_u32 s{sW}, 3")
    a("s_cbranch_scc1 w3_path")
    p0_addr(a)
    a("s_waitcnt lgkmcnt(0)")
    stamp(a, 1)
    p0_issue(a, OPT.get("p0ld", "nt"))
    def common_srds(a):
        srd(a, SH, 10, 11, TENS)
        srd(a, SF, 20, 21, F_BYTES, F_OFF)
        srd(a, SU, 20, 21, U_BYTES, U_OFF)
        srd(a, SY, 20, 21, Y_BYTES, YM_OFF)
        srd(a, SO, 16, 17, TENS)
        a(f"s_lshr_b32 s90, s{sCH}, 1")
        a("s_lshl_b32 s90, s90, 2")
        a(f"s_lshr_b32 s91, s{sCE}, 1")
        a("s_lshl_b32 s91, s91, 2")
        a(f"s_load_dword s{sDM}, s[12:13], s90")
        a(f"s_load_dword s{sDE}, s[12:13], s91")
    common_srds(a)
    a("s_barrier")
    epoch_issue(a)
    h_dma(a, sCH, sHB, 0, hl)
    nx = p2_x_issue(a, "nt")
    stamp(a, 2)
    p0_compute(a, 1 + 4 + nx, OPT.get("ust", "sc1"))
    stamp(a, 3)
    for r in range(124, 128): a(f"v_mov_b32 v{r}, 0")
    a(f"v_add_u32 v119, s{sHB}, v{vL16}")
    a("s_waitcnt vmcnt(6) lgkmcnt(0)")
    epoch_use(a)
    h_copies(a, 119)
    a(f"s_lshl_b32 s3, s{sFI}, 6")
    a(f"s_lshl_b32 s90, s{sW}, 2")
    a("s_add_u32 s3, s3, s90")
    a("s_waitcnt vmcnt(0)")
    signal(a, 3)
    stamp(a, 4)
    a("s_branch join1")
    a.label("w3_path")
    for r in range(124, 128): a(f"v_mov_b32 v{r}, 0")
    a("s_waitcnt lgkmcnt(0)")
    common_srds(a)
    a("s_barrier")
    epoch_issue(a)
    h_dma(a, sCH, sHB, 0, hl)
    h_dma(a, sCE, None, 4 * HB, hl)
    p2_x_issue(a, "nt")
    stamp(a, 2)
    a(f"v_add_u32 v119, s{sHB}, v{vL16}")
    a("s_waitcnt vmcnt(8) lgkmcnt(0)")
    epoch_use(a)
    h_copies(a, 119)
    a(f"v_add_u32 v119, {4*HB}, v{vL16}")
    a("s_waitcnt vmcnt(4)")
    h_copies(a, 119)
    a("s_waitcnt vmcnt(0)")
    stamp(a, 4)
    a.label("join1")
    p1_prep(a)
    a("s_waitcnt lgkmcnt(0)")
    p1_aload(a)
    p2_first(a)
    u_load(a)
    a(f"s_lshl_b32 s92, s{sB}, 2")
    a(f"s_add_u32 s92, s92, s{sW}")
    a("s_lshl_b32 s92, s92, 11")
    a(f"v_lshlrev_b32 v218, 6, v{vLANE}")
    a("v_add_u32 v219, s92, v218")
    a(f"s_lshl_b32 s92, s{sW}, 12")
    a(f"s_add_u32 s92, s92, {F2}")
    a("v_add_u32 v218, s92, v218")
    stamp(a, 5)
    poll(a, "e1", 219, 3, False)
    a("s_barrier")
    stamp(a, 6)
    u_load_go(a)
    a("s_barrier")
    stamp(a, 9); stamp(a, 24, True)
    p1_main(a, OPT.get("yst", "sc1"))
    stamp(a, 27, True); stamp(a, 18)
    a("s_lshl_b32 s3, s2, 6")
    a(f"s_lshl_b32 s90, s{sW}, 2")
    a("s_add_u32 s3, s3, s90")
    a(f"s_add_u32 s3, s3, {F2}")
    a("s_waitcnt vmcnt(0)")
    signal(a, 3)
    stamp(a, 10)
    poll(a, "e2", 218, 4, True)
    a("s_barrier")
    stamp(a, 11)
    y_load(a)
    a("s_barrier")
    stamp(a, 12)
    a(f"s_or_b32 s3, s2, s{sW}")
    a("s_cmp_eq_u32 s3, 0")
    a("s_cbranch_scc0 no_epoch")
    a(f"s_mov_b32 s3, {EP}")
    signal(a, 3)
    a.label("no_epoch")
    p2_rest(a, OPT.get("ost", ""))
    stamp(a, 13)
    stamp_flush(a)
    out += kernel(K, a.text(), 512, 256)
    return out

if __name__ == "__main__":
    path = sys.argv[1]
    STAMPS = "--stamps" in sys.argv
    for x in sys.argv[2:]:
        if "=" in x:
            k_, v_ = x.split("=", 1); OPT[k_] = v_
    open(path, "w").write(gen_fused())
```

```python
import sys
NAME = "interleave_layers__ssm_conv_h3__ssm_conv_h3__prompt"
REF = f"cdna_kernels/{NAME}.s.ref"
OPT = {}
STAMPS = False

S, D = 2048, 576
ROWB = D * 2
TENS = S * ROWB
U_OFF = 0;            U_BYTES = 2 * D * 4096
YM_OFF = U_BYTES;     YM_BYTES = 256 * 16384
YE_OFF = YM_BYTES;    YE_BYTES = 64 * 8192
Y_BYTES = YM_BYTES + YE_BYTES
F_OFF = YM_OFF + Y_BYTES
F2 = 16384; EP = 32768; F_BYTES = 32768 + 64
ST_OFF = 0xA00000
CS = 4160; HB = 4 * CS
US = 4608; U_BASE = 5 * HB
LDS_TOT = U_BASE + 5 * US
Y_LDS = 0; YR = 1040; YBR = 9 * YR
T_LDS = 20480; TR = 144
E_LDS = 40960

class A:
    def __init__(self): self.l = []
    def __call__(self, s): self.l.append("    " + s)
    def label(self, s): self.l.append(s + ":")
    def text(self): return "\n".join(self.l) + "\n"

def srd(a, d, lo, hi, size, add=None):
    if add:
        a(f"s_add_u32 s{d}, s{lo}, {add}")
        a(f"s_addc_u32 s{d+1}, s{hi}, 0")
    else:
        a(f"s_mov_b32 s{d}, s{lo}")
        a(f"s_mov_b32 s{d+1}, s{hi}")
    a(f"s_mov_b32 s{d+2}, {size}")
    a(f"s_mov_b32 s{d+3}, 0x00020000")

SK, SV, SSH, SH, SU, SY, SX, SO, SF = 24, 28, 32, 36, 40, 44, 48, 52, 56
sX, sQ, sB, sP, sW = 60, 61, 62, 63, 64
sB0, sCF, sRB = 69, 70, 71
sCH, sCE, sJE, sHB, sUB, sDM, sDE, sFI, sHF, sTAG = 72, 73, 74, 75, 76, 77, 78, 79, 82, 83
vLANE, vL16, vL2 = 250, 251, 252

def stamp(a, idx, cyc=False):
    if not STAMPS: return
    a(("s_memtime" if cyc else "s_memrealtime") + " s[94:95]")
    a("s_waitcnt lgkmcnt(0)")
    a(f"v_writelane_b32 v255, s94, {idx}")
def stamp_flush(a):
    if not STAMPS: return
    srd(a, 96, 20, 21, 0x100000, ST_OFF)
    a("s_lshl_b32 s94, s2, 2")
    a(f"s_add_u32 s94, s94, s{sW}")
    a("s_lshl_b32 s94, s94, 7")
    a(f"v_lshlrev_b32 v254, 2, v{vLANE}")
    a("s_mov_b32 exec_hi, 0")
    a("buffer_store_dword v255, v254, s[96:99], s94 offen")

def dbg_flush(a):
    if OPT.get("dbg", "0") != "1": return
    srd(a, 96, 18, 19, 256)
    sel = [0, 1, 3, 4, 6, 10, 11, 13]
    for i, st in enumerate(sel):
        a(f"v_readlane_b32 s94, v255, {st}")
        a("s_nop 3")
        a(f"v_writelane_b32 v254, s94, {i}")
        a("s_not_b32 s94, s94")
        a(f"v_writelane_b32 v254, s94, {8+i}")
    a(f"v_lshlrev_b32 v253, 2, v{vLANE}")
    a(f"s_cmp_eq_u32 s{sW}, 3")
    a("s_cbranch_scc1 dbg_skip")
    a("s_mov_b64 exec, 0xffff")
    a("buffer_atomic_umax v254, v253, s[96:99], 0 offen sc1")
    a.label("dbg_skip")
    a("s_mov_b64 exec, -1")

def vr(r, n=4): return f"v[{r}:{r+n-1}]"
def ar(r, n=4): return f"a[{r}:{r+n-1}]"
def pr(r): return f"v[{r}:{r+1}]"
def sq(r): return f"s[{r}:{r+3}]"

def prologue(a, end):
    a("s_cmp_ge_u32 s2, 256")
    a(f"s_cbranch_scc1 {end}")
    a(f"s_lshr_b32 s{sB0}, s2, 7")
    a(f"s_mul_i32 s3, s{sB0}, 48")
    a("s_add_u32 s22, s0, s3")
    a("s_addc_u32 s23, s1, 0")
    a("s_load_dwordx4 s[4:7], s[22:23], 8")
    a("s_load_dwordx2 s[8:9], s[22:23], 24")
    a(f"s_and_b32 s{sX}, s2, 7")
    a(f"s_lshr_b32 s{sQ}, s2, 3")
    a(f"s_lshr_b32 s{sB}, s{sX}, 2")
    a(f"s_mul_i32 s3, s{sB}, 48")
    a("s_add_u32 s22, s0, s3")
    a("s_addc_u32 s23, s1, 0")
    a("s_load_dwordx4 s[10:13], s[22:23], 32") if False else None
    a("s_load_dwordx2 s[10:11], s[22:23], 32")
    a("s_load_dwordx2 s[12:13], s[22:23], 40")
    a("s_load_dwordx2 s[14:15], s[0:1], 0")
    a("s_load_dwordx4 s[16:19], s[0:1], 96")
    a("s_load_dwordx2 s[20:21], s[0:1], 112")
    a("v_lshrrev_b32 v1, 6, v0")
    a(f"v_and_b32 v{vLANE}, 63, v0")
    a(f"v_readfirstlane_b32 s{sW}, v1")
    a(f"v_lshlrev_b32 v{vL16}, 4, v{vLANE}")
    a(f"v_lshlrev_b32 v{vL2}, 1, v{vLANE}")
    a(f"s_and_b32 s{sCF}, s{sQ}, 1")
    a(f"s_lshr_b32 s{sRB}, s{sQ}, 1")
    a(f"s_and_b32 s{sRB}, s{sRB}, 7")
    a(f"s_lshl_b32 s3, s{sX}, 3")
    a(f"s_add_u32 s{sRB}, s{sRB}, s3")
    a(f"s_lshl_b32 s{sFI}, s{sB0}, 7")
    a(f"s_lshl_b32 s3, s{sCF}, 6")
    a(f"s_add_u32 s{sFI}, s{sFI}, s3")
    a(f"s_add_u32 s{sFI}, s{sFI}, s{sRB}")
    a(f"s_and_b32 s{sP}, s{sX}, 3")
    a(f"s_lshl_b32 s{sP}, s{sP}, 4")
    a(f"s_lshr_b32 s3, s{sQ}, 1")
    a(f"s_add_u32 s{sP}, s{sP}, s3")
    a(f"s_and_b32 s{sHF}, s{sQ}, 1")
    a(f"s_lshl_b32 s{sCH}, s{sP}, 3")
    a(f"s_lshl_b32 s3, s{sHF}, 2")
    a(f"s_add_u32 s{sCH}, s{sCH}, s3")
    a(f"s_add_u32 s{sCH}, s{sCH}, s{sW}")
    a(f"s_add_u32 s{sCE}, s{sP}, 512")
    a(f"s_lshl_b32 s{sJE}, s{sW}, 1")
    a(f"s_add_u32 s{sJE}, s{sJE}, s{sHF}")
    a(f"s_mul_i32 s{sHB}, s{sW}, {HB}")
    a(f"s_mul_i32 s{sUB}, s{sW}, {US}")
    a(f"s_add_u32 s{sUB}, s{sUB}, {U_BASE}")

def kreg(j): return 8 + 4 * j
def vreg(t): return 52 + 4 * t
def p0_addr(a):
    a("v_lshrrev_b32 v5, 2, v0")
    a("v_and_b32 v6, 3, v0")
    a(f"s_mul_i32 s65, s{sRB}, {32*ROWB}")
    a(f"s_mul_i32 s66, s{sCF}, 576")
    a("s_add_u32 s65, s65, s66")
    a(f"v_mul_u32_u24 v1, {8*ROWB}, v6")
    a("v_mul_u32_u24 v7, 12, v5")
    a("v_add3_u32 v1, v1, v7, s65")
    a(f"v_add_u32 v2, {4*ROWB}, v1")
    a(f"v_subrev_u32 v3, {3*ROWB}, v1")
    a(f"s_mul_i32 s66, s{sCF}, {288*8}")
    a("v_mul_u32_u24 v7, 48, v5")
    a("v_add_u32 v7, s66, v7")
    a(f"s_mul_i32 s65, s{sB0}, 576")
    a(f"s_mul_i32 s66, s{sCF}, 288")
    a("s_add_u32 s65, s65, s66")
    a("s_lshl_b32 s65, s65, 12")
    a("s_add_u32 s65, s65, 4080")
    a(f"s_lshl_b32 s66, s{sRB}, 6")
    a("s_sub_u32 s65, s65, s66")
    a(f"v_mul_u32_u24 v4, {6*4096}, v5")
    a("v_lshlrev_b32 v6, 4, v6")
    a("v_sub_u32 v4, v4, v6")
    a("v_add_u32 v4, s65, v4")

def p0_issue(a, fl):
    srd(a, SK, 4, 5, TENS)
    srd(a, SV, 6, 7, TENS)
    srd(a, SSH, 8, 9, D * 8)
    for j in range(3):
        a(f"buffer_load_dwordx3 v[{kreg(j)}:{kreg(j)+2}], v3, {sq(SK)}, 0 offen offset:{j*ROWB} {fl}")
    for t in range(8):
        base, off = ("v1", t * ROWB) if t < 4 else ("v2", (t - 4) * ROWB)
        a(f"buffer_load_dwordx3 v[{kreg(t+3)}:{kreg(t+3)+2}], {base}, {sq(SK)}, 0 offen offset:{off} {fl}")
        a(f"buffer_load_dwordx3 v[{vreg(t)}:{vreg(t)+2}], {base}, {sq(SV)}, 0 offen offset:{off} {fl}")
        if t == 0:
            for q in range(3):
                a(f"buffer_load_dwordx4 v[{84+4*q}:{87+4*q}], v7, {sq(SSH)}, 0 offen offset:{16*q}")

def unpack(a, dlo, dhi, src):
    a(f"v_lshlrev_b32 v{dlo}, 16, v{src}")
    a(f"v_and_b32 v{dhi}, 0xffff0000, v{src}")

def p0_compute(a, later, stflag):
    def W(p, j): return 96 + 8 * p + 2 * j
    def Kf(j, c): return 120 + 6 * j + c
    def U(t, c): return 186 + 6 * t + c
    a(f"s_waitcnt vmcnt({later + 19})")
    for j in range(3):
        for p in range(3):
            unpack(a, Kf(j, 2*p), Kf(j, 2*p+1), kreg(j) + p)
    a(f"s_waitcnt vmcnt({later + 14})")
    stamp(a, 16)
    for c in range(6):
        p, h = c >> 1, c & 1
        a(f"v_lshlrev_b32 v{W(p,0)+h}, 16, v{84+2*c}")
        a(f"v_and_b32 v{W(p,1)+h}, 0xffff0000, v{84+2*c}")
        a(f"v_lshlrev_b32 v{W(p,2)+h}, 16, v{85+2*c}")
        a(f"v_and_b32 v{W(p,3)+h}, 0xffff0000, v{85+2*c}")
    for t in range(8):
        if t: a(f"s_waitcnt vmcnt({later + 14 - 2*t})")
        if t == 7: stamp(a, 17)
        for p in range(3):
            unpack(a, Kf(t+3, 2*p), Kf(t+3, 2*p+1), kreg(t+3) + p)
            unpack(a, 234 + 2*p, 235 + 2*p, vreg(t) + p)
        for p in range(3):
            u = U(t, 2*p)
            a(f"v_pk_mul_f32 {pr(u)}, {pr(Kf(t,2*p))}, {pr(W(p,3))}")
        for jj in (2, 1, 0):
            for p in range(3):
                u = U(t, 2*p); k = Kf(t + 3 - jj, 2*p)
                a(f"v_pk_fma_f32 {pr(u)}, {pr(k)}, {pr(W(p,jj))}, {pr(u)}")
        for p in range(3):
            u = U(t, 2*p)
            a(f"v_pk_mul_f32 {pr(u)}, {pr(u)}, {pr(234+2*p)}")
    for c in range(1, 6):
        a(f"s_mov_b32 s{64+c}, {4096*c}")
    for c in range(6):
        o = 8 + 4 * c
        for q in range(4):
            a(f"v_cvt_pk_bf16_f32 v{o+q}, v{U(7-2*q, c)}, v{U(6-2*q, c)}")
        so = "0" if c == 0 else f"s{64+c}"
        a(f"buffer_store_dwordx4 {vr(o)}, v4, {sq(SU)}, {so} offen {stflag}")

ACC, ACCE, PD, PDE, FB = 8, 40, 44, 48, 56
def h_dma(a, ch, ldsbase_s, ldsconst, flag):
    a(f"s_lshl_b32 s3, s{ch}, 12")
    if ldsbase_s is not None:
        a(f"s_add_u32 s90, s{ldsbase_s}, {ldsconst + 3*CS + 32}")
        a("s_mov_b32 m0, s90")
    else:
        a(f"s_mov_b32 m0, {ldsconst + 3*CS + 32}")
    a("s_nop 0")
    for q in range(4):
        a(f"buffer_load_dwordx4 v{vL16}, {sq(SH)}, s3 offen offset:{1024*q} {flag} lds")

def h_copies(a, vR):
    Dq = lambda q: 56 + 8 * q
    for q in range(4):
        a(f"ds_read_b128 {vr(Dq(q))}, v{vR} offset:{3*CS + 32 + 1024*q}")
        a(f"ds_read_b64 {pr(Dq(q)+4)}, v{vR} offset:{3*CS + 48 + 1024*q}")
    a(f"v_sub_u32 v120, v{vR}, v{vL16}")
    a(f"ds_read_b64 v[122:123], v120 offset:{3*CS + 32}")
    for q in range(4):
        d = Dq(q); o = 16 * (q & 1); T0, T1, T2, O4 = 88 + o, 92 + o, 96 + o, 100 + o
        a(f"s_waitcnt lgkmcnt({7 + q})")
        for i in range(4):
            a(f"v_alignbit_b32 v{T0+i}, v{d+i+1}, v{d+i}, 16")
        a(f"v_alignbit_b32 v{O4}, v{d+5}, v{d+4}, 16")
        a(f"v_pk_mov_b32 {pr(T1)}, {pr(d)}, {pr(d+2)} op_sel:[1,0]")
        a(f"v_pk_mov_b32 {pr(T1+2)}, {pr(d+2)}, {pr(d+4)} op_sel:[1,0]")
        a(f"v_pk_mov_b32 {pr(T2)}, {pr(T0)}, {pr(T0+2)} op_sel:[1,0]")
        a(f"v_pk_mov_b32 {pr(T2+2)}, {pr(T0+2)}, {pr(O4)} op_sel:[1,0]")
        a(f"ds_write_b128 v{vR}, {vr(T0)} offset:{32 + 1024*q}")
        a(f"ds_write_b128 v{vR}, {vr(T1)} offset:{CS + 32 + 1024*q}")
        a(f"ds_write_b128 v{vR}, {vr(T2)} offset:{2*CS + 32 + 1024*q}")
    a(f"v_sub_u32 v121, 3, v{vLANE}")
    a("v_lshlrev_b32 v121, 4, v121")
    a("s_waitcnt lgkmcnt(12)")
    a("v_lshlrev_b64 v[122:123], v121, v[122:123]")
    a(f"v_cmp_eq_u32 vcc, 3, v{vLANE}")
    a(f"v_mul_u32_u24 v121, {CS}, v{vLANE}")
    a("v_add_u32 v118, v121, v120")
    a("v_cndmask_b32 v122, v122, 0, vcc")
    a("v_cndmask_b32 v123, v123, 0, vcc")
    a("v_mov_b32 v120, 0")
    a("v_mov_b32 v121, 0")
    a("s_mov_b64 exec, 15")
    a("ds_write_b128 v118, v[124:127]")
    a("ds_write_b128 v118, v[120:123] offset:16")
    a("s_mov_b64 exec, -1")

def p1_prep(a):
    a(f"v_add_u32 v54, s{sUB}, v{vL16}")
    a(f"s_lshl_b32 s3, s{sW}, 7")
    a(f"s_add_u32 s3, s3, {U_BASE + 4*US - 512}")
    a(f"v_add_u32 v55, s3, v{vL16}")
    a(f"v_cmp_gt_u32 vcc, 32, v{vLANE}")
    a("s_mov_b32 exec_hi, 0xff")
    a("s_nop 0")
    a("v_cndmask_b32 v54, v55, v54, vcc")
    a("ds_write_b128 v54, v[124:127] offset:4096")
    a("s_mov_b64 exec, -1")
    for ch, sv in ((sCH, sDM), (sCE, sDE)):
        a(f"s_and_b32 s3, s{ch}, 1")
        a("s_lshl_b32 s3, s3, 4")
        a(f"s_lshr_b32 s{sv}, s{sv}, s3")
        a(f"s_and_b32 s{sv}, s{sv}, 0xffff")
    a(f"v_and_b32 v1, 15, v{vLANE}")
    a(f"v_lshrrev_b32 v2, 4, v{vLANE}")
    a("v_lshlrev_b32 v3, 3, v2")
    a("v_add_u32 v3, v3, v1")
    a("v_sub_u32 v3, 15, v3")
    a("v_and_b32 v4, 1, v3")
    a("v_lshlrev_b32 v4, 4, v4")
    a("v_ashrrev_i32 v3, 1, v3")
    a(f"v_lshlrev_b32 v5, v4, s{sDM}")
    a(f"v_lshlrev_b32 v6, v4, s{sDE}")
    for q in range(4):
        a(f"v_cmp_eq_u32 vcc, {q}, v3")
        a("s_nop 1")
        a(f"v_cndmask_b32 v{PD+q}, 0, v5, vcc")
        a(f"v_cndmask_b32 v{PDE+q}, 0, v6, vcc")
    a("v_and_b32 v3, 3, v1")
    a("v_cmp_eq_u32 vcc, 3, v3")
    a(f"v_mul_u32_u24 v3, {CS}, v3")
    a("v_and_b32 v4, 12, v1")
    a("v_lshlrev_b32 v4, 1, v4")
    a("v_add_u32 v3, v3, v4")
    a("v_cndmask_b32 v4, 0, 8, vcc")
    a("v_add_u32 v3, v3, v4")
    a("v_lshl_add_u32 v3, v2, 4, v3")
    a(f"v_add_u32 v5, s{sHB}, v3")
    a(f"v_add_u32 v6, {4*HB}, v3")
    a("v_lshlrev_b32 v3, 4, v2")
    a("v_lshlrev_b32 v4, 5, v1")
    a("v_sub_u32 v3, v3, v4")
    a("v_add_u32 v3, 480, v3")
    a(f"v_add_u32 v7, s{sUB}, v3")
    a(f"s_sub_u32 s3, 7, s{sJE}")
    a("s_lshl_b32 s3, s3, 9")
    a(f"s_add_u32 s3, s3, {U_BASE + 4*US}")
    a("v_add_u32 v54, s3, v3")
    a(f"v_mul_u32_u24 v52, {TR}, v1")
    a("v_lshrrev_b32 v3, 1, v2")
    a("v_lshl_add_u32 v52, v3, 6, v52")
    a("v_and_b32 v3, 1, v2")
    a("v_lshl_add_u32 v52, v3, 3, v52")
    a(f"s_lshl_b32 s3, s{sW}, 4")
    a(f"s_add_u32 s3, s3, {T_LDS}")
    a("v_add_u32 v52, s3, v52")
    a(f"v_lshrrev_b32 v3, 3, v{vLANE}")
    a(f"v_mul_u32_u24 v53, {TR}, v3")
    a(f"v_and_b32 v3, 7, v{vLANE}")
    a("v_lshl_add_u32 v53, v3, 4, v53")
    a(f"s_mul_i32 s3, s{sW}, {32*TR}")
    a(f"s_add_u32 s3, s3, {T_LDS}")
    a("v_add_u32 v53, s3, v53")
    a(f"v_lshrrev_b32 v4, 2, v{vLANE}")
    a(f"v_and_b32 v55, 3, v{vLANE}")
    a("v_lshlrev_b32 v55, 4, v55")
    a("v_lshl_add_u32 v3, v4, 14, v55")
    a("v_lshl_add_u32 v4, v4, 13, v55")
    a(f"s_lshl_b32 s80, s{sW}, 20")
    a(f"s_lshl_b32 s3, s{sB}, 13")
    a("s_add_u32 s80, s80, s3")
    a(f"s_sub_u32 s3, s{sCH}, s{sW}")
    a("s_lshl_b32 s3, s3, 4")
    a("s_add_u32 s80, s80, s3")
    a(f"s_lshl_b32 s81, s{sJE}, 16")
    a(f"s_lshl_b32 s3, s{sB}, 12")
    a("s_add_u32 s81, s81, s3")
    a(f"s_lshl_b32 s3, s{sP}, 6")
    a("s_add_u32 s81, s81, s3")
    a(f"s_add_u32 s81, s81, {YE_OFF}")
    a("v_lshlrev_b32 v55, 5, v1")
    a("v_lshl_add_u32 v55, v2, 3, v55")
    a(f"s_lshl_b32 s3, s{sW}, 9")
    a(f"s_add_u32 s93, s3, {E_LDS}")
    a("v_add_u32 v55, s93, v55")
    a(f"v_add_u32 v253, s93, v{vL16}")

def p1_aload(a):
    for ks in range(64):
        a(f"ds_read_b64 a[{4*ks}:{4*ks+1}], v5 offset:{64*ks}")
        a(f"ds_read_b64 a[{4*ks+2}:{4*ks+3}], v5 offset:{64*ks+8}")

def u_load(a):
    a(f"s_mul_i32 s3, s{sB}, 576")
    a(f"s_add_u32 s90, s3, s{sCH}")
    a("s_lshl_b32 s90, s90, 12")
    a(f"s_add_u32 s91, s3, s{sCE}")
    a("s_lshl_b32 s91, s91, 12")
    a(f"s_lshl_b32 s3, s{sW}, 10")
    a("s_add_u32 s91, s91, s3")
    a(f"s_add_u32 s3, s3, {U_BASE + 4*US}")
def u_load_go(a):
    if OPT.get("udma", "0") == "1":
        a(f"s_mov_b32 m0, s{sUB}")
        a("s_nop 0")
        for q in range(4):
            a(f"buffer_load_dwordx4 v{vL16}, {sq(SU)}, s90 offen offset:{1024*q} sc1 lds")
        a("s_mov_b32 m0, s3")
        a("s_nop 0")
        a(f"buffer_load_dwordx4 v{vL16}, {sq(SU)}, s91 offen sc1 lds")
        a("s_waitcnt vmcnt(0)")
        return
    for q in range(4):
        a(f"buffer_load_dwordx4 {vr(88+4*q)}, v{vL16}, {sq(SU)}, s90 offen offset:{1024*q} sc1")
    a(f"buffer_load_dwordx4 v[104:107], v{vL16}, {sq(SU)}, s91 offen sc1")
    a(f"v_add_u32 v108, s{sUB}, v{vL16}")
    a(f"v_add_u32 v109, s3, v{vL16}")
    for q in range(4):
        a(f"s_waitcnt vmcnt({4-q})")
        a(f"ds_write_b128 v108, {vr(88+4*q)} offset:{1024*q}")
    a("s_waitcnt vmcnt(0)")
    a("ds_write_b128 v109, v[104:107]")
    a("s_waitcnt lgkmcnt(0)")

def F(bank, c): return FB + 32 * bank + 4 * c
def p1_main(a, stflag):
    mf = "v_mfma_f32_16x16x32_bf16"
    for c in range(8):
        a(f"ds_read_b128 {vr(F(0,c))}, v7 offset:{512*(7-c)}")
    for r in range(8):
        bank = r & 1
        fill = []
        if r < 7:
            for c in range(8):
                fill.append(f"ds_read_b128 {vr(F(bank^1,c))}, v7 offset:{64*(r+1) + 512*(7-c)}")
        else:
            for rr in range(8):
                fill.append(f"ds_read_b128 {vr(F(0,rr))}, v54 offset:{64*rr}")
        if r > 0:
            for aa in range(8):
                ks = 8 * aa + r - 1
                fill.append(f"ds_read_b64 a[{4*ks}:{4*ks+1}], v6 offset:{64*ks}")
                fill.append(f"ds_read_b64 a[{4*ks+2}:{4*ks+3}], v6 offset:{64*ks+8}")
        a("s_waitcnt lgkmcnt(0)")
        for c in range(8):
            for j in range(c, 8):
                if r == 0 and j == c:
                    a(f"{mf} {vr(ACC+4*j)}, {vr(PD)}, {vr(F(bank,c))}, " + ("0" if c == 0 else vr(ACC+4*j)))
                ks = 8 * (j - c) + r
                first = (r == 0 and c == 0 and j > 0)
                a(f"{mf} {vr(ACC+4*j)}, {ar(4*ks)}, {vr(F(bank,c))}, " + ("0" if first else vr(ACC+4*j)))
                if fill: a(fill.pop(0))
        assert not fill
    stamp(a, 7); stamp(a, 25, True)
    for aa in range(8):
        ks = 8 * aa + 7
        a(f"ds_read_b64 a[{4*ks}:{4*ks+1}], v6 offset:{64*ks}")
        a(f"ds_read_b64 a[{4*ks+2}:{4*ks+3}], v6 offset:{64*ks+8}")
    E = 88
    for j in range(8):
        a(f"v_cvt_pk_bf16_f32 v{E+2*j}, v{ACC+4*j}, v{ACC+4*j+1}")
        a(f"v_cvt_pk_bf16_f32 v{E+2*j+1}, v{ACC+4*j+2}, v{ACC+4*j+3}")
        a(f"ds_write_b64 v52, {pr(E+2*j)} offset:{16*TR*j}")
    a("s_waitcnt lgkmcnt(0)")
    a("s_barrier")
    for q in range(4):
        a(f"ds_read_b128 {vr(104+4*q)}, v53 offset:{8*TR*q}")
    def FE(bank, rr): return (FB + 4 * rr) if bank == 0 else (ACC + 4 * rr)
    pend = []
    for q in range(4):
        pend.append([f"s_add_u32 s3, s80, {q*16*16384}",
                     f"buffer_store_dwordx4 {vr(104+4*q)}, v3, {sq(SY)}, s3 offen {stflag}"])
    stamp(a, 8); stamp(a, 26, True)
    for aa in range(8):
        bank = aa & 1
        for rr in range(8):
            if aa == 0 and rr == 0:
                a(f"{mf} {vr(ACCE)}, {vr(PDE)}, {vr(FE(0,0))}, 0")
            a(f"{mf} {vr(ACCE)}, {ar(4*(8*aa+rr))}, {vr(FE(bank,rr))}, {vr(ACCE)}")
            if aa < 7:
                a(f"ds_read_b128 {vr(FE(bank^1,rr))}, v54 offset:{64*rr + 512*(aa+1)}")
            if aa == 0 and rr >= 3 and pend:
                q = 4 - len(pend)
                a(f"s_waitcnt lgkmcnt({rr + 1 + 3 - q})")
                for s_ in pend.pop(0): a(s_)
            if aa > 0 and rr < 7:
                a(f"s_waitcnt lgkmcnt({7 if aa < 7 else 6 - rr})")
        if aa < 7:
            a(f"s_cmp_eq_u32 s{sJE}, {aa}")
            a("s_cbranch_scc1 exdone")
            a("s_waitcnt lgkmcnt(7)")
    a.label("exdone")
    a("s_nop 7")
    a(f"v_cvt_pk_bf16_f32 v88, v{ACCE}, v{ACCE+1}")
    a(f"v_cvt_pk_bf16_f32 v89, v{ACCE+2}, v{ACCE+3}")
    a("ds_write_b64 v55, v[88:89]")
    a("s_mov_b32 exec_hi, 0")
    a("ds_read_b128 v[92:95], v253")
    a("s_waitcnt lgkmcnt(0)")
    a(f"buffer_store_dwordx4 v[92:95], v4, {sq(SY)}, s81 offen {stflag}")
    a("s_mov_b64 exec, -1")

Z, YA, YB, G = 128, 146, 164, 182
XR = 240
SS, QQ, RS, ND, C0 = 200, 202, 204, 206, 208
def p2_x_issue(a, flag):
    srd(a, SX, 14, 15, TENS)
    a("s_lshl_b32 s84, s2, 3")
    a(f"s_lshl_b32 s3, s{sW}, 1")
    a("s_add_u32 s84, s84, s3")
    a(f"s_mul_i32 s84, s84, {ROWB}")
    a(f"buffer_load_dwordx4 v[240:243], v{vL16}, {sq(SX)}, s84 offen {flag}")
    a(f"buffer_load_dwordx4 v[244:247], v{vL16}, {sq(SX)}, s84 offen offset:{ROWB} {flag}")
    a(f"buffer_load_ushort v248, v{vL2}, {sq(SX)}, s84 offen offset:1024 {flag}")
    a(f"buffer_load_ushort v249, v{vL2}, {sq(SX)}, s84 offen offset:{1024+ROWB} {flag}")
    return 4

def p2_sums(a):
    a(f"v_pk_add_f32 {pr(SS)}, {pr(Z)}, {pr(Z+2)}")
    a(f"v_pk_mul_f32 {pr(QQ)}, {pr(Z)}, {pr(Z)}")
    a(f"v_pk_fma_f32 {pr(QQ)}, {pr(Z+2)}, {pr(Z+2)}, {pr(QQ)}")
    for e in range(2, 9):
        a(f"v_pk_add_f32 {pr(SS)}, {pr(SS)}, {pr(Z+2*e)}")
        a(f"v_pk_fma_f32 {pr(QQ)}, {pr(Z+2*e)}, {pr(Z+2*e)}, {pr(QQ)}")

def p2_chain(a, fill):
    fill = list(fill)
    def gap(n):
        for _ in range(n):
            if fill: a(fill.pop(0))
            else: a("s_nop 0")
    T, Uq = 210, 211
    gap(2)
    a(f"v_permlane32_swap_b32 v{SS}, v{SS+1}")
    a(f"v_permlane32_swap_b32 v{QQ}, v{QQ+1}")
    a(f"v_add_f32 v{SS}, v{SS}, v{SS+1}")
    a(f"v_add_f32 v{QQ}, v{QQ}, v{QQ+1}")
    gap(2)
    a(f"v_permlane16_swap_b32 v{SS}, v{QQ}")
    a(f"v_add_f32 v{T}, v{SS}, v{QQ}")
    for m in ("quad_perm:[1,0,3,2]", "quad_perm:[2,3,0,1]", "row_half_mirror", "row_mirror"):
        gap(2)
        a(f"v_add_f32_dpp v{T}, v{T}, v{T} {m} row_mask:0xf bank_mask:0xf")
    a(f"v_mov_b32 v{Uq}, v{T}")
    gap(2)
    a(f"v_permlane16_swap_b32 v{T}, v{Uq}")
    a(f"v_mul_f32 v{T}, s86, v{T}")
    a(f"v_mul_f32 v{Uq}, s86, v{Uq}")
    a(f"v_fma_f32 v{Uq}, -v{T}, v{T}, v{Uq}")
    a(f"v_max_f32 v{Uq}, 0, v{Uq}")
    a(f"v_add_f32 v{Uq}, s87, v{Uq}")
    a(f"v_rsq_f32 v{RS}, v{Uq}")
    gap(1)
    a(f"v_mul_f32 v{ND}, v{RS}, v{T}")
    a(f"v_mov_b32 v{RS+1}, v{RS}")
    a(f"v_mov_b32 v{ND+1}, v{ND}")
    gap(2)
    a(f"v_permlane32_swap_b32 v{RS}, v{RS+1}")
    a(f"v_permlane32_swap_b32 v{ND}, v{ND+1}")
    while fill: a(fill.pop(0))

def p2_first(a):
    a("s_mov_b32 s86, 0x3ae38e39")
    a("s_mov_b32 s87, 0x3727c5ac")
    for q in range(4):
        for row in range(2):
            a(f"v_lshlrev_b32 v{Z+4*q+row}, 16, v{XR+4*row+q}")
            a(f"v_and_b32 v{Z+4*q+2+row}, 0xffff0000, v{XR+4*row+q}")
    a(f"v_lshlrev_b32 v{Z+16}, 16, v248")
    a(f"v_lshlrev_b32 v{Z+17}, 16, v249")
    a(f"v_readfirstlane_b32 s88, v{Z}")
    a(f"v_readfirstlane_b32 s89, v{Z+1}")
    a("s_nop 1")
    a(f"v_mov_b32 v{C0}, s88")
    a(f"v_mov_b32 v{C0+1}, s89")
    for e in range(9):
        a(f"v_pk_add_f32 {pr(Z+2*e)}, {pr(Z+2*e)}, {pr(C0)} neg_lo:[0,1] neg_hi:[0,1]")
    p2_sums(a)
    p2_chain(a, [])
    a(f"v_and_b32 v212, 7, v{vLANE}")
    a(f"v_mul_u32_u24 v212, {YR}, v212")
    a(f"v_lshrrev_b32 v213, 3, v{vLANE}")
    a("v_lshl_add_u32 v212, v213, 4, v212")
    a(f"s_lshr_b32 s88, s{sW}, 1")
    a(f"s_mul_i32 s89, s88, {YBR}")
    a(f"s_and_b32 s3, s{sW}, 1")
    a("s_lshl_b32 s3, s3, 9")
    a("s_add_u32 s89, s89, s3")
    a(f"s_add_u32 s89, s89, {Y_LDS}")
    a("v_add_u32 v212, s89, v212")
    a(f"s_add_u32 s89, s89, {8*YR}")
    a(f"v_add_u32 v213, s89, v{vL16}")
    a(f"v_lshlrev_b32 v214, 6, v{vLANE}")
    a("s_lshl_b32 s88, s88, 3")
    a(f"s_add_u32 s88, s88, {Y_LDS}")
    a(f"v_add_u32 v215, s88, v{vL16}")
    a("s_lshl_b32 s88, s2, 14")
    a(f"s_lshl_b32 s3, s{sW}, 12")
    a("s_add_u32 s88, s88, s3")
    a("s_lshr_b32 s89, s2, 2")
    a("s_lshl_b32 s89, s89, 13")
    a(f"s_lshl_b32 s3, s{sW}, 11")
    a("s_add_u32 s89, s89, s3")
    a("s_and_b32 s3, s2, 3")
    a("s_lshl_b32 s3, s3, 4")
    a("s_add_u32 s89, s89, s3")
    a(f"s_add_u32 s89, s89, {YE_OFF}")

def y_load(a):
    a("s_mov_b32 exec_hi, 0")
    a(f"buffer_load_dwordx4 v[24:27], v214, {sq(SY)}, s89 offen sc1")
    a("s_mov_b64 exec, -1")
    for q in range(4):
        a(f"buffer_load_dwordx4 {vr(8+4*q)}, v{vL16}, {sq(SY)}, s88 offen offset:{1024*q} sc1")
    a("s_waitcnt vmcnt(4)")
    a("s_mov_b32 exec_hi, 0")
    a("ds_write_b128 v213, v[24:27]")
    a("s_mov_b64 exec, -1")
    for q in range(4):
        a(f"s_waitcnt vmcnt({3-q})")
        a(f"ds_write_b128 v212, {vr(8+4*q)} offset:{128*q}")
    a("s_waitcnt lgkmcnt(0)")

def p2_rest(a, stflag):
    for b in range(2):
        for e in range(9):
            r = 56 + 2 * (9 * b + e)
            a(f"ds_read_b64 {pr(r)}, v215 offset:{YBR*b + YR*e}")
    a(f"s_and_b32 s90, s{sW}, 1")
    a("s_mul_i32 s90, s90, 0x04040000")
    a("s_add_u32 s91, s90, 0x03020c0c")
    a("s_add_u32 s90, s90, 0x01000c0c")
    def unp(b, e):
        r = 56 + 2 * (9 * b + e); y = (YA if b == 0 else YB) + 2 * e
        return [f"v_perm_b32 v{y}, v{r+1}, v{r}, s90", f"v_perm_b32 v{y+1}, v{r+1}, v{r}, s91"]
    for e in range(9):
        a(f"s_waitcnt lgkmcnt({min(15, 17 - e)})")
        for s_ in unp(0, e): a(s_)
        a(f"v_pk_mul_f32 {pr(G+2*e)}, {pr(Z+2*e)}, {pr(YA+2*e)}")
    def post(Y):
        for e in range(9):
            a(f"v_pk_fma_f32 {pr(Z+2*e)}, {pr(G+2*e)}, {pr(RS)}, {pr(Z+2*e)}")
        for e in range(9):
            a(f"v_pk_fma_f32 {pr(Z+2*e)}, {pr(Y+2*e)}, {pr(ND)}, {pr(Z+2*e)} neg_lo:[0,1,0] neg_hi:[0,1,0]")
    post(YA)
    a("s_waitcnt lgkmcnt(0)")
    for layer, Y in ((2, YB), (3, YA), (4, YB)):
        p2_sums(a)
        fill = []
        for e in range(9):
            if layer == 2: fill += unp(1, e)
            fill.append(f"v_pk_mul_f32 {pr(G+2*e)}, {pr(Z+2*e)}, {pr(Y+2*e)}")
        if layer == 4:
            fill += [f"v_pk_add_f32 {pr(Z+2*e)}, {pr(Z+2*e)}, {pr(C0)}" for e in range(9)]
        p2_chain(a, fill)
        a("s_nop 0")
        post(Y)
    for row in range(2):
        for q in range(4):
            a(f"v_cvt_pk_bf16_f32 v{XR+4*row+q}, v{Z+4*q+row}, v{Z+4*q+2+row}")
    a(f"v_cvt_pk_bf16_f32 v248, v{Z+16}, v{Z+17}")
    a(f"buffer_store_dwordx4 v[240:243], v{vL16}, {sq(SO)}, s84 offen {stflag}")
    a(f"buffer_store_dwordx4 v[244:247], v{vL16}, {sq(SO)}, s84 offen offset:{ROWB} {stflag}")
    a(f"buffer_store_short v248, v{vL2}, {sq(SO)}, s84 offen offset:1024 {stflag}")
    a(f"buffer_store_short_d16_hi v248, v{vL2}, {sq(SO)}, s84 offen offset:{1024+ROWB} {stflag}")

def signal(a, off_s):
    a(f"v_mov_b32 v216, s{off_s}")
    a(f"v_mov_b32 v217, s{sTAG}")
    a("s_mov_b64 exec, 1")
    a(f"buffer_store_dword v217, v216, {sq(SF)}, 0 offen sc1")
    a("s_mov_b64 exec, -1")

def poll(a, tag, vaddr, nd, mask_hi):
    a("s_mov_b32 s92, 0x20000")
    if not mask_hi: a("s_mov_b32 exec_hi, 0")
    a.label(f"{tag}_poll")
    a(f"buffer_load_dwordx{nd} v[220:{220+nd-1}], v{vaddr}, {sq(SF)}, 0 offen sc1")
    a("s_waitcnt vmcnt(0)")
    for i in range(nd):
        a(f"v_xor_b32 v{220+i}, s{sTAG}, v{220+i}")
    a("v_or3_b32 v220, v220, v221, v222")
    if nd == 4: a("v_or_b32 v220, v220, v223")
    a("v_cmp_ne_u32 vcc, 0, v220")
    a("s_and_b64 exec, exec, vcc")
    a(f"s_cbranch_execz {tag}_ok")
    if int(OPT.get("sleep", "0")): a(f"s_sleep {OPT['sleep']}")
    a("s_sub_u32 s92, s92, 1")
    a("s_cmp_lg_u32 s92, 0")
    a(f"s_cbranch_scc1 {tag}_poll")
    a.label(f"{tag}_ok")
    a("s_mov_b64 exec, -1")

def epoch_issue(a):
    a(f"v_mov_b32 v253, {EP}")
    a(f"buffer_load_dword v254, v253, {sq(SF)}, 0 offen sc1")
def epoch_use(a):
    a(f"v_readfirstlane_b32 s{sTAG}, v254")
    a(f"s_mul_i32 s{sTAG}, s{sTAG}, 0x9E3779B1")
    a(f"s_add_u32 s{sTAG}, s{sTAG}, 0x7F4A7C15")

def kernel(name, body, vgpr, accum):
    return f""".text
.globl {name}
.p2align 8
.type {name},@function
{name}:
{body}{name}_end:
    s_endpgm
.section .rodata,"a"
.p2align 6
.amdhsa_kernel {name}
  .amdhsa_next_free_vgpr {vgpr}
  .amdhsa_next_free_sgpr 102
  .amdhsa_accum_offset {accum}
  .amdhsa_group_segment_fixed_size 0
  .amdhsa_kernarg_size 120
  .amdhsa_user_sgpr_count 2
  .amdhsa_user_sgpr_kernarg_segment_ptr 1
  .amdhsa_system_sgpr_workgroup_id_x 1
.end_amdhsa_kernel
"""
def header(launches):
    hdr = [l for l in open(REF).read().split("\n") if l.startswith(";") and "@launch" not in l]
    return "\n".join(hdr) + "\n" + "\n".join(launches) + '\n.amdgcn_target "amdgcn-amd-amdhsa--gfx950"\n'

def gen_fused():
    K = NAME + "_kernel"
    out = header([f"; @launch grid=(256,1,1) block=(256,1,1) lds={LDS_TOT}"])
    a = A()
    hl = OPT.get("hld", "nt")
    stamp(a, 0)
    prologue(a, K + "_end")
    a(f"s_cmp_eq_u32 s{sW}, 3")
    a("s_cbranch_scc1 w3_path")
    p0_addr(a)
    a("s_waitcnt lgkmcnt(0)")
    stamp(a, 1)
    p0_issue(a, OPT.get("p0ld", "nt"))
    def common_srds(a):
        srd(a, SH, 10, 11, TENS)
        srd(a, SF, 20, 21, F_BYTES, F_OFF)
        srd(a, SU, 20, 21, U_BYTES, U_OFF)
        srd(a, SY, 20, 21, Y_BYTES, YM_OFF)
        srd(a, SO, 16, 17, TENS)
        a(f"s_lshr_b32 s90, s{sCH}, 1")
        a("s_lshl_b32 s90, s90, 2")
        a(f"s_lshr_b32 s91, s{sCE}, 1")
        a("s_lshl_b32 s91, s91, 2")
        a(f"s_load_dword s{sDM}, s[12:13], s90")
        a(f"s_load_dword s{sDE}, s[12:13], s91")
    common_srds(a)
    a("s_barrier")
    epoch_issue(a)
    h_dma(a, sCH, sHB, 0, hl)
    nx = p2_x_issue(a, "nt")
    stamp(a, 2)
    p0_compute(a, 1 + 4 + nx, OPT.get("ust", "sc1"))
    stamp(a, 3)
    for r in range(124, 128): a(f"v_mov_b32 v{r}, 0")
    a(f"v_add_u32 v119, s{sHB}, v{vL16}")
    a("s_waitcnt vmcnt(6) lgkmcnt(0)")
    epoch_use(a)
    h_copies(a, 119)
    a(f"s_lshl_b32 s3, s{sFI}, 6")
    a(f"s_lshl_b32 s90, s{sW}, 2")
    a("s_add_u32 s3, s3, s90")
    a("s_waitcnt vmcnt(0)")
    signal(a, 3)
    stamp(a, 4)
    a("s_branch join1")
    a.label("w3_path")
    for r in range(124, 128): a(f"v_mov_b32 v{r}, 0")
    a("s_waitcnt lgkmcnt(0)")
    common_srds(a)
    a("s_barrier")
    epoch_issue(a)
    h_dma(a, sCH, sHB, 0, hl)
    h_dma(a, sCE, None, 4 * HB, hl)
    p2_x_issue(a, "nt")
    stamp(a, 2)
    a(f"v_add_u32 v119, s{sHB}, v{vL16}")
    a("s_waitcnt vmcnt(8) lgkmcnt(0)")
    epoch_use(a)
    h_copies(a, 119)
    a(f"v_add_u32 v119, {4*HB}, v{vL16}")
    a("s_waitcnt vmcnt(4)")
    h_copies(a, 119)
    a("s_waitcnt vmcnt(0)")
    stamp(a, 4)
    a.label("join1")
    p1_prep(a)
    a("s_waitcnt lgkmcnt(0)")
    p1_aload(a)
    p2_first(a)
    u_load(a)
    a(f"s_lshl_b32 s92, s{sB}, 2")
    a(f"s_add_u32 s92, s92, s{sW}")
    a("s_lshl_b32 s92, s92, 11")
    a(f"v_lshlrev_b32 v218, 6, v{vLANE}")
    a("v_add_u32 v219, s92, v218")
    a(f"s_lshl_b32 s92, s{sW}, 12")
    a(f"s_add_u32 s92, s92, {F2}")
    a("v_add_u32 v218, s92, v218")
    stamp(a, 5)
    poll(a, "e1", 219, 3, False)
    a("s_barrier")
    stamp(a, 6)
    u_load_go(a)
    a("s_barrier")
    stamp(a, 9); stamp(a, 24, True)
    p1_main(a, OPT.get("yst", "sc1"))
    stamp(a, 27, True); stamp(a, 18)
    a("s_lshl_b32 s3, s2, 6")
    a(f"s_lshl_b32 s90, s{sW}, 2")
    a("s_add_u32 s3, s3, s90")
    a(f"s_add_u32 s3, s3, {F2}")
    a("s_waitcnt vmcnt(0)")
    signal(a, 3)
    stamp(a, 10)
    poll(a, "e2", 218, 4, True)
    a("s_barrier")
    stamp(a, 11)
    y_load(a)
    a("s_barrier")
    stamp(a, 12)
    a(f"s_or_b32 s3, s2, s{sW}")
    a("s_cmp_eq_u32 s3, 0")
    a("s_cbranch_scc0 no_epoch")
    a(f"s_mov_b32 s3, {EP}")
    signal(a, 3)
    a.label("no_epoch")
    p2_rest(a, OPT.get("ost", ""))
    stamp(a, 13)
    dbg_flush(a)
    stamp_flush(a)
    out += kernel(K, a.text(), 512, 256)
    return out

if __name__ == "__main__":
    path = sys.argv[1]
    STAMPS = "--stamps" in sys.argv
    for x in sys.argv[2:]:
        if "=" in x:
            k_, v_ = x.split("=", 1); OPT[k_] = v_
    open(path, "w").write(gen_fused())
```

```python
import sys
NAME = "interleave_layers__ssm_conv_h3__ssm_conv_h3__prompt"
REF = f"cdna_kernels/{NAME}.s.ref"
OPT = {}
STAMPS = False

S, D = 2048, 576
ROWB = D * 2
TENS = S * ROWB
U_OFF = 0;            U_BYTES = 2 * D * 4096
YM_OFF = U_BYTES;     YM_BYTES = 256 * 16384
YE_OFF = YM_BYTES;    YE_BYTES = 64 * 8192
Y_BYTES = YM_BYTES + YE_BYTES
F_OFF = YM_OFF + Y_BYTES
F2 = 16384; EP = 32768; F_BYTES = 32768 + 64
ST_OFF = 0xA00000
CS = 4160; HB = 4 * CS
US = 4608; U_BASE = 5 * HB
LDS_CTR = U_BASE + 5 * US
LDS_TOT = LDS_CTR + 16
Y_LDS = 0; YR = 1040; YBR = 9 * YR
T_LDS = 20480; TR = 144
E_LDS = 40960

class A:
    def __init__(self): self.l = []
    def __call__(self, s): self.l.append("    " + s)
    def label(self, s): self.l.append(s + ":")
    def text(self): return "\n".join(self.l) + "\n"

def srd(a, d, lo, hi, size, add=None):
    if add:
        a(f"s_add_u32 s{d}, s{lo}, {add}")
        a(f"s_addc_u32 s{d+1}, s{hi}, 0")
    else:
        a(f"s_mov_b32 s{d}, s{lo}")
        a(f"s_mov_b32 s{d+1}, s{hi}")
    a(f"s_mov_b32 s{d+2}, {size}")
    a(f"s_mov_b32 s{d+3}, 0x00020000")

SK, SV, SSH, SH, SU, SY, SX, SO, SF = 24, 28, 32, 36, 40, 44, 48, 52, 56
sX, sQ, sB, sP, sW = 60, 61, 62, 63, 64
sB0, sCF, sRB = 69, 70, 71
sCH, sCE, sJE, sHB, sUB, sDM, sDE, sFI, sHF, sTAG = 72, 73, 74, 75, 76, 77, 78, 79, 82, 83
vLANE, vL16, vL2 = 250, 251, 252

def stamp(a, idx, cyc=False):
    if not STAMPS: return
    a(("s_memtime" if cyc else "s_memrealtime") + " s[94:95]")
    a("s_waitcnt lgkmcnt(0)")
    a(f"v_writelane_b32 v255, s94, {idx}")
def stamp_flush(a):
    if not STAMPS: return
    srd(a, 96, 20, 21, 0x100000, ST_OFF)
    a("s_lshl_b32 s94, s2, 2")
    a(f"s_add_u32 s94, s94, s{sW}")
    a("s_lshl_b32 s94, s94, 7")
    a(f"v_lshlrev_b32 v254, 2, v{vLANE}")
    a("s_mov_b32 exec_hi, 0")
    a("buffer_store_dword v255, v254, s[96:99], s94 offen")

def dbg_flush(a):
    if OPT.get("dbg", "0") != "1": return
    srd(a, 96, 18, 19, 256)
    sel = [0, 1, 3, 4, 6, 10, 11, 13]
    for i, st in enumerate(sel):
        a(f"v_readlane_b32 s94, v255, {st}")
        a("s_nop 3")
        a(f"v_writelane_b32 v254, s94, {i}")
        a("s_not_b32 s94, s94")
        a(f"v_writelane_b32 v254, s94, {8+i}")
    a(f"v_lshlrev_b32 v253, 2, v{vLANE}")
    a(f"s_cmp_eq_u32 s{sW}, 3")
    a("s_cbranch_scc1 dbg_skip")
    a("s_mov_b64 exec, 0xffff")
    a("buffer_atomic_umax v254, v253, s[96:99], 0 offen sc1")
    a.label("dbg_skip")
    a("s_mov_b64 exec, -1")

def vr(r, n=4): return f"v[{r}:{r+n-1}]"
def ar(r, n=4): return f"a[{r}:{r+n-1}]"
def pr(r): return f"v[{r}:{r+1}]"
def sq(r): return f"s[{r}:{r+3}]"

def prologue(a, end):
    a("s_cmp_ge_u32 s2, 256")
    a(f"s_cbranch_scc1 {end}")
    a(f"s_lshr_b32 s{sB0}, s2, 7")
    a(f"s_mul_i32 s3, s{sB0}, 48")
    a("s_add_u32 s22, s0, s3")
    a("s_addc_u32 s23, s1, 0")
    a("s_load_dwordx4 s[4:7], s[22:23], 8")
    a("s_load_dwordx2 s[8:9], s[22:23], 24")
    a(f"s_and_b32 s{sX}, s2, 7")
    a(f"s_lshr_b32 s{sQ}, s2, 3")
    a(f"s_lshr_b32 s{sB}, s{sX}, 2")
    a(f"s_mul_i32 s3, s{sB}, 48")
    a("s_add_u32 s22, s0, s3")
    a("s_addc_u32 s23, s1, 0")
    a("s_load_dwordx4 s[10:13], s[22:23], 32") if False else None
    a("s_load_dwordx2 s[10:11], s[22:23], 32")
    a("s_load_dwordx2 s[12:13], s[22:23], 40")
    a("s_load_dwordx2 s[14:15], s[0:1], 0")
    a("s_load_dwordx4 s[16:19], s[0:1], 96")
    a("s_load_dwordx2 s[20:21], s[0:1], 112")
    a("v_lshrrev_b32 v1, 6, v0")
    a(f"v_and_b32 v{vLANE}, 63, v0")
    a(f"v_readfirstlane_b32 s{sW}, v1")
    a(f"v_lshlrev_b32 v{vL16}, 4, v{vLANE}")
    a(f"v_lshlrev_b32 v{vL2}, 1, v{vLANE}")
    a(f"s_and_b32 s{sCF}, s{sQ}, 1")
    a(f"s_lshr_b32 s{sRB}, s{sQ}, 1")
    a(f"s_and_b32 s{sRB}, s{sRB}, 7")
    a(f"s_lshl_b32 s3, s{sX}, 3")
    a(f"s_add_u32 s{sRB}, s{sRB}, s3")
    a(f"s_lshl_b32 s{sFI}, s{sB0}, 7")
    a(f"s_lshl_b32 s3, s{sCF}, 6")
    a(f"s_add_u32 s{sFI}, s{sFI}, s3")
    a(f"s_add_u32 s{sFI}, s{sFI}, s{sRB}")
    a(f"s_and_b32 s{sP}, s{sX}, 3")
    a(f"s_lshl_b32 s{sP}, s{sP}, 4")
    a(f"s_lshr_b32 s3, s{sQ}, 1")
    a(f"s_add_u32 s{sP}, s{sP}, s3")
    a(f"s_and_b32 s{sHF}, s{sQ}, 1")
    a(f"s_lshl_b32 s{sCH}, s{sP}, 3")
    a(f"s_lshl_b32 s3, s{sHF}, 2")
    a(f"s_add_u32 s{sCH}, s{sCH}, s3")
    a(f"s_add_u32 s{sCH}, s{sCH}, s{sW}")
    a(f"s_add_u32 s{sCE}, s{sP}, 512")
    a(f"s_lshl_b32 s{sJE}, s{sW}, 1")
    a(f"s_add_u32 s{sJE}, s{sJE}, s{sHF}")
    a(f"s_mul_i32 s{sHB}, s{sW}, {HB}")
    a(f"s_mul_i32 s{sUB}, s{sW}, {US}")
    a(f"s_add_u32 s{sUB}, s{sUB}, {U_BASE}")

def kreg(j): return 8 + 4 * j
def vreg(t): return 52 + 4 * t
def p0_addr(a):
    a("v_lshrrev_b32 v5, 2, v0")
    a("v_and_b32 v6, 3, v0")
    a(f"s_mul_i32 s65, s{sRB}, {32*ROWB}")
    a(f"s_mul_i32 s66, s{sCF}, 576")
    a("s_add_u32 s65, s65, s66")
    a(f"v_mul_u32_u24 v1, {8*ROWB}, v6")
    a("v_mul_u32_u24 v7, 12, v5")
    a("v_add3_u32 v1, v1, v7, s65")
    a(f"v_add_u32 v2, {4*ROWB}, v1")
    a(f"v_subrev_u32 v3, {3*ROWB}, v1")
    a(f"s_mul_i32 s66, s{sCF}, {288*8}")
    a("v_mul_u32_u24 v7, 48, v5")
    a("v_add_u32 v7, s66, v7")
    a(f"s_mul_i32 s65, s{sB0}, 576")
    a(f"s_mul_i32 s66, s{sCF}, 288")
    a("s_add_u32 s65, s65, s66")
    a("s_lshl_b32 s65, s65, 12")
    a("s_add_u32 s65, s65, 4080")
    a(f"s_lshl_b32 s66, s{sRB}, 6")
    a("s_sub_u32 s65, s65, s66")
    a(f"v_mul_u32_u24 v4, {6*4096}, v5")
    a("v_lshlrev_b32 v6, 4, v6")
    a("v_sub_u32 v4, v4, v6")
    a("v_add_u32 v4, s65, v4")

def p0_issue(a, fl):
    srd(a, SK, 4, 5, TENS)
    srd(a, SV, 6, 7, TENS)
    srd(a, SSH, 8, 9, D * 8)
    for j in range(3):
        a(f"buffer_load_dwordx3 v[{kreg(j)}:{kreg(j)+2}], v3, {sq(SK)}, 0 offen offset:{j*ROWB} {fl}")
    for t in range(8):
        base, off = ("v1", t * ROWB) if t < 4 else ("v2", (t - 4) * ROWB)
        a(f"buffer_load_dwordx3 v[{kreg(t+3)}:{kreg(t+3)+2}], {base}, {sq(SK)}, 0 offen offset:{off} {fl}")
        a(f"buffer_load_dwordx3 v[{vreg(t)}:{vreg(t)+2}], {base}, {sq(SV)}, 0 offen offset:{off} {fl}")
        if t == 0:
            for q in range(3):
                a(f"buffer_load_dwordx4 v[{84+4*q}:{87+4*q}], v7, {sq(SSH)}, 0 offen offset:{16*q}")

def unpack(a, dlo, dhi, src):
    a(f"v_lshlrev_b32 v{dlo}, 16, v{src}")
    a(f"v_and_b32 v{dhi}, 0xffff0000, v{src}")

def p0_compute(a, later, stflag):
    def W(p, j): return 96 + 8 * p + 2 * j
    def Kf(j, c): return 120 + 6 * j + c
    def U(t, c): return 186 + 6 * t + c
    a(f"s_waitcnt vmcnt({later + 19})")
    for j in range(3):
        for p in range(3):
            unpack(a, Kf(j, 2*p), Kf(j, 2*p+1), kreg(j) + p)
    a(f"s_waitcnt vmcnt({later + 14})")
    stamp(a, 16)
    for c in range(6):
        p, h = c >> 1, c & 1
        a(f"v_lshlrev_b32 v{W(p,0)+h}, 16, v{84+2*c}")
        a(f"v_and_b32 v{W(p,1)+h}, 0xffff0000, v{84+2*c}")
        a(f"v_lshlrev_b32 v{W(p,2)+h}, 16, v{85+2*c}")
        a(f"v_and_b32 v{W(p,3)+h}, 0xffff0000, v{85+2*c}")
    for t in range(8):
        if t: a(f"s_waitcnt vmcnt({later + 14 - 2*t})")
        if t == 7: stamp(a, 17)
        for p in range(3):
            unpack(a, Kf(t+3, 2*p), Kf(t+3, 2*p+1), kreg(t+3) + p)
            unpack(a, 234 + 2*p, 235 + 2*p, vreg(t) + p)
        for p in range(3):
            u = U(t, 2*p)
            a(f"v_pk_mul_f32 {pr(u)}, {pr(Kf(t,2*p))}, {pr(W(p,3))}")
        for jj in (2, 1, 0):
            for p in range(3):
                u = U(t, 2*p); k = Kf(t + 3 - jj, 2*p)
                a(f"v_pk_fma_f32 {pr(u)}, {pr(k)}, {pr(W(p,jj))}, {pr(u)}")
        for p in range(3):
            u = U(t, 2*p)
            a(f"v_pk_mul_f32 {pr(u)}, {pr(u)}, {pr(234+2*p)}")
    for c in range(1, 6):
        a(f"s_mov_b32 s{64+c}, {4096*c}")
    for c in range(6):
        o = 8 + 4 * c
        for q in range(4):
            a(f"v_cvt_pk_bf16_f32 v{o+q}, v{U(7-2*q, c)}, v{U(6-2*q, c)}")
        so = "0" if c == 0 else f"s{64+c}"
        a(f"buffer_store_dwordx4 {vr(o)}, v4, {sq(SU)}, {so} offen {stflag}")

ACC, ACCE, PD, PDE, FB = 8, 40, 44, 48, 56
def h_dma(a, ch, ldsbase_s, ldsconst, flag):
    a(f"s_lshl_b32 s3, s{ch}, 12")
    if ldsbase_s is not None:
        a(f"s_add_u32 s90, s{ldsbase_s}, {ldsconst + 3*CS + 32}")
        a("s_mov_b32 m0, s90")
    else:
        a(f"s_mov_b32 m0, {ldsconst + 3*CS + 32}")
    a("s_nop 0")
    for q in range(4):
        a(f"buffer_load_dwordx4 v{vL16}, {sq(SH)}, s3 offen offset:{1024*q} {flag} lds")

def h_copies(a, vR):
    Dq = lambda q: 56 + 8 * q
    for q in range(4):
        a(f"ds_read_b128 {vr(Dq(q))}, v{vR} offset:{3*CS + 32 + 1024*q}")
        a(f"ds_read_b64 {pr(Dq(q)+4)}, v{vR} offset:{3*CS + 48 + 1024*q}")
    a(f"v_sub_u32 v120, v{vR}, v{vL16}")
    a(f"ds_read_b64 v[122:123], v120 offset:{3*CS + 32}")
    for q in range(4):
        d = Dq(q); o = 16 * (q & 1); T0, T1, T2, O4 = 88 + o, 92 + o, 96 + o, 100 + o
        a(f"s_waitcnt lgkmcnt({7 + q})")
        for i in range(4):
            a(f"v_alignbit_b32 v{T0+i}, v{d+i+1}, v{d+i}, 16")
        a(f"v_alignbit_b32 v{O4}, v{d+5}, v{d+4}, 16")
        a(f"v_pk_mov_b32 {pr(T1)}, {pr(d)}, {pr(d+2)} op_sel:[1,0]")
        a(f"v_pk_mov_b32 {pr(T1+2)}, {pr(d+2)}, {pr(d+4)} op_sel:[1,0]")
        a(f"v_pk_mov_b32 {pr(T2)}, {pr(T0)}, {pr(T0+2)} op_sel:[1,0]")
        a(f"v_pk_mov_b32 {pr(T2+2)}, {pr(T0+2)}, {pr(O4)} op_sel:[1,0]")
        a(f"ds_write_b128 v{vR}, {vr(T0)} offset:{32 + 1024*q}")
        a(f"ds_write_b128 v{vR}, {vr(T1)} offset:{CS + 32 + 1024*q}")
        a(f"ds_write_b128 v{vR}, {vr(T2)} offset:{2*CS + 32 + 1024*q}")
    a(f"v_sub_u32 v121, 3, v{vLANE}")
    a("v_lshlrev_b32 v121, 4, v121")
    a("s_waitcnt lgkmcnt(12)")
    a("v_lshlrev_b64 v[122:123], v121, v[122:123]")
    a(f"v_cmp_eq_u32 vcc, 3, v{vLANE}")
    a(f"v_mul_u32_u24 v121, {CS}, v{vLANE}")
    a("v_add_u32 v118, v121, v120")
    a("v_cndmask_b32 v122, v122, 0, vcc")
    a("v_cndmask_b32 v123, v123, 0, vcc")
    a("v_mov_b32 v120, 0")
    a("v_mov_b32 v121, 0")
    a("s_mov_b64 exec, 15")
    a("ds_write_b128 v118, v[124:127]")
    a("ds_write_b128 v118, v[120:123] offset:16")
    a("s_mov_b64 exec, -1")

def p1_prep(a):
    a(f"v_add_u32 v54, s{sUB}, v{vL16}")
    a(f"s_lshl_b32 s3, s{sW}, 7")
    a(f"s_add_u32 s3, s3, {U_BASE + 4*US - 512}")
    a(f"v_add_u32 v55, s3, v{vL16}")
    a(f"v_cmp_gt_u32 vcc, 32, v{vLANE}")
    a("s_mov_b32 exec_hi, 0xff")
    a("s_nop 0")
    a("v_cndmask_b32 v54, v55, v54, vcc")
    a("ds_write_b128 v54, v[124:127] offset:4096")
    a("s_mov_b64 exec, -1")
    for ch, sv in ((sCH, sDM), (sCE, sDE)):
        a(f"s_and_b32 s3, s{ch}, 1")
        a("s_lshl_b32 s3, s3, 4")
        a(f"s_lshr_b32 s{sv}, s{sv}, s3")
        a(f"s_and_b32 s{sv}, s{sv}, 0xffff")
    a(f"v_and_b32 v1, 15, v{vLANE}")
    a(f"v_lshrrev_b32 v2, 4, v{vLANE}")
    a("v_lshlrev_b32 v3, 3, v2")
    a("v_add_u32 v3, v3, v1")
    a("v_sub_u32 v3, 15, v3")
    a("v_and_b32 v4, 1, v3")
    a("v_lshlrev_b32 v4, 4, v4")
    a("v_ashrrev_i32 v3, 1, v3")
    a(f"v_lshlrev_b32 v5, v4, s{sDM}")
    a(f"v_lshlrev_b32 v6, v4, s{sDE}")
    for q in range(4):
        a(f"v_cmp_eq_u32 vcc, {q}, v3")
        a("s_nop 1")
        a(f"v_cndmask_b32 v{PD+q}, 0, v5, vcc")
        a(f"v_cndmask_b32 v{PDE+q}, 0, v6, vcc")
    a("v_and_b32 v3, 3, v1")
    a("v_cmp_eq_u32 vcc, 3, v3")
    a(f"v_mul_u32_u24 v3, {CS}, v3")
    a("v_and_b32 v4, 12, v1")
    a("v_lshlrev_b32 v4, 1, v4")
    a("v_add_u32 v3, v3, v4")
    a("v_cndmask_b32 v4, 0, 8, vcc")
    a("v_add_u32 v3, v3, v4")
    a("v_lshl_add_u32 v3, v2, 4, v3")
    a(f"v_add_u32 v5, s{sHB}, v3")
    a(f"v_add_u32 v6, {4*HB}, v3")
    a("v_lshlrev_b32 v3, 4, v2")
    a("v_lshlrev_b32 v4, 5, v1")
    a("v_sub_u32 v3, v3, v4")
    a("v_add_u32 v3, 480, v3")
    a(f"v_add_u32 v7, s{sUB}, v3")
    a(f"s_sub_u32 s3, 7, s{sJE}")
    a("s_lshl_b32 s3, s3, 9")
    a(f"s_add_u32 s3, s3, {U_BASE + 4*US}")
    a("v_add_u32 v54, s3, v3")
    a(f"v_mul_u32_u24 v52, {TR}, v1")
    a("v_lshrrev_b32 v3, 1, v2")
    a("v_lshl_add_u32 v52, v3, 6, v52")
    a("v_and_b32 v3, 1, v2")
    a("v_lshl_add_u32 v52, v3, 3, v52")
    a(f"s_lshl_b32 s3, s{sW}, 4")
    a(f"s_add_u32 s3, s3, {T_LDS}")
    a("v_add_u32 v52, s3, v52")
    a(f"v_lshrrev_b32 v3, 3, v{vLANE}")
    a(f"v_mul_u32_u24 v53, {TR}, v3")
    a(f"v_and_b32 v3, 7, v{vLANE}")
    a("v_lshl_add_u32 v53, v3, 4, v53")
    a(f"s_mul_i32 s3, s{sW}, {32*TR}")
    a(f"s_add_u32 s3, s3, {T_LDS}")
    a("v_add_u32 v53, s3, v53")
    a(f"v_lshrrev_b32 v4, 2, v{vLANE}")
    a(f"v_and_b32 v55, 3, v{vLANE}")
    a("v_lshlrev_b32 v55, 4, v55")
    a("v_lshl_add_u32 v3, v4, 14, v55")
    a("v_lshl_add_u32 v4, v4, 13, v55")
    a(f"s_lshl_b32 s80, s{sW}, 20")
    a(f"s_lshl_b32 s3, s{sB}, 13")
    a("s_add_u32 s80, s80, s3")
    a(f"s_sub_u32 s3, s{sCH}, s{sW}")
    a("s_lshl_b32 s3, s3, 4")
    a("s_add_u32 s80, s80, s3")
    a(f"s_lshl_b32 s81, s{sJE}, 16")
    a(f"s_lshl_b32 s3, s{sB}, 12")
    a("s_add_u32 s81, s81, s3")
    a(f"s_lshl_b32 s3, s{sP}, 6")
    a("s_add_u32 s81, s81, s3")
    a(f"s_add_u32 s81, s81, {YE_OFF}")
    a("v_lshlrev_b32 v55, 5, v1")
    a("v_lshl_add_u32 v55, v2, 3, v55")
    a(f"s_lshl_b32 s3, s{sW}, 9")
    a(f"s_add_u32 s93, s3, {E_LDS}")
    a("v_add_u32 v55, s93, v55")
    a(f"v_add_u32 v253, s93, v{vL16}")

def p1_aload(a):
    for ks in range(64):
        a(f"ds_read_b64 a[{4*ks}:{4*ks+1}], v5 offset:{64*ks}")
        a(f"ds_read_b64 a[{4*ks+2}:{4*ks+3}], v5 offset:{64*ks+8}")

def u_load(a):
    a(f"s_mul_i32 s3, s{sB}, 576")
    a(f"s_add_u32 s90, s3, s{sCH}")
    a("s_lshl_b32 s90, s90, 12")
    a(f"s_add_u32 s91, s3, s{sCE}")
    a("s_lshl_b32 s91, s91, 12")
    a(f"s_lshl_b32 s3, s{sW}, 10")
    a("s_add_u32 s91, s91, s3")
    a(f"s_add_u32 s3, s3, {U_BASE + 4*US}")
def u_load_go(a):
    if OPT.get("udma", "0") == "1":
        a(f"s_mov_b32 m0, s{sUB}")
        a("s_nop 0")
        for q in range(4):
            a(f"buffer_load_dwordx4 v{vL16}, {sq(SU)}, s90 offen offset:{1024*q} sc1 lds")
        a("s_mov_b32 m0, s3")
        a("s_nop 0")
        a(f"buffer_load_dwordx4 v{vL16}, {sq(SU)}, s91 offen sc1 lds")
        a("s_waitcnt vmcnt(0)")
        return
    for q in range(4):
        a(f"buffer_load_dwordx4 {vr(88+4*q)}, v{vL16}, {sq(SU)}, s90 offen offset:{1024*q} sc1")
    a(f"buffer_load_dwordx4 v[104:107], v{vL16}, {sq(SU)}, s91 offen sc1")
    a(f"v_add_u32 v108, s{sUB}, v{vL16}")
    a(f"v_add_u32 v109, s3, v{vL16}")
    for q in range(4):
        a(f"s_waitcnt vmcnt({4-q})")
        a(f"ds_write_b128 v108, {vr(88+4*q)} offset:{1024*q}")
    a("s_waitcnt vmcnt(0)")
    a("ds_write_b128 v109, v[104:107]")
    a("s_waitcnt lgkmcnt(0)")

def F(bank, c): return FB + 32 * bank + 4 * c
def p1_main(a, stflag):
    mf = "v_mfma_f32_16x16x32_bf16"
    for c in range(8):
        a(f"ds_read_b128 {vr(F(0,c))}, v7 offset:{512*(7-c)}")
    for r in range(8):
        bank = r & 1
        fill = []
        if r < 7:
            for c in range(8):
                fill.append(f"ds_read_b128 {vr(F(bank^1,c))}, v7 offset:{64*(r+1) + 512*(7-c)}")
        else:
            for rr in range(8):
                fill.append(f"ds_read_b128 {vr(F(0,rr))}, v54 offset:{64*rr}")
        if r > 0:
            for aa in range(8):
                ks = 8 * aa + r - 1
                fill.append(f"ds_read_b64 a[{4*ks}:{4*ks+1}], v6 offset:{64*ks}")
                fill.append(f"ds_read_b64 a[{4*ks+2}:{4*ks+3}], v6 offset:{64*ks+8}")
        a("s_waitcnt lgkmcnt(0)")
        for c in range(8):
            for j in range(c, 8):
                if r == 0 and j == c:
                    a(f"{mf} {vr(ACC+4*j)}, {vr(PD)}, {vr(F(bank,c))}, " + ("0" if c == 0 else vr(ACC+4*j)))
                ks = 8 * (j - c) + r
                first = (r == 0 and c == 0 and j > 0)
                a(f"{mf} {vr(ACC+4*j)}, {ar(4*ks)}, {vr(F(bank,c))}, " + ("0" if first else vr(ACC+4*j)))
                if fill: a(fill.pop(0))
        assert not fill
    stamp(a, 7); stamp(a, 25, True)
    for aa in range(8):
        ks = 8 * aa + 7
        a(f"ds_read_b64 a[{4*ks}:{4*ks+1}], v6 offset:{64*ks}")
        a(f"ds_read_b64 a[{4*ks+2}:{4*ks+3}], v6 offset:{64*ks+8}")
    E = 88
    for j in range(8):
        a(f"v_cvt_pk_bf16_f32 v{E+2*j}, v{ACC+4*j}, v{ACC+4*j+1}")
        a(f"v_cvt_pk_bf16_f32 v{E+2*j+1}, v{ACC+4*j+2}, v{ACC+4*j+3}")
        a(f"ds_write_b64 v52, {pr(E+2*j)} offset:{16*TR*j}")
    a("s_waitcnt lgkmcnt(0)")
    a("s_barrier")
    for q in range(4):
        a(f"ds_read_b128 {vr(104+4*q)}, v53 offset:{8*TR*q}")
    def FE(bank, rr): return (FB + 4 * rr) if bank == 0 else (ACC + 4 * rr)
    pend = []
    for q in range(4):
        pend.append([f"s_add_u32 s3, s80, {q*16*16384}",
                     f"buffer_store_dwordx4 {vr(104+4*q)}, v3, {sq(SY)}, s3 offen {stflag}"])
    stamp(a, 8); stamp(a, 26, True)
    for aa in range(8):
        bank = aa & 1
        for rr in range(8):
            if aa == 0 and rr == 0:
                a(f"{mf} {vr(ACCE)}, {vr(PDE)}, {vr(FE(0,0))}, 0")
            a(f"{mf} {vr(ACCE)}, {ar(4*(8*aa+rr))}, {vr(FE(bank,rr))}, {vr(ACCE)}")
            if aa < 7:
                a(f"ds_read_b128 {vr(FE(bank^1,rr))}, v54 offset:{64*rr + 512*(aa+1)}")
            if aa == 0 and rr >= 3 and pend:
                q = 4 - len(pend)
                a(f"s_waitcnt lgkmcnt({rr + 1 + 3 - q})")
                for s_ in pend.pop(0): a(s_)
            if aa > 0 and rr < 7:
                a(f"s_waitcnt lgkmcnt({7 if aa < 7 else 6 - rr})")
        if aa < 7:
            a(f"s_cmp_eq_u32 s{sJE}, {aa}")
            a("s_cbranch_scc1 exdone")
            a("s_waitcnt lgkmcnt(7)")
    a.label("exdone")
    a("s_nop 7")
    a(f"v_cvt_pk_bf16_f32 v88, v{ACCE}, v{ACCE+1}")
    a(f"v_cvt_pk_bf16_f32 v89, v{ACCE+2}, v{ACCE+3}")
    a("ds_write_b64 v55, v[88:89]")
    a("s_mov_b32 exec_hi, 0")
    a("ds_read_b128 v[92:95], v253")
    a("s_waitcnt lgkmcnt(0)")
    a(f"buffer_store_dwordx4 v[92:95], v4, {sq(SY)}, s81 offen {stflag}")
    a("s_mov_b64 exec, -1")

Z, YA, YB, G = 128, 146, 164, 182
XR = 240
SS, QQ, RS, ND, C0 = 200, 202, 204, 206, 208
def p2_x_issue(a, flag):
    srd(a, SX, 14, 15, TENS)
    a("s_lshl_b32 s84, s2, 3")
    a(f"s_lshl_b32 s3, s{sW}, 1")
    a("s_add_u32 s84, s84, s3")
    a(f"s_mul_i32 s84, s84, {ROWB}")
    a(f"buffer_load_dwordx4 v[240:243], v{vL16}, {sq(SX)}, s84 offen {flag}")
    a(f"buffer_load_dwordx4 v[244:247], v{vL16}, {sq(SX)}, s84 offen offset:{ROWB} {flag}")
    a(f"buffer_load_ushort v248, v{vL2}, {sq(SX)}, s84 offen offset:1024 {flag}")
    a(f"buffer_load_ushort v249, v{vL2}, {sq(SX)}, s84 offen offset:{1024+ROWB} {flag}")
    return 4

def p2_sums(a):
    a(f"v_pk_add_f32 {pr(SS)}, {pr(Z)}, {pr(Z+2)}")
    a(f"v_pk_mul_f32 {pr(QQ)}, {pr(Z)}, {pr(Z)}")
    a(f"v_pk_fma_f32 {pr(QQ)}, {pr(Z+2)}, {pr(Z+2)}, {pr(QQ)}")
    for e in range(2, 9):
        a(f"v_pk_add_f32 {pr(SS)}, {pr(SS)}, {pr(Z+2*e)}")
        a(f"v_pk_fma_f32 {pr(QQ)}, {pr(Z+2*e)}, {pr(Z+2*e)}, {pr(QQ)}")

def p2_chain(a, fill):
    fill = list(fill)
    def gap(n):
        for _ in range(n):
            if fill: a(fill.pop(0))
            else: a("s_nop 0")
    T, Uq = 210, 211
    gap(2)
    a(f"v_permlane32_swap_b32 v{SS}, v{SS+1}")
    a(f"v_permlane32_swap_b32 v{QQ}, v{QQ+1}")
    a(f"v_add_f32 v{SS}, v{SS}, v{SS+1}")
    a(f"v_add_f32 v{QQ}, v{QQ}, v{QQ+1}")
    gap(2)
    a(f"v_permlane16_swap_b32 v{SS}, v{QQ}")
    a(f"v_add_f32 v{T}, v{SS}, v{QQ}")
    for m in ("quad_perm:[1,0,3,2]", "quad_perm:[2,3,0,1]", "row_half_mirror", "row_mirror"):
        gap(2)
        a(f"v_add_f32_dpp v{T}, v{T}, v{T} {m} row_mask:0xf bank_mask:0xf")
    a(f"v_mov_b32 v{Uq}, v{T}")
    gap(2)
    a(f"v_permlane16_swap_b32 v{T}, v{Uq}")
    a(f"v_mul_f32 v{T}, s86, v{T}")
    a(f"v_mul_f32 v{Uq}, s86, v{Uq}")
    a(f"v_fma_f32 v{Uq}, -v{T}, v{T}, v{Uq}")
    a(f"v_max_f32 v{Uq}, 0, v{Uq}")
    a(f"v_add_f32 v{Uq}, s87, v{Uq}")
    a(f"v_rsq_f32 v{RS}, v{Uq}")
    gap(1)
    a(f"v_mul_f32 v{ND}, v{RS}, v{T}")
    a(f"v_mov_b32 v{RS+1}, v{RS}")
    a(f"v_mov_b32 v{ND+1}, v{ND}")
    gap(2)
    a(f"v_permlane32_swap_b32 v{RS}, v{RS+1}")
    a(f"v_permlane32_swap_b32 v{ND}, v{ND+1}")
    while fill: a(fill.pop(0))

def p2_first(a):
    a("s_mov_b32 s86, 0x3ae38e39")
    a("s_mov_b32 s87, 0x3727c5ac")
    for q in range(4):
        for row in range(2):
            a(f"v_lshlrev_b32 v{Z+4*q+row}, 16, v{XR+4*row+q}")
            a(f"v_and_b32 v{Z+4*q+2+row}, 0xffff0000, v{XR+4*row+q}")
    a(f"v_lshlrev_b32 v{Z+16}, 16, v248")
    a(f"v_lshlrev_b32 v{Z+17}, 16, v249")
    a(f"v_readfirstlane_b32 s88, v{Z}")
    a(f"v_readfirstlane_b32 s89, v{Z+1}")
    a("s_nop 1")
    a(f"v_mov_b32 v{C0}, s88")
    a(f"v_mov_b32 v{C0+1}, s89")
    for e in range(9):
        a(f"v_pk_add_f32 {pr(Z+2*e)}, {pr(Z+2*e)}, {pr(C0)} neg_lo:[0,1] neg_hi:[0,1]")
    p2_sums(a)
    p2_chain(a, [])
    a(f"v_and_b32 v212, 7, v{vLANE}")
    a(f"v_mul_u32_u24 v212, {YR}, v212")
    a(f"v_lshrrev_b32 v213, 3, v{vLANE}")
    a("v_lshl_add_u32 v212, v213, 4, v212")
    a(f"s_lshr_b32 s88, s{sW}, 1")
    a(f"s_mul_i32 s89, s88, {YBR}")
    a(f"s_and_b32 s3, s{sW}, 1")
    a("s_lshl_b32 s3, s3, 9")
    a("s_add_u32 s89, s89, s3")
    a(f"s_add_u32 s89, s89, {Y_LDS}")
    a("v_add_u32 v212, s89, v212")
    a(f"s_add_u32 s89, s89, {8*YR}")
    a(f"v_add_u32 v213, s89, v{vL16}")
    a(f"v_lshlrev_b32 v214, 6, v{vLANE}")
    a("s_lshl_b32 s88, s88, 3")
    a(f"s_add_u32 s88, s88, {Y_LDS}")
    a(f"v_add_u32 v215, s88, v{vL16}")
    a("s_lshl_b32 s88, s2, 14")
    a(f"s_lshl_b32 s3, s{sW}, 12")
    a("s_add_u32 s88, s88, s3")
    a("s_lshr_b32 s89, s2, 2")
    a("s_lshl_b32 s89, s89, 13")
    a(f"s_lshl_b32 s3, s{sW}, 11")
    a("s_add_u32 s89, s89, s3")
    a("s_and_b32 s3, s2, 3")
    a("s_lshl_b32 s3, s3, 4")
    a("s_add_u32 s89, s89, s3")
    a(f"s_add_u32 s89, s89, {YE_OFF}")

def y_load(a):
    a("s_mov_b32 exec_hi, 0")
    a(f"buffer_load_dwordx4 v[24:27], v214, {sq(SY)}, s89 offen sc1")
    a("s_mov_b64 exec, -1")
    for q in range(4):
        a(f"buffer_load_dwordx4 {vr(8+4*q)}, v{vL16}, {sq(SY)}, s88 offen offset:{1024*q} sc1")
    a("s_waitcnt vmcnt(4)")
    a("s_mov_b32 exec_hi, 0")
    a("ds_write_b128 v213, v[24:27]")
    a("s_mov_b64 exec, -1")
    for q in range(4):
        a(f"s_waitcnt vmcnt({3-q})")
        a(f"ds_write_b128 v212, {vr(8+4*q)} offset:{128*q}")
    a("s_waitcnt lgkmcnt(0)")

def p2_rest(a, stflag):
    for b in range(2):
        for e in range(9):
            r = 56 + 2 * (9 * b + e)
            a(f"ds_read_b64 {pr(r)}, v215 offset:{YBR*b + YR*e}")
    a(f"s_and_b32 s90, s{sW}, 1")
    a("s_mul_i32 s90, s90, 0x04040000")
    a("s_add_u32 s91, s90, 0x03020c0c")
    a("s_add_u32 s90, s90, 0x01000c0c")
    def unp(b, e):
        r = 56 + 2 * (9 * b + e); y = (YA if b == 0 else YB) + 2 * e
        return [f"v_perm_b32 v{y}, v{r+1}, v{r}, s90", f"v_perm_b32 v{y+1}, v{r+1}, v{r}, s91"]
    for e in range(9):
        a(f"s_waitcnt lgkmcnt({min(15, 17 - e)})")
        for s_ in unp(0, e): a(s_)
        a(f"v_pk_mul_f32 {pr(G+2*e)}, {pr(Z+2*e)}, {pr(YA+2*e)}")
    def post(Y):
        for e in range(9):
            a(f"v_pk_fma_f32 {pr(Z+2*e)}, {pr(G+2*e)}, {pr(RS)}, {pr(Z+2*e)}")
        for e in range(9):
            a(f"v_pk_fma_f32 {pr(Z+2*e)}, {pr(Y+2*e)}, {pr(ND)}, {pr(Z+2*e)} neg_lo:[0,1,0] neg_hi:[0,1,0]")
    post(YA)
    a("s_waitcnt lgkmcnt(0)")
    for layer, Y in ((2, YB), (3, YA), (4, YB)):
        p2_sums(a)
        fill = []
        for e in range(9):
            if layer == 2: fill += unp(1, e)
            fill.append(f"v_pk_mul_f32 {pr(G+2*e)}, {pr(Z+2*e)}, {pr(Y+2*e)}")
        if layer == 4:
            fill += [f"v_pk_add_f32 {pr(Z+2*e)}, {pr(Z+2*e)}, {pr(C0)}" for e in range(9)]
        p2_chain(a, fill)
        a("s_nop 0")
        post(Y)
    for row in range(2):
        for q in range(4):
            a(f"v_cvt_pk_bf16_f32 v{XR+4*row+q}, v{Z+4*q+row}, v{Z+4*q+2+row}")
    a(f"v_cvt_pk_bf16_f32 v248, v{Z+16}, v{Z+17}")
    a(f"buffer_store_dwordx4 v[240:243], v{vL16}, {sq(SO)}, s84 offen {stflag}")
    a(f"buffer_store_dwordx4 v[244:247], v{vL16}, {sq(SO)}, s84 offen offset:{ROWB} {stflag}")
    a(f"buffer_store_short v248, v{vL2}, {sq(SO)}, s84 offen offset:1024 {stflag}")
    a(f"buffer_store_short_d16_hi v248, v{vL2}, {sq(SO)}, s84 offen offset:{1024+ROWB} {stflag}")

def signal(a, off_s):
    a(f"v_mov_b32 v216, s{off_s}")
    a(f"v_mov_b32 v217, s{sTAG}")
    a("s_mov_b64 exec, 1")
    a(f"buffer_store_dword v217, v216, {sq(SF)}, 0 offen sc1")
    a("s_mov_b64 exec, -1")

def poll(a, tag, vaddr, nd, mask_hi):
    a("s_mov_b32 s92, 0x20000")
    if not mask_hi: a("s_mov_b32 exec_hi, 0")
    a.label(f"{tag}_poll")
    a(f"buffer_load_dword v220, v{vaddr}, {sq(SF)}, 0 offen sc1")
    a(f"s_waitcnt vmcnt(0)")
    a(f"v_cmp_ne_u32 vcc, s{sTAG}, v220")
    a("s_and_b64 exec, exec, vcc")
    a(f"s_cbranch_execz {tag}_ok")
    if int(OPT.get("sleep", "0")): a(f"s_sleep {OPT['sleep']}")
    a("s_sub_u32 s92, s92, 1")
    a("s_cmp_lg_u32 s92, 0")
    a(f"s_cbranch_scc1 {tag}_poll")
    a.label(f"{tag}_ok")
    a("s_mov_b64 exec, -1")

def epoch_issue(a):
    a(f"v_mov_b32 v253, {EP}")
    a(f"buffer_load_dword v254, v253, {sq(SF)}, 0 offen sc1")
def epoch_use(a):
    a(f"v_readfirstlane_b32 s{sTAG}, v254")
    a(f"s_mul_i32 s{sTAG}, s{sTAG}, 0x9E3779B1")
    a(f"s_add_u32 s{sTAG}, s{sTAG}, 0x7F4A7C15")

def kernel(name, body, vgpr, accum):
    return f""".text
.globl {name}
.p2align 8
.type {name},@function
{name}:
{body}{name}_end:
    s_endpgm
.section .rodata,"a"
.p2align 6
.amdhsa_kernel {name}
  .amdhsa_next_free_vgpr {vgpr}
  .amdhsa_next_free_sgpr 102
  .amdhsa_accum_offset {accum}
  .amdhsa_group_segment_fixed_size 0
  .amdhsa_kernarg_size 120
  .amdhsa_user_sgpr_count 2
  .amdhsa_user_sgpr_kernarg_segment_ptr 1
  .amdhsa_system_sgpr_workgroup_id_x 1
.end_amdhsa_kernel
"""
def header(launches):
    hdr = [l for l in open(REF).read().split("\n") if l.startswith(";") and "@launch" not in l]
    return "\n".join(hdr) + "\n" + "\n".join(launches) + '\n.amdgcn_target "amdgcn-amd-amdhsa--gfx950"\n'

def gen_fused():
    K = NAME + "_kernel"
    out = header([f"; @launch grid=(256,1,1) block=(256,1,1) lds={LDS_TOT}"])
    a = A()
    hl = OPT.get("hld", "nt")
    stamp(a, 0)
    prologue(a, K + "_end")
    a(f"s_cmp_eq_u32 s{sW}, 3")
    a("s_cbranch_scc1 w3_path")
    p0_addr(a)
    a("s_waitcnt lgkmcnt(0)")
    stamp(a, 1)
    p0_issue(a, OPT.get("p0ld", "nt"))
    def common_srds(a):
        srd(a, SH, 10, 11, TENS)
        srd(a, SF, 20, 21, F_BYTES, F_OFF)
        srd(a, SU, 20, 21, U_BYTES, U_OFF)
        srd(a, SY, 20, 21, Y_BYTES, YM_OFF)
        srd(a, SO, 16, 17, TENS)
        a(f"s_lshr_b32 s90, s{sCH}, 1")
        a("s_lshl_b32 s90, s90, 2")
        a(f"s_lshr_b32 s91, s{sCE}, 1")
        a("s_lshl_b32 s91, s91, 2")
        a(f"s_load_dword s{sDM}, s[12:13], s90")
        a(f"s_load_dword s{sDE}, s[12:13], s91")
    common_srds(a)
    epoch_issue(a)
    a("s_barrier")
    stamp(a, 2)
    p0_compute(a, 1, OPT.get("ust", "sc1"))
    stamp(a, 3)
    for r in range(124, 128): a(f"v_mov_b32 v{r}, 0")
    a(f"v_add_u32 v119, s{sHB}, v{vL16}")
    a("s_waitcnt vmcnt(6) lgkmcnt(0)")
    epoch_use(a)
    a("s_barrier")
    h_copies(a, 119)
    a(f"v_mov_b32 v56, {LDS_CTR}")
    a("v_mov_b32 v57, 1")
    a(f"s_lshl_b32 s90, s{sFI}, 6")
    a("s_waitcnt vmcnt(0)")
    a("s_mov_b64 exec, 1")
    a("ds_add_rtn_u32 v58, v56, v57")
    a("s_waitcnt lgkmcnt(0)")
    a("v_readfirstlane_b32 s3, v58")
    a("s_mov_b64 exec, -1")
    a("s_cmp_eq_u32 s3, 2")
    a("s_cbranch_scc0 join1")
    signal(a, 90)
    stamp(a, 4)
    a("s_branch join1")
    a.label("w3_path")
    for r in range(124, 128): a(f"v_mov_b32 v{r}, 0")
    a(f"v_mov_b32 v56, {LDS_CTR}")
    a("ds_write_b32 v56, v124")
    a("s_waitcnt lgkmcnt(0)")
    common_srds(a)
    epoch_issue(a)
    a("s_barrier")
    h_dma(a, sCH, sHB, 0, hl)
    h_dma(a, sCE, None, 4 * HB, hl)
    for w in range(3):
        a(f"s_sub_u32 s91, s{sCH}, {3-w}")
        h_dma(a, 91, None, w * HB, hl)
    stamp(a, 2)
    a(f"v_add_u32 v119, s{sHB}, v{vL16}")
    a("s_waitcnt vmcnt(16) lgkmcnt(0)")
    epoch_use(a)
    h_copies(a, 119)
    a("s_waitcnt vmcnt(0)")
    a("s_barrier")
    a(f"v_add_u32 v119, {4*HB}, v{vL16}")
    h_copies(a, 119)
    stamp(a, 4)
    a.label("join1")
    p1_prep(a)
    a("s_waitcnt lgkmcnt(0)")
    p1_aload(a)
    u_load(a)
    a(f"s_lshl_b32 s92, s{sB}, 2")
    a(f"s_add_u32 s92, s92, s{sW}")
    a("s_lshl_b32 s92, s92, 11")
    a(f"v_lshlrev_b32 v218, 6, v{vLANE}")
    a("v_add_u32 v219, s92, v218")
    a(f"s_lshl_b32 s92, s{sW}, 12")
    a(f"s_add_u32 s92, s92, {F2}")
    a("v_add_u32 v218, s92, v218")
    stamp(a, 5)
    poll(a, "e1", 219, 3, False)
    a("s_barrier")
    stamp(a, 6)
    u_load_go(a)
    a("s_barrier")
    p2_x_issue(a, "nt")
    stamp(a, 9); stamp(a, 24, True)
    p1_main(a, OPT.get("yst", "sc1"))
    stamp(a, 27, True); stamp(a, 18)
    a("s_lshl_b32 s90, s2, 6")
    a(f"s_add_u32 s90, s90, {F2}")
    a("s_waitcnt vmcnt(0)")
    a("s_barrier")
    a(f"s_cmp_eq_u32 s{sW}, 0")
    a("s_cbranch_scc0 no_sig2")
    signal(a, 90)
    a.label("no_sig2")
    stamp(a, 10)
    p2_first(a)
    stamp(a, 19)
    poll(a, "e2", 218, 4, True)
    a("s_barrier")
    stamp(a, 11)
    y_load(a)
    a("s_barrier")
    stamp(a, 12)
    a(f"s_or_b32 s3, s2, s{sW}")
    a("s_cmp_eq_u32 s3, 0")
    a("s_cbranch_scc0 no_epoch")
    a(f"s_mov_b32 s3, {EP}")
    signal(a, 3)
    a.label("no_epoch")
    p2_rest(a, OPT.get("ost", ""))
    stamp(a, 13)
    dbg_flush(a)
    stamp_flush(a)
    out += kernel(K, a.text(), 512, 256)
    return out

if __name__ == "__main__":
    path = sys.argv[1]
    STAMPS = "--stamps" in sys.argv
    for x in sys.argv[2:]:
        if "=" in x:
            k_, v_ = x.split("=", 1); OPT[k_] = v_
    open(path, "w").write(gen_fused())
```

```python
import sys
NAME = "interleave_layers__ssm_conv_h3__ssm_conv_h3__prompt"
REF = f"cdna_kernels/{NAME}.s.ref"
OPT = {}
STAMPS = False
def opt(k, d): return OPT.get(k, d)

S, D = 2048, 576
ROWB = D * 2
TENS = S * ROWB
U_OFF = 0;            U_BYTES = 2 * D * 4096
YM_OFF = U_BYTES;     YM_BYTES = 256 * 16384
YE_OFF = YM_BYTES;    YE_BYTES = 64 * 8192
Y_BYTES = YM_BYTES + YE_BYTES
F_OFF = YM_OFF + Y_BYTES
F2 = 16384; EP = 32768; F_BYTES = 32768 + 64
ST_OFF = 0xA00000
CS = 4160; HB = 4 * CS
US = 4608; U_BASE = 5 * HB; UE = U_BASE + 4 * US
LDS_CTR = U_BASE + 5 * US
LDS_TOT = LDS_CTR + 16
Y_LDS = 0; YR = 1040; YBR = 9 * YR
T_LDS = 20480; TR = 144
E_LDS = 40960
R_LDS = 45056

class A:
    def __init__(self):
        self.l = []; self.reset()
    def reset(self):
        self.ln = 0; self.ld = 0; self.lt = {}
        self.vn = 0; self.vd = 0; self.vt = {}
    def __call__(self, s): self.l.append("    " + s)
    def label(self, s): self.l.append(s + ":")
    def text(self): return "\n".join(self.l) + "\n"
    def lds(self, s, tag=None):
        self(s); self.ln += 1
        if tag is not None: self.lt[tag] = self.ln
    def vm(self, s, tag=None):
        self(s); self.vn += 1
        if tag is not None: self.vt[tag] = self.vn
    def need(self, *tags):
        k = max([self.lt[t] for t in tags if t in self.lt] + [0])
        if k > self.ld:
            n = min(15, self.ln - k); self(f"s_waitcnt lgkmcnt({n})"); self.ld = self.ln - n
    def needv(self, *tags):
        k = max([self.vt[t] for t in tags] + [0])
        if k > self.vd:
            n = min(63, self.vn - k); self(f"s_waitcnt vmcnt({n})"); self.vd = self.vn - n

def srd(a, d, lo, hi, size, add=None):
    if add:
        a(f"s_add_u32 s{d}, s{lo}, {add}")
        a(f"s_addc_u32 s{d+1}, s{hi}, 0")
    else:
        a(f"s_mov_b32 s{d}, s{lo}")
        a(f"s_mov_b32 s{d+1}, s{hi}")
    a(f"s_mov_b32 s{d+2}, {size}")
    a(f"s_mov_b32 s{d+3}, 0x00020000")

SK, SV, SSH, SH, SU, SY, SX, SO, SF = 24, 28, 32, 36, 40, 44, 48, 52, 56
sX, sQ, sB, sP, sW = 60, 61, 62, 63, 64
sB0, sCF, sRB = 69, 70, 71
sCH, sCE, sJE, sHB, sUB, sDM, sDE, sFI, sHF, sTAG = 72, 73, 74, 75, 76, 77, 78, 79, 82, 83
sYM, sYE, sXO = 80, 81, 84
vLANE, vL16, vL2 = 250, 251, 252

def stamp(a, idx, cyc=False):
    if not STAMPS: return
    a(("s_memtime" if cyc else "s_memrealtime") + " s[94:95]")
    a("s_waitcnt lgkmcnt(0)")
    a(f"v_writelane_b32 v255, s94, {idx}")
def qstamp(a, i):
    if STAMPS and opt("q", "0") == "1": a(f"s_memtime s[{4+2*i}:{5+2*i}]")
def qflush(a):
    if STAMPS and opt("q", "0") == "1":
        a("s_waitcnt lgkmcnt(0)")
        for i in range(8): a(f"v_writelane_b32 v255, s{4+2*i}, {20+i if i < 4 else 24+i}")
def stamp_flush(a):
    if not STAMPS: return
    srd(a, 96, 20, 21, 0x100000, ST_OFF)
    a("s_lshl_b32 s94, s2, 2")
    a(f"s_add_u32 s94, s94, s{sW}")
    a("s_lshl_b32 s94, s94, 7")
    a(f"v_lshlrev_b32 v254, 2, v{vLANE}")
    a("s_mov_b32 exec_hi, 0")
    a("buffer_store_dword v255, v254, s[96:99], s94 offen")

def vr(r, n=4): return f"v[{r}:{r+n-1}]"
def ar(r, n=4): return f"a[{r}:{r+n-1}]"
def pr(r): return f"v[{r}:{r+1}]"
def sq(r): return f"s[{r}:{r+3}]"
DPP = "row_mask:0xf bank_mask:0xf"

def prologue(a, end):
    a("s_cmp_ge_u32 s2, 256")
    a(f"s_cbranch_scc1 {end}")
    a(f"s_lshr_b32 s{sB0}, s2, 7")
    a(f"s_mul_i32 s3, s{sB0}, 48")
    a("s_add_u32 s22, s0, s3")
    a("s_addc_u32 s23, s1, 0")
    a("s_load_dwordx4 s[4:7], s[22:23], 8")
    a("s_load_dwordx2 s[8:9], s[22:23], 24")
    a(f"s_and_b32 s{sX}, s2, 7")
    a(f"s_lshr_b32 s{sQ}, s2, 3")
    a(f"s_lshr_b32 s{sB}, s{sX}, 2")
    a(f"s_mul_i32 s3, s{sB}, 48")
    a("s_add_u32 s22, s0, s3")
    a("s_addc_u32 s23, s1, 0")
    a("s_load_dwordx2 s[10:11], s[22:23], 32")
    a("s_load_dwordx2 s[12:13], s[22:23], 40")
    a("s_load_dwordx2 s[14:15], s[0:1], 0")
    a("s_load_dwordx4 s[16:19], s[0:1], 96")
    a("s_load_dwordx2 s[20:21], s[0:1], 112")
    a("v_lshrrev_b32 v1, 6, v0")
    a(f"v_and_b32 v{vLANE}, 63, v0")
    a(f"v_readfirstlane_b32 s{sW}, v1")
    a(f"v_lshlrev_b32 v{vL16}, 4, v{vLANE}")
    a(f"v_lshlrev_b32 v{vL2}, 1, v{vLANE}")
    a(f"s_and_b32 s{sCF}, s{sQ}, 1")
    a(f"s_lshr_b32 s{sRB}, s{sQ}, 1")
    a(f"s_and_b32 s{sRB}, s{sRB}, 7")
    a(f"s_lshl_b32 s3, s{sX}, 3")
    a(f"s_add_u32 s{sRB}, s{sRB}, s3")
    a(f"s_lshl_b32 s{sFI}, s{sB0}, 7")
    a(f"s_lshl_b32 s3, s{sCF}, 6")
    a(f"s_add_u32 s{sFI}, s{sFI}, s3")
    a(f"s_add_u32 s{sFI}, s{sFI}, s{sRB}")
    a(f"s_and_b32 s{sP}, s{sX}, 3")
    a(f"s_lshl_b32 s{sP}, s{sP}, 4")
    a(f"s_lshr_b32 s3, s{sQ}, 1")
    a(f"s_add_u32 s{sP}, s{sP}, s3")
    a(f"s_and_b32 s{sHF}, s{sQ}, 1")
    a(f"s_lshl_b32 s{sCH}, s{sP}, 3")
    a(f"s_lshl_b32 s3, s{sHF}, 2")
    a(f"s_add_u32 s{sCH}, s{sCH}, s3")
    a(f"s_add_u32 s{sCH}, s{sCH}, s{sW}")
    a(f"s_add_u32 s{sCE}, s{sP}, 512")
    a(f"s_cmp_eq_u32 s{sHF}, 0")
    a(f"s_cselect_b32 s{sJE}, 0x7520, 0x6431") if False else None
    a("s_mov_b32 s3, 0x6431")
    a(f"s_cselect_b32 s{sJE}, 0x7520, s3")
    a(f"s_lshl_b32 s3, s{sW}, 2")
    a(f"s_lshr_b32 s{sJE}, s{sJE}, s3")
    a(f"s_and_b32 s{sJE}, s{sJE}, 7")
    a(f"s_mul_i32 s{sHB}, s{sW}, {HB}")
    a(f"s_mul_i32 s{sUB}, s{sW}, {US}")
    a(f"s_add_u32 s{sUB}, s{sUB}, {U_BASE}")

def kraw(t): return 8 + 4 * t
def hraw(j): return 40 + 4 * j
def vraw(t): return 52 + 4 * t
def p0_addr(a):
    a("v_lshrrev_b32 v5, 2, v0")
    a("v_and_b32 v6, 3, v0")
    a(f"s_mul_i32 s65, s{sRB}, {32*ROWB}")
    a(f"s_mul_i32 s66, s{sCF}, 576")
    a("s_add_u32 s65, s65, s66")
    a(f"v_mul_u32_u24 v1, {8*ROWB}, v6")
    a("v_mul_u32_u24 v7, 12, v5")
    a("v_add3_u32 v1, v1, v7, s65")
    a(f"v_add_u32 v2, {4*ROWB}, v1")
    a(f"v_subrev_u32 v3, {3*ROWB}, v1")
    a(f"s_mul_i32 s66, s{sCF}, {288*8}")
    a("v_mul_u32_u24 v7, 48, v5")
    a("v_lshl_add_u32 v7, v6, 4, v7")
    a("v_add_u32 v7, s66, v7")
    a(f"s_mul_i32 s65, s{sB0}, 576")
    a(f"s_mul_i32 s66, s{sCF}, 288")
    a("s_add_u32 s65, s65, s66")
    a("s_lshl_b32 s65, s65, 12")
    a("s_add_u32 s65, s65, 4080")
    a(f"s_lshl_b32 s66, s{sRB}, 6")
    a("s_sub_u32 s65, s65, s66")
    a(f"v_mul_u32_u24 v4, {6*4096}, v5")
    a("v_lshlrev_b32 v6, 4, v6")
    a("v_sub_u32 v4, v4, v6")
    a("v_add_u32 v4, s65, v4")
    a("s_mov_b32 s66, 0x11111111")
    a("s_mov_b32 s67, 0x11111111")
    a("s_mov_b32 s68, 0x77777777")

def p0_issue(a, fl):
    srd(a, SK, 4, 5, TENS)
    srd(a, SV, 6, 7, TENS)
    srd(a, SSH, 8, 9, D * 8)
    def row(t): return ("v1", t * ROWB) if t < 4 else ("v2", (t - 4) * ROWB)
    def ldk(t):
        b, o = row(t); a.vm(f"buffer_load_dwordx3 v[{kraw(t)}:{kraw(t)+2}], {b}, {sq(SK)}, 0 offen offset:{o} {fl}", f"K{t}")
    def ldv(t):
        b, o = row(t); a.vm(f"buffer_load_dwordx3 v[{vraw(t)}:{vraw(t)+2}], {b}, {sq(SV)}, 0 offen offset:{o} {fl}", f"V{t}")
    for t in (5, 6, 7): ldk(t)
    a("s_mov_b64 exec, s[66:67]")
    for j in range(3):
        a.vm(f"buffer_load_dwordx3 v[{hraw(j)}:{hraw(j)+2}], v3, {sq(SK)}, 0 offen offset:{j*ROWB} {fl}", f"H{j}")
    a("s_mov_b32 exec_lo, s68")
    a("s_mov_b32 exec_hi, s68")
    a.vm(f"buffer_load_dwordx4 v[84:87], v7, {sq(SSH)}, 0 offen", "W")
    a("s_mov_b64 exec, -1")
    for t in range(5): ldk(t); ldv(t)
    for t in (5, 6, 7): ldv(t)

def unpack(a, dlo, dhi, src):
    a(f"v_lshlrev_b32 v{dlo}, 16, v{src}")
    a(f"v_and_b32 v{dhi}, 0xffff0000, v{src}")

def p0_compute(a, stflag):
    def W(p, j): return 96 + 8 * p + 2 * j
    def Kf(j, c): return 120 + 6 * j + c
    def U(t, c): return 186 + 6 * (t & 3) + c
    def OUT(c): return 212 + 4 * c
    VT = 236
    a("s_mov_b64 vcc, s[66:67]")
    a("v_mov_b32 v88, 0xffff0000")
    for c in range(1, 6):
        a(f"s_mov_b32 s{64+c}, {4096*c}")
    for t in (5, 6, 7):
        a.needv(f"K{t}")
        for p in range(3): unpack(a, Kf(t+3, 2*p), Kf(t+3, 2*p+1), kraw(t) + p)
    for j in range(3):
        a.needv(f"H{j}")
        for p in range(3):
            a(f"v_cndmask_b32_dpp v{hraw(j)+p}, v{kraw(5+j)+p}, v{hraw(j)+p}, vcc quad_perm:[0,0,1,2] {DPP}")
        for p in range(3): unpack(a, Kf(j, 2*p), Kf(j, 2*p+1), hraw(j) + p)
    a.needv("W")
    stamp(a, 16)
    for c in range(6):
        p, h = c >> 1, c & 1
        for half in range(2):
            i = 2 * c + half; s_ = i >> 2; qp = f"quad_perm:[{s_},{s_},{s_},{s_}] {DPP}"
            a(f"v_cvt_f32_bf16_dpp v{W(p,2*half)+h}, v{84+(i&3)} {qp}")
            a(f"v_and_b32_dpp v{W(p,2*half+1)+h}, v{84+(i&3)}, v88 {qp}")
    def ksum(t):
        for p in range(3):
            a(f"v_pk_mul_f32 {pr(U(t,2*p))}, {pr(Kf(t,2*p))}, {pr(W(p,3))}")
        for jj in (2, 1, 0):
            for p in range(3):
                a(f"v_pk_fma_f32 {pr(U(t,2*p))}, {pr(Kf(t+3-jj,2*p))}, {pr(W(p,jj))}, {pr(U(t,2*p))}")
    def vmul(t):
        a.needv(f"V{t}")
        if t == 7: stamp(a, 17)
        for p in range(3): unpack(a, VT + 2*p, VT + 2*p + 1, vraw(t) + p)
        for p in range(3):
            a(f"v_pk_mul_f32 {pr(U(t,2*p))}, {pr(U(t,2*p))}, {pr(VT+2*p)}")
    def cvt(t):
        q = (7 - t) // 2
        for c in range(6):
            a(f"v_cvt_pk_bf16_f32 v{OUT(c)+q}, v{U(t, c)}, v{U(t-1, c)}")
            if t == 7:
                so = "0" if c == 0 else f"s{64+c}"
                a.vm(f"buffer_store_dwordx4 {vr(OUT(c))}, v4, {sq(SU)}, {so} offen {stflag}")
    for t in range(5):
        a.needv(f"K{t}")
        for p in range(3): unpack(a, Kf(t+3, 2*p), Kf(t+3, 2*p+1), kraw(t) + p)
        ksum(t)
        if t == 4:
            for tt in (5, 6, 7): ksum(tt)
        vmul(t)
        if t & 1: cvt(t)
    for t in (5, 6, 7):
        vmul(t)
        if t & 1: cvt(t)

ACC, ACCE, FB, AE, FE0, PD, EV = 8, 40, 56, 120, 184, 216, 220
vTW, vTR, vFE, vEW, vER, vRW, vRR, vUD, vP1, vP2, vYM, vYE, vYG, vYR = range(224, 238)
RED, UD, STG, ES, TRD, YP, XR = 120, 136, 138, 140, 144, 152, 172
TJ = ((0, 2, 5, 7), (1, 3, 4, 6))

def h_dma(a, ch, ldsbase_s, ldsconst, flag, tag):
    a(f"s_lshl_b32 s3, s{ch}, 12")
    if ldsbase_s is not None:
        a(f"s_add_u32 s90, s{ldsbase_s}, {ldsconst + 3*CS + 32}")
        a("s_mov_b32 m0, s90")
    else:
        a(f"s_mov_b32 m0, {ldsconst + 3*CS + 32}")
    a("s_nop 0")
    for q in range(4):
        a.vm(f"buffer_load_dwordx4 v{vL16}, {sq(SH)}, s3 offen offset:{1024*q} {flag} lds", tag)

def h_copies(a, vR):
    Dq = lambda q: 56 + 8 * q
    for q in range(4):
        a(f"ds_read_b128 {vr(Dq(q))}, v{vR} offset:{3*CS + 32 + 1024*q}")
        a(f"ds_read_b64 {pr(Dq(q)+4)}, v{vR} offset:{3*CS + 48 + 1024*q}")
    a(f"v_sub_u32 v120, v{vR}, v{vL16}")
    a(f"ds_read_b64 v[122:123], v120 offset:{3*CS + 32}")
    for q in range(4):
        d = Dq(q); o = 16 * (q & 1); T0, T1, T2, O4 = 88 + o, 92 + o, 96 + o, 100 + o
        a(f"s_waitcnt lgkmcnt({7 + q})")
        for i in range(4):
            a(f"v_alignbit_b32 v{T0+i}, v{d+i+1}, v{d+i}, 16")
        a(f"v_alignbit_b32 v{O4}, v{d+5}, v{d+4}, 16")
        a(f"v_pk_mov_b32 {pr(T1)}, {pr(d)}, {pr(d+2)} op_sel:[1,0]")
        a(f"v_pk_mov_b32 {pr(T1+2)}, {pr(d+2)}, {pr(d+4)} op_sel:[1,0]")
        a(f"v_pk_mov_b32 {pr(T2)}, {pr(T0)}, {pr(T0+2)} op_sel:[1,0]")
        a(f"v_pk_mov_b32 {pr(T2+2)}, {pr(T0+2)}, {pr(O4)} op_sel:[1,0]")
        a(f"ds_write_b128 v{vR}, {vr(T0)} offset:{32 + 1024*q}")
        a(f"ds_write_b128 v{vR}, {vr(T1)} offset:{CS + 32 + 1024*q}")
        a(f"ds_write_b128 v{vR}, {vr(T2)} offset:{2*CS + 32 + 1024*q}")
    a(f"v_sub_u32 v121, 3, v{vLANE}")
    a("v_lshlrev_b32 v121, 4, v121")
    a("s_waitcnt lgkmcnt(12)")
    a("v_lshlrev_b64 v[122:123], v121, v[122:123]")
    a(f"v_cmp_eq_u32 vcc, 3, v{vLANE}")
    a(f"v_mul_u32_u24 v121, {CS}, v{vLANE}")
    a("v_add_u32 v118, v121, v120")
    a("v_cndmask_b32 v122, v122, 0, vcc")
    a("v_cndmask_b32 v123, v123, 0, vcc")
    a("v_mov_b32 v120, 0")
    a("v_mov_b32 v121, 0")
    a("s_mov_b64 exec, 15")
    a("ds_write_b128 v118, v[124:127]")
    a("ds_write_b128 v118, v[120:123] offset:16")
    a("s_mov_b64 exec, -1")

def p1_prep_a(a):
    a(f"v_and_b32 v1, 15, v{vLANE}")
    a(f"v_lshrrev_b32 v2, 4, v{vLANE}")
    a("v_and_b32 v3, 3, v1")
    a("v_cmp_eq_u32 vcc, 3, v3")
    a(f"v_mul_u32_u24 v3, {CS}, v3")
    a("v_and_b32 v4, 12, v1")
    a("v_lshlrev_b32 v4, 1, v4")
    a("v_add_u32 v3, v3, v4")
    a("v_cndmask_b32 v4, 0, 8, vcc")
    a("v_add_u32 v3, v3, v4")
    a("v_lshl_add_u32 v3, v2, 4, v3")
    a(f"v_add_u32 v5, s{sHB}, v3")
    a(f"s_lshl_b32 s93, s{sW}, 7")
    a(f"s_add_u32 s3, s93, {4*HB}")
    a("v_add_u32 v6, s3, v3")

def p1_prep_b(a):
    a(f"v_add_u32 v8, s{sUB}, v{vL16}")
    a(f"s_add_u32 s3, s93, {UE - 512}")
    a(f"v_add_u32 v9, s3, v{vL16}")
    a(f"v_cmp_gt_u32 vcc, 32, v{vLANE}")
    a("s_mov_b32 exec_hi, 0xff")
    a("s_nop 0")
    a("v_cndmask_b32 v8, v9, v8, vcc")
    a("ds_write_b128 v8, v[124:127] offset:4096")
    a("s_mov_b64 exec, -1")
    for ch, sv in ((sCH, sDM), (sCE, sDE)):
        a(f"s_and_b32 s3, s{ch}, 1")
        a("s_lshl_b32 s3, s3, 4")
        a(f"s_lshr_b32 s{sv}, s{sv}, s3")
        a(f"s_and_b32 s{sv}, s{sv}, 0xffff")
    a(f"s_lshl_b32 s{sDE}, s{sDE}, 16")
    a("v_lshlrev_b32 v3, 3, v2")
    a("v_add_u32 v3, v3, v1")
    a("v_sub_u32 v3, 15, v3")
    a("v_and_b32 v4, 1, v3")
    a("v_lshlrev_b32 v4, 4, v4")
    a("v_ashrrev_i32 v3, 1, v3")
    a(f"v_lshlrev_b32 v8, v4, s{sDM}")
    for q in range(4):
        a(f"v_cmp_eq_u32 vcc, {q}, v3")
        a("s_nop 1")
        a(f"v_cndmask_b32 v{PD+q}, 0, v8, vcc")
    a("v_lshlrev_b32 v3, 4, v2")
    a("v_lshlrev_b32 v4, 5, v1")
    a("v_sub_u32 v3, v3, v4")
    a("v_add_u32 v3, 480, v3")
    a(f"v_add_u32 v7, s{sUB}, v3")
    a(f"s_add_u32 s3, s93, {UE}")
    a(f"v_add_u32 v{vFE}, s3, v3")
    a("v_lshlrev_b32 v3, 3, v2")
    a("v_add_u32 v3, v3, v4")
    a(f"s_lshl_b32 s3, s{sJE}, 9")
    a(f"s_sub_u32 s3, {UE + 4088}, s3")
    a(f"v_sub_u32 v{vUD}, s3, v3")
    a(f"s_lshl_b32 s3, s{sW}, 9")
    a(f"s_add_u32 s3, s3, {E_LDS}")
    a(f"v_add_u32 v{vEW}, s3, v3")
    a(f"v_add_u32 v{vER}, s3, v{vL16}")
    a(f"s_lshl_b32 s3, s{sW}, 10")
    a(f"s_add_u32 s3, s3, {R_LDS}")
    a(f"v_add_u32 v{vRW}, s3, v{vL16}")
    a(f"s_lshl_b32 s3, s{sW}, 12")
    a(f"s_add_u32 s3, s3, {R_LDS}")
    a(f"v_add_u32 v{vRR}, s3, v{vL16}")
    a(f"v_mul_u32_u24 v{vTW}, {TR}, v1")
    a("v_lshrrev_b32 v3, 1, v2")
    a(f"v_lshl_add_u32 v{vTW}, v3, 6, v{vTW}")
    a("v_and_b32 v3, 1, v2")
    a(f"v_lshl_add_u32 v{vTW}, v3, 3, v{vTW}")
    a(f"s_lshl_b32 s3, s{sW}, 4")
    a(f"s_add_u32 s3, s3, {T_LDS}")
    a(f"v_add_u32 v{vTW}, s3, v{vTW}")
    a(f"v_lshrrev_b32 v3, 3, v{vLANE}")
    a(f"v_mul_u32_u24 v{vTR}, {TR}, v3")
    a(f"v_and_b32 v4, 7, v{vLANE}")
    a(f"v_lshl_add_u32 v{vTR}, v4, 4, v{vTR}")
    a(f"s_mul_i32 s3, s{sW}, {8*TR}")
    a(f"s_add_u32 s3, s3, {T_LDS}")
    a(f"v_add_u32 v{vTR}, s3, v{vTR}")
    a(f"v_mul_u32_u24 v{vYM}, {YR}, v4")
    a(f"v_lshl_add_u32 v{vYM}, v3, 4, v{vYM}")
    a(f"s_lshr_b32 s88, s{sW}, 1")
    a(f"s_mul_i32 s89, s88, {YBR}")
    a(f"s_and_b32 s3, s{sW}, 1")
    a("s_lshl_b32 s3, s3, 9")
    a("s_add_u32 s89, s89, s3")
    a(f"s_add_u32 s89, s89, {Y_LDS}")
    a(f"v_add_u32 v{vYM}, s89, v{vYM}")
    a(f"s_add_u32 s89, s89, {8*YR}")
    a(f"v_add_u32 v{vYE}, s89, v{vL16}")
    a(f"v_lshlrev_b32 v{vYG}, 6, v{vLANE}")
    a("s_lshl_b32 s88, s88, 3")
    a(f"s_add_u32 s88, s88, {Y_LDS}")
    a(f"v_add_u32 v{vYR}, s88, v{vL16}")
    a("s_lshl_b32 s88, s2, 14")
    a(f"s_lshl_b32 s3, s{sW}, 12")
    a("s_add_u32 s88, s88, s3")
    a("s_lshr_b32 s89, s2, 2")
    a("s_lshl_b32 s89, s89, 13")
    a(f"s_lshl_b32 s3, s{sW}, 11")
    a("s_add_u32 s89, s89, s3")
    a("s_and_b32 s3, s2, 3")
    a("s_lshl_b32 s3, s3, 4")
    a("s_add_u32 s89, s89, s3")
    a(f"s_add_u32 s89, s89, {YE_OFF}")
    a(f"v_lshrrev_b32 v4, 2, v{vLANE}")
    a(f"v_and_b32 v8, 3, v{vLANE}")
    a("v_lshlrev_b32 v8, 4, v8")
    a("v_lshl_add_u32 v3, v4, 14, v8")
    a("v_lshl_add_u32 v4, v4, 13, v8")
    a(f"s_lshl_b32 s{sYM}, s{sW}, 18")
    a(f"s_lshl_b32 s3, s{sB}, 13")
    a(f"s_add_u32 s{sYM}, s{sYM}, s3")
    a(f"s_sub_u32 s3, s{sCH}, s{sW}")
    a("s_lshl_b32 s3, s3, 4")
    a(f"s_add_u32 s{sYM}, s{sYM}, s3")
    a(f"s_lshl_b32 s{sYE}, s{sJE}, 16")
    a(f"s_lshl_b32 s3, s{sB}, 12")
    a(f"s_add_u32 s{sYE}, s{sYE}, s3")
    a(f"s_lshl_b32 s3, s{sP}, 6")
    a(f"s_add_u32 s{sYE}, s{sYE}, s3")
    a(f"s_add_u32 s{sYE}, s{sYE}, {YE_OFF}")
    srd(a, SX, 14, 15, TENS)
    a(f"s_lshl_b32 s{sXO}, s2, 3")
    a(f"s_lshl_b32 s3, s{sW}, 1")
    a(f"s_add_u32 s{sXO}, s{sXO}, s3")
    a(f"s_mul_i32 s{sXO}, s{sXO}, {ROWB}")
    a(f"s_mul_i32 s3, s{sB}, 576")
    a(f"s_add_u32 s90, s3, s{sCH}")
    a("s_lshl_b32 s90, s90, 12")
    a(f"s_add_u32 s91, s3, s{sCE}")
    a("s_lshl_b32 s91, s91, 12")
    a(f"s_lshl_b32 s85, s{sW}, 10")
    a("s_add_u32 s91, s91, s85")
    a(f"s_add_u32 s85, s85, {UE}")
    if opt("x2", "sent") == "sent":
        a(f"s_lshl_b32 s92, s{sW}, 12")
        a(f"v_add_u32 v{vP1}, s92, v{vYG}")
    else:
        a(f"s_lshl_b32 s92, s{sB}, 2")
        a(f"s_add_u32 s92, s92, s{sW}")
        a("s_lshl_b32 s92, s92, 11")
        a(f"v_add_u32 v{vP1}, s92, v{vYG}")
        a(f"s_lshl_b32 s92, s{sW}, 12")
        a(f"s_add_u32 s92, s92, {F2}")
        a(f"v_add_u32 v{vP2}, s92, v{vYG}")
    a("s_mov_b32 s86, 0x3ae38e39")
    a("s_mov_b32 s87, 0x3727c5ac")

def p1_aload(a):
    for aa in range(8):
        for r in range(8):
            ks = 8 * aa + r
            a(f"ds_read_b64 a[{4*ks}:{4*ks+1}], v5 offset:{64*ks}")
            a(f"ds_read_b64 a[{4*ks+2}:{4*ks+3}], v5 offset:{64*ks+8}")

def F(bank, c): return FB + 32 * bank + 4 * c
MF = "v_mfma_f32_16x16x32_bf16"

def p1_mfma(a, stflag):
    sent = opt("x2", "sent") == "sent"
    a(f"s_mov_b32 m0, s{sUB}")
    a("s_nop 0")
    for q in (3, 2, 1, 0):
        a.vm(f"buffer_load_dwordx4 v{vL16}, {sq(SU)}, s90 offen offset:{1024*q} sc1 lds", f"U{q}")
    a("s_mov_b32 m0, s85")
    a("s_nop 0")
    a.vm(f"buffer_load_dwordx4 v{vL16}, {sq(SU)}, s91 offen sc1 lds", "UE")
    inited = set()
    def mfma(acc, A_, B_, needs):
        a.need(*needs)
        c = vr(acc) if acc in inited else "0"
        inited.add(acc)
        a(f"{MF} {vr(acc)}, {A_}, {vr(B_)}, {c}")
    def fread(bank, c, r, tag):
        return lambda: a.lds(f"ds_read_b128 {vr(F(bank,c))}, v7 offset:{64*r + 512*(7-c)}", tag)
    def aeread(rp, aa, half):
        return lambda: a.lds(f"ds_read_b64 {pr(AE+32*rp+4*aa+2*half)}, v6 offset:{512*aa + 64*rp + 8*half}", ("AE", rp, aa))
    def FEr(rp, c): return (FE0 + 4 * c) if rp == 0 else F(1, c)
    def feread(rp, c):
        return lambda: a.lds(f"ds_read_b128 {vr(FEr(rp,c))}, v{vFE} offset:{64*rp + 512*(7-c)}", ("FE", rp, c))
    def I(s): return lambda: a(s)
    evc = [0]
    def conv(j):
        e = EV + 2 * (evc[0] & 1); evc[0] += 1
        ops = [I(f"v_cvt_pk_bf16_f32 v{e}, v{ACC+4*j}, v{ACC+4*j+1}"), I(f"v_cvt_pk_bf16_f32 v{e+1}, v{ACC+4*j+2}, v{ACC+4*j+3}")]
        if sent: ops += [I(f"v_min_u32 v{e}, -2, v{e}"), I(f"v_min_u32 v{e+1}, -2, v{e+1}")]
        ops.append(lambda: a.lds(f"ds_write_b64 v{vTW}, {pr(e)} offset:{16*TR*j}", ("TW", j)))
        return ops
    def barrier(*tags):
        def f():
            a.need(*tags); a("s_barrier")
        return f
    def tread(k, reg): return lambda: a.lds(f"ds_read_b128 {vr(reg)}, v{vTR} offset:{32*TR*k}", ("TRD", k))
    def tstore(k, reg):
        def f():
            a(f"s_add_u32 s3, s{sYM}, {k*64*16384}")
            a.need(("TRD", k))
            a.vm(f"buffer_store_dwordx4 {vr(reg)}, v3, {sq(SY)}, s3 offen {stflag}")
        return f
    def run(items, plan):
        for n, it in enumerate(items):
            mfma(*it)
            for op in plan.pop(n, []): op()
        assert not plan, plan.keys()
    def put(plan, start, ops, per=1):
        for i, op in enumerate(ops):
            plan.setdefault(start + i // per, []).append(op)
    def passblk(J, r, pname):
        bank = r & 1; items = []
        order = [(c, j) for c in range(max(J) + 1) for j in J if j >= c]
        if pname == "c" and r == 7:
            order = [(c, 6) for c in range(7)] + [(c, 7) for c in range(8)]
        for c, j in order:
            tg = [("F", pname, r, c)]
            if r == 0 and j == c: items.append((ACC + 4*j, vr(PD), F(bank, c), tg))
            items.append((ACC + 4*j, ar(4 * (8 * (j - c) + r)), F(bank, c), tg))
        return items
    ae_ops = [aeread(rp, aa, h) for rp in range(2) for aa in range(8) for h in range(2)]
    for op in ae_ops[:8]: op()
    ae_ops = ae_ops[8:]
    a.needv("U2")
    stamp(a, 9); stamp(a, 24, True)
    for c in range(4): fread(0, c, 0, ("F", "a", 0, c))()
    for r in range(8):
        plan = {}
        if r < 7: put(plan, 0, [fread((r+1) & 1, c, r + 1, ("F", "a", r + 1, c)) for c in range(4)])
        else: put(plan, 0, [fread(0, c, 0, ("F", "b", 0, c)) for c in range(6)])
        if r < 4: put(plan, 4, ae_ops[6*r: 6*r + 6])
        if r == 4: put(plan, 5, [lambda: (a.needv("UE"), a("s_barrier"))])
        if r == 5: put(plan, 4, [feread(0, c) for c in range(4)])
        if r == 6: put(plan, 4, [feread(0, c) for c in range(4, 8)])
        run(passblk((0, 1, 2, 3), r, "a"), plan)
        if r == 3: qstamp(a, 0)
        if r == 4: qstamp(a, 1)
        if r == 7: qstamp(a, 2)
    a(f"s_cmp_eq_u32 s{sHF}, 1")
    a("s_cbranch_scc1 ex_h1")
    save = (a.ln, a.ld, dict(a.lt), evc[0], set(inited))
    for h in range(2):
        if h == 1:
            a("s_branch ex_join")
            a.label("ex_h1")
            end0 = (a.ln, a.ld)
            a.ln, a.ld, a.lt, evc[0], inited = save[0], save[1], dict(save[2]), save[3], set(save[4])
        items = []
        for rp in range(2):
            for c in range(8):
                for s_, j in enumerate(TJ[h]):
                    if j >= c:
                        items.append((ACCE + 4*s_, vr(AE + 32*rp + 4*(j - c)), FEr(rp, c), [("AE", rp, j - c), ("FE", rp, c)]))
        assert len(items) == 36
        plan = {}
        put(plan, 0, [feread(1, c) for c in range(8)])
        put(plan, 9, conv(0) + conv(1) + conv(2) + conv(3))
        run(items, plan)
    a.label("ex_join")
    qstamp(a, 3)
    assert a.ln == end0[0]
    a.ld = min(a.ld, end0[1])
    red = [I(f"v_pk_add_f32 {pr(RED)}, {pr(RED)}, {pr(RED+4)}"), I(f"v_pk_add_f32 {pr(RED+2)}, {pr(RED+2)}, {pr(RED+6)}"),
           I(f"v_pk_add_f32 {pr(RED+8)}, {pr(RED+8)}, {pr(RED+12)}"), I(f"v_pk_add_f32 {pr(RED+10)}, {pr(RED+10)}, {pr(RED+14)}"),
           I(f"v_pk_add_f32 {pr(RED)}, {pr(RED)}, {pr(RED+8)}"), I(f"v_pk_add_f32 {pr(RED+2)}, {pr(RED+2)}, {pr(RED+10)}"),
           I(f"v_and_b32 v{RED+4}, 0xffff0000, v{UD+1}"), I(f"v_lshlrev_b32 v{RED+5}, 16, v{UD+1}"),
           I(f"v_and_b32 v{RED+6}, 0xffff0000, v{UD}"), I(f"v_lshlrev_b32 v{RED+7}, 16, v{UD}")]
    red += [I(f"v_fmac_f32 v{RED+i}, s{sDE}, v{RED+4+i}") for i in range(4)]
    red += [I(f"v_cvt_pk_bf16_f32 v{STG}, v{RED}, v{RED+1}"), I(f"v_cvt_pk_bf16_f32 v{STG+1}, v{RED+2}, v{RED+3}")]
    if sent: red += [I(f"v_min_u32 v{STG}, -2, v{STG}"), I(f"v_min_u32 v{STG+1}, -2, v{STG+1}")]
    red += [lambda: a.lds(f"ds_write_b64 v{vEW}, {pr(STG)}"), lambda: a.lds(f"ds_read_b128 {vr(ES)}, v{vER}", "ES")]
    def estore():
        a.need("ES"); a("s_mov_b32 exec_hi, 0")
        a.vm(f"buffer_store_dwordx4 {vr(ES)}, v4, {sq(SY)}, s{sYE} offen {stflag}")
        a("s_mov_b64 exec, -1")
    xl = [lambda: a.vm(f"buffer_load_dwordx4 {vr(XR)}, v{vL16}, {sq(SX)}, s{sXO} offen nt"),
          lambda: a.vm(f"buffer_load_dwordx4 {vr(XR+4)}, v{vL16}, {sq(SX)}, s{sXO} offen offset:{ROWB} nt"),
          lambda: a.vm(f"buffer_load_ushort v{XR+8}, v{vL2}, {sq(SX)}, s{sXO} offen offset:1024 nt"),
          lambda: a.vm(f"buffer_load_ushort v{XR+9}, v{vL2}, {sq(SX)}, s{sXO} offen offset:{1024+ROWB} nt", "X")]
    for r in range(8):
        plan = {}
        if r < 7: put(plan, 0, [fread((r+1) & 1, c, r + 1, ("F", "b", r + 1, c)) for c in range(6)])
        else: put(plan, 0, [fread(0, c, 0, ("F", "c", 0, c)) for c in range(8)])
        if r == 0: put(plan, 8, [(lambda s_: lambda: a.lds(f"ds_write_b128 v{vRW}, {vr(ACCE+4*s_)} offset:{4096*s_}", ("RW", s_)))(s_) for s_ in range(4)])
        if r == 1: put(plan, 9, [barrier(("RW", 3), ("TW", 3))])
        if r == 2:
            put(plan, 6, [tread(0, TRD), tread(1, TRD + 4)] +
                [(lambda i: lambda: a.lds(f"ds_read_b128 {vr(RED+4*i)}, v{vRR} offset:{1024*i}", ("RR", i)))(i) for i in range(3)])
        if r == 3:
            put(plan, 6, [lambda: a.lds(f"ds_read_b128 {vr(RED+12)}, v{vRR} offset:3072", ("RR", 3)),
                          lambda: a.lds(f"ds_read_b64 {pr(UD)}, v{vUD}", "UD"), tstore(0, TRD), tstore(1, TRD + 4)])
        if r == 4:
            put(plan, 5, [lambda: a.need("UD")])
            put(plan, 6, red[:10], 2)
        if r == 5: put(plan, 6, red[10:], 2)
        if r == 6: put(plan, 6, [estore] + xl)
        run(passblk((4, 5), r, "b"), plan)
        if r == 1: qstamp(a, 4)
        if r == 7: qstamp(a, 5)
    for r in range(8):
        plan = {}
        if r < 7: put(plan, 0, [fread((r+1) & 1, c, r + 1, ("F", "c", r + 1, c)) for c in range(8)])
        if r == 0: put(plan, 9, conv(4) + conv(5), 2)
        if r == 1: put(plan, 10, [barrier(("TW", 5))])
        if r == 2: put(plan, 9, [tread(2, TRD)])
        if r == 3: put(plan, 9, [tstore(2, TRD)])
        if r == int(opt("ypre", "6")) and sent: put(plan, 9, y_issue_ops(a))
        if r == 7: put(plan, 14, conv(6), 5)
        run(passblk((6, 7), r, "c"), plan)
        if r == 1: qstamp(a, 6)
        if r == 5: qstamp(a, 7)
    stamp(a, 7); stamp(a, 25, True)
    a("s_nop 2" if sent else "s_nop 4")
    for op in conv(7): op()
    barrier(("TW", 7))()
    tread(3, TRD + 4)()
    tstore(3, TRD + 4)()
    stamp(a, 8); stamp(a, 26, True)
    qflush(a)

Z, YA, YB, G = 8, 26, 44, 62
SS, QQ, RS, ND, C0 = 80, 82, 84, 86, 88
YW = 96

def p2_sums(a):
    a(f"v_pk_add_f32 {pr(SS)}, {pr(Z)}, {pr(Z+2)}")
    a(f"v_pk_mul_f32 {pr(QQ)}, {pr(Z)}, {pr(Z)}")
    a(f"v_pk_fma_f32 {pr(QQ)}, {pr(Z+2)}, {pr(Z+2)}, {pr(QQ)}")
    for e in range(2, 9):
        a(f"v_pk_add_f32 {pr(SS)}, {pr(SS)}, {pr(Z+2*e)}")
        a(f"v_pk_fma_f32 {pr(QQ)}, {pr(Z+2*e)}, {pr(Z+2*e)}, {pr(QQ)}")

def p2_chain(a, fill):
    fill = list(fill)
    def gap(n):
        for _ in range(n):
            if fill: a(fill.pop(0))
            else: a("s_nop 0")
    T, Uq = 90, 91
    gap(2)
    a(f"v_permlane32_swap_b32 v{SS}, v{SS+1}")
    a(f"v_permlane32_swap_b32 v{QQ}, v{QQ+1}")
    a(f"v_add_f32 v{SS}, v{SS}, v{SS+1}")
    a(f"v_add_f32 v{QQ}, v{QQ}, v{QQ+1}")
    gap(2)
    a(f"v_permlane16_swap_b32 v{SS}, v{QQ}")
    a(f"v_add_f32 v{T}, v{SS}, v{QQ}")
    for m in ("quad_perm:[1,0,3,2]", "quad_perm:[2,3,0,1]", "row_half_mirror", "row_mirror"):
        gap(2)
        a(f"v_add_f32_dpp v{T}, v{T}, v{T} {m} {DPP}")
    a(f"v_mov_b32 v{Uq}, v{T}")
    gap(2)
    a(f"v_permlane16_swap_b32 v{T}, v{Uq}")
    a(f"v_mul_f32 v{T}, s86, v{T}")
    a(f"v_mul_f32 v{Uq}, s86, v{Uq}")
    a(f"v_fma_f32 v{Uq}, -v{T}, v{T}, v{Uq}")
    a(f"v_max_f32 v{Uq}, 0, v{Uq}")
    a(f"v_add_f32 v{Uq}, s87, v{Uq}")
    a(f"v_rsq_f32 v{RS}, v{Uq}")
    gap(1)
    a(f"v_mul_f32 v{ND}, v{RS}, v{T}")
    a(f"v_mov_b32 v{RS+1}, v{RS}")
    a(f"v_mov_b32 v{ND+1}, v{ND}")
    gap(2)
    a(f"v_permlane32_swap_b32 v{RS}, v{RS+1}")
    a(f"v_permlane32_swap_b32 v{ND}, v{ND+1}")
    while fill: a(fill.pop(0))

def p2_first(a):
    a.needv("X")
    for q in range(4):
        for row in range(2):
            a(f"v_lshlrev_b32 v{Z+4*q+row}, 16, v{XR+4*row+q}")
            a(f"v_and_b32 v{Z+4*q+2+row}, 0xffff0000, v{XR+4*row+q}")
    a(f"v_lshlrev_b32 v{Z+16}, 16, v{XR+8}")
    a(f"v_lshlrev_b32 v{Z+17}, 16, v{XR+9}")
    a(f"v_readfirstlane_b32 s92, v{Z}")
    a(f"v_readfirstlane_b32 s93, v{Z+1}")
    a("s_nop 1")
    a(f"v_mov_b32 v{C0}, s92")
    a(f"v_mov_b32 v{C0+1}, s93")
    for e in range(9):
        a(f"v_pk_add_f32 {pr(Z+2*e)}, {pr(Z+2*e)}, {pr(C0)} neg_lo:[0,1] neg_hi:[0,1]")
    p2_sums(a)
    p2_chain(a, [])

def y_ld(i):
    if i == 4: return f"buffer_load_dwordx4 {vr(YP+16)}, v{vYG}, {sq(SY)}, s89 offen sc1"
    return f"buffer_load_dwordx4 {vr(YP+4*i)}, v{vL16}, {sq(SY)}, s88 offen offset:{1024*i} sc1"
def y_issue_ops(a):
    def e():
        a("s_mov_b32 exec_hi, 0"); a.vm(y_ld(4)); a("s_mov_b64 exec, -1")
    return [e] + [(lambda i: lambda: a.vm(y_ld(i)))(i) for i in range(4)]

def y_write(a):
    for q in range(4):
        a(f"ds_write_b128 v{vYM}, {vr(YP+4*q)} offset:{128*q}")
    a("s_mov_b32 exec_hi, 0")
    a(f"ds_write_b128 v{vYE}, {vr(YP+16)}")
    a("s_mov_b64 exec, -1")
    a("s_waitcnt lgkmcnt(0)")

def y_check(a):
    M = [4, 6, 8, 10, 12]
    for i in range(4):
        a(f"s_mov_b64 s[{M[i]}:{M[i]+1}], -1")
    a("s_mov_b32 s12, -1")
    a("s_mov_b32 s13, 0")
    a("s_mov_b32 s92, 0x20000")
    a("s_waitcnt vmcnt(1)")
    a("s_branch yc_chk")
    a.label("yc_loop")
    a("s_waitcnt vmcnt(0)")
    a.label("yc_chk")
    for i in range(5):
        r = YP + 4 * i
        a(f"s_mov_b64 exec, s[{M[i]}:{M[i]+1}]")
        a(f"v_max3_u32 v240, v{r}, v{r+1}, v{r+2}")
        a(f"v_max_u32 v240, v240, v{r+3}")
        a(f"v_cmp_eq_u32 s[{M[i]}:{M[i]+1}], -1, v240")
    a("s_or_b64 s[14:15], s[4:5], s[6:7]")
    a("s_or_b64 s[14:15], s[14:15], s[8:9]")
    a("s_or_b64 s[14:15], s[14:15], s[10:11]")
    a("s_or_b64 s[14:15], s[14:15], s[12:13]")
    a("s_cbranch_scc0 yc_done")
    a("s_sub_u32 s92, s92, 1")
    a("s_cbranch_scc1 yc_done")
    if int(opt("ysleep", "0")): a(f"s_sleep {opt('ysleep','0')}")
    for i in range(5):
        a(f"s_mov_b64 exec, s[{M[i]}:{M[i]+1}]")
        a(f"s_cbranch_execz yc_skip{i}")
        a(y_ld(i))
        a.label(f"yc_skip{i}")
    a("s_branch yc_loop")
    a.label("yc_done")
    a("s_mov_b64 exec, -1")

def p2_rest(a, stflag):
    for b in range(2):
        for e in range(9):
            a(f"ds_read_b64 {pr(YW + 2*(9*b+e))}, v{vYR} offset:{YBR*b + YR*e}")
    a(f"s_and_b32 s90, s{sW}, 1")
    a("s_mul_i32 s90, s90, 0x04040000")
    a("s_add_u32 s91, s90, 0x03020c0c")
    a("s_add_u32 s90, s90, 0x01000c0c")
    def unp(b, e):
        r = YW + 2 * (9 * b + e); y = (YA if b == 0 else YB) + 2 * e
        return [f"v_perm_b32 v{y}, v{r+1}, v{r}, s90", f"v_perm_b32 v{y+1}, v{r+1}, v{r}, s91"]
    for e in range(9):
        a(f"s_waitcnt lgkmcnt({min(15, 17 - e)})")
        for s_ in unp(0, e): a(s_)
        a(f"v_pk_mul_f32 {pr(G+2*e)}, {pr(Z+2*e)}, {pr(YA+2*e)}")
    def post(Y):
        for e in range(9):
            a(f"v_pk_fma_f32 {pr(Z+2*e)}, {pr(G+2*e)}, {pr(RS)}, {pr(Z+2*e)}")
        for e in range(9):
            a(f"v_pk_fma_f32 {pr(Z+2*e)}, {pr(Y+2*e)}, {pr(ND)}, {pr(Z+2*e)} neg_lo:[0,1,0] neg_hi:[0,1,0]")
    post(YA)
    a("s_waitcnt lgkmcnt(0)")
    for layer, Y in ((2, YB), (3, YA), (4, YB)):
        p2_sums(a)
        fill = []
        for e in range(9):
            if layer == 2: fill += unp(1, e)
            fill.append(f"v_pk_mul_f32 {pr(G+2*e)}, {pr(Z+2*e)}, {pr(Y+2*e)}")
        if layer == 4:
            fill += [f"v_pk_add_f32 {pr(Z+2*e)}, {pr(Z+2*e)}, {pr(C0)}" for e in range(9)]
        p2_chain(a, fill)
        a("s_nop 0")
        post(Y)
    for row in range(2):
        for q in range(4):
            a(f"v_cvt_pk_bf16_f32 v{XR+4*row+q}, v{Z+4*q+row}, v{Z+4*q+2+row}")
    a(f"v_cvt_pk_bf16_f32 v{XR+8}, v{Z+16}, v{Z+17}")
    a(f"buffer_store_dwordx4 {vr(XR)}, v{vL16}, {sq(SO)}, s{sXO} offen {stflag}")
    a(f"buffer_store_dwordx4 {vr(XR+4)}, v{vL16}, {sq(SO)}, s{sXO} offen offset:{ROWB} {stflag}")
    a(f"buffer_store_short v{XR+8}, v{vL2}, {sq(SO)}, s{sXO} offen offset:1024 {stflag}")
    a(f"buffer_store_short_d16_hi v{XR+8}, v{vL2}, {sq(SO)}, s{sXO} offen offset:{1024+ROWB} {stflag}")

def signal(a, off_s):
    a(f"v_mov_b32 v242, s{off_s}")
    a(f"v_mov_b32 v243, s{sTAG}")
    a("s_mov_b64 exec, 1")
    a(f"buffer_store_dword v243, v242, {sq(SF)}, 0 offen sc1")
    a("s_mov_b64 exec, -1")

def poll(a, tag, vaddr, all64):
    a("s_mov_b32 s92, 0x20000")
    if not all64: a("s_mov_b32 exec_hi, 0")
    a.label(f"{tag}_poll")
    a(f"buffer_load_dword v240, v{vaddr}, {sq(SF)}, 0 offen sc1")
    a("s_waitcnt vmcnt(0)")
    a(f"v_cmp_ne_u32 vcc, s{sTAG}, v240")
    a("s_and_b64 exec, exec, vcc")
    a(f"s_cbranch_execz {tag}_ok")
    if int(opt("sleep", "2")): a(f"s_sleep {opt('sleep', '2')}")
    a("s_sub_u32 s92, s92, 1")
    a("s_cmp_lg_u32 s92, 0")
    a(f"s_cbranch_scc1 {tag}_poll")
    a.label(f"{tag}_ok")
    a("s_mov_b64 exec, -1")

def epoch_issue(a):
    a(f"v_mov_b32 v253, {EP}")
    a.vm(f"buffer_load_dword v254, v253, {sq(SF)}, 0 offen sc1", "EP")
def epoch_use(a):
    a.needv("EP")
    a(f"v_readfirstlane_b32 s{sTAG}, v254")
    a(f"s_mul_i32 s{sTAG}, s{sTAG}, 0x9E3779B1")
    a(f"s_add_u32 s{sTAG}, s{sTAG}, 0x7F4A7C15")

def elect_and_signal(a, n, skip):
    a(f"v_mov_b32 v240, {LDS_CTR}")
    a("v_mov_b32 v241, 1")
    a(f"s_lshl_b32 s90, s{sFI}, 6")
    a("s_waitcnt vmcnt(0)")
    a("s_mov_b64 exec, 1")
    a("ds_add_rtn_u32 v244, v240, v241")
    a("s_waitcnt lgkmcnt(0)")
    a("v_readfirstlane_b32 s3, v244")
    a("s_mov_b64 exec, -1")
    a(f"s_cmp_eq_u32 s3, {n-1}")
    a(f"s_cbranch_scc0 {skip}")
    signal(a, 90)
    stamp(a, 4)
    a.label(skip)

def kernel(name, body, vgpr, accum):
    return f""".text
.globl {name}
.p2align 8
.type {name},@function
{name}:
{body}{name}_end:
    s_endpgm
.section .rodata,"a"
.p2align 6
.amdhsa_kernel {name}
  .amdhsa_next_free_vgpr {vgpr}
  .amdhsa_next_free_sgpr 102
  .amdhsa_accum_offset {accum}
  .amdhsa_group_segment_fixed_size 0
  .amdhsa_kernarg_size 120
  .amdhsa_user_sgpr_count 2
  .amdhsa_user_sgpr_kernarg_segment_ptr 1
  .amdhsa_system_sgpr_workgroup_id_x 1
.end_amdhsa_kernel
"""
def header(launches):
    hdr = [l for l in open(REF).read().split("\n") if l.startswith(";") and "@launch" not in l]
    return "\n".join(hdr) + "\n" + "\n".join(launches) + '\n.amdgcn_target "amdgcn-amd-amdhsa--gfx950"\n'

def gen_fused():
    K = NAME + "_kernel"
    sent = opt("x2", "sent") == "sent"
    NEL = 4 if sent else 3
    out = header([f"; @launch grid=(256,1,1) block=(256,1,1) lds={LDS_TOT}"])
    a = A()
    hl = opt("hld", "nt")
    stamp(a, 0)
    prologue(a, K + "_end")
    a(f"s_cmp_eq_u32 s{sW}, 3")
    a("s_cbranch_scc1 w3_path")
    def common_srds(a):
        srd(a, SH, 10, 11, TENS)
        srd(a, SF, 20, 21, F_BYTES, F_OFF)
        srd(a, SU, 20, 21, U_BYTES, U_OFF)
        srd(a, SY, 20, 21, Y_BYTES, YM_OFF)
        srd(a, SO, 16, 17, TENS)
        a(f"s_lshr_b32 s90, s{sCH}, 1")
        a("s_lshl_b32 s90, s90, 2")
        a(f"s_lshr_b32 s91, s{sCE}, 1")
        a("s_lshl_b32 s91, s91, 2")
        a(f"s_load_dword s{sDM}, s[12:13], s90")
        a(f"s_load_dword s{sDE}, s[12:13], s91")
    p0_addr(a)
    a("s_waitcnt lgkmcnt(0)")
    stamp(a, 1)
    p0_issue(a, opt("p0ld", "nt"))
    common_srds(a)
    epoch_issue(a)
    a("s_barrier")
    stamp(a, 2)
    p0_compute(a, opt("ust", "sc1"))
    stamp(a, 3)
    for r in range(124, 128): a(f"v_mov_b32 v{r}, 0")
    a(f"v_add_u32 v119, s{sHB}, v{vL16}")
    epoch_use(a)
    a("s_waitcnt lgkmcnt(0)")
    a("s_barrier")
    h_copies(a, 119)
    p1_prep_a(a)
    elect_and_signal(a, NEL, "join0")
    a("s_branch join1")
    a.reset()
    a.label("w3_path")
    npf = int(opt("cpf", "0"))
    if npf:
        a(f"s_cmp_ge_u32 s2, {npf}")
        a("s_cbranch_scc1 no_cpf")
        a("s_getpc_b64 s[96:97]")
        a.label("cpf_base")
        a(f"s_sub_u32 s96, s96, cpf_base - {K}")
        a("s_subb_u32 s97, s97, 0")
        for i in range(3):
            a(f"v_lshlrev_b32 v12, 7, v{vLANE}")
            a(f"v_add_u32 v12, {8192*i}, v12")
            a(f"v_min_u32 v12, {K}_end - {K}, v12")
            a("v_mov_b32 v13, s97")
            a("v_add_co_u32 v12, vcc, s96, v12")
            a("s_nop 1")
            a("v_addc_co_u32 v13, vcc, 0, v13, vcc")
            a(f"global_load_dword v{14+i}, v[12:13], off")
        a.label("no_cpf")
    for r in range(124, 128): a(f"v_mov_b32 v{r}, 0")
    a(f"v_mov_b32 v56, {LDS_CTR}")
    a("ds_write_b32 v56, v124")
    a("s_waitcnt lgkmcnt(0)")
    common_srds(a)
    epoch_issue(a)
    for r in range(8, 12): a(f"v_mov_b32 v{r}, -1")
    a("s_barrier")
    h_dma(a, sCH, sHB, 0, hl, "h3")
    for w in range(3):
        a(f"s_sub_u32 s91, s{sCH}, {3-w}")
        h_dma(a, 91, None, w * HB, hl, f"h{w}")
    h_dma(a, sCE, None, 4 * HB, hl, "hE")
    if sent:
        a("s_lshl_b32 s91, s2, 14")
        for g in range(4):
            for q in range(4):
                a.vm(f"buffer_store_dwordx4 v[8:11], v{vL16}, {sq(SY)}, s91 offen offset:{1024*q} sc1")
            a("s_add_u32 s91, s91, 4096")
        a("s_lshl_b32 s91, s2, 11")
        a(f"s_add_u32 s91, s91, {YE_OFF}")
        for q in range(2):
            a.vm(f"buffer_store_dwordx4 v[8:11], v{vL16}, {sq(SY)}, s91 offen offset:{1024*q} sc1")
    stamp(a, 2)
    a(f"v_add_u32 v119, s{sHB}, v{vL16}")
    epoch_use(a)
    a.needv("h3")
    a("s_waitcnt lgkmcnt(0)")
    h_copies(a, 119)
    a.needv("h2")
    a("s_barrier")
    a.needv("hE")
    a(f"v_add_u32 v119, {4*HB}, v{vL16}")
    h_copies(a, 119)
    p1_prep_a(a)
    if sent: elect_and_signal(a, NEL, "join3")
    a.label("join1")
    a.reset()
    a("s_waitcnt lgkmcnt(0)")
    p1_aload(a)
    p1_prep_b(a)
    stamp(a, 5)
    poll(a, "e1", vP1, sent)
    a("s_waitcnt lgkmcnt(0)")
    a("s_barrier")
    stamp(a, 6)
    p1_mfma(a, opt("yst", "sc1"))
    if sent:
        p2_first(a)
        stamp(a, 19)
        y_check(a)
        stamp(a, 11)
        y_write(a)
    else:
        a("s_lshl_b32 s90, s2, 6")
        a(f"s_add_u32 s90, s90, {F2}")
        a("s_waitcnt vmcnt(0)")
        a("s_barrier")
        a(f"s_cmp_eq_u32 s{sW}, 0")
        a("s_cbranch_scc0 no_sig2")
        signal(a, 90)
        a.label("no_sig2")
        stamp(a, 10)
        p2_first(a)
        stamp(a, 19)
        poll(a, "e2", vP2, True)
        a("s_barrier")
        stamp(a, 11)
        for op in y_issue_ops(a): op()
        a("s_waitcnt vmcnt(0)")
        y_write(a)
    a("s_barrier")
    stamp(a, 12)
    a(f"s_or_b32 s3, s2, s{sW}")
    a("s_cmp_eq_u32 s3, 0")
    a("s_cbranch_scc0 no_epoch")
    a(f"s_mov_b32 s3, {EP}")
    signal(a, 3)
    a.label("no_epoch")
    if opt("q2", "0") == "1": stamp(a, 24, True)
    p2_rest(a, opt("ost", "sc1"))
    if opt("q2", "0") == "1": stamp(a, 27, True)
    stamp(a, 13)
    stamp_flush(a)
    out += kernel(K, a.text(), 512, 256)
    return out

if __name__ == "__main__":
    path = sys.argv[1]
    STAMPS = "--stamps" in sys.argv
    for x in sys.argv[2:]:
        if "=" in x:
            k_, v_ = x.split("=", 1); OPT[k_] = v_
    open(path, "w").write(gen_fused())
```

```python
import sys
NAME = "interleave_layers__ssm_conv_h3__ssm_conv_h3__prompt"
REF = f"cdna_kernels/{NAME}.s.ref"
OPT = {}
STAMPS = False
def opt(k, d): return OPT.get(k, d)

S, D = 2048, 576
ROWB = D * 2
TENS = S * ROWB
U_OFF = 0;            U_BYTES = 2 * D * 4096
YM_OFF = U_BYTES;     YM_BYTES = 256 * 16384
YE_OFF = YM_BYTES;    YE_BYTES = 64 * 8192
Y_BYTES = YM_BYTES + YE_BYTES
F_OFF = YM_OFF + Y_BYTES
F2 = 16384; EP = 32768; F_BYTES = 32768 + 64
ST_OFF = 0xA00000
CS = 4160; HB = 4 * CS
US = 4608; U_BASE = 5 * HB; UE = U_BASE + 4 * US
LDS_CTR = U_BASE + 5 * US
LDS_TOT = LDS_CTR + 16
Y_LDS = 0; YR = 1040; YBR = 9 * YR
T_LDS = 20480; TR = 144
E_LDS = 40960
R_LDS = 45056

class A:
    def __init__(self):
        self.l = []; self.reset()
    def reset(self):
        self.ln = 0; self.ld = 0; self.lt = {}
        self.vn = 0; self.vd = 0; self.vt = {}
    def __call__(self, s): self.l.append("    " + s)
    def label(self, s): self.l.append(s + ":")
    def text(self): return "\n".join(self.l) + "\n"
    def lds(self, s, tag=None):
        self(s); self.ln += 1
        if tag is not None: self.lt[tag] = self.ln
    def vm(self, s, tag=None):
        self(s); self.vn += 1
        if tag is not None: self.vt[tag] = self.vn
    def need(self, *tags):
        k = max([self.lt[t] for t in tags if t in self.lt] + [0])
        if k > self.ld:
            n = min(15, self.ln - k); self(f"s_waitcnt lgkmcnt({n})"); self.ld = self.ln - n
    def needv(self, *tags):
        k = max([self.vt[t] for t in tags] + [0])
        if k > self.vd:
            n = min(63, self.vn - k); self(f"s_waitcnt vmcnt({n})"); self.vd = self.vn - n

def srd(a, d, lo, hi, size, add=None):
    if add:
        a(f"s_add_u32 s{d}, s{lo}, {add}")
        a(f"s_addc_u32 s{d+1}, s{hi}, 0")
    else:
        a(f"s_mov_b32 s{d}, s{lo}")
        a(f"s_mov_b32 s{d+1}, s{hi}")
    a(f"s_mov_b32 s{d+2}, {size}")
    a(f"s_mov_b32 s{d+3}, 0x00020000")

SK, SV, SSH, SH, SU, SY, SX, SO, SF = 24, 28, 32, 36, 40, 44, 48, 52, 56
sX, sQ, sB, sP, sW = 60, 61, 62, 63, 64
sB0, sCF, sRB = 69, 70, 71
sCH, sCE, sJE, sHB, sUB, sDM, sDE, sFI, sHF, sTAG = 72, 73, 74, 75, 76, 77, 78, 79, 82, 83
sYM, sYE, sXO = 80, 81, 84
vLANE, vL16, vL2 = 250, 251, 252

def stamp(a, idx, cyc=False):
    if not STAMPS: return
    a(("s_memtime" if cyc else "s_memrealtime") + " s[94:95]")
    a("s_waitcnt lgkmcnt(0)")
    a(f"v_writelane_b32 v255, s94, {idx}")
def qstamp(a, i):
    if STAMPS and opt("q", "0") == "1": a(f"s_memtime s[{4+2*i}:{5+2*i}]")
def qflush(a):
    if STAMPS and opt("q", "0") == "1":
        a("s_waitcnt lgkmcnt(0)")
        for i in range(8): a(f"v_writelane_b32 v255, s{4+2*i}, {20+i if i < 4 else 24+i}")
def stamp_flush(a):
    if not STAMPS: return
    srd(a, 96, 20, 21, 0x100000, ST_OFF)
    a("s_lshl_b32 s94, s2, 2")
    a(f"s_add_u32 s94, s94, s{sW}")
    a("s_lshl_b32 s94, s94, 7")
    a(f"v_lshlrev_b32 v254, 2, v{vLANE}")
    a("s_mov_b32 exec_hi, 0")
    a("buffer_store_dword v255, v254, s[96:99], s94 offen")

def vr(r, n=4): return f"v[{r}:{r+n-1}]"
def ar(r, n=4): return f"a[{r}:{r+n-1}]"
def pr(r): return f"v[{r}:{r+1}]"
def sq(r): return f"s[{r}:{r+3}]"
DPP = "row_mask:0xf bank_mask:0xf"

def prologue(a, end):
    a("s_cmp_ge_u32 s2, 256")
    a(f"s_cbranch_scc1 {end}")
    a(f"s_lshr_b32 s{sB0}, s2, 7")
    a(f"s_mul_i32 s3, s{sB0}, 48")
    a("s_add_u32 s22, s0, s3")
    a("s_addc_u32 s23, s1, 0")
    a("s_load_dwordx4 s[4:7], s[22:23], 8")
    a("s_load_dwordx2 s[8:9], s[22:23], 24")
    a(f"s_and_b32 s{sX}, s2, 7")
    a(f"s_lshr_b32 s{sQ}, s2, 3")
    a(f"s_lshr_b32 s{sB}, s{sX}, 2")
    a(f"s_mul_i32 s3, s{sB}, 48")
    a("s_add_u32 s22, s0, s3")
    a("s_addc_u32 s23, s1, 0")
    a("s_load_dwordx2 s[10:11], s[22:23], 32")
    a("s_load_dwordx2 s[12:13], s[22:23], 40")
    a("s_load_dwordx2 s[14:15], s[0:1], 0")
    a("s_load_dwordx4 s[16:19], s[0:1], 96")
    a("s_load_dwordx2 s[20:21], s[0:1], 112")
    a("v_lshrrev_b32 v1, 6, v0")
    a(f"v_and_b32 v{vLANE}, 63, v0")
    a(f"v_readfirstlane_b32 s{sW}, v1")
    a(f"v_lshlrev_b32 v{vL16}, 4, v{vLANE}")
    a(f"v_lshlrev_b32 v{vL2}, 1, v{vLANE}")
    a(f"s_and_b32 s{sCF}, s{sQ}, 1")
    a(f"s_lshr_b32 s{sRB}, s{sQ}, 1")
    a(f"s_and_b32 s{sRB}, s{sRB}, 7")
    a(f"s_lshl_b32 s3, s{sX}, 3")
    a(f"s_add_u32 s{sRB}, s{sRB}, s3")
    a(f"s_lshl_b32 s{sFI}, s{sB0}, 7")
    a(f"s_lshl_b32 s3, s{sCF}, 6")
    a(f"s_add_u32 s{sFI}, s{sFI}, s3")
    a(f"s_add_u32 s{sFI}, s{sFI}, s{sRB}")
    a(f"s_and_b32 s{sP}, s{sX}, 3")
    a(f"s_lshl_b32 s{sP}, s{sP}, 4")
    a(f"s_lshr_b32 s3, s{sQ}, 1")
    a(f"s_add_u32 s{sP}, s{sP}, s3")
    a(f"s_and_b32 s{sHF}, s{sQ}, 1")
    a(f"s_lshl_b32 s{sCH}, s{sP}, 3")
    a(f"s_lshl_b32 s3, s{sHF}, 2")
    a(f"s_add_u32 s{sCH}, s{sCH}, s3")
    a(f"s_add_u32 s{sCH}, s{sCH}, s{sW}")
    a(f"s_add_u32 s{sCE}, s{sP}, 512")
    a(f"s_cmp_eq_u32 s{sHF}, 0")
    a(f"s_cselect_b32 s{sJE}, 0x7520, 0x6431") if False else None
    a("s_mov_b32 s3, 0x6431")
    a(f"s_cselect_b32 s{sJE}, 0x7520, s3")
    a(f"s_lshl_b32 s3, s{sW}, 2")
    a(f"s_lshr_b32 s{sJE}, s{sJE}, s3")
    a(f"s_and_b32 s{sJE}, s{sJE}, 7")
    a(f"s_mul_i32 s{sHB}, s{sW}, {HB}")
    a(f"s_mul_i32 s{sUB}, s{sW}, {US}")
    a(f"s_add_u32 s{sUB}, s{sUB}, {U_BASE}")

def kraw(t): return 8 + 4 * t
def hraw(j): return 40 + 4 * j
def vraw(t): return 52 + 4 * t
def p0_addr(a):
    a("v_lshrrev_b32 v5, 2, v0")
    a("v_and_b32 v6, 3, v0")
    a(f"s_mul_i32 s65, s{sRB}, {32*ROWB}")
    a(f"s_mul_i32 s66, s{sCF}, 576")
    a("s_add_u32 s65, s65, s66")
    a(f"v_mul_u32_u24 v1, {8*ROWB}, v6")
    a("v_mul_u32_u24 v7, 12, v5")
    a("v_add3_u32 v1, v1, v7, s65")
    a(f"v_add_u32 v2, {4*ROWB}, v1")
    a(f"v_subrev_u32 v3, {3*ROWB}, v1")
    a(f"s_mul_i32 s66, s{sCF}, {288*8}")
    a("v_mul_u32_u24 v7, 48, v5")
    a("v_lshl_add_u32 v7, v6, 4, v7")
    a("v_add_u32 v7, s66, v7")
    a(f"s_mul_i32 s65, s{sB0}, 576")
    a(f"s_mul_i32 s66, s{sCF}, 288")
    a("s_add_u32 s65, s65, s66")
    a("s_lshl_b32 s65, s65, 12")
    a("s_add_u32 s65, s65, 4080")
    a(f"s_lshl_b32 s66, s{sRB}, 6")
    a("s_sub_u32 s65, s65, s66")
    a(f"v_mul_u32_u24 v4, {6*4096}, v5")
    a("v_lshlrev_b32 v6, 4, v6")
    a("v_sub_u32 v4, v4, v6")
    a("v_add_u32 v4, s65, v4")
    a("s_mov_b32 s66, 0x11111111")
    a("s_mov_b32 s67, 0x11111111")
    a("s_mov_b32 s68, 0x77777777")

def p0_issue(a, fl):
    srd(a, SK, 4, 5, TENS)
    srd(a, SV, 6, 7, TENS)
    srd(a, SSH, 8, 9, D * 8)
    def row(t): return ("v1", t * ROWB) if t < 4 else ("v2", (t - 4) * ROWB)
    def ldk(t):
        b, o = row(t); a.vm(f"buffer_load_dwordx3 v[{kraw(t)}:{kraw(t)+2}], {b}, {sq(SK)}, 0 offen offset:{o} {fl}", f"K{t}")
    def ldv(t):
        b, o = row(t); a.vm(f"buffer_load_dwordx3 v[{vraw(t)}:{vraw(t)+2}], {b}, {sq(SV)}, 0 offen offset:{o} {fl}", f"V{t}")
    for t in (5, 6, 7): ldk(t)
    a("s_mov_b64 exec, s[66:67]")
    for j in range(3):
        a.vm(f"buffer_load_dwordx3 v[{hraw(j)}:{hraw(j)+2}], v3, {sq(SK)}, 0 offen offset:{j*ROWB} {fl}", f"H{j}")
    a("s_mov_b32 exec_lo, s68")
    a("s_mov_b32 exec_hi, s68")
    a.vm(f"buffer_load_dwordx4 v[84:87], v7, {sq(SSH)}, 0 offen", "W")
    a("s_mov_b64 exec, -1")
    for t in range(5): ldk(t); ldv(t)
    for t in (5, 6, 7): ldv(t)

def unpack(a, dlo, dhi, src):
    a(f"v_lshlrev_b32 v{dlo}, 16, v{src}")
    a(f"v_and_b32 v{dhi}, 0xffff0000, v{src}")

def p0_compute(a, stflag):
    def W(p, j): return 96 + 8 * p + 2 * j
    def Kf(j, c): return 120 + 6 * j + c
    def U(t, c): return 186 + 6 * (t & 3) + c
    def OUT(c): return 212 + 4 * c
    VT = 236
    a("s_mov_b64 vcc, s[66:67]")
    a("v_mov_b32 v88, 0xffff0000")
    for c in range(1, 6):
        a(f"s_mov_b32 s{64+c}, {4096*c}")
    for t in (5, 6, 7):
        a.needv(f"K{t}")
        for p in range(3): unpack(a, Kf(t+3, 2*p), Kf(t+3, 2*p+1), kraw(t) + p)
    for j in range(3):
        a.needv(f"H{j}")
        for p in range(3):
            a(f"v_cndmask_b32_dpp v{hraw(j)+p}, v{kraw(5+j)+p}, v{hraw(j)+p}, vcc quad_perm:[0,0,1,2] {DPP}")
        for p in range(3): unpack(a, Kf(j, 2*p), Kf(j, 2*p+1), hraw(j) + p)
    a.needv("W")
    stamp(a, 16)
    for c in range(6):
        p, h = c >> 1, c & 1
        for half in range(2):
            i = 2 * c + half; s_ = i >> 2; qp = f"quad_perm:[{s_},{s_},{s_},{s_}] {DPP}"
            a(f"v_cvt_f32_bf16_dpp v{W(p,2*half)+h}, v{84+(i&3)} {qp}")
            a(f"v_and_b32_dpp v{W(p,2*half+1)+h}, v{84+(i&3)}, v88 {qp}")
    def ksum(t):
        for p in range(3):
            a(f"v_pk_mul_f32 {pr(U(t,2*p))}, {pr(Kf(t,2*p))}, {pr(W(p,3))}")
        for jj in (2, 1, 0):
            for p in range(3):
                a(f"v_pk_fma_f32 {pr(U(t,2*p))}, {pr(Kf(t+3-jj,2*p))}, {pr(W(p,jj))}, {pr(U(t,2*p))}")
    def vmul(t):
        a.needv(f"V{t}")
        if t == 7: stamp(a, 17)
        for p in range(3): unpack(a, VT + 2*p, VT + 2*p + 1, vraw(t) + p)
        for p in range(3):
            a(f"v_pk_mul_f32 {pr(U(t,2*p))}, {pr(U(t,2*p))}, {pr(VT+2*p)}")
    def cvt(t):
        q = (7 - t) // 2
        for c in range(6):
            a(f"v_cvt_pk_bf16_f32 v{OUT(c)+q}, v{U(t, c)}, v{U(t-1, c)}")
            if t == 7:
                so = "0" if c == 0 else f"s{64+c}"
                a.vm(f"buffer_store_dwordx4 {vr(OUT(c))}, v4, {sq(SU)}, {so} offen {stflag}")
    for t in range(5):
        a.needv(f"K{t}")
        for p in range(3): unpack(a, Kf(t+3, 2*p), Kf(t+3, 2*p+1), kraw(t) + p)
        ksum(t)
        if t == 4:
            for tt in (5, 6, 7): ksum(tt)
        vmul(t)
        if t & 1: cvt(t)
    for t in (5, 6, 7):
        vmul(t)
        if t & 1: cvt(t)

ACC, ACCE, FB, AE, FE0, PD, EV = 8, 40, 56, 120, 184, 216, 220
vTW, vTR, vFE, vEW, vER, vRW, vRR, vUD, vP1, vP2, vYM, vYE, vYG, vYR = range(224, 238)
RED, UD, STG, ES, TRD, YP, XR = 120, 136, 138, 140, 144, 152, 172
TJ = ((0, 2, 5, 7), (1, 3, 4, 6))

def h_dma(a, ch, ldsbase_s, ldsconst, flag, tag):
    a(f"s_lshl_b32 s3, s{ch}, 12")
    if ldsbase_s is not None:
        a(f"s_add_u32 s90, s{ldsbase_s}, {ldsconst + 3*CS + 32}")
        a("s_mov_b32 m0, s90")
    else:
        a(f"s_mov_b32 m0, {ldsconst + 3*CS + 32}")
    a("s_nop 0")
    for q in range(4):
        a.vm(f"buffer_load_dwordx4 v{vL16}, {sq(SH)}, s3 offen offset:{1024*q} {flag} lds", tag)

def h_copies(a, vR):
    Dq = lambda q: 56 + 8 * q
    for q in range(4):
        a(f"ds_read_b128 {vr(Dq(q))}, v{vR} offset:{3*CS + 32 + 1024*q}")
        a(f"ds_read_b64 {pr(Dq(q)+4)}, v{vR} offset:{3*CS + 48 + 1024*q}")
    a(f"v_sub_u32 v120, v{vR}, v{vL16}")
    a(f"ds_read_b64 v[122:123], v120 offset:{3*CS + 32}")
    for q in range(4):
        d = Dq(q); o = 16 * (q & 1); T0, T1, T2, O4 = 88 + o, 92 + o, 96 + o, 100 + o
        a(f"s_waitcnt lgkmcnt({7 + q})")
        for i in range(4):
            a(f"v_alignbit_b32 v{T0+i}, v{d+i+1}, v{d+i}, 16")
        a(f"v_alignbit_b32 v{O4}, v{d+5}, v{d+4}, 16")
        a(f"v_pk_mov_b32 {pr(T1)}, {pr(d)}, {pr(d+2)} op_sel:[1,0]")
        a(f"v_pk_mov_b32 {pr(T1+2)}, {pr(d+2)}, {pr(d+4)} op_sel:[1,0]")
        a(f"v_pk_mov_b32 {pr(T2)}, {pr(T0)}, {pr(T0+2)} op_sel:[1,0]")
        a(f"v_pk_mov_b32 {pr(T2+2)}, {pr(T0+2)}, {pr(O4)} op_sel:[1,0]")
        a(f"ds_write_b128 v{vR}, {vr(T0)} offset:{32 + 1024*q}")
        a(f"ds_write_b128 v{vR}, {vr(T1)} offset:{CS + 32 + 1024*q}")
        a(f"ds_write_b128 v{vR}, {vr(T2)} offset:{2*CS + 32 + 1024*q}")
    a(f"v_sub_u32 v121, 3, v{vLANE}")
    a("v_lshlrev_b32 v121, 4, v121")
    a("s_waitcnt lgkmcnt(12)")
    a("v_lshlrev_b64 v[122:123], v121, v[122:123]")
    a(f"v_cmp_eq_u32 vcc, 3, v{vLANE}")
    a(f"v_mul_u32_u24 v121, {CS}, v{vLANE}")
    a("v_add_u32 v118, v121, v120")
    a("v_cndmask_b32 v122, v122, 0, vcc")
    a("v_cndmask_b32 v123, v123, 0, vcc")
    a("v_mov_b32 v120, 0")
    a("v_mov_b32 v121, 0")
    a("s_mov_b64 exec, 15")
    a("ds_write_b128 v118, v[124:127]")
    a("ds_write_b128 v118, v[120:123] offset:16")
    a("s_mov_b64 exec, -1")

def p1_prep_a(a):
    a(f"v_and_b32 v1, 15, v{vLANE}")
    a(f"v_lshrrev_b32 v2, 4, v{vLANE}")
    a("v_and_b32 v3, 3, v1")
    a("v_cmp_eq_u32 vcc, 3, v3")
    a(f"v_mul_u32_u24 v3, {CS}, v3")
    a("v_and_b32 v4, 12, v1")
    a("v_lshlrev_b32 v4, 1, v4")
    a("v_add_u32 v3, v3, v4")
    a("v_cndmask_b32 v4, 0, 8, vcc")
    a("v_add_u32 v3, v3, v4")
    a("v_lshl_add_u32 v3, v2, 4, v3")
    a(f"v_add_u32 v5, s{sHB}, v3")
    a(f"s_lshl_b32 s93, s{sW}, 7")
    a(f"s_add_u32 s3, s93, {4*HB}")
    a("v_add_u32 v6, s3, v3")

def p1_prep_b(a):
    a(f"v_add_u32 v8, s{sUB}, v{vL16}")
    a(f"s_add_u32 s3, s93, {UE - 512}")
    a(f"v_add_u32 v9, s3, v{vL16}")
    a(f"v_cmp_gt_u32 vcc, 32, v{vLANE}")
    a("s_mov_b32 exec_hi, 0xff")
    a("s_nop 0")
    a("v_cndmask_b32 v8, v9, v8, vcc")
    a("ds_write_b128 v8, v[124:127] offset:4096")
    a("s_mov_b64 exec, -1")
    for ch, sv in ((sCH, sDM), (sCE, sDE)):
        a(f"s_and_b32 s3, s{ch}, 1")
        a("s_lshl_b32 s3, s3, 4")
        a(f"s_lshr_b32 s{sv}, s{sv}, s3")
        a(f"s_and_b32 s{sv}, s{sv}, 0xffff")
    a(f"s_lshl_b32 s{sDE}, s{sDE}, 16")
    a("v_lshlrev_b32 v3, 3, v2")
    a("v_add_u32 v3, v3, v1")
    a("v_sub_u32 v3, 15, v3")
    a("v_and_b32 v4, 1, v3")
    a("v_lshlrev_b32 v4, 4, v4")
    a("v_ashrrev_i32 v3, 1, v3")
    a(f"v_lshlrev_b32 v8, v4, s{sDM}")
    for q in range(4):
        a(f"v_cmp_eq_u32 vcc, {q}, v3")
        a("s_nop 1")
        a(f"v_cndmask_b32 v{PD+q}, 0, v8, vcc")
    a("v_lshlrev_b32 v3, 4, v2")
    a("v_lshlrev_b32 v4, 5, v1")
    a("v_sub_u32 v3, v3, v4")
    a("v_add_u32 v3, 480, v3")
    a(f"v_add_u32 v7, s{sUB}, v3")
    a(f"s_add_u32 s3, s93, {UE}")
    a(f"v_add_u32 v{vFE}, s3, v3")
    a("v_lshlrev_b32 v3, 3, v2")
    a("v_add_u32 v3, v3, v4")
    a(f"s_lshl_b32 s3, s{sJE}, 9")
    a(f"s_sub_u32 s3, {UE + 4088}, s3")
    a(f"v_sub_u32 v{vUD}, s3, v3")
    a(f"s_lshl_b32 s3, s{sW}, 9")
    a(f"s_add_u32 s3, s3, {E_LDS}")
    a(f"v_add_u32 v{vEW}, s3, v3")
    a(f"v_add_u32 v{vER}, s3, v{vL16}")
    a(f"s_lshl_b32 s3, s{sW}, 10")
    a(f"s_add_u32 s3, s3, {R_LDS}")
    a(f"v_add_u32 v{vRW}, s3, v{vL16}")
    a(f"s_lshl_b32 s3, s{sW}, 12")
    a(f"s_add_u32 s3, s3, {R_LDS}")
    a(f"v_add_u32 v{vRR}, s3, v{vL16}")
    a(f"v_mul_u32_u24 v{vTW}, {TR}, v1")
    a("v_lshrrev_b32 v3, 1, v2")
    a(f"v_lshl_add_u32 v{vTW}, v3, 6, v{vTW}")
    a("v_and_b32 v3, 1, v2")
    a(f"v_lshl_add_u32 v{vTW}, v3, 3, v{vTW}")
    a(f"s_lshl_b32 s3, s{sW}, 4")
    a(f"s_add_u32 s3, s3, {T_LDS}")
    a(f"v_add_u32 v{vTW}, s3, v{vTW}")
    a(f"v_lshrrev_b32 v3, 3, v{vLANE}")
    a(f"v_mul_u32_u24 v{vTR}, {TR}, v3")
    a(f"v_and_b32 v4, 7, v{vLANE}")
    a(f"v_lshl_add_u32 v{vTR}, v4, 4, v{vTR}")
    a(f"s_mul_i32 s3, s{sW}, {8*TR}")
    a(f"s_add_u32 s3, s3, {T_LDS}")
    a(f"v_add_u32 v{vTR}, s3, v{vTR}")
    a(f"v_mul_u32_u24 v{vYM}, {YR}, v4")
    a(f"v_lshl_add_u32 v{vYM}, v3, 4, v{vYM}")
    a(f"s_lshr_b32 s88, s{sW}, 1")
    a(f"s_mul_i32 s89, s88, {YBR}")
    a(f"s_and_b32 s3, s{sW}, 1")
    a("s_lshl_b32 s3, s3, 9")
    a("s_add_u32 s89, s89, s3")
    a(f"s_add_u32 s89, s89, {Y_LDS}")
    a(f"v_add_u32 v{vYM}, s89, v{vYM}")
    a(f"s_add_u32 s89, s89, {8*YR}")
    a(f"v_add_u32 v{vYE}, s89, v{vL16}")
    a(f"v_lshlrev_b32 v{vYG}, 6, v{vLANE}")
    a("s_lshl_b32 s88, s88, 3")
    a(f"s_add_u32 s88, s88, {Y_LDS}")
    a(f"v_add_u32 v{vYR}, s88, v{vL16}")
    a("s_lshl_b32 s88, s2, 14")
    a(f"s_lshl_b32 s3, s{sW}, 12")
    a("s_add_u32 s88, s88, s3")
    a("s_lshr_b32 s89, s2, 2")
    a("s_lshl_b32 s89, s89, 13")
    a(f"s_lshl_b32 s3, s{sW}, 11")
    a("s_add_u32 s89, s89, s3")
    a("s_and_b32 s3, s2, 3")
    a("s_lshl_b32 s3, s3, 4")
    a("s_add_u32 s89, s89, s3")
    a(f"s_add_u32 s89, s89, {YE_OFF}")
    a(f"v_lshrrev_b32 v4, 2, v{vLANE}")
    a(f"v_and_b32 v8, 3, v{vLANE}")
    a("v_lshlrev_b32 v8, 4, v8")
    a("v_lshl_add_u32 v3, v4, 14, v8")
    a("v_lshl_add_u32 v4, v4, 13, v8")
    a(f"s_lshl_b32 s{sYM}, s{sW}, 18")
    a(f"s_lshl_b32 s3, s{sB}, 13")
    a(f"s_add_u32 s{sYM}, s{sYM}, s3")
    a(f"s_sub_u32 s3, s{sCH}, s{sW}")
    a("s_lshl_b32 s3, s3, 4")
    a(f"s_add_u32 s{sYM}, s{sYM}, s3")
    a(f"s_lshl_b32 s{sYE}, s{sJE}, 16")
    a(f"s_lshl_b32 s3, s{sB}, 12")
    a(f"s_add_u32 s{sYE}, s{sYE}, s3")
    a(f"s_lshl_b32 s3, s{sP}, 6")
    a(f"s_add_u32 s{sYE}, s{sYE}, s3")
    a(f"s_add_u32 s{sYE}, s{sYE}, {YE_OFF}")
    srd(a, SX, 14, 15, TENS)
    a(f"s_lshl_b32 s{sXO}, s2, 3")
    a(f"s_lshl_b32 s3, s{sW}, 1")
    a(f"s_add_u32 s{sXO}, s{sXO}, s3")
    a(f"s_mul_i32 s{sXO}, s{sXO}, {ROWB}")
    a(f"s_mul_i32 s3, s{sB}, 576")
    a(f"s_add_u32 s90, s3, s{sCH}")
    a("s_lshl_b32 s90, s90, 12")
    a(f"s_add_u32 s91, s3, s{sCE}")
    a("s_lshl_b32 s91, s91, 12")
    a(f"s_lshl_b32 s85, s{sW}, 10")
    a("s_add_u32 s91, s91, s85")
    a(f"s_add_u32 s85, s85, {UE}")
    if opt("x2", "sent") == "sent":
        a(f"s_lshl_b32 s92, s{sW}, 12")
        a(f"v_add_u32 v{vP1}, s92, v{vYG}")
    else:
        a(f"s_lshl_b32 s92, s{sB}, 2")
        a(f"s_add_u32 s92, s92, s{sW}")
        a("s_lshl_b32 s92, s92, 11")
        a(f"v_add_u32 v{vP1}, s92, v{vYG}")
        a(f"s_lshl_b32 s92, s{sW}, 12")
        a(f"s_add_u32 s92, s92, {F2}")
        a(f"v_add_u32 v{vP2}, s92, v{vYG}")
    a("s_mov_b32 s86, 0x3ae38e39")
    a("s_mov_b32 s87, 0x3727c5ac")

def p1_aload(a):
    for aa in range(8):
        for r in range(8):
            ks = 8 * aa + r
            a(f"ds_read_b64 a[{4*ks}:{4*ks+1}], v5 offset:{64*ks}")
            a(f"ds_read_b64 a[{4*ks+2}:{4*ks+3}], v5 offset:{64*ks+8}")

def F(bank, c): return FB + 32 * bank + 4 * c
MF = "v_mfma_f32_16x16x32_bf16"

def p1_mfma(a, stflag):
    sent = opt("x2", "sent") == "sent"
    a(f"s_mov_b32 m0, s{sUB}")
    a("s_nop 0")
    for q in (3, 2, 1, 0):
        a.vm(f"buffer_load_dwordx4 v{vL16}, {sq(SU)}, s90 offen offset:{1024*q} sc1 lds", f"U{q}")
    a("s_mov_b32 m0, s85")
    a("s_nop 0")
    a.vm(f"buffer_load_dwordx4 v{vL16}, {sq(SU)}, s91 offen sc1 lds", "UE")
    inited = set()
    def mfma(acc, A_, B_, needs):
        a.need(*needs)
        c = vr(acc) if acc in inited else "0"
        inited.add(acc)
        a(f"{MF} {vr(acc)}, {A_}, {vr(B_)}, {c}")
    def fread(bank, c, r, tag):
        return lambda: a.lds(f"ds_read_b128 {vr(F(bank,c))}, v7 offset:{64*r + 512*(7-c)}", tag)
    def aeread(rp, aa, half):
        return lambda: a.lds(f"ds_read_b64 {pr(AE+32*rp+4*aa+2*half)}, v6 offset:{512*aa + 64*rp + 8*half}", ("AE", rp, aa))
    def FEr(rp, c): return (FE0 + 4 * c) if rp == 0 else F(1, c)
    def feread(rp, c):
        return lambda: a.lds(f"ds_read_b128 {vr(FEr(rp,c))}, v{vFE} offset:{64*rp + 512*(7-c)}", ("FE", rp, c))
    def I(s): return lambda: a(s)
    evc = [0]
    def conv(j):
        e = EV + 2 * (evc[0] & 1); evc[0] += 1
        ops = [I(f"v_cvt_pk_bf16_f32 v{e}, v{ACC+4*j}, v{ACC+4*j+1}"), I(f"v_cvt_pk_bf16_f32 v{e+1}, v{ACC+4*j+2}, v{ACC+4*j+3}")]
        if sent: ops += [I(f"v_min_u32 v{e}, -2, v{e}"), I(f"v_min_u32 v{e+1}, -2, v{e+1}")]
        ops.append(lambda: a.lds(f"ds_write_b64 v{vTW}, {pr(e)} offset:{16*TR*j}", ("TW", j)))
        return ops
    def barrier(*tags):
        def f():
            a.need(*tags); a("s_barrier")
        return f
    def tread(k, reg): return lambda: a.lds(f"ds_read_b128 {vr(reg)}, v{vTR} offset:{32*TR*k}", ("TRD", k))
    def tstore(k, reg):
        def f():
            a(f"s_add_u32 s3, s{sYM}, {k*64*16384}")
            a.need(("TRD", k))
            a.vm(f"buffer_store_dwordx4 {vr(reg)}, v3, {sq(SY)}, s3 offen {stflag}")
        return f
    def run(items, plan):
        for n, it in enumerate(items):
            mfma(*it)
            for op in plan.pop(n, []): op()
        assert not plan, plan.keys()
    def put(plan, start, ops, per=1):
        for i, op in enumerate(ops):
            plan.setdefault(start + i // per, []).append(op)
    def passblk(J, r, pname):
        bank = r & 1; items = []
        order = [(c, j) for c in range(max(J) + 1) for j in J if j >= c]
        if pname == "c" and r == 7:
            order = [(c, 6) for c in range(7)] + [(c, 7) for c in range(8)]
        for c, j in order:
            tg = [("F", pname, r, c)]
            if r == 0 and j == c: items.append((ACC + 4*j, vr(PD), F(bank, c), tg))
            items.append((ACC + 4*j, ar(4 * (8 * (j - c) + r)), F(bank, c), tg))
        return items
    ae_ops = [aeread(rp, aa, h) for rp in range(2) for aa in range(8) for h in range(2)]
    for op in ae_ops[:8]: op()
    ae_ops = ae_ops[8:]
    a.needv("U2")
    stamp(a, 9); stamp(a, 24, True)
    for c in range(4): fread(0, c, 0, ("F", "a", 0, c))()
    for r in range(8):
        plan = {}
        if r < 7: put(plan, 0, [fread((r+1) & 1, c, r + 1, ("F", "a", r + 1, c)) for c in range(4)])
        else: put(plan, 0, [fread(0, c, 0, ("F", "b", 0, c)) for c in range(6)])
        if r < 4: put(plan, 4, ae_ops[6*r: 6*r + 6])
        if r == 4: put(plan, 5, [lambda: (a.needv("UE"), a("s_barrier"))])
        if r == 5: put(plan, 4, [feread(0, c) for c in range(4)])
        if r == 6: put(plan, 4, [feread(0, c) for c in range(4, 8)])
        run(passblk((0, 1, 2, 3), r, "a"), plan)
        if r == 3: qstamp(a, 0)
        if r == 4: qstamp(a, 1)
        if r == 7: qstamp(a, 2)
    a(f"s_cmp_eq_u32 s{sHF}, 1")
    a("s_cbranch_scc1 ex_h1")
    save = (a.ln, a.ld, dict(a.lt), evc[0], set(inited))
    for h in range(2):
        if h == 1:
            a("s_branch ex_join")
            a.label("ex_h1")
            end0 = (a.ln, a.ld)
            a.ln, a.ld, a.lt, evc[0], inited = save[0], save[1], dict(save[2]), save[3], set(save[4])
        items = []
        for rp in range(2):
            for c in range(8):
                for s_, j in enumerate(TJ[h]):
                    if j >= c:
                        items.append((ACCE + 4*s_, vr(AE + 32*rp + 4*(j - c)), FEr(rp, c), [("AE", rp, j - c), ("FE", rp, c)]))
        assert len(items) == 36
        plan = {}
        put(plan, 0, [feread(1, c) for c in range(8)])
        put(plan, 9, conv(0) + conv(1) + conv(2) + conv(3))
        run(items, plan)
    a.label("ex_join")
    qstamp(a, 3)
    assert a.ln == end0[0]
    a.ld = min(a.ld, end0[1])
    red = [I(f"v_pk_add_f32 {pr(RED)}, {pr(RED)}, {pr(RED+4)}"), I(f"v_pk_add_f32 {pr(RED+2)}, {pr(RED+2)}, {pr(RED+6)}"),
           I(f"v_pk_add_f32 {pr(RED+8)}, {pr(RED+8)}, {pr(RED+12)}"), I(f"v_pk_add_f32 {pr(RED+10)}, {pr(RED+10)}, {pr(RED+14)}"),
           I(f"v_pk_add_f32 {pr(RED)}, {pr(RED)}, {pr(RED+8)}"), I(f"v_pk_add_f32 {pr(RED+2)}, {pr(RED+2)}, {pr(RED+10)}"),
           I(f"v_and_b32 v{RED+4}, 0xffff0000, v{UD+1}"), I(f"v_lshlrev_b32 v{RED+5}, 16, v{UD+1}"),
           I(f"v_and_b32 v{RED+6}, 0xffff0000, v{UD}"), I(f"v_lshlrev_b32 v{RED+7}, 16, v{UD}")]
    red += [I(f"v_fmac_f32 v{RED+i}, s{sDE}, v{RED+4+i}") for i in range(4)]
    red += [I(f"v_cvt_pk_bf16_f32 v{STG}, v{RED}, v{RED+1}"), I(f"v_cvt_pk_bf16_f32 v{STG+1}, v{RED+2}, v{RED+3}")]
    if sent: red += [I(f"v_min_u32 v{STG}, -2, v{STG}"), I(f"v_min_u32 v{STG+1}, -2, v{STG+1}")]
    red += [lambda: a.lds(f"ds_write_b64 v{vEW}, {pr(STG)}"), lambda: a.lds(f"ds_read_b128 {vr(ES)}, v{vER}", "ES")]
    def estore():
        a.need("ES"); a("s_mov_b32 exec_hi, 0")
        a.vm(f"buffer_store_dwordx4 {vr(ES)}, v4, {sq(SY)}, s{sYE} offen {stflag}")
        a("s_mov_b64 exec, -1")
    xl = [lambda: a.vm(f"buffer_load_dwordx4 {vr(XR)}, v{vL16}, {sq(SX)}, s{sXO} offen nt"),
          lambda: a.vm(f"buffer_load_dwordx4 {vr(XR+4)}, v{vL16}, {sq(SX)}, s{sXO} offen offset:{ROWB} nt"),
          lambda: a.vm(f"buffer_load_ushort v{XR+8}, v{vL2}, {sq(SX)}, s{sXO} offen offset:1024 nt"),
          lambda: a.vm(f"buffer_load_ushort v{XR+9}, v{vL2}, {sq(SX)}, s{sXO} offen offset:{1024+ROWB} nt", "X")]
    for r in range(8):
        plan = {}
        if r < 7: put(plan, 0, [fread((r+1) & 1, c, r + 1, ("F", "b", r + 1, c)) for c in range(6)])
        else: put(plan, 0, [fread(0, c, 0, ("F", "c", 0, c)) for c in range(8)])
        if r == 0: put(plan, 8, [(lambda s_: lambda: a.lds(f"ds_write_b128 v{vRW}, {vr(ACCE+4*s_)} offset:{4096*s_}", ("RW", s_)))(s_) for s_ in range(4)])
        if r == 1: put(plan, 9, [barrier(("RW", 3), ("TW", 3))])
        if r == 2:
            put(plan, 6, [tread(0, TRD), tread(1, TRD + 4)] +
                [(lambda i: lambda: a.lds(f"ds_read_b128 {vr(RED+4*i)}, v{vRR} offset:{1024*i}", ("RR", i)))(i) for i in range(3)])
        if r == 3:
            put(plan, 6, [lambda: a.lds(f"ds_read_b128 {vr(RED+12)}, v{vRR} offset:3072", ("RR", 3)),
                          lambda: a.lds(f"ds_read_b64 {pr(UD)}, v{vUD}", "UD"), tstore(0, TRD), tstore(1, TRD + 4)])
        if r == 4:
            put(plan, 5, [lambda: a.need("UD")])
            put(plan, 6, red[:10], 2)
        if r == 5: put(plan, 6, red[10:], 2)
        if r == 6: put(plan, 6, [estore] + xl)
        run(passblk((4, 5), r, "b"), plan)
        if r == 1: qstamp(a, 4)
        if r == 7: qstamp(a, 5)
    for r in range(8):
        plan = {}
        if r < 7: put(plan, 0, [fread((r+1) & 1, c, r + 1, ("F", "c", r + 1, c)) for c in range(8)])
        if r == 0: put(plan, 9, conv(4) + conv(5), 2)
        if r == 1: put(plan, 10, [barrier(("TW", 5))])
        if r == 2: put(plan, 9, [tread(2, TRD)])
        if r == 3: put(plan, 9, [tstore(2, TRD)])
        if r == int(opt("ypre", "6")) and sent: put(plan, 9, y_issue_ops(a))
        if r == 7: put(plan, 14, conv(6), 5)
        run(passblk((6, 7), r, "c"), plan)
        if r == 1: qstamp(a, 6)
        if r == 5: qstamp(a, 7)
    stamp(a, 7); stamp(a, 25, True)
    a("s_nop 2" if sent else "s_nop 4")
    for op in conv(7): op()
    barrier(("TW", 7))()
    tread(3, TRD + 4)()
    tstore(3, TRD + 4)()
    stamp(a, 8); stamp(a, 26, True)
    qflush(a)

Z, YA, YB, G = 8, 26, 44, 62
SS, QQ, RS, ND, C0 = 80, 82, 84, 86, 88
YW = 96

def p2_sums(a):
    a(f"v_pk_add_f32 {pr(SS)}, {pr(Z)}, {pr(Z+2)}")
    a(f"v_pk_mul_f32 {pr(QQ)}, {pr(Z)}, {pr(Z)}")
    a(f"v_pk_fma_f32 {pr(QQ)}, {pr(Z+2)}, {pr(Z+2)}, {pr(QQ)}")
    for e in range(2, 9):
        a(f"v_pk_add_f32 {pr(SS)}, {pr(SS)}, {pr(Z+2*e)}")
        a(f"v_pk_fma_f32 {pr(QQ)}, {pr(Z+2*e)}, {pr(Z+2*e)}, {pr(QQ)}")

def p2_chain(a, fill):
    fill = list(fill)
    def gap(n):
        for _ in range(n):
            if fill: a(fill.pop(0))
            else: a("s_nop 0")
    T, Uq = 90, 91
    gap(2)
    a(f"v_permlane32_swap_b32 v{SS}, v{SS+1}")
    a(f"v_permlane32_swap_b32 v{QQ}, v{QQ+1}")
    a(f"v_add_f32 v{SS}, v{SS}, v{SS+1}")
    a(f"v_add_f32 v{QQ}, v{QQ}, v{QQ+1}")
    gap(2)
    a(f"v_permlane16_swap_b32 v{SS}, v{QQ}")
    a(f"v_add_f32 v{T}, v{SS}, v{QQ}")
    for m in ("quad_perm:[1,0,3,2]", "quad_perm:[2,3,0,1]", "row_half_mirror", "row_mirror"):
        gap(2)
        a(f"v_add_f32_dpp v{T}, v{T}, v{T} {m} {DPP}")
    a(f"v_mov_b32 v{Uq}, v{T}")
    gap(2)
    a(f"v_permlane16_swap_b32 v{T}, v{Uq}")
    a(f"v_mul_f32 v{T}, s86, v{T}")
    a(f"v_mul_f32 v{Uq}, s86, v{Uq}")
    a(f"v_fma_f32 v{Uq}, -v{T}, v{T}, v{Uq}")
    a(f"v_max_f32 v{Uq}, 0, v{Uq}")
    a(f"v_add_f32 v{Uq}, s87, v{Uq}")
    a(f"v_rsq_f32 v{RS}, v{Uq}")
    gap(1)
    a(f"v_mul_f32 v{ND}, v{RS}, v{T}")
    a(f"v_mov_b32 v{RS+1}, v{RS}")
    a(f"v_mov_b32 v{ND+1}, v{ND}")
    gap(2)
    a(f"v_permlane32_swap_b32 v{RS}, v{RS+1}")
    a(f"v_permlane32_swap_b32 v{ND}, v{ND+1}")
    while fill: a(fill.pop(0))

def p2_first(a):
    a.needv("X")
    for q in range(4):
        for row in range(2):
            a(f"v_lshlrev_b32 v{Z+4*q+row}, 16, v{XR+4*row+q}")
            a(f"v_and_b32 v{Z+4*q+2+row}, 0xffff0000, v{XR+4*row+q}")
    a(f"v_lshlrev_b32 v{Z+16}, 16, v{XR+8}")
    a(f"v_lshlrev_b32 v{Z+17}, 16, v{XR+9}")
    a(f"v_readfirstlane_b32 s92, v{Z}")
    a(f"v_readfirstlane_b32 s93, v{Z+1}")
    a("s_nop 1")
    a(f"v_mov_b32 v{C0}, s92")
    a(f"v_mov_b32 v{C0+1}, s93")
    for e in range(9):
        a(f"v_pk_add_f32 {pr(Z+2*e)}, {pr(Z+2*e)}, {pr(C0)} neg_lo:[0,1] neg_hi:[0,1]")
    p2_sums(a)
    p2_chain(a, [])

def y_ld(i):
    if i == 4: return f"buffer_load_dwordx4 {vr(YP+16)}, v{vYG}, {sq(SY)}, s89 offen sc1"
    return f"buffer_load_dwordx4 {vr(YP+4*i)}, v{vL16}, {sq(SY)}, s88 offen offset:{1024*i} sc1"
def y_issue_ops(a):
    def e():
        a("s_mov_b32 exec_hi, 0"); a.vm(y_ld(4)); a("s_mov_b64 exec, -1")
    return [e] + [(lambda i: lambda: a.vm(y_ld(i)))(i) for i in range(4)]

def y_write(a):
    for q in range(4):
        a(f"ds_write_b128 v{vYM}, {vr(YP+4*q)} offset:{128*q}")
    a("s_mov_b32 exec_hi, 0")
    a(f"ds_write_b128 v{vYE}, {vr(YP+16)}")
    a("s_mov_b64 exec, -1")
    a("s_waitcnt lgkmcnt(0)")

def y_check(a):
    M = [4, 6, 8, 10, 12]
    for i in range(4):
        a(f"s_mov_b64 s[{M[i]}:{M[i]+1}], -1")
    a("s_mov_b32 s12, -1")
    a("s_mov_b32 s13, 0")
    a("s_mov_b32 s92, 0x20000")
    a("s_waitcnt vmcnt(1)")
    a("s_branch yc_chk")
    a.label("yc_loop")
    a("s_waitcnt vmcnt(0)")
    a.label("yc_chk")
    for i in range(5):
        r = YP + 4 * i
        a(f"s_mov_b64 exec, s[{M[i]}:{M[i]+1}]")
        a(f"v_max3_u32 v240, v{r}, v{r+1}, v{r+2}")
        a(f"v_max_u32 v240, v240, v{r+3}")
        a(f"v_cmp_eq_u32 s[{M[i]}:{M[i]+1}], -1, v240")
    a("s_or_b64 s[14:15], s[4:5], s[6:7]")
    a("s_or_b64 s[14:15], s[14:15], s[8:9]")
    a("s_or_b64 s[14:15], s[14:15], s[10:11]")
    a("s_or_b64 s[14:15], s[14:15], s[12:13]")
    a("s_cbranch_scc0 yc_done")
    a("s_sub_u32 s92, s92, 1")
    a("s_cbranch_scc1 yc_done")
    if int(opt("ysleep", "0")): a(f"s_sleep {opt('ysleep','0')}")
    for i in range(5):
        a(f"s_mov_b64 exec, s[{M[i]}:{M[i]+1}]")
        a(f"s_cbranch_execz yc_skip{i}")
        a(y_ld(i))
        a.label(f"yc_skip{i}")
    a("s_branch yc_loop")
    a.label("yc_done")
    a("s_mov_b64 exec, -1")

def p2_rest(a, stflag):
    for b in range(2):
        for e in range(9):
            a(f"ds_read_b64 {pr(YW + 2*(9*b+e))}, v{vYR} offset:{YBR*b + YR*e}")
    a(f"s_and_b32 s90, s{sW}, 1")
    a("s_mul_i32 s90, s90, 0x04040000")
    a("s_add_u32 s91, s90, 0x03020c0c")
    a("s_add_u32 s90, s90, 0x01000c0c")
    def unp(b, e):
        r = YW + 2 * (9 * b + e); y = (YA if b == 0 else YB) + 2 * e
        return [f"v_perm_b32 v{y}, v{r+1}, v{r}, s90", f"v_perm_b32 v{y+1}, v{r+1}, v{r}, s91"]
    for e in range(9):
        a(f"s_waitcnt lgkmcnt({min(15, 17 - e)})")
        for s_ in unp(0, e): a(s_)
        a(f"v_pk_mul_f32 {pr(G+2*e)}, {pr(Z+2*e)}, {pr(YA+2*e)}")
    def post(Y):
        for e in range(9):
            a(f"v_pk_fma_f32 {pr(Z+2*e)}, {pr(G+2*e)}, {pr(RS)}, {pr(Z+2*e)}")
        for e in range(9):
            a(f"v_pk_fma_f32 {pr(Z+2*e)}, {pr(Y+2*e)}, {pr(ND)}, {pr(Z+2*e)} neg_lo:[0,1,0] neg_hi:[0,1,0]")
    post(YA)
    a("s_waitcnt lgkmcnt(0)")
    for layer, Y in ((2, YB), (3, YA), (4, YB)):
        p2_sums(a)
        fill = []
        for e in range(9):
            if layer == 2: fill += unp(1, e)
            fill.append(f"v_pk_mul_f32 {pr(G+2*e)}, {pr(Z+2*e)}, {pr(Y+2*e)}")
        if layer == 4:
            fill += [f"v_pk_add_f32 {pr(Z+2*e)}, {pr(Z+2*e)}, {pr(C0)}" for e in range(9)]
        p2_chain(a, fill)
        a("s_nop 0")
        post(Y)
    for row in range(2):
        for q in range(4):
            a(f"v_cvt_pk_bf16_f32 v{XR+4*row+q}, v{Z+4*q+row}, v{Z+4*q+2+row}")
    a(f"v_cvt_pk_bf16_f32 v{XR+8}, v{Z+16}, v{Z+17}")
    a(f"buffer_store_dwordx4 {vr(XR)}, v{vL16}, {sq(SO)}, s{sXO} offen {stflag}")
    a(f"buffer_store_dwordx4 {vr(XR+4)}, v{vL16}, {sq(SO)}, s{sXO} offen offset:{ROWB} {stflag}")
    a(f"buffer_store_short v{XR+8}, v{vL2}, {sq(SO)}, s{sXO} offen offset:1024 {stflag}")
    a(f"buffer_store_short_d16_hi v{XR+8}, v{vL2}, {sq(SO)}, s{sXO} offen offset:{1024+ROWB} {stflag}")

def signal(a, off_s):
    a(f"v_mov_b32 v242, s{off_s}")
    a(f"v_mov_b32 v243, s{sTAG}")
    a("s_mov_b64 exec, 1")
    a(f"buffer_store_dword v243, v242, {sq(SF)}, 0 offen sc1")
    a("s_mov_b64 exec, -1")

def poll(a, tag, vaddr, all64):
    a("s_mov_b32 s92, 0x20000")
    if not all64: a("s_mov_b32 exec_hi, 0")
    a.label(f"{tag}_poll")
    a(f"buffer_load_dword v240, v{vaddr}, {sq(SF)}, 0 offen sc1")
    a("s_waitcnt vmcnt(0)")
    a(f"v_cmp_ne_u32 vcc, s{sTAG}, v240")
    a("s_and_b64 exec, exec, vcc")
    a(f"s_cbranch_execz {tag}_ok")
    if int(opt("sleep", "2")): a(f"s_sleep {opt('sleep', '2')}")
    a("s_sub_u32 s92, s92, 1")
    a("s_cmp_lg_u32 s92, 0")
    a(f"s_cbranch_scc1 {tag}_poll")
    a.label(f"{tag}_ok")
    a("s_mov_b64 exec, -1")

def epoch_issue(a):
    a(f"v_mov_b32 v253, {EP}")
    a.vm(f"buffer_load_dword v254, v253, {sq(SF)}, 0 offen sc1", "EP")
def epoch_use(a):
    a.needv("EP")
    a(f"v_readfirstlane_b32 s{sTAG}, v254")
    a(f"s_mul_i32 s{sTAG}, s{sTAG}, 0x9E3779B1")
    a(f"s_add_u32 s{sTAG}, s{sTAG}, 0x7F4A7C15")

def elect_and_signal(a, n, skip):
    a(f"v_mov_b32 v240, {LDS_CTR}")
    a("v_mov_b32 v241, 1")
    a(f"s_lshl_b32 s90, s{sFI}, 6")
    a("s_waitcnt vmcnt(0)")
    a("s_mov_b64 exec, 1")
    a("ds_add_rtn_u32 v244, v240, v241")
    a("s_waitcnt lgkmcnt(0)")
    a("v_readfirstlane_b32 s3, v244")
    a("s_mov_b64 exec, -1")
    a(f"s_cmp_eq_u32 s3, {n-1}")
    a(f"s_cbranch_scc0 {skip}")
    signal(a, 90)
    stamp(a, 4)
    a.label(skip)

def kernel(name, body, vgpr, accum):
    return f""".text
.globl {name}
.p2align 8
.type {name},@function
{name}:
{body}{name}_end:
    s_endpgm
.section .rodata,"a"
.p2align 6
.amdhsa_kernel {name}
  .amdhsa_next_free_vgpr {vgpr}
  .amdhsa_next_free_sgpr 102
  .amdhsa_accum_offset {accum}
  .amdhsa_group_segment_fixed_size 0
  .amdhsa_kernarg_size 120
  .amdhsa_user_sgpr_count 2
  .amdhsa_user_sgpr_kernarg_segment_ptr 1
  .amdhsa_system_sgpr_workgroup_id_x 1
.end_amdhsa_kernel
"""
def header(launches):
    hdr = [l for l in open(REF).read().split("\n") if l.startswith(";") and "@launch" not in l]
    return "\n".join(hdr) + "\n" + "\n".join(launches) + '\n.amdgcn_target "amdgcn-amd-amdhsa--gfx950"\n'

def gen_fused():
    K = NAME + "_kernel"
    sent = opt("x2", "sent") == "sent"
    NEL = 4 if sent else 3
    out = header([f"; @launch grid=(256,1,1) block=(256,1,1) lds={LDS_TOT}"])
    a = A()
    hl = opt("hld", "nt")
    stamp(a, 0)
    if int(opt("pad", "0")): a("s_memrealtime s[100:101]")
    prologue(a, K + "_end")
    a(f"s_cmp_eq_u32 s{sW}, 3")
    a("s_cbranch_scc1 w3_path")
    def common_srds(a):
        srd(a, SH, 10, 11, TENS)
        srd(a, SF, 20, 21, F_BYTES, F_OFF)
        srd(a, SU, 20, 21, U_BYTES, U_OFF)
        srd(a, SY, 20, 21, Y_BYTES, YM_OFF)
        srd(a, SO, 16, 17, TENS)
        a(f"s_lshr_b32 s90, s{sCH}, 1")
        a("s_lshl_b32 s90, s90, 2")
        a(f"s_lshr_b32 s91, s{sCE}, 1")
        a("s_lshl_b32 s91, s91, 2")
        a(f"s_load_dword s{sDM}, s[12:13], s90")
        a(f"s_load_dword s{sDE}, s[12:13], s91")
    p0_addr(a)
    a("s_waitcnt lgkmcnt(0)")
    stamp(a, 1)
    p0_issue(a, opt("p0ld", "nt"))
    common_srds(a)
    epoch_issue(a)
    a("s_barrier")
    stamp(a, 2)
    p0_compute(a, opt("ust", "sc1"))
    stamp(a, 3)
    for r in range(124, 128): a(f"v_mov_b32 v{r}, 0")
    a(f"v_add_u32 v119, s{sHB}, v{vL16}")
    epoch_use(a)
    a("s_waitcnt lgkmcnt(0)")
    a("s_barrier")
    h_copies(a, 119)
    p1_prep_a(a)
    elect_and_signal(a, NEL, "join0")
    a("s_branch join1")
    a.reset()
    a.label("w3_path")
    npf = int(opt("cpf", "0"))
    if npf:
        a(f"s_cmp_ge_u32 s2, {npf}")
        a("s_cbranch_scc1 no_cpf")
        a("s_getpc_b64 s[96:97]")
        a.label("cpf_base")
        a(f"s_sub_u32 s96, s96, cpf_base - {K}")
        a("s_subb_u32 s97, s97, 0")
        for i in range(3):
            a(f"v_lshlrev_b32 v12, 7, v{vLANE}")
            a(f"v_add_u32 v12, {8192*i}, v12")
            a(f"v_min_u32 v12, {K}_end - {K}, v12")
            a("v_mov_b32 v13, s97")
            a("v_add_co_u32 v12, vcc, s96, v12")
            a("s_nop 1")
            a("v_addc_co_u32 v13, vcc, 0, v13, vcc")
            a(f"global_load_dword v{14+i}, v[12:13], off")
        a.label("no_cpf")
    for r in range(124, 128): a(f"v_mov_b32 v{r}, 0")
    a(f"v_mov_b32 v56, {LDS_CTR}")
    a("ds_write_b32 v56, v124")
    a("s_waitcnt lgkmcnt(0)")
    common_srds(a)
    epoch_issue(a)
    for r in range(8, 12): a(f"v_mov_b32 v{r}, -1")
    a("s_barrier")
    h_dma(a, sCH, sHB, 0, hl, "h3")
    for w in range(3):
        a(f"s_sub_u32 s91, s{sCH}, {3-w}")
        h_dma(a, 91, None, w * HB, hl, f"h{w}")
    h_dma(a, sCE, None, 4 * HB, hl, "hE")
    if sent:
        a("s_lshl_b32 s91, s2, 14")
        for g in range(4):
            for q in range(4):
                a.vm(f"buffer_store_dwordx4 v[8:11], v{vL16}, {sq(SY)}, s91 offen offset:{1024*q} sc1")
            a("s_add_u32 s91, s91, 4096")
        a("s_lshl_b32 s91, s2, 11")
        a(f"s_add_u32 s91, s91, {YE_OFF}")
        for q in range(2):
            a.vm(f"buffer_store_dwordx4 v[8:11], v{vL16}, {sq(SY)}, s91 offen offset:{1024*q} sc1")
    stamp(a, 2)
    a(f"v_add_u32 v119, s{sHB}, v{vL16}")
    epoch_use(a)
    a.needv("h3")
    a("s_waitcnt lgkmcnt(0)")
    h_copies(a, 119)
    a.needv("h2")
    a("s_barrier")
    a.needv("hE")
    a(f"v_add_u32 v119, {4*HB}, v{vL16}")
    h_copies(a, 119)
    p1_prep_a(a)
    if sent: elect_and_signal(a, NEL, "join3")
    a.label("join1")
    a.reset()
    a("s_waitcnt lgkmcnt(0)")
    p1_aload(a)
    p1_prep_b(a)
    stamp(a, 5)
    poll(a, "e1", vP1, sent)
    a("s_waitcnt lgkmcnt(0)")
    a("s_barrier")
    stamp(a, 6)
    p1_mfma(a, opt("yst", "sc1"))
    if sent:
        p2_first(a)
        stamp(a, 19)
        y_check(a)
        stamp(a, 11)
        y_write(a)
    else:
        a("s_lshl_b32 s90, s2, 6")
        a(f"s_add_u32 s90, s90, {F2}")
        a("s_waitcnt vmcnt(0)")
        a("s_barrier")
        a(f"s_cmp_eq_u32 s{sW}, 0")
        a("s_cbranch_scc0 no_sig2")
        signal(a, 90)
        a.label("no_sig2")
        stamp(a, 10)
        p2_first(a)
        stamp(a, 19)
        poll(a, "e2", vP2, True)
        a("s_barrier")
        stamp(a, 11)
        for op in y_issue_ops(a): op()
        a("s_waitcnt vmcnt(0)")
        y_write(a)
    a("s_barrier")
    stamp(a, 12)
    a(f"s_or_b32 s3, s2, s{sW}")
    a("s_cmp_eq_u32 s3, 0")
    a("s_cbranch_scc0 no_epoch")
    a(f"s_mov_b32 s3, {EP}")
    signal(a, 3)
    a.label("no_epoch")
    if opt("q2", "0") == "1": stamp(a, 24, True)
    p2_rest(a, opt("ost", "sc1"))
    if opt("q2", "0") == "1": stamp(a, 27, True)
    stamp(a, 13)
    if int(opt("pad", "0")):
        a.label("padl")
        a("s_memrealtime s[98:99]")
        a("s_waitcnt lgkmcnt(0)")
        a("s_sub_u32 s98, s98, s100")
        a(f"s_cmp_lt_u32 s98, {opt('pad', '0')}")
        a("s_cbranch_scc1 padl")
    stamp_flush(a)
    out += kernel(K, a.text(), 512, 256)
    return out

if __name__ == "__main__":
    path = sys.argv[1]
    STAMPS = "--stamps" in sys.argv
    for x in sys.argv[2:]:
        if "=" in x:
            k_, v_ = x.split("=", 1); OPT[k_] = v_
    open(path, "w").write(gen_fused())
```

```python
import sys
NAME = "interleave_layers__ssm_conv_h3__ssm_conv_h3__prompt"
REF = f"cdna_kernels/{NAME}.s.ref"
OPT = {}
STAMPS = False
def opt(k, d): return OPT.get(k, d)

S, D = 2048, 576
ROWB = D * 2
TENS = S * ROWB
U_OFF = 0;            U_BYTES = 2 * D * 4096
YM_OFF = U_BYTES;     YM_BYTES = 256 * 16384
YE_OFF = YM_BYTES;    YE_BYTES = 64 * 8192
Y_BYTES = YM_BYTES + YE_BYTES
F_OFF = YM_OFF + Y_BYTES
F2 = 16384; F2A = 32768; EP = 49152; FD = 65536; F_BYTES = 65536 + 65536
ST_OFF = 0xA00000
CS = 4160; HB = 4 * CS
US = 4608; U_BASE = 5 * HB; UE = U_BASE + 4 * US
LDS_CTR = U_BASE + 5 * US
LDS_TOT = LDS_CTR + 16
Y_LDS = 0; YR = 1040; YBR = 9 * YR
T_LDS = 20480; TR = 144
E_LDS = 40960
R_LDS = 45056

class A:
    def __init__(self):
        self.l = []; self.reset()
    def reset(self):
        self.ln = 0; self.ld = 0; self.lt = {}
        self.vn = 0; self.vd = 0; self.vt = {}
    def __call__(self, s): self.l.append("    " + s)
    def label(self, s): self.l.append(s + ":")
    def text(self): return "\n".join(self.l) + "\n"
    def lds(self, s, tag=None):
        self(s); self.ln += 1
        if tag is not None: self.lt[tag] = self.ln
    def vm(self, s, tag=None):
        self(s); self.vn += 1
        if tag is not None: self.vt[tag] = self.vn
    def need(self, *tags):
        k = max([self.lt[t] for t in tags if t in self.lt] + [0])
        if k > self.ld:
            n = min(15, self.ln - k); self(f"s_waitcnt lgkmcnt({n})"); self.ld = self.ln - n
    def needv(self, *tags):
        k = max([self.vt[t] for t in tags] + [0])
        if k > self.vd:
            n = min(63, self.vn - k); self(f"s_waitcnt vmcnt({n})"); self.vd = self.vn - n

def srd(a, d, lo, hi, size, add=None):
    if add:
        a(f"s_add_u32 s{d}, s{lo}, {add}")
        a(f"s_addc_u32 s{d+1}, s{hi}, 0")
    else:
        a(f"s_mov_b32 s{d}, s{lo}")
        a(f"s_mov_b32 s{d+1}, s{hi}")
    a(f"s_mov_b32 s{d+2}, {size}")
    a(f"s_mov_b32 s{d+3}, 0x00020000")

SK, SV, SSH, SH, SU, SY, SX, SO, SF = 24, 28, 32, 36, 40, 44, 48, 52, 56
sX, sQ, sB, sP, sW = 60, 61, 62, 63, 64
sB0, sCF, sRB = 69, 70, 71
sCH, sCE, sJE, sHB, sUB, sDM, sDE, sFI, sHF, sTAG = 72, 73, 74, 75, 76, 77, 78, 79, 82, 83
sYM, sYE, sXO = 80, 81, 84
vLANE, vL16, vL2 = 250, 251, 252

def stamp(a, idx, cyc=False):
    if not STAMPS: return
    a(("s_memtime" if cyc else "s_memrealtime") + " s[94:95]")
    a("s_waitcnt lgkmcnt(0)")
    a(f"v_writelane_b32 v255, s94, {idx}")
def qstamp(a, i):
    if STAMPS and opt("q", "0") == "1": a(f"s_memtime s[{4+2*i}:{5+2*i}]")
def qflush(a):
    if STAMPS and opt("q", "0") == "1":
        a("s_waitcnt lgkmcnt(0)")
        for i in range(8): a(f"v_writelane_b32 v255, s{4+2*i}, {20+i if i < 4 else 24+i}")
def stamp_flush(a):
    if not STAMPS: return
    srd(a, 96, 20, 21, 0x100000, ST_OFF)
    a("s_lshl_b32 s94, s2, 2")
    a(f"s_add_u32 s94, s94, s{sW}")
    a("s_lshl_b32 s94, s94, 7")
    a(f"v_lshlrev_b32 v254, 2, v{vLANE}")
    a("s_mov_b32 exec_hi, 0")
    a("buffer_store_dword v255, v254, s[96:99], s94 offen")

def vr(r, n=4): return f"v[{r}:{r+n-1}]"
def ar(r, n=4): return f"a[{r}:{r+n-1}]"
def pr(r): return f"v[{r}:{r+1}]"
def sq(r): return f"s[{r}:{r+3}]"
DPP = "row_mask:0xf bank_mask:0xf"

def prologue(a, end):
    a("s_cmp_ge_u32 s2, 256")
    a(f"s_cbranch_scc1 {end}")
    a(f"s_lshr_b32 s{sB0}, s2, 7")
    a(f"s_mul_i32 s3, s{sB0}, 48")
    a("s_add_u32 s22, s0, s3")
    a("s_addc_u32 s23, s1, 0")
    a("s_load_dwordx4 s[4:7], s[22:23], 8")
    a("s_load_dwordx2 s[8:9], s[22:23], 24")
    a(f"s_and_b32 s{sX}, s2, 7")
    a(f"s_lshr_b32 s{sQ}, s2, 3")
    a(f"s_lshr_b32 s{sB}, s{sX}, 2")
    a(f"s_mul_i32 s3, s{sB}, 48")
    a("s_add_u32 s22, s0, s3")
    a("s_addc_u32 s23, s1, 0")
    a("s_load_dwordx2 s[10:11], s[22:23], 32")
    a("s_load_dwordx2 s[12:13], s[22:23], 40")
    a("s_load_dwordx2 s[14:15], s[0:1], 0")
    a("s_load_dwordx4 s[16:19], s[0:1], 96")
    a("s_load_dwordx2 s[20:21], s[0:1], 112")
    a("v_lshrrev_b32 v1, 6, v0")
    a(f"v_and_b32 v{vLANE}, 63, v0")
    a(f"v_readfirstlane_b32 s{sW}, v1")
    a(f"v_lshlrev_b32 v{vL16}, 4, v{vLANE}")
    a(f"v_lshlrev_b32 v{vL2}, 1, v{vLANE}")
    a(f"s_and_b32 s{sCF}, s{sQ}, 1")
    a(f"s_lshr_b32 s{sRB}, s{sQ}, 1")
    a(f"s_and_b32 s{sRB}, s{sRB}, 7")
    a(f"s_lshl_b32 s3, s{sX}, 3")
    a(f"s_add_u32 s{sRB}, s{sRB}, s3")
    a(f"s_lshl_b32 s{sFI}, s{sB0}, 7")
    a(f"s_lshl_b32 s3, s{sCF}, 6")
    a(f"s_add_u32 s{sFI}, s{sFI}, s3")
    a(f"s_add_u32 s{sFI}, s{sFI}, s{sRB}")
    a(f"s_and_b32 s{sP}, s{sX}, 3")
    a(f"s_lshl_b32 s{sP}, s{sP}, 4")
    a(f"s_lshr_b32 s3, s{sQ}, 1")
    a(f"s_add_u32 s{sP}, s{sP}, s3")
    a(f"s_and_b32 s{sHF}, s{sQ}, 1")
    a(f"s_lshl_b32 s{sCH}, s{sP}, 3")
    a(f"s_lshl_b32 s3, s{sHF}, 2")
    a(f"s_add_u32 s{sCH}, s{sCH}, s3")
    a(f"s_add_u32 s{sCH}, s{sCH}, s{sW}")
    a(f"s_add_u32 s{sCE}, s{sP}, 512")
    a(f"s_cmp_eq_u32 s{sHF}, 0")
    a(f"s_cselect_b32 s{sJE}, 0x7520, 0x6431") if False else None
    a("s_mov_b32 s3, 0x6431")
    a(f"s_cselect_b32 s{sJE}, 0x7520, s3")
    a(f"s_lshl_b32 s3, s{sW}, 2")
    a(f"s_lshr_b32 s{sJE}, s{sJE}, s3")
    a(f"s_and_b32 s{sJE}, s{sJE}, 7")
    a(f"s_mul_i32 s{sHB}, s{sW}, {HB}")
    a(f"s_mul_i32 s{sUB}, s{sW}, {US}")
    a(f"s_add_u32 s{sUB}, s{sUB}, {U_BASE}")

def kraw(t): return 8 + 4 * t
def hraw(j): return 40 + 4 * j
def vraw(t): return 52 + 4 * t
def p0_addr(a):
    a("v_lshrrev_b32 v5, 2, v0")
    a("v_and_b32 v6, 3, v0")
    a(f"s_mul_i32 s65, s{sRB}, {32*ROWB}")
    a(f"s_mul_i32 s66, s{sCF}, 576")
    a("s_add_u32 s65, s65, s66")
    a(f"v_mul_u32_u24 v1, {8*ROWB}, v6")
    a("v_mul_u32_u24 v7, 12, v5")
    a("v_add3_u32 v1, v1, v7, s65")
    a(f"v_add_u32 v2, {4*ROWB}, v1")
    a(f"v_subrev_u32 v3, {3*ROWB}, v1")
    a(f"s_mul_i32 s66, s{sCF}, {288*8}")
    a("v_mul_u32_u24 v7, 48, v5")
    a("v_lshl_add_u32 v7, v6, 4, v7")
    a("v_add_u32 v7, s66, v7")
    a(f"s_mul_i32 s65, s{sB0}, 576")
    a(f"s_mul_i32 s66, s{sCF}, 288")
    a("s_add_u32 s65, s65, s66")
    a("s_lshl_b32 s65, s65, 12")
    a("s_add_u32 s65, s65, 4080")
    a(f"s_lshl_b32 s66, s{sRB}, 6")
    a("s_sub_u32 s65, s65, s66")
    a(f"v_mul_u32_u24 v4, {6*4096}, v5")
    a("v_lshlrev_b32 v6, 4, v6")
    a("v_sub_u32 v4, v4, v6")
    a("v_add_u32 v4, s65, v4")
    a("s_mov_b32 s66, 0x11111111")
    a("s_mov_b32 s67, 0x11111111")
    a("s_mov_b32 s68, 0x77777777")

def p0_issue(a, fl):
    srd(a, SK, 4, 5, TENS)
    srd(a, SV, 6, 7, TENS)
    srd(a, SSH, 8, 9, D * 8)
    def row(t): return ("v1", t * ROWB) if t < 4 else ("v2", (t - 4) * ROWB)
    def ldk(t):
        b, o = row(t); a.vm(f"buffer_load_dwordx3 v[{kraw(t)}:{kraw(t)+2}], {b}, {sq(SK)}, 0 offen offset:{o} {fl}", f"K{t}")
    def ldv(t):
        b, o = row(t); a.vm(f"buffer_load_dwordx3 v[{vraw(t)}:{vraw(t)+2}], {b}, {sq(SV)}, 0 offen offset:{o} {fl}", f"V{t}")
    for t in (5, 6, 7): ldk(t)
    a("s_mov_b64 exec, s[66:67]")
    for j in range(3):
        a.vm(f"buffer_load_dwordx3 v[{hraw(j)}:{hraw(j)+2}], v3, {sq(SK)}, 0 offen offset:{j*ROWB} {fl}", f"H{j}")
    a("s_mov_b32 exec_lo, s68")
    a("s_mov_b32 exec_hi, s68")
    a.vm(f"buffer_load_dwordx4 v[84:87], v7, {sq(SSH)}, 0 offen", "W")
    a("s_mov_b64 exec, -1")
    for t in range(5): ldk(t); ldv(t)
    for t in (5, 6, 7): ldv(t)

def unpack(a, dlo, dhi, src):
    a(f"v_lshlrev_b32 v{dlo}, 16, v{src}")
    a(f"v_and_b32 v{dhi}, 0xffff0000, v{src}")

def p0_compute(a, stflag):
    def W(p, j): return 96 + 8 * p + 2 * j
    def Kf(j, c): return 120 + 6 * j + c
    def U(t, c): return 186 + 6 * (t & 3) + c
    def OUT(c): return 212 + 4 * c
    VT = 236
    a("s_mov_b64 vcc, s[66:67]")
    a("v_mov_b32 v88, 0xffff0000")
    for c in range(1, 6):
        a(f"s_mov_b32 s{64+c}, {4096*c}")
    for t in (5, 6, 7):
        a.needv(f"K{t}")
        for p in range(3): unpack(a, Kf(t+3, 2*p), Kf(t+3, 2*p+1), kraw(t) + p)
    for j in range(3):
        a.needv(f"H{j}")
        for p in range(3):
            a(f"v_cndmask_b32_dpp v{hraw(j)+p}, v{kraw(5+j)+p}, v{hraw(j)+p}, vcc quad_perm:[0,0,1,2] {DPP}")
        for p in range(3): unpack(a, Kf(j, 2*p), Kf(j, 2*p+1), hraw(j) + p)
    a.needv("W")
    stamp(a, 16)
    for c in range(6):
        p, h = c >> 1, c & 1
        for half in range(2):
            i = 2 * c + half; s_ = i >> 2; qp = f"quad_perm:[{s_},{s_},{s_},{s_}] {DPP}"
            a(f"v_cvt_f32_bf16_dpp v{W(p,2*half)+h}, v{84+(i&3)} {qp}")
            a(f"v_and_b32_dpp v{W(p,2*half+1)+h}, v{84+(i&3)}, v88 {qp}")
    def ksum(t):
        for p in range(3):
            a(f"v_pk_mul_f32 {pr(U(t,2*p))}, {pr(Kf(t,2*p))}, {pr(W(p,3))}")
        for jj in (2, 1, 0):
            for p in range(3):
                a(f"v_pk_fma_f32 {pr(U(t,2*p))}, {pr(Kf(t+3-jj,2*p))}, {pr(W(p,jj))}, {pr(U(t,2*p))}")
    def vmul(t):
        a.needv(f"V{t}")
        if t == 7: stamp(a, 17)
        for p in range(3): unpack(a, VT + 2*p, VT + 2*p + 1, vraw(t) + p)
        for p in range(3):
            a(f"v_pk_mul_f32 {pr(U(t,2*p))}, {pr(U(t,2*p))}, {pr(VT+2*p)}")
    def cvt(t):
        q = (7 - t) // 2
        for c in range(6):
            a(f"v_cvt_pk_bf16_f32 v{OUT(c)+q}, v{U(t, c)}, v{U(t-1, c)}")
            if t == 7:
                so = "0" if c == 0 else f"s{64+c}"
                a.vm(f"buffer_store_dwordx4 {vr(OUT(c))}, v4, {sq(SU)}, {so} offen {stflag}")
    for t in range(5):
        a.needv(f"K{t}")
        for p in range(3): unpack(a, Kf(t+3, 2*p), Kf(t+3, 2*p+1), kraw(t) + p)
        ksum(t)
        if t == 4:
            for tt in (5, 6, 7): ksum(tt)
        vmul(t)
        if t & 1: cvt(t)
    for t in (5, 6, 7):
        vmul(t)
        if t & 1: cvt(t)

ACC, ACCE, FB, AE, FE0, PD, EV = 8, 40, 56, 120, 184, 216, 220
vTW, vTR, vFE, vEW, vER, vRW, vRR, vUD, vP1, vP2, vYM, vYE, vYG, vYR = range(224, 238)
RED, UD, STG, ES, TRD, YP, XR = 120, 136, 138, 140, 144, 152, 240
TJ = ((0, 2, 5, 7), (1, 3, 4, 6))

def h_dma(a, ch, ldsbase_s, ldsconst, flag, tag):
    a(f"s_lshl_b32 s3, s{ch}, 12")
    if ldsbase_s is not None:
        a(f"s_add_u32 s92, s{ldsbase_s}, {ldsconst + 3*CS + 32}")
        a("s_mov_b32 m0, s92")
    else:
        a(f"s_mov_b32 m0, {ldsconst + 3*CS + 32}")
    a("s_nop 0")
    for q in range(4):
        a.vm(f"buffer_load_dwordx4 v{vL16}, {sq(SH)}, s3 offen offset:{1024*q} {flag} lds", tag)

hc_n = [0]
def h_copies(a, vR, qs, head, qoff=None):
    hc_n[0] += 1; u = hc_n[0]
    Dq = lambda i: 56 + 8 * i
    for i, q in enumerate(qs):
        a.lds(f"ds_read_b128 {vr(Dq(i))}, v{vR} offset:{3*CS + 32 + 1024*q}")
        a.lds(f"ds_read_b64 {pr(Dq(i)+4)}, v{vR} offset:{3*CS + 48 + 1024*q}", ("HC", u, i))
    if head is not None:
        a.lds(f"ds_read_b64 v[122:123], v{head} offset:{3*CS + 32}", ("HH", u))
    for i, q in enumerate(qs):
        d = Dq(i); o = 16 * (i & 1); T0, T1, T2, O4 = 88 + o, 92 + o, 96 + o, 100 + o
        a.need(("HC", u, i))
        for k in range(4):
            a(f"v_alignbit_b32 v{T0+k}, v{d+k+1}, v{d+k}, 16")
        a(f"v_alignbit_b32 v{O4}, v{d+5}, v{d+4}, 16")
        a(f"v_pk_mov_b32 {pr(T1)}, {pr(d)}, {pr(d+2)} op_sel:[1,0]")
        a(f"v_pk_mov_b32 {pr(T1+2)}, {pr(d+2)}, {pr(d+4)} op_sel:[1,0]")
        a(f"v_pk_mov_b32 {pr(T2)}, {pr(T0)}, {pr(T0+2)} op_sel:[1,0]")
        a(f"v_pk_mov_b32 {pr(T2+2)}, {pr(T0+2)}, {pr(O4)} op_sel:[1,0]")
        a.lds(f"ds_write_b128 v{vR}, {vr(T0)} offset:{32 + 1024*q}")
        a.lds(f"ds_write_b128 v{vR}, {vr(T1)} offset:{CS + 32 + 1024*q}")
        a.lds(f"ds_write_b128 v{vR}, {vr(T2)} offset:{2*CS + 32 + 1024*q}", ("HW", u))
    if head is not None:
        a(f"v_sub_u32 v121, 3, v{vLANE}")
        a("v_lshlrev_b32 v121, 4, v121")
        a.need(("HH", u))
        a("v_lshlrev_b64 v[122:123], v121, v[122:123]")
        a(f"v_cmp_eq_u32 vcc, 3, v{vLANE}")
        a(f"v_mul_u32_u24 v121, {CS}, v{vLANE}")
        a(f"v_add_u32 v118, v121, v{head}")
        a("v_cndmask_b32 v122, v122, 0, vcc")
        a("v_cndmask_b32 v123, v123, 0, vcc")
        a("v_mov_b32 v120, 0")
        a("v_mov_b32 v121, 0")
        a("s_mov_b64 exec, 15")
        a.lds("ds_write_b128 v118, v[124:127]")
        a.lds("ds_write_b128 v118, v[120:123] offset:16", ("HW", u))
        a("s_mov_b64 exec, -1")
    return ("HW", u)

def p1_prep_a(a):
    a(f"v_and_b32 v1, 15, v{vLANE}")
    a(f"v_lshrrev_b32 v2, 4, v{vLANE}")
    a("v_and_b32 v3, 3, v1")
    a("v_cmp_eq_u32 vcc, 3, v3")
    a(f"v_mul_u32_u24 v3, {CS}, v3")
    a("v_and_b32 v4, 12, v1")
    a("v_lshlrev_b32 v4, 1, v4")
    a("v_add_u32 v3, v3, v4")
    a("v_cndmask_b32 v4, 0, 8, vcc")
    a("v_add_u32 v3, v3, v4")
    a("v_lshl_add_u32 v3, v2, 4, v3")
    a(f"v_add_u32 v5, s{sHB}, v3")
    a(f"s_lshl_b32 s93, s{sW}, 7")
    a(f"s_add_u32 s3, s93, {4*HB}")
    a("v_add_u32 v6, s3, v3")

def p1_prep_b(a):
    a(f"v_add_u32 v8, s{sUB}, v{vL16}")
    a(f"s_add_u32 s3, s93, {UE - 512}")
    a(f"v_add_u32 v9, s3, v{vL16}")
    a(f"v_cmp_gt_u32 vcc, 32, v{vLANE}")
    a("s_mov_b32 exec_hi, 0xff")
    a("s_nop 0")
    a("v_cndmask_b32 v8, v9, v8, vcc")
    a("ds_write_b128 v8, v[124:127] offset:4096")
    a("s_mov_b64 exec, -1")
    for ch, sv in ((sCH, sDM), (sCE, sDE)):
        a(f"s_and_b32 s3, s{ch}, 1")
        a("s_lshl_b32 s3, s3, 4")
        a(f"s_lshr_b32 s{sv}, s{sv}, s3")
        a(f"s_and_b32 s{sv}, s{sv}, 0xffff")
    a(f"s_lshl_b32 s{sDE}, s{sDE}, 16")
    a("v_lshlrev_b32 v3, 3, v2")
    a("v_add_u32 v3, v3, v1")
    a("v_sub_u32 v3, 15, v3")
    a("v_and_b32 v4, 1, v3")
    a("v_lshlrev_b32 v4, 4, v4")
    a("v_ashrrev_i32 v3, 1, v3")
    a(f"v_lshlrev_b32 v8, v4, s{sDM}")
    for q in range(4):
        a(f"v_cmp_eq_u32 vcc, {q}, v3")
        a("s_nop 1")
        a(f"v_cndmask_b32 v{PD+q}, 0, v8, vcc")
    a("v_lshlrev_b32 v3, 4, v2")
    a("v_lshlrev_b32 v4, 5, v1")
    a("v_sub_u32 v3, v3, v4")
    a("v_add_u32 v3, 480, v3")
    a(f"v_add_u32 v7, s{sUB}, v3")
    a(f"s_add_u32 s3, s93, {UE}")
    a(f"v_add_u32 v{vFE}, s3, v3")
    a("v_lshlrev_b32 v3, 3, v2")
    a("v_add_u32 v3, v3, v4")
    a(f"s_lshl_b32 s3, s{sJE}, 9")
    a(f"s_sub_u32 s3, {UE + 4088}, s3")
    a(f"v_sub_u32 v{vUD}, s3, v3")
    a(f"s_lshl_b32 s3, s{sW}, 9")
    a(f"s_add_u32 s3, s3, {E_LDS}")
    a(f"v_add_u32 v{vEW}, s3, v3")
    a(f"v_add_u32 v{vER}, s3, v{vL16}")
    a(f"s_lshl_b32 s3, s{sW}, 10")
    a(f"s_add_u32 s3, s3, {R_LDS}")
    a(f"v_add_u32 v{vRW}, s3, v{vL16}")
    a(f"s_lshl_b32 s3, s{sW}, 12")
    a(f"s_add_u32 s3, s3, {R_LDS}")
    a(f"v_add_u32 v{vRR}, s3, v{vL16}")
    a(f"v_mul_u32_u24 v{vTW}, {TR}, v1")
    a("v_lshrrev_b32 v3, 1, v2")
    a(f"v_lshl_add_u32 v{vTW}, v3, 6, v{vTW}")
    a("v_and_b32 v3, 1, v2")
    a(f"v_lshl_add_u32 v{vTW}, v3, 3, v{vTW}")
    a(f"s_lshl_b32 s3, s{sW}, 4")
    a(f"s_add_u32 s3, s3, {T_LDS}")
    a(f"v_add_u32 v{vTW}, s3, v{vTW}")
    a(f"v_lshrrev_b32 v3, 3, v{vLANE}")
    a(f"v_mul_u32_u24 v{vTR}, {TR}, v3")
    a(f"v_and_b32 v4, 7, v{vLANE}")
    a(f"v_lshl_add_u32 v{vTR}, v4, 4, v{vTR}")
    a(f"s_mul_i32 s3, s{sW}, {8*TR}")
    a(f"s_add_u32 s3, s3, {T_LDS}")
    a(f"v_add_u32 v{vTR}, s3, v{vTR}")
    a(f"v_mul_u32_u24 v{vYM}, {YR}, v4")
    a(f"v_lshl_add_u32 v{vYM}, v3, 4, v{vYM}")
    a(f"s_lshr_b32 s88, s{sW}, 1")
    a(f"s_mul_i32 s89, s88, {YBR}")
    a(f"s_and_b32 s3, s{sW}, 1")
    a("s_lshl_b32 s3, s3, 9")
    a("s_add_u32 s89, s89, s3")
    a(f"s_add_u32 s89, s89, {Y_LDS}")
    a(f"v_add_u32 v{vYM}, s89, v{vYM}")
    a(f"s_add_u32 s89, s89, {8*YR}")
    a(f"v_add_u32 v{vYE}, s89, v{vL16}")
    a(f"v_lshlrev_b32 v{vYG}, 6, v{vLANE}")
    a("s_lshl_b32 s88, s88, 3")
    a(f"s_add_u32 s88, s88, {Y_LDS}")
    a(f"v_add_u32 v{vYR}, s88, v{vL16}")
    a("s_lshl_b32 s88, s2, 14")
    a(f"s_lshl_b32 s3, s{sW}, 12")
    a("s_add_u32 s88, s88, s3")
    a("s_lshr_b32 s89, s2, 2")
    a("s_lshl_b32 s89, s89, 13")
    a(f"s_lshl_b32 s3, s{sW}, 11")
    a("s_add_u32 s89, s89, s3")
    a("s_and_b32 s3, s2, 3")
    a("s_lshl_b32 s3, s3, 4")
    a("s_add_u32 s89, s89, s3")
    a(f"s_add_u32 s89, s89, {YE_OFF}")
    a(f"v_lshrrev_b32 v4, 2, v{vLANE}")
    a(f"v_and_b32 v8, 3, v{vLANE}")
    a("v_lshlrev_b32 v8, 4, v8")
    a("v_lshl_add_u32 v3, v4, 14, v8")
    a("v_lshl_add_u32 v4, v4, 13, v8")
    a(f"s_lshl_b32 s{sYM}, s{sW}, 18")
    a(f"s_lshl_b32 s3, s{sB}, 13")
    a(f"s_add_u32 s{sYM}, s{sYM}, s3")
    a(f"s_sub_u32 s3, s{sCH}, s{sW}")
    a("s_lshl_b32 s3, s3, 4")
    a(f"s_add_u32 s{sYM}, s{sYM}, s3")
    a(f"s_lshl_b32 s{sYE}, s{sJE}, 16")
    a(f"s_lshl_b32 s3, s{sB}, 12")
    a(f"s_add_u32 s{sYE}, s{sYE}, s3")
    a(f"s_lshl_b32 s3, s{sP}, 6")
    a(f"s_add_u32 s{sYE}, s{sYE}, s3")
    a(f"s_add_u32 s{sYE}, s{sYE}, {YE_OFF}")
    srd(a, SX, 14, 15, TENS)
    a(f"s_lshl_b32 s{sXO}, s2, 3")
    a(f"s_lshl_b32 s3, s{sW}, 1")
    a(f"s_add_u32 s{sXO}, s{sXO}, s3")
    a(f"s_mul_i32 s{sXO}, s{sXO}, {ROWB}")
    a(f"s_mul_i32 s3, s{sB}, 576")
    a(f"s_add_u32 s90, s3, s{sCH}")
    a("s_lshl_b32 s90, s90, 12")
    a(f"s_add_u32 s91, s3, s{sCE}")
    a("s_lshl_b32 s91, s91, 12")
    a(f"s_lshl_b32 s85, s{sW}, 10")
    a("s_add_u32 s91, s91, s85")
    a(f"s_add_u32 s85, s85, {UE}")
    if opt("x2", "flag") == "sent":
        a(f"s_lshl_b32 s92, s{sW}, 12")
        a(f"v_add_u32 v{vP1}, s92, v{vYG}")
    else:
        a(f"s_lshl_b32 s92, s{sB}, 2")
        a(f"s_add_u32 s92, s92, s{sW}")
        a("s_lshl_b32 s92, s92, 11")
        a(f"v_add_u32 v{vP1}, s92, v{vYG}")
        a(f"s_lshl_b32 s92, s{sW}, 12")
        a(f"s_mov_b32 s3, {F2}")
        a("s_cmp_lt_u32 s2, 192")
        a(f"s_cselect_b32 s3, {F2A if opt('f2a', '1') == '1' else F2}, s3")
        a("s_add_u32 s92, s92, s3")
        a(f"v_add_u32 v{vP2}, s92, v{vYG}")
    a(f"v_add_u32 v246, s{sHB}, v{vL16}")
    a(f"v_mov_b32 v247, s{sHB}")
    a(f"s_lshl_b32 s3, s{sW}, 10")
    a(f"s_add_u32 s3, s3, {4*HB}")
    a(f"v_add_u32 v248, s3, v{vL16}")
    a(f"v_mov_b32 v249, {4*HB}")
    a("s_mov_b32 s86, 0x3ae38e39")
    a("s_mov_b32 s87, 0x3727c5ac")

def p1_aload(a, aas):
    for r in range(8):
        for aa in aas:
            ks = 8 * aa + r
            a.lds(f"ds_read_b64 a[{4*ks}:{4*ks+1}], v5 offset:{64*ks}")
            a.lds(f"ds_read_b64 a[{4*ks+2}:{4*ks+3}], v5 offset:{64*ks+8}", ("A", ks))

def F(bank, c): return FB + 32 * bank + 4 * c
MF = "v_mfma_f32_16x16x32_bf16"

def p1_mfma(a, stflag):
    sent = opt("x2", "flag") == "sent"
    a(f"s_mov_b32 m0, s{sUB}")
    a("s_nop 0")
    for q in (3, 2, 1, 0):
        a.vm(f"buffer_load_dwordx4 v{vL16}, {sq(SU)}, s90 offen offset:{1024*q} sc1 lds", f"U{q}")
    a("s_mov_b32 m0, s85")
    a("s_nop 0")
    a.vm(f"buffer_load_dwordx4 v{vL16}, {sq(SU)}, s91 offen sc1 lds", "UE")
    h_copies(a, 246, [2, 3], None)
    hwe = h_copies(a, 248, [0], None)
    p1_aload(a, range(4, 8))
    a.vm(f"buffer_load_dwordx4 {vr(XR)}, v{vL16}, {sq(SX)}, s{sXO} offen nt")
    a.vm(f"buffer_load_dwordx4 {vr(XR+4)}, v{vL16}, {sq(SX)}, s{sXO} offen offset:{ROWB} nt")
    a.vm(f"buffer_load_ushort v{XR+8}, v{vL2}, {sq(SX)}, s{sXO} offen offset:1024 nt")
    a.vm(f"buffer_load_ushort v{XR+9}, v{vL2}, {sq(SX)}, s{sXO} offen offset:{1024+ROWB} nt", "X")
    a("s_lshl_b32 s85, s2, 6")
    a(f"s_add_u32 s85, s85, {F2A}")
    a("s_lshl_b32 s3, s2, 2")
    a(f"s_add_u32 s3, s3, s{sW}")
    a("s_lshl_b32 s3, s3, 6")
    a(f"s_add_u32 s3, s3, {FD}")
    a(f"s_cmp_eq_u32 s{sW}, 0")
    a("s_cselect_b32 s85, s85, s3")
    inited = set()
    def mfma(acc, A_, B_, needs):
        a.need(*needs)
        c = vr(acc) if acc in inited else "0"
        inited.add(acc)
        a(f"{MF} {vr(acc)}, {A_}, {vr(B_)}, {c}")
    def fread(bank, c, r, tag):
        return lambda: a.lds(f"ds_read_b128 {vr(F(bank,c))}, v7 offset:{64*r + 512*(7-c)}", tag)
    def aeread(rp, aa, half):
        return lambda: a.lds(f"ds_read_b64 {pr(AE+32*rp+4*aa+2*half)}, v6 offset:{512*aa + 64*rp + 8*half}", ("AE", rp, aa))
    def FEr(rp, c): return (FE0 + 4 * c) if rp == 0 else F(1, c)
    def feread(rp, c):
        return lambda: a.lds(f"ds_read_b128 {vr(FEr(rp,c))}, v{vFE} offset:{64*rp + 512*(7-c)}", ("FE", rp, c))
    def I(s): return lambda: a(s)
    evc = [0]
    def conv(j):
        e = EV + 2 * (evc[0] & 1); evc[0] += 1
        ops = [I(f"v_cvt_pk_bf16_f32 v{e}, v{ACC+4*j}, v{ACC+4*j+1}"), I(f"v_cvt_pk_bf16_f32 v{e+1}, v{ACC+4*j+2}, v{ACC+4*j+3}")]
        if sent: ops += [I(f"v_min_u32 v{e}, -2, v{e}"), I(f"v_min_u32 v{e+1}, -2, v{e+1}")]
        ops.append(lambda: a.lds(f"ds_write_b64 v{vTW}, {pr(e)} offset:{16*TR*j}", ("TW", j)))
        return ops
    def barrier(*tags):
        def f():
            a.need(*tags); a("s_barrier")
        return f
    def tread(k, reg): return lambda: a.lds(f"ds_read_b128 {vr(reg)}, v{vTR} offset:{32*TR*k}", ("TRD", k))
    def tstore(k, reg):
        def f():
            a(f"s_add_u32 s3, s{sYM}, {k*64*16384}")
            a.need(("TRD", k))
            a.vm(f"buffer_store_dwordx4 {vr(reg)}, v3, {sq(SY)}, s3 offen {stflag}")
        return f
    def run(items, plan):
        for n, it in enumerate(items):
            mfma(*it)
            for op in plan.pop(n, []): op()
        assert not plan, plan.keys()
    def put(plan, start, ops, per=1):
        for i, op in enumerate(ops):
            plan.setdefault(start + i // per, []).append(op)
    def passblk(J, r, pname):
        bank = r & 1; items = []
        order = [(c, j) for c in range(max(J) + 1) for j in J if j >= c]
        if pname == "c" and r == 7:
            order = [(c, 6) for c in range(7)] + [(c, 7) for c in range(8)]
        for c, j in order:
            tg = [("F", pname, r, c)]
            if r == 0 and j == c: items.append((ACC + 4*j, vr(PD), F(bank, c), tg))
            items.append((ACC + 4*j, ar(4 * (8 * (j - c) + r)), F(bank, c), tg))
        return items
    ae_ops = [aeread(rp, aa, h) for rp in range(2) for aa in range(8) for h in range(2)]
    a.needv("U2")
    stamp(a, 9); stamp(a, 24, True)
    for c in range(4): fread(0, c, 0, ("F", "a", 0, c))()
    for r in range(8):
        plan = {}
        if r < 7: put(plan, 0, [fread((r+1) & 1, c, r + 1, ("F", "a", r + 1, c)) for c in range(4)])
        else: put(plan, 0, [fread(0, c, 0, ("F", "b", 0, c)) for c in range(6)])
        if r == 1: put(plan, 8, [barrier(hwe)])
        if 2 <= r <= 5:
            for sl, op in zip((4, 4, 5, 6, 6, 7, 8, 9), ae_ops[8*(r-2): 8*(r-2) + 8]): plan.setdefault(sl, []).append(op)
        if r == 6:
            put(plan, 3, [lambda: (a.needv("UE"), a("s_barrier"))])
            put(plan, 4, [feread(0, c) for c in range(6)])
        if r == 7: put(plan, 6, [feread(0, c) for c in range(6, 8)])
        run(passblk((0, 1, 2, 3), r, "a"), plan)
        if r == 3: qstamp(a, 0)
        if r == 6: qstamp(a, 1)
        if r == 7: qstamp(a, 2)
    a(f"s_cmp_eq_u32 s{sHF}, 1")
    a("s_cbranch_scc1 ex_h1")
    save = (a.ln, a.ld, dict(a.lt), evc[0], set(inited))
    for h in range(2):
        if h == 1:
            a("s_branch ex_join")
            a.label("ex_h1")
            end0 = (a.ln, a.ld)
            a.ln, a.ld, a.lt, evc[0], inited = save[0], save[1], dict(save[2]), save[3], set(save[4])
        items = []
        for rp in range(2):
            for c in range(8):
                for s_, j in enumerate(TJ[h]):
                    if j >= c:
                        items.append((ACCE + 4*s_, vr(AE + 32*rp + 4*(j - c)), FEr(rp, c), [("AE", rp, j - c), ("FE", rp, c)]))
        assert len(items) == 36
        plan = {}
        put(plan, 0, [feread(1, c) for c in range(8)])
        put(plan, 9, conv(0) + conv(1) + conv(2) + conv(3))
        run(items, plan)
    a.label("ex_join")
    qstamp(a, 3)
    assert a.ln == end0[0]
    a.ld = min(a.ld, end0[1])
    red = [I(f"v_pk_add_f32 {pr(RED)}, {pr(RED)}, {pr(RED+4)}"), I(f"v_pk_add_f32 {pr(RED+2)}, {pr(RED+2)}, {pr(RED+6)}"),
           I(f"v_pk_add_f32 {pr(RED+8)}, {pr(RED+8)}, {pr(RED+12)}"), I(f"v_pk_add_f32 {pr(RED+10)}, {pr(RED+10)}, {pr(RED+14)}"),
           I(f"v_pk_add_f32 {pr(RED)}, {pr(RED)}, {pr(RED+8)}"), I(f"v_pk_add_f32 {pr(RED+2)}, {pr(RED+2)}, {pr(RED+10)}"),
           I(f"v_and_b32 v{RED+4}, 0xffff0000, v{UD+1}"), I(f"v_lshlrev_b32 v{RED+5}, 16, v{UD+1}"),
           I(f"v_and_b32 v{RED+6}, 0xffff0000, v{UD}"), I(f"v_lshlrev_b32 v{RED+7}, 16, v{UD}")]
    red += [I(f"v_fmac_f32 v{RED+i}, s{sDE}, v{RED+4+i}") for i in range(4)]
    red += [I(f"v_cvt_pk_bf16_f32 v{STG}, v{RED}, v{RED+1}"), I(f"v_cvt_pk_bf16_f32 v{STG+1}, v{RED+2}, v{RED+3}")]
    if sent: red += [I(f"v_min_u32 v{STG}, -2, v{STG}"), I(f"v_min_u32 v{STG+1}, -2, v{STG+1}")]
    red += [lambda: a.lds(f"ds_write_b64 v{vEW}, {pr(STG)}"), lambda: a.lds(f"ds_read_b128 {vr(ES)}, v{vER}", "ES")]
    def estore():
        a.need("ES"); a("s_mov_b32 exec_hi, 0")
        a.vm(f"buffer_store_dwordx4 {vr(ES)}, v4, {sq(SY)}, s{sYE} offen {stflag}")
        a("s_mov_b64 exec, -1")
    for r in range(8):
        plan = {}
        if r < 7: put(plan, 0, [fread((r+1) & 1, c, r + 1, ("F", "b", r + 1, c)) for c in range(6)])
        else: put(plan, 0, [fread(0, c, 0, ("F", "c", 0, c)) for c in range(8)])
        if r == 0: put(plan, 8, [(lambda s_: lambda: a.lds(f"ds_write_b128 v{vRW}, {vr(ACCE+4*s_)} offset:{4096*s_}", ("RW", s_)))(s_) for s_ in range(4)])
        if r == 1: put(plan, 9, [barrier(("RW", 3), ("TW", 3))])
        if r == 2:
            put(plan, 6, [tread(0, TRD), tread(1, TRD + 4)] +
                [(lambda i: lambda: a.lds(f"ds_read_b128 {vr(RED+4*i)}, v{vRR} offset:{1024*i}", ("RR", i)))(i) for i in range(3)])
        if r == 3:
            put(plan, 6, [lambda: a.lds(f"ds_read_b128 {vr(RED+12)}, v{vRR} offset:3072", ("RR", 3)),
                          lambda: a.lds(f"ds_read_b64 {pr(UD)}, v{vUD}", "UD"), tstore(0, TRD), tstore(1, TRD + 4)])
        if r == 4:
            put(plan, 5, [lambda: a.need("UD")])
            put(plan, 6, red[:10], 2)
        if r == 5: put(plan, 6, red[10:], 2)
        if r == 6: put(plan, 6, [estore])
        run(passblk((4, 5), r, "b"), plan)
        if r == 1: qstamp(a, 4)
        if r == 7: qstamp(a, 5)
    for r in range(8):
        plan = {}
        if r < 7: put(plan, 0, [fread((r+1) & 1, c, r + 1, ("F", "c", r + 1, c)) for c in range(8)])
        if r == 0: put(plan, 9, conv(4) + conv(5), 2)
        if r == 1:
            put(plan, 8, [barrier(("TW", 5))])
            put(plan, 10, [tread(2, TRD)])
        if r == 2: put(plan, 9, [tstore(2, TRD)])
        if r == int(opt("x2b", "6")) and not sent and opt("f2a", "1") == "1":
            def f2a():
                a("s_waitcnt vmcnt(0)"); a.vd = a.vn
                a("s_barrier")
                signal(a, 85); a.vn += 1
            put(plan, 9, [f2a])
        if r == int(opt("ypre", "6")) and sent: put(plan, 9, y_issue_ops(a))
        if r == 7: put(plan, 14, conv(6), 5)
        run(passblk((6, 7), r, "c"), plan)
        if r == 1: qstamp(a, 6)
        if r == 5: qstamp(a, 7)
    stamp(a, 7); stamp(a, 25, True)
    a("s_nop 2" if sent else "s_nop 4")
    for op in conv(7): op()
    barrier(("TW", 7))()
    tread(3, TRD + 4)()
    tstore(3, TRD + 4)()
    stamp(a, 8); stamp(a, 26, True)
    qflush(a)

Z, YA, YB, G = 8, 26, 44, 62
SS, QQ, RS, ND, C0 = 80, 82, 84, 86, 88
YW = 96

def p2_sums(a):
    a(f"v_pk_add_f32 {pr(SS)}, {pr(Z)}, {pr(Z+2)}")
    a(f"v_pk_mul_f32 {pr(QQ)}, {pr(Z)}, {pr(Z)}")
    a(f"v_pk_fma_f32 {pr(QQ)}, {pr(Z+2)}, {pr(Z+2)}, {pr(QQ)}")
    for e in range(2, 9):
        a(f"v_pk_add_f32 {pr(SS)}, {pr(SS)}, {pr(Z+2*e)}")
        a(f"v_pk_fma_f32 {pr(QQ)}, {pr(Z+2*e)}, {pr(Z+2*e)}, {pr(QQ)}")

def p2_chain(a, fill):
    fill = list(fill)
    def gap(n):
        for _ in range(n):
            if fill: a(fill.pop(0))
            else: a("s_nop 0")
    T, Uq = 90, 91
    gap(2)
    a(f"v_permlane32_swap_b32 v{SS}, v{SS+1}")
    a(f"v_permlane32_swap_b32 v{QQ}, v{QQ+1}")
    a(f"v_add_f32 v{SS}, v{SS}, v{SS+1}")
    a(f"v_add_f32 v{QQ}, v{QQ}, v{QQ+1}")
    gap(2)
    a(f"v_permlane16_swap_b32 v{SS}, v{QQ}")
    a(f"v_add_f32 v{T}, v{SS}, v{QQ}")
    for m in ("quad_perm:[1,0,3,2]", "quad_perm:[2,3,0,1]", "row_half_mirror", "row_mirror"):
        gap(2)
        a(f"v_add_f32_dpp v{T}, v{T}, v{T} {m} {DPP}")
    a(f"v_mov_b32 v{Uq}, v{T}")
    gap(2)
    a(f"v_permlane16_swap_b32 v{T}, v{Uq}")
    a(f"v_mul_f32 v{T}, s86, v{T}")
    a(f"v_mul_f32 v{Uq}, s86, v{Uq}")
    a(f"v_fma_f32 v{Uq}, -v{T}, v{T}, v{Uq}")
    a(f"v_max_f32 v{Uq}, 0, v{Uq}")
    a(f"v_add_f32 v{Uq}, s87, v{Uq}")
    a(f"v_rsq_f32 v{RS}, v{Uq}")
    gap(1)
    a(f"v_mul_f32 v{ND}, v{RS}, v{T}")
    a(f"v_mov_b32 v{RS+1}, v{RS}")
    a(f"v_mov_b32 v{ND+1}, v{ND}")
    gap(2)
    a(f"v_permlane32_swap_b32 v{RS}, v{RS+1}")
    a(f"v_permlane32_swap_b32 v{ND}, v{ND+1}")
    while fill: a(fill.pop(0))

def p2_first(a):
    a.needv("X")
    for q in range(4):
        for row in range(2):
            a(f"v_lshlrev_b32 v{Z+4*q+row}, 16, v{XR+4*row+q}")
            a(f"v_and_b32 v{Z+4*q+2+row}, 0xffff0000, v{XR+4*row+q}")
    a(f"v_lshlrev_b32 v{Z+16}, 16, v{XR+8}")
    a(f"v_lshlrev_b32 v{Z+17}, 16, v{XR+9}")
    a(f"v_readfirstlane_b32 s92, v{Z}")
    a(f"v_readfirstlane_b32 s93, v{Z+1}")
    a("s_nop 1")
    a(f"v_mov_b32 v{C0}, s92")
    a(f"v_mov_b32 v{C0+1}, s93")
    for e in range(9):
        a(f"v_pk_add_f32 {pr(Z+2*e)}, {pr(Z+2*e)}, {pr(C0)} neg_lo:[0,1] neg_hi:[0,1]")
    p2_sums(a)
    p2_chain(a, [])

def y_ld(i):
    if i == 4: return f"buffer_load_dwordx4 {vr(YP+16)}, v{vYG}, {sq(SY)}, s89 offen sc1"
    return f"buffer_load_dwordx4 {vr(YP+4*i)}, v{vL16}, {sq(SY)}, s88 offen offset:{1024*i} sc1"
def y_issue_ops(a):
    def e():
        a("s_mov_b32 exec_hi, 0"); a.vm(y_ld(4)); a("s_mov_b64 exec, -1")
    return [e] + [(lambda i: lambda: a.vm(y_ld(i)))(i) for i in range(4)]

def y_write(a):
    for q in range(4):
        a(f"ds_write_b128 v{vYM}, {vr(YP+4*q)} offset:{128*q}")
    a("s_mov_b32 exec_hi, 0")
    a(f"ds_write_b128 v{vYE}, {vr(YP+16)}")
    a("s_mov_b64 exec, -1")
    a("s_waitcnt lgkmcnt(0)")

def y_check(a):
    M = [4, 6, 8, 10, 12]
    for i in range(4):
        a(f"s_mov_b64 s[{M[i]}:{M[i]+1}], -1")
    a("s_mov_b32 s12, -1")
    a("s_mov_b32 s13, 0")
    a("s_mov_b32 s92, 0x20000")
    a("s_waitcnt vmcnt(1)")
    a("s_branch yc_chk")
    a.label("yc_loop")
    a("s_waitcnt vmcnt(0)")
    a.label("yc_chk")
    for i in range(5):
        r = YP + 4 * i
        a(f"s_mov_b64 exec, s[{M[i]}:{M[i]+1}]")
        a(f"v_max3_u32 v238, v{r}, v{r+1}, v{r+2}")
        a(f"v_max_u32 v238, v238, v{r+3}")
        a(f"v_cmp_eq_u32 s[{M[i]}:{M[i]+1}], -1, v238")
    a("s_or_b64 s[14:15], s[4:5], s[6:7]")
    a("s_or_b64 s[14:15], s[14:15], s[8:9]")
    a("s_or_b64 s[14:15], s[14:15], s[10:11]")
    a("s_or_b64 s[14:15], s[14:15], s[12:13]")
    a("s_cbranch_scc0 yc_done")
    a("s_sub_u32 s92, s92, 1")
    a("s_cbranch_scc1 yc_done")
    if int(opt("ysleep", "0")): a(f"s_sleep {opt('ysleep','0')}")
    for i in range(5):
        a(f"s_mov_b64 exec, s[{M[i]}:{M[i]+1}]")
        a(f"s_cbranch_execz yc_skip{i}")
        a(y_ld(i))
        a.label(f"yc_skip{i}")
    a("s_branch yc_loop")
    a.label("yc_done")
    a("s_mov_b64 exec, -1")

def p2_rest(a, stflag):
    for b in range(2):
        for e in range(9):
            a(f"ds_read_b64 {pr(YW + 2*(9*b+e))}, v{vYR} offset:{YBR*b + YR*e}")
    a(f"s_and_b32 s90, s{sW}, 1")
    a("s_mul_i32 s90, s90, 0x04040000")
    a("s_add_u32 s91, s90, 0x03020c0c")
    a("s_add_u32 s90, s90, 0x01000c0c")
    def unp(b, e):
        r = YW + 2 * (9 * b + e); y = (YA if b == 0 else YB) + 2 * e
        return [f"v_perm_b32 v{y}, v{r+1}, v{r}, s90", f"v_perm_b32 v{y+1}, v{r+1}, v{r}, s91"]
    for e in range(9):
        a(f"s_waitcnt lgkmcnt({min(15, 17 - e)})")
        for s_ in unp(0, e): a(s_)
        a(f"v_pk_mul_f32 {pr(G+2*e)}, {pr(Z+2*e)}, {pr(YA+2*e)}")
    def post(Y):
        for e in range(9):
            a(f"v_pk_fma_f32 {pr(Z+2*e)}, {pr(G+2*e)}, {pr(RS)}, {pr(Z+2*e)}")
        for e in range(9):
            a(f"v_pk_fma_f32 {pr(Z+2*e)}, {pr(Y+2*e)}, {pr(ND)}, {pr(Z+2*e)} neg_lo:[0,1,0] neg_hi:[0,1,0]")
    post(YA)
    a("s_waitcnt lgkmcnt(0)")
    for layer, Y in ((2, YB), (3, YA), (4, YB)):
        p2_sums(a)
        fill = []
        for e in range(9):
            if layer == 2: fill += unp(1, e)
            fill.append(f"v_pk_mul_f32 {pr(G+2*e)}, {pr(Z+2*e)}, {pr(Y+2*e)}")
        if layer == 4:
            fill += [f"v_pk_add_f32 {pr(Z+2*e)}, {pr(Z+2*e)}, {pr(C0)}" for e in range(9)]
        p2_chain(a, fill)
        a("s_nop 0")
        post(Y)
    for row in range(2):
        for q in range(4):
            a(f"v_cvt_pk_bf16_f32 v{XR+4*row+q}, v{Z+4*q+row}, v{Z+4*q+2+row}")
    a(f"v_cvt_pk_bf16_f32 v{XR+8}, v{Z+16}, v{Z+17}")
    a(f"buffer_store_dwordx4 {vr(XR)}, v{vL16}, {sq(SO)}, s{sXO} offen {stflag}")
    a(f"buffer_store_dwordx4 {vr(XR+4)}, v{vL16}, {sq(SO)}, s{sXO} offen offset:{ROWB} {stflag}")
    a(f"buffer_store_short v{XR+8}, v{vL2}, {sq(SO)}, s{sXO} offen offset:1024 {stflag}")
    a(f"buffer_store_short_d16_hi v{XR+8}, v{vL2}, {sq(SO)}, s{sXO} offen offset:{1024+ROWB} {stflag}")

def signal(a, off_s):
    a(f"v_mov_b32 v238, s{off_s}")
    a(f"v_mov_b32 v239, s{sTAG}")
    a("s_mov_b64 exec, 1")
    a(f"buffer_store_dword v239, v238, {sq(SF)}, 0 offen sc1")
    a("s_mov_b64 exec, -1")

def poll(a, tag, vaddr, all64):
    a("s_mov_b32 s92, 0x20000")
    if not all64: a("s_mov_b32 exec_hi, 0")
    a.label(f"{tag}_poll")
    a(f"buffer_load_dword v238, v{vaddr}, {sq(SF)}, 0 offen sc1")
    a("s_waitcnt vmcnt(0)")
    a(f"v_cmp_ne_u32 vcc, s{sTAG}, v238")
    a("s_and_b64 exec, exec, vcc")
    a(f"s_cbranch_execz {tag}_ok")
    if int(opt("sleep", "2")): a(f"s_sleep {opt('sleep', '2')}")
    a("s_sub_u32 s92, s92, 1")
    a("s_cmp_lg_u32 s92, 0")
    a(f"s_cbranch_scc1 {tag}_poll")
    a.label(f"{tag}_ok")
    a("s_mov_b64 exec, -1")

def epoch_issue(a):
    a(f"v_mov_b32 v253, {EP}")
    a.vm(f"buffer_load_dword v254, v253, {sq(SF)}, 0 offen sc1", "EP")
def epoch_use(a):
    a.needv("EP")
    a(f"v_readfirstlane_b32 s{sTAG}, v254")
    a(f"s_mul_i32 s{sTAG}, s{sTAG}, 0x9E3779B1")
    a(f"s_add_u32 s{sTAG}, s{sTAG}, 0x7F4A7C15")

def elect_and_signal(a, n, skip):
    a(f"v_mov_b32 v238, {LDS_CTR}")
    a("v_mov_b32 v239, 1")
    a(f"s_lshl_b32 s90, s{sFI}, 6")
    a("s_waitcnt vmcnt(0)")
    a("s_mov_b64 exec, 1")
    a("ds_add_rtn_u32 v253, v238, v239")
    a("s_waitcnt lgkmcnt(0)")
    a("v_readfirstlane_b32 s3, v253")
    a("s_mov_b64 exec, -1")
    a(f"s_cmp_eq_u32 s3, {n-1}")
    a(f"s_cbranch_scc0 {skip}")
    signal(a, 90)
    stamp(a, 4)
    a.label(skip)

def kernel(name, body, vgpr, accum):
    return f""".text
.globl {name}
.p2align 8
.type {name},@function
{name}:
{body}{name}_end:
    s_endpgm
.section .rodata,"a"
.p2align 6
.amdhsa_kernel {name}
  .amdhsa_next_free_vgpr {vgpr}
  .amdhsa_next_free_sgpr 102
  .amdhsa_accum_offset {accum}
  .amdhsa_group_segment_fixed_size 0
  .amdhsa_kernarg_size 120
  .amdhsa_user_sgpr_count 2
  .amdhsa_user_sgpr_kernarg_segment_ptr 1
  .amdhsa_system_sgpr_workgroup_id_x 1
.end_amdhsa_kernel
"""
def header(launches):
    hdr = [l for l in open(REF).read().split("\n") if l.startswith(";") and "@launch" not in l]
    return "\n".join(hdr) + "\n" + "\n".join(launches) + '\n.amdgcn_target "amdgcn-amd-amdhsa--gfx950"\n'

def gen_fused():
    K = NAME + "_kernel"
    sent = opt("x2", "flag") == "sent"
    NEL = 4 if sent else 3
    out = header([f"; @launch grid=(256,1,1) block=(256,1,1) lds={LDS_TOT}"])
    a = A()
    hl = opt("hld", "nt")
    stamp(a, 0)
    if int(opt("pad", "0")): a("s_memrealtime s[100:101]")
    prologue(a, K + "_end")
    a(f"s_cmp_eq_u32 s{sW}, 3")
    a("s_cbranch_scc1 w3_path")
    def common_srds(a):
        srd(a, SH, 10, 11, TENS)
        srd(a, SF, 20, 21, F_BYTES, F_OFF)
        srd(a, SU, 20, 21, U_BYTES, U_OFF)
        srd(a, SY, 20, 21, Y_BYTES, YM_OFF)
        srd(a, SO, 16, 17, TENS)
        a(f"s_lshr_b32 s90, s{sCH}, 1")
        a("s_lshl_b32 s90, s90, 2")
        a(f"s_lshr_b32 s91, s{sCE}, 1")
        a("s_lshl_b32 s91, s91, 2")
        a(f"s_load_dword s{sDM}, s[12:13], s90")
        a(f"s_load_dword s{sDE}, s[12:13], s91")
    late = opt("hw3", "late") == "late"
    p0_addr(a)
    a("s_waitcnt lgkmcnt(0)")
    stamp(a, 1)
    p0_issue(a, opt("p0ld", "nt"))
    common_srds(a)
    epoch_issue(a)
    if not late: a("s_barrier")
    stamp(a, 2)
    p0_compute(a, opt("ust", "sc1"))
    a.vt["UST"] = a.vn
    h_dma(a, sCH, sHB, 0, hl, "h")
    if late: a("s_barrier")
    stamp(a, 3)
    for r in range(124, 128): a(f"v_mov_b32 v{r}, 0")
    epoch_use(a)
    a("s_waitcnt lgkmcnt(0)")
    p1_prep_a(a)
    p1_prep_b(a)
    a(f"v_mov_b32 v238, {LDS_CTR}")
    a("v_mov_b32 v239, 1")
    a(f"s_lshl_b32 s92, s{sFI}, 6")
    a.needv("UST")
    a("s_mov_b64 exec, 1")
    a("ds_add_rtn_u32 v253, v238, v239")
    a("s_waitcnt lgkmcnt(0)")
    a("v_readfirstlane_b32 s3, v253")
    a("s_mov_b64 exec, -1")
    a("s_cmp_eq_u32 s3, 2")
    a("s_cbranch_scc0 no_sig1")
    signal(a, 92)
    stamp(a, 4)
    a("s_waitcnt vmcnt(1)")
    a("s_branch have_h")
    a.label("no_sig1")
    a("s_waitcnt vmcnt(0)")
    a("s_branch have_h")
    a.reset()
    a.label("w3_path")
    npf = int(opt("cpf", "0"))
    if npf:
        a(f"s_cmp_ge_u32 s2, {npf}")
        a("s_cbranch_scc1 no_cpf")
        a("s_getpc_b64 s[96:97]")
        a.label("cpf_base")
        a(f"s_sub_u32 s96, s96, cpf_base - {K}")
        a("s_subb_u32 s97, s97, 0")
        for i in range(3):
            a(f"v_lshlrev_b32 v12, 7, v{vLANE}")
            a(f"v_add_u32 v12, {8192*i}, v12")
            a(f"v_min_u32 v12, {K}_end - {K}, v12")
            a("v_mov_b32 v13, s97")
            a("v_add_co_u32 v12, vcc, s96, v12")
            a("s_nop 1")
            a("v_addc_co_u32 v13, vcc, 0, v13, vcc")
            a(f"global_load_dword v{14+i}, v[12:13], off")
        a.label("no_cpf")
    for r in range(124, 128): a(f"v_mov_b32 v{r}, 0")
    a(f"v_mov_b32 v56, {LDS_CTR}")
    a("ds_write_b32 v56, v124")
    a("s_waitcnt lgkmcnt(0)")
    common_srds(a)
    epoch_issue(a)
    a("s_waitcnt lgkmcnt(0)")
    p1_prep_a(a)
    p1_prep_b(a)
    epoch_use(a)
    a("s_waitcnt lgkmcnt(0)")
    a("s_barrier")
    h_dma(a, sCE, None, 4 * HB, hl, "hE")
    h_dma(a, sCH, sHB, 0, hl, "h")
    stamp(a, 2)
    a.reset(); a.vn = 8; a.vt["hE"] = 4
    a.needv("hE")
    h_copies(a, 249, [], 249)
    a("s_waitcnt vmcnt(0)")
    a.label("have_h")
    a.reset()
    stamp(a, 18)
    h_copies(a, 246, [0, 1], 247)
    p1_aload(a, range(4))
    stamp(a, 5)
    poll(a, "e1", vP1, False)
    a("s_waitcnt lgkmcnt(0)")
    a("s_barrier")
    a.reset()
    stamp(a, 6)
    p1_mfma(a, opt("yst", "sc1"))
    if sent:
        p2_first(a)
        stamp(a, 19)
        y_check(a)
        stamp(a, 11)
        y_write(a)
    else:
        a("s_lshl_b32 s90, s2, 6")
        a(f"s_add_u32 s90, s90, {F2}")
        a("s_waitcnt vmcnt(0)")
        a("s_barrier")
        a(f"s_cmp_eq_u32 s{sW}, 0")
        a("s_cbranch_scc0 no_sig2")
        signal(a, 90)
        a.label("no_sig2")
        stamp(a, 10)
        p2_first(a)
        stamp(a, 19)
        poll(a, "e2", vP2, True)
        a("s_barrier")
        stamp(a, 11)
        for op in y_issue_ops(a): op()
        a("s_waitcnt vmcnt(0)")
        y_write(a)
    a("s_barrier")
    stamp(a, 12)
    a(f"s_or_b32 s3, s2, s{sW}")
    a("s_cmp_eq_u32 s3, 0")
    a("s_cbranch_scc0 no_epoch")
    a(f"s_mov_b32 s3, {EP}")
    signal(a, 3)
    a.label("no_epoch")
    if opt("q2", "0") == "1": stamp(a, 24, True)
    p2_rest(a, opt("ost", "sc1"))
    if opt("q2", "0") == "1": stamp(a, 27, True)
    stamp(a, 13)
    if int(opt("pad", "0")):
        if opt("gpad", "0") == "1":
            srd(a, 96, 18, 19, 256)
            a("v_mov_b32 v13, 0")
            a("buffer_load_dword v12, v13, s[96:99], 0 offen sc1")
            a("s_waitcnt vmcnt(0)")
            a("v_readfirstlane_b32 s100, v12")
            a("s_not_b32 s100, s100")
        a.label("padl")
        a("s_memrealtime s[98:99]")
        a("s_waitcnt lgkmcnt(0)")
        a("s_sub_u32 s98, s98, s100")
        a(f"s_cmp_lt_u32 s98, {opt('pad', '0')}")
        a("s_cbranch_scc1 padl")
    stamp_flush(a)
    out += kernel(K, a.text(), 512, 256)
    return out

if __name__ == "__main__":
    path = sys.argv[1]
    STAMPS = "--stamps" in sys.argv
    for x in sys.argv[2:]:
        if "=" in x:
            k_, v_ = x.split("=", 1); OPT[k_] = v_
    open(path, "w").write(gen_fused())
```

```python
import sys
NAME = "interleave_layers__ssm_conv_h3__ssm_conv_h3__prompt"
REF = f"cdna_kernels/{NAME}.s.ref"
OPT = {}
STAMPS = False
def opt(k, d): return OPT.get(k, d)

S, D = 2048, 576
ROWB = D * 2
TENS = S * ROWB
U_OFF = 0;            U_BYTES = 2 * D * 4096
YM_OFF = U_BYTES;     YM_BYTES = 256 * 16384
YE_OFF = YM_BYTES;    YE_BYTES = 64 * 8192
Y_BYTES = YM_BYTES + YE_BYTES
F_OFF = YM_OFF + Y_BYTES
F2 = 16384; F2A = 32768; EP = 49152; FD = 65536; F_BYTES = 65536 + 65536
ST_OFF = 0xA00000
CS = 4160; HB = 4 * CS
US = 4608; U_BASE = 5 * HB; UE = U_BASE + 4 * US
LDS_CTR = U_BASE + 5 * US
LDS_TOT = LDS_CTR + 16
Y_LDS = 0; YR = 1040; YBR = 9 * YR
T_LDS = 20480; TR = 144
E_LDS = 40960
R_LDS = 45056

class A:
    def __init__(self):
        self.l = []; self.reset()
    def reset(self):
        self.ln = 0; self.ld = 0; self.lt = {}
        self.vn = 0; self.vd = 0; self.vt = {}
    def __call__(self, s): self.l.append("    " + s)
    def label(self, s): self.l.append(s + ":")
    def text(self): return "\n".join(self.l) + "\n"
    def lds(self, s, tag=None):
        self(s); self.ln += 1
        if tag is not None: self.lt[tag] = self.ln
    def vm(self, s, tag=None):
        self(s); self.vn += 1
        if tag is not None: self.vt[tag] = self.vn
    def need(self, *tags):
        k = max([self.lt[t] for t in tags if t in self.lt] + [0])
        if k > self.ld:
            n = min(15, self.ln - k); self(f"s_waitcnt lgkmcnt({n})"); self.ld = self.ln - n
    def needv(self, *tags):
        k = max([self.vt[t] for t in tags] + [0])
        if k > self.vd:
            n = min(63, self.vn - k); self(f"s_waitcnt vmcnt({n})"); self.vd = self.vn - n

def srd(a, d, lo, hi, size, add=None):
    if add:
        a(f"s_add_u32 s{d}, s{lo}, {add}")
        a(f"s_addc_u32 s{d+1}, s{hi}, 0")
    else:
        a(f"s_mov_b32 s{d}, s{lo}")
        a(f"s_mov_b32 s{d+1}, s{hi}")
    a(f"s_mov_b32 s{d+2}, {size}")
    a(f"s_mov_b32 s{d+3}, 0x00020000")

SK, SV, SSH, SH, SU, SY, SX, SO, SF = 24, 28, 32, 36, 40, 44, 48, 52, 56
sX, sQ, sB, sP, sW = 60, 61, 62, 63, 64
sB0, sCF, sRB = 69, 70, 71
sCH, sCE, sJE, sHB, sUB, sDM, sDE, sFI, sHF, sTAG = 72, 73, 74, 75, 76, 77, 78, 79, 82, 83
sYM, sYE, sXO = 80, 81, 84
vLANE, vL16, vL2 = 250, 251, 252

def stamp(a, idx, cyc=False):
    if not STAMPS: return
    a(("s_memtime" if cyc else "s_memrealtime") + " s[94:95]")
    a("s_waitcnt lgkmcnt(0)")
    a(f"v_writelane_b32 v255, s94, {idx}")
def qstamp(a, i):
    if STAMPS and opt("q", "0") == "1": a(f"s_memtime s[{4+2*i}:{5+2*i}]")
def qflush(a):
    if STAMPS and opt("q", "0") == "1":
        a("s_waitcnt lgkmcnt(0)")
        for i in range(8): a(f"v_writelane_b32 v255, s{4+2*i}, {20+i if i < 4 else 24+i}")
def stamp_flush(a):
    if not STAMPS: return
    srd(a, 96, 20, 21, 0x100000, ST_OFF)
    a("s_lshl_b32 s94, s2, 2")
    a(f"s_add_u32 s94, s94, s{sW}")
    a("s_lshl_b32 s94, s94, 7")
    a(f"v_lshlrev_b32 v254, 2, v{vLANE}")
    a("s_mov_b32 exec_hi, 0")
    a("buffer_store_dword v255, v254, s[96:99], s94 offen")

def vr(r, n=4): return f"v[{r}:{r+n-1}]"
def ar(r, n=4): return f"a[{r}:{r+n-1}]"
def pr(r): return f"v[{r}:{r+1}]"
def sq(r): return f"s[{r}:{r+3}]"
DPP = "row_mask:0xf bank_mask:0xf"

def prologue(a, end):
    a("s_cmp_ge_u32 s2, 256")
    a(f"s_cbranch_scc1 {end}")
    a(f"s_lshr_b32 s{sB0}, s2, 7")
    a(f"s_mul_i32 s3, s{sB0}, 48")
    a("s_add_u32 s22, s0, s3")
    a("s_addc_u32 s23, s1, 0")
    a("s_load_dwordx4 s[4:7], s[22:23], 8")
    a("s_load_dwordx2 s[8:9], s[22:23], 24")
    a(f"s_and_b32 s{sX}, s2, 7")
    a(f"s_lshr_b32 s{sQ}, s2, 3")
    a(f"s_lshr_b32 s{sB}, s{sX}, 2")
    a(f"s_mul_i32 s3, s{sB}, 48")
    a("s_add_u32 s22, s0, s3")
    a("s_addc_u32 s23, s1, 0")
    a("s_load_dwordx2 s[10:11], s[22:23], 32")
    a("s_load_dwordx2 s[12:13], s[22:23], 40")
    a("s_load_dwordx2 s[14:15], s[0:1], 0")
    a("s_load_dwordx4 s[16:19], s[0:1], 96")
    a("s_load_dwordx2 s[20:21], s[0:1], 112")
    a("v_lshrrev_b32 v1, 6, v0")
    a(f"v_and_b32 v{vLANE}, 63, v0")
    a(f"v_readfirstlane_b32 s{sW}, v1")
    a(f"v_lshlrev_b32 v{vL16}, 4, v{vLANE}")
    a(f"v_lshlrev_b32 v{vL2}, 1, v{vLANE}")
    a(f"s_and_b32 s{sCF}, s{sQ}, 1")
    a(f"s_lshr_b32 s{sRB}, s{sQ}, 1")
    a(f"s_and_b32 s{sRB}, s{sRB}, 7")
    a(f"s_lshl_b32 s3, s{sX}, 3")
    a(f"s_add_u32 s{sRB}, s{sRB}, s3")
    a(f"s_lshl_b32 s{sFI}, s{sB0}, 7")
    a(f"s_lshl_b32 s3, s{sCF}, 6")
    a(f"s_add_u32 s{sFI}, s{sFI}, s3")
    a(f"s_add_u32 s{sFI}, s{sFI}, s{sRB}")
    a(f"s_and_b32 s{sP}, s{sX}, 3")
    a(f"s_lshl_b32 s{sP}, s{sP}, 4")
    a(f"s_lshr_b32 s3, s{sQ}, 1")
    a(f"s_add_u32 s{sP}, s{sP}, s3")
    a(f"s_and_b32 s{sHF}, s{sQ}, 1")
    a(f"s_lshl_b32 s{sCH}, s{sP}, 3")
    a(f"s_lshl_b32 s3, s{sHF}, 2")
    a(f"s_add_u32 s{sCH}, s{sCH}, s3")
    a(f"s_add_u32 s{sCH}, s{sCH}, s{sW}")
    a(f"s_add_u32 s{sCE}, s{sP}, 512")
    a(f"s_cmp_eq_u32 s{sHF}, 0")
    a(f"s_cselect_b32 s{sJE}, 0x7520, 0x6431") if False else None
    a("s_mov_b32 s3, 0x6431")
    a(f"s_cselect_b32 s{sJE}, 0x7520, s3")
    a(f"s_lshl_b32 s3, s{sW}, 2")
    a(f"s_lshr_b32 s{sJE}, s{sJE}, s3")
    a(f"s_and_b32 s{sJE}, s{sJE}, 7")
    a(f"s_mul_i32 s{sHB}, s{sW}, {HB}")
    a(f"s_mul_i32 s{sUB}, s{sW}, {US}")
    a(f"s_add_u32 s{sUB}, s{sUB}, {U_BASE}")

def kraw(t): return 8 + 4 * t
def hraw(j): return 40 + 4 * j
def vraw(t): return 52 + 4 * t
def p0_addr(a):
    a("v_lshrrev_b32 v5, 2, v0")
    a("v_and_b32 v6, 3, v0")
    a(f"s_mul_i32 s65, s{sRB}, {32*ROWB}")
    a(f"s_mul_i32 s66, s{sCF}, 576")
    a("s_add_u32 s65, s65, s66")
    a(f"v_mul_u32_u24 v1, {8*ROWB}, v6")
    a("v_mul_u32_u24 v7, 12, v5")
    a("v_add3_u32 v1, v1, v7, s65")
    a(f"v_add_u32 v2, {4*ROWB}, v1")
    a(f"v_subrev_u32 v3, {3*ROWB}, v1")
    a(f"s_mul_i32 s66, s{sCF}, {288*8}")
    a("v_mul_u32_u24 v7, 48, v5")
    a("v_lshl_add_u32 v7, v6, 4, v7")
    a("v_add_u32 v7, s66, v7")
    a(f"s_mul_i32 s65, s{sB0}, 576")
    a(f"s_mul_i32 s66, s{sCF}, 288")
    a("s_add_u32 s65, s65, s66")
    a("s_lshl_b32 s65, s65, 12")
    a("s_add_u32 s65, s65, 4080")
    a(f"s_lshl_b32 s66, s{sRB}, 6")
    a("s_sub_u32 s65, s65, s66")
    a(f"v_mul_u32_u24 v4, {6*4096}, v5")
    a("v_lshlrev_b32 v6, 4, v6")
    a("v_sub_u32 v4, v4, v6")
    a("v_add_u32 v4, s65, v4")
    a("s_mov_b32 s66, 0x11111111")
    a("s_mov_b32 s67, 0x11111111")
    a("s_mov_b32 s68, 0x77777777")

def p0_issue(a, fl):
    srd(a, SK, 4, 5, TENS)
    srd(a, SV, 6, 7, TENS)
    srd(a, SSH, 8, 9, D * 8)
    def row(t): return ("v1", t * ROWB) if t < 4 else ("v2", (t - 4) * ROWB)
    def ldk(t):
        b, o = row(t); a.vm(f"buffer_load_dwordx3 v[{kraw(t)}:{kraw(t)+2}], {b}, {sq(SK)}, 0 offen offset:{o} {fl}", f"K{t}")
    def ldv(t):
        b, o = row(t); a.vm(f"buffer_load_dwordx3 v[{vraw(t)}:{vraw(t)+2}], {b}, {sq(SV)}, 0 offen offset:{o} {fl}", f"V{t}")
    for t in (5, 6, 7): ldk(t)
    a("s_mov_b64 exec, s[66:67]")
    for j in range(3):
        a.vm(f"buffer_load_dwordx3 v[{hraw(j)}:{hraw(j)+2}], v3, {sq(SK)}, 0 offen offset:{j*ROWB} {fl}", f"H{j}")
    a("s_mov_b32 exec_lo, s68")
    a("s_mov_b32 exec_hi, s68")
    a.vm(f"buffer_load_dwordx4 v[84:87], v7, {sq(SSH)}, 0 offen", "W")
    a("s_mov_b64 exec, -1")
    for t in range(5): ldk(t); ldv(t)
    for t in (5, 6, 7): ldv(t)

def unpack(a, dlo, dhi, src):
    a(f"v_lshlrev_b32 v{dlo}, 16, v{src}")
    a(f"v_and_b32 v{dhi}, 0xffff0000, v{src}")

def p0_compute(a, stflag):
    def W(p, j): return 96 + 8 * p + 2 * j
    def Kf(j, c): return 120 + 6 * j + c
    def U(t, c): return 186 + 6 * (t & 3) + c
    def OUT(c): return 212 + 4 * c
    VT = 236
    a("s_mov_b64 vcc, s[66:67]")
    a("v_mov_b32 v88, 0xffff0000")
    for c in range(1, 6):
        a(f"s_mov_b32 s{64+c}, {4096*c}")
    for t in (5, 6, 7):
        a.needv(f"K{t}")
        for p in range(3): unpack(a, Kf(t+3, 2*p), Kf(t+3, 2*p+1), kraw(t) + p)
    for j in range(3):
        a.needv(f"H{j}")
        for p in range(3):
            a(f"v_cndmask_b32_dpp v{hraw(j)+p}, v{kraw(5+j)+p}, v{hraw(j)+p}, vcc quad_perm:[0,0,1,2] {DPP}")
        for p in range(3): unpack(a, Kf(j, 2*p), Kf(j, 2*p+1), hraw(j) + p)
    a.needv("W")
    stamp(a, 16)
    for c in range(6):
        p, h = c >> 1, c & 1
        for half in range(2):
            i = 2 * c + half; s_ = i >> 2; qp = f"quad_perm:[{s_},{s_},{s_},{s_}] {DPP}"
            a(f"v_cvt_f32_bf16_dpp v{W(p,2*half)+h}, v{84+(i&3)} {qp}")
            a(f"v_and_b32_dpp v{W(p,2*half+1)+h}, v{84+(i&3)}, v88 {qp}")
    def ksum(t):
        for p in range(3):
            a(f"v_pk_mul_f32 {pr(U(t,2*p))}, {pr(Kf(t,2*p))}, {pr(W(p,3))}")
        for jj in (2, 1, 0):
            for p in range(3):
                a(f"v_pk_fma_f32 {pr(U(t,2*p))}, {pr(Kf(t+3-jj,2*p))}, {pr(W(p,jj))}, {pr(U(t,2*p))}")
    def vmul(t):
        a.needv(f"V{t}")
        if t == 7: stamp(a, 17)
        for p in range(3): unpack(a, VT + 2*p, VT + 2*p + 1, vraw(t) + p)
        for p in range(3):
            a(f"v_pk_mul_f32 {pr(U(t,2*p))}, {pr(U(t,2*p))}, {pr(VT+2*p)}")
    def cvt(t):
        q = (7 - t) // 2
        for c in range(6):
            a(f"v_cvt_pk_bf16_f32 v{OUT(c)+q}, v{U(t, c)}, v{U(t-1, c)}")
            if t == 7:
                so = "0" if c == 0 else f"s{64+c}"
                a.vm(f"buffer_store_dwordx4 {vr(OUT(c))}, v4, {sq(SU)}, {so} offen {stflag}")
    for t in range(5):
        a.needv(f"K{t}")
        for p in range(3): unpack(a, Kf(t+3, 2*p), Kf(t+3, 2*p+1), kraw(t) + p)
        ksum(t)
        if t == 4:
            for tt in (5, 6, 7): ksum(tt)
        vmul(t)
        if t & 1: cvt(t)
    for t in (5, 6, 7):
        vmul(t)
        if t & 1: cvt(t)

ACC, ACCE, FB, AE, FE0, PD, EV = 8, 40, 56, 120, 184, 216, 220
vTW, vTR, vFE, vEW, vER, vRW, vRR, vUD, vP1, vP2, vYM, vYE, vYG, vYR = range(224, 238)
RED, UD, STG, ES, TRD, YP, XR = 120, 136, 138, 140, 144, 152, 240
TJ = ((0, 2, 5, 7), (1, 3, 4, 6))

def h_dma(a, ch, ldsbase_s, ldsconst, flag, tag):
    a(f"s_lshl_b32 s3, s{ch}, 12")
    if ldsbase_s is not None:
        a(f"s_add_u32 s92, s{ldsbase_s}, {ldsconst + 3*CS + 32}")
        a("s_mov_b32 m0, s92")
    else:
        a(f"s_mov_b32 m0, {ldsconst + 3*CS + 32}")
    a("s_nop 0")
    for q in range(4):
        a.vm(f"buffer_load_dwordx4 v{vL16}, {sq(SH)}, s3 offen offset:{1024*q} {flag} lds", tag)

hc_n = [0]
def h_copies(a, vR, qs, head, qoff=None):
    hc_n[0] += 1; u = hc_n[0]
    Dq = lambda i: 56 + 8 * i
    for i, q in enumerate(qs):
        a.lds(f"ds_read_b128 {vr(Dq(i))}, v{vR} offset:{3*CS + 32 + 1024*q}")
        a.lds(f"ds_read_b64 {pr(Dq(i)+4)}, v{vR} offset:{3*CS + 48 + 1024*q}", ("HC", u, i))
    if head is not None:
        a.lds(f"ds_read_b64 v[122:123], v{head} offset:{3*CS + 32}", ("HH", u))
    for i, q in enumerate(qs):
        d = Dq(i); o = 16 * (i & 1); T0, T1, T2, O4 = 88 + o, 92 + o, 96 + o, 100 + o
        a.need(("HC", u, i))
        for k in range(4):
            a(f"v_alignbit_b32 v{T0+k}, v{d+k+1}, v{d+k}, 16")
        a(f"v_alignbit_b32 v{O4}, v{d+5}, v{d+4}, 16")
        a(f"v_pk_mov_b32 {pr(T1)}, {pr(d)}, {pr(d+2)} op_sel:[1,0]")
        a(f"v_pk_mov_b32 {pr(T1+2)}, {pr(d+2)}, {pr(d+4)} op_sel:[1,0]")
        a(f"v_pk_mov_b32 {pr(T2)}, {pr(T0)}, {pr(T0+2)} op_sel:[1,0]")
        a(f"v_pk_mov_b32 {pr(T2+2)}, {pr(T0+2)}, {pr(O4)} op_sel:[1,0]")
        a.lds(f"ds_write_b128 v{vR}, {vr(T0)} offset:{32 + 1024*q}")
        a.lds(f"ds_write_b128 v{vR}, {vr(T1)} offset:{CS + 32 + 1024*q}")
        a.lds(f"ds_write_b128 v{vR}, {vr(T2)} offset:{2*CS + 32 + 1024*q}", ("HW", u))
    if head is not None:
        a(f"v_sub_u32 v121, 3, v{vLANE}")
        a("v_lshlrev_b32 v121, 4, v121")
        a.need(("HH", u))
        a("v_lshlrev_b64 v[122:123], v121, v[122:123]")
        a(f"v_cmp_eq_u32 vcc, 3, v{vLANE}")
        a(f"v_mul_u32_u24 v121, {CS}, v{vLANE}")
        a(f"v_add_u32 v118, v121, v{head}")
        a("v_cndmask_b32 v122, v122, 0, vcc")
        a("v_cndmask_b32 v123, v123, 0, vcc")
        a("v_mov_b32 v120, 0")
        a("v_mov_b32 v121, 0")
        a("s_mov_b64 exec, 15")
        a.lds("ds_write_b128 v118, v[124:127]")
        a.lds("ds_write_b128 v118, v[120:123] offset:16", ("HW", u))
        a("s_mov_b64 exec, -1")
    return ("HW", u)

def p1_prep_a(a):
    a(f"v_and_b32 v1, 15, v{vLANE}")
    a(f"v_lshrrev_b32 v2, 4, v{vLANE}")
    a("v_and_b32 v3, 3, v1")
    a("v_cmp_eq_u32 vcc, 3, v3")
    a(f"v_mul_u32_u24 v3, {CS}, v3")
    a("v_and_b32 v4, 12, v1")
    a("v_lshlrev_b32 v4, 1, v4")
    a("v_add_u32 v3, v3, v4")
    a("v_cndmask_b32 v4, 0, 8, vcc")
    a("v_add_u32 v3, v3, v4")
    a("v_lshl_add_u32 v3, v2, 4, v3")
    a(f"v_add_u32 v5, s{sHB}, v3")
    a(f"s_lshl_b32 s93, s{sW}, 7")
    a(f"s_add_u32 s3, s93, {4*HB}")
    a("v_add_u32 v6, s3, v3")

def p1_prep_b(a):
    a(f"v_add_u32 v8, s{sUB}, v{vL16}")
    a(f"s_add_u32 s3, s93, {UE - 512}")
    a(f"v_add_u32 v9, s3, v{vL16}")
    a(f"v_cmp_gt_u32 vcc, 32, v{vLANE}")
    a("s_mov_b32 exec_hi, 0xff")
    a("s_nop 0")
    a("v_cndmask_b32 v8, v9, v8, vcc")
    a("ds_write_b128 v8, v[124:127] offset:4096")
    a("s_mov_b64 exec, -1")
    for ch, sv in ((sCH, sDM), (sCE, sDE)):
        a(f"s_and_b32 s3, s{ch}, 1")
        a("s_lshl_b32 s3, s3, 4")
        a(f"s_lshr_b32 s{sv}, s{sv}, s3")
        a(f"s_and_b32 s{sv}, s{sv}, 0xffff")
    a(f"s_lshl_b32 s{sDE}, s{sDE}, 16")
    a("v_lshlrev_b32 v3, 3, v2")
    a("v_add_u32 v3, v3, v1")
    a("v_sub_u32 v3, 15, v3")
    a("v_and_b32 v4, 1, v3")
    a("v_lshlrev_b32 v4, 4, v4")
    a("v_ashrrev_i32 v3, 1, v3")
    a(f"v_lshlrev_b32 v8, v4, s{sDM}")
    for q in range(4):
        a(f"v_cmp_eq_u32 vcc, {q}, v3")
        a("s_nop 1")
        a(f"v_cndmask_b32 v{PD+q}, 0, v8, vcc")
    a("v_lshlrev_b32 v3, 4, v2")
    a("v_lshlrev_b32 v4, 5, v1")
    a("v_sub_u32 v3, v3, v4")
    a("v_add_u32 v3, 480, v3")
    a(f"v_add_u32 v7, s{sUB}, v3")
    a(f"s_add_u32 s3, s93, {UE}")
    a(f"v_add_u32 v{vFE}, s3, v3")
    a("v_lshlrev_b32 v3, 3, v2")
    a("v_add_u32 v3, v3, v4")
    a(f"s_lshl_b32 s3, s{sJE}, 9")
    a(f"s_sub_u32 s3, {UE + 4088}, s3")
    a(f"v_sub_u32 v{vUD}, s3, v3")
    a(f"s_lshl_b32 s3, s{sW}, 9")
    a(f"s_add_u32 s3, s3, {E_LDS}")
    a(f"v_add_u32 v{vEW}, s3, v3")
    a(f"v_add_u32 v{vER}, s3, v{vL16}")
    a(f"s_lshl_b32 s3, s{sW}, 10")
    a(f"s_add_u32 s3, s3, {R_LDS}")
    a(f"v_add_u32 v{vRW}, s3, v{vL16}")
    a(f"s_lshl_b32 s3, s{sW}, 12")
    a(f"s_add_u32 s3, s3, {R_LDS}")
    a(f"v_add_u32 v{vRR}, s3, v{vL16}")
    a(f"v_mul_u32_u24 v{vTW}, {TR}, v1")
    a("v_lshrrev_b32 v3, 1, v2")
    a(f"v_lshl_add_u32 v{vTW}, v3, 6, v{vTW}")
    a("v_and_b32 v3, 1, v2")
    a(f"v_lshl_add_u32 v{vTW}, v3, 3, v{vTW}")
    a(f"s_lshl_b32 s3, s{sW}, 4")
    a(f"s_add_u32 s3, s3, {T_LDS}")
    a(f"v_add_u32 v{vTW}, s3, v{vTW}")
    a(f"v_lshrrev_b32 v3, 3, v{vLANE}")
    a(f"v_mul_u32_u24 v{vTR}, {TR}, v3")
    a(f"v_and_b32 v4, 7, v{vLANE}")
    a(f"v_lshl_add_u32 v{vTR}, v4, 4, v{vTR}")
    a(f"s_mul_i32 s3, s{sW}, {8*TR}")
    a(f"s_add_u32 s3, s3, {T_LDS}")
    a(f"v_add_u32 v{vTR}, s3, v{vTR}")
    a(f"v_mul_u32_u24 v{vYM}, {YR}, v4")
    a(f"v_lshl_add_u32 v{vYM}, v3, 4, v{vYM}")
    a(f"s_lshr_b32 s88, s{sW}, 1")
    a(f"s_mul_i32 s89, s88, {YBR}")
    a(f"s_and_b32 s3, s{sW}, 1")
    a("s_lshl_b32 s3, s3, 9")
    a("s_add_u32 s89, s89, s3")
    a(f"s_add_u32 s89, s89, {Y_LDS}")
    a(f"v_add_u32 v{vYM}, s89, v{vYM}")
    a(f"s_add_u32 s89, s89, {8*YR}")
    a(f"v_add_u32 v{vYE}, s89, v{vL16}")
    a(f"v_lshlrev_b32 v{vYG}, 6, v{vLANE}")
    a("s_lshl_b32 s88, s88, 3")
    a(f"s_add_u32 s88, s88, {Y_LDS}")
    a(f"v_add_u32 v{vYR}, s88, v{vL16}")
    a("s_lshl_b32 s88, s2, 14")
    a(f"s_lshl_b32 s3, s{sW}, 12")
    a("s_add_u32 s88, s88, s3")
    a("s_lshr_b32 s89, s2, 2")
    a("s_lshl_b32 s89, s89, 13")
    a(f"s_lshl_b32 s3, s{sW}, 11")
    a("s_add_u32 s89, s89, s3")
    a("s_and_b32 s3, s2, 3")
    a("s_lshl_b32 s3, s3, 4")
    a("s_add_u32 s89, s89, s3")
    a(f"s_add_u32 s89, s89, {YE_OFF}")
    a(f"v_lshrrev_b32 v4, 2, v{vLANE}")
    a(f"v_and_b32 v8, 3, v{vLANE}")
    a("v_lshlrev_b32 v8, 4, v8")
    a("v_lshl_add_u32 v3, v4, 14, v8")
    a("v_lshl_add_u32 v4, v4, 13, v8")
    a(f"s_lshl_b32 s{sYM}, s{sW}, 18")
    a(f"s_lshl_b32 s3, s{sB}, 13")
    a(f"s_add_u32 s{sYM}, s{sYM}, s3")
    a(f"s_sub_u32 s3, s{sCH}, s{sW}")
    a("s_lshl_b32 s3, s3, 4")
    a(f"s_add_u32 s{sYM}, s{sYM}, s3")
    a(f"s_lshl_b32 s{sYE}, s{sJE}, 16")
    a(f"s_lshl_b32 s3, s{sB}, 12")
    a(f"s_add_u32 s{sYE}, s{sYE}, s3")
    a(f"s_lshl_b32 s3, s{sP}, 6")
    a(f"s_add_u32 s{sYE}, s{sYE}, s3")
    a(f"s_add_u32 s{sYE}, s{sYE}, {YE_OFF}")
    srd(a, SX, 14, 15, TENS)
    a(f"s_lshl_b32 s{sXO}, s2, 3")
    a(f"s_lshl_b32 s3, s{sW}, 1")
    a(f"s_add_u32 s{sXO}, s{sXO}, s3")
    a(f"s_mul_i32 s{sXO}, s{sXO}, {ROWB}")
    a(f"s_mul_i32 s3, s{sB}, 576")
    a(f"s_add_u32 s90, s3, s{sCH}")
    a("s_lshl_b32 s90, s90, 12")
    a(f"s_add_u32 s91, s3, s{sCE}")
    a("s_lshl_b32 s91, s91, 12")
    a(f"s_lshl_b32 s85, s{sW}, 10")
    a("s_add_u32 s91, s91, s85")
    a(f"s_add_u32 s85, s85, {UE}")
    if opt("x2", "flag") == "sent":
        a(f"s_lshl_b32 s92, s{sW}, 12")
        a(f"v_add_u32 v{vP1}, s92, v{vYG}")
    else:
        a(f"s_lshl_b32 s92, s{sB}, 2")
        a(f"s_add_u32 s92, s92, s{sW}")
        a("s_lshl_b32 s92, s92, 11")
        a(f"v_add_u32 v{vP1}, s92, v{vYG}")
        a(f"s_lshl_b32 s92, s{sW}, 12")
        a(f"s_mov_b32 s3, {F2}")
        a("s_cmp_lt_u32 s2, 192")
        a(f"s_cselect_b32 s3, {F2A if opt('f2a', '1') == '1' else F2}, s3")
        a("s_add_u32 s92, s92, s3")
        a(f"v_add_u32 v{vP2}, s92, v{vYG}")
    a(f"v_add_u32 v246, s{sHB}, v{vL16}")
    a(f"v_mov_b32 v247, s{sHB}")
    a(f"s_lshl_b32 s3, s{sW}, 10")
    a(f"s_add_u32 s3, s3, {4*HB}")
    a(f"v_add_u32 v248, s3, v{vL16}")
    a(f"v_mov_b32 v249, {4*HB}")
    a("s_mov_b32 s86, 0x3ae38e39")
    a("s_mov_b32 s87, 0x3727c5ac")

def p1_aload(a, aas):
    for r in range(8):
        for aa in aas:
            ks = 8 * aa + r
            a.lds(f"ds_read_b64 a[{4*ks}:{4*ks+1}], v5 offset:{64*ks}")
            a.lds(f"ds_read_b64 a[{4*ks+2}:{4*ks+3}], v5 offset:{64*ks+8}", ("A", ks))

def F(bank, c): return FB + 32 * bank + 4 * c
MF = "v_mfma_f32_16x16x32_bf16"

def p1_mfma(a, stflag):
    sent = opt("x2", "flag") == "sent"
    a(f"s_mov_b32 m0, s{sUB}")
    a("s_nop 0")
    for q in (3, 2, 1, 0):
        a.vm(f"buffer_load_dwordx4 v{vL16}, {sq(SU)}, s90 offen offset:{1024*q} sc1 lds", f"U{q}")
    a("s_mov_b32 m0, s85")
    a("s_nop 0")
    a.vm(f"buffer_load_dwordx4 v{vL16}, {sq(SU)}, s91 offen sc1 lds", "UE")
    h_copies(a, 246, [2, 3], None)
    hwe = h_copies(a, 248, [0], None)
    p1_aload(a, range(4, 8))
    a.vm(f"buffer_load_dwordx4 {vr(XR)}, v{vL16}, {sq(SX)}, s{sXO} offen nt")
    a.vm(f"buffer_load_dwordx4 {vr(XR+4)}, v{vL16}, {sq(SX)}, s{sXO} offen offset:{ROWB} nt")
    a.vm(f"buffer_load_ushort v{XR+8}, v{vL2}, {sq(SX)}, s{sXO} offen offset:1024 nt")
    a.vm(f"buffer_load_ushort v{XR+9}, v{vL2}, {sq(SX)}, s{sXO} offen offset:{1024+ROWB} nt", "X")
    a("s_lshl_b32 s85, s2, 6")
    a(f"s_add_u32 s85, s85, {F2A}")
    a("s_lshl_b32 s3, s2, 2")
    a(f"s_add_u32 s3, s3, s{sW}")
    a("s_lshl_b32 s3, s3, 6")
    a(f"s_add_u32 s3, s3, {FD}")
    a(f"s_cmp_eq_u32 s{sW}, 0")
    a("s_cselect_b32 s85, s85, s3")
    inited = set()
    def mfma(acc, A_, B_, needs):
        a.need(*needs)
        c = vr(acc) if acc in inited else "0"
        inited.add(acc)
        a(f"{MF} {vr(acc)}, {A_}, {vr(B_)}, {c}")
    def fread(bank, c, r, tag):
        return lambda: a.lds(f"ds_read_b128 {vr(F(bank,c))}, v7 offset:{64*r + 512*(7-c)}", tag)
    def aeread(rp, aa, half):
        return lambda: a.lds(f"ds_read_b64 {pr(AE+32*rp+4*aa+2*half)}, v6 offset:{512*aa + 64*rp + 8*half}", ("AE", rp, aa))
    def FEr(rp, c): return (FE0 + 4 * c) if rp == 0 else F(1, c)
    def feread(rp, c):
        return lambda: a.lds(f"ds_read_b128 {vr(FEr(rp,c))}, v{vFE} offset:{64*rp + 512*(7-c)}", ("FE", rp, c))
    def I(s): return lambda: a(s)
    evc = [0]
    def conv(j):
        e = EV + 2 * (evc[0] & 1); evc[0] += 1
        ops = [I(f"v_cvt_pk_bf16_f32 v{e}, v{ACC+4*j}, v{ACC+4*j+1}"), I(f"v_cvt_pk_bf16_f32 v{e+1}, v{ACC+4*j+2}, v{ACC+4*j+3}")]
        if sent: ops += [I(f"v_min_u32 v{e}, -2, v{e}"), I(f"v_min_u32 v{e+1}, -2, v{e+1}")]
        ops.append(lambda: a.lds(f"ds_write_b64 v{vTW}, {pr(e)} offset:{16*TR*j}", ("TW", j)))
        return ops
    def barrier(*tags):
        def f():
            a.need(*tags); a("s_barrier")
        return f
    def tread(k, reg): return lambda: a.lds(f"ds_read_b128 {vr(reg)}, v{vTR} offset:{32*TR*k}", ("TRD", k))
    def tstore(k, reg):
        def f():
            a(f"s_add_u32 s3, s{sYM}, {k*64*16384}")
            a.need(("TRD", k))
            a.vm(f"buffer_store_dwordx4 {vr(reg)}, v3, {sq(SY)}, s3 offen {stflag}")
        return f
    def run(items, plan):
        for n, it in enumerate(items):
            mfma(*it)
            for op in plan.pop(n, []): op()
        assert not plan, plan.keys()
    def put(plan, start, ops, per=1):
        for i, op in enumerate(ops):
            plan.setdefault(start + i // per, []).append(op)
    def passblk(J, r, pname):
        bank = r & 1; items = []
        order = [(c, j) for c in range(max(J) + 1) for j in J if j >= c]
        if pname == "c" and r == 7:
            order = [(c, 6) for c in range(7)] + [(c, 7) for c in range(8)]
        for c, j in order:
            tg = [("F", pname, r, c)]
            if r == 0 and j == c: items.append((ACC + 4*j, vr(PD), F(bank, c), tg))
            items.append((ACC + 4*j, ar(4 * (8 * (j - c) + r)), F(bank, c), tg))
        return items
    ae_ops = [aeread(rp, aa, h) for rp in range(2) for aa in range(8) for h in range(2)]
    a.needv("U2")
    stamp(a, 9); stamp(a, 24, True)
    for c in range(4): fread(0, c, 0, ("F", "a", 0, c))()
    for r in range(8):
        plan = {}
        if r < 7: put(plan, 0, [fread((r+1) & 1, c, r + 1, ("F", "a", r + 1, c)) for c in range(4)])
        else: put(plan, 0, [fread(0, c, 0, ("F", "b", 0, c)) for c in range(6)])
        if r == 1: put(plan, 8, [barrier(hwe)])
        if 2 <= r <= 5:
            for sl, op in zip((4, 4, 5, 6, 6, 7, 8, 9), ae_ops[8*(r-2): 8*(r-2) + 8]): plan.setdefault(sl, []).append(op)
        if r == 6:
            put(plan, 3, [lambda: (a.needv("UE"), a("s_barrier"))])
            put(plan, 4, [feread(0, c) for c in range(6)])
        if r == 7: put(plan, 6, [feread(0, c) for c in range(6, 8)])
        run(passblk((0, 1, 2, 3), r, "a"), plan)
        if r == 3: qstamp(a, 0)
        if r == 6: qstamp(a, 1)
        if r == 7: qstamp(a, 2)
    a(f"s_cmp_eq_u32 s{sHF}, 1")
    a("s_cbranch_scc1 ex_h1")
    save = (a.ln, a.ld, dict(a.lt), evc[0], set(inited))
    for h in range(2):
        if h == 1:
            a("s_branch ex_join")
            a.label("ex_h1")
            end0 = (a.ln, a.ld)
            a.ln, a.ld, a.lt, evc[0], inited = save[0], save[1], dict(save[2]), save[3], set(save[4])
        items = []
        for rp in range(2):
            for c in range(8):
                for s_, j in enumerate(TJ[h]):
                    if j >= c:
                        items.append((ACCE + 4*s_, vr(AE + 32*rp + 4*(j - c)), FEr(rp, c), [("AE", rp, j - c), ("FE", rp, c)]))
        assert len(items) == 36
        plan = {}
        put(plan, 0, [feread(1, c) for c in range(8)])
        put(plan, 9, conv(0) + conv(1) + conv(2) + conv(3))
        run(items, plan)
    a.label("ex_join")
    qstamp(a, 3)
    assert a.ln == end0[0]
    a.ld = min(a.ld, end0[1])
    red = [I(f"v_pk_add_f32 {pr(RED)}, {pr(RED)}, {pr(RED+4)}"), I(f"v_pk_add_f32 {pr(RED+2)}, {pr(RED+2)}, {pr(RED+6)}"),
           I(f"v_pk_add_f32 {pr(RED+8)}, {pr(RED+8)}, {pr(RED+12)}"), I(f"v_pk_add_f32 {pr(RED+10)}, {pr(RED+10)}, {pr(RED+14)}"),
           I(f"v_pk_add_f32 {pr(RED)}, {pr(RED)}, {pr(RED+8)}"), I(f"v_pk_add_f32 {pr(RED+2)}, {pr(RED+2)}, {pr(RED+10)}"),
           I(f"v_and_b32 v{RED+4}, 0xffff0000, v{UD+1}"), I(f"v_lshlrev_b32 v{RED+5}, 16, v{UD+1}"),
           I(f"v_and_b32 v{RED+6}, 0xffff0000, v{UD}"), I(f"v_lshlrev_b32 v{RED+7}, 16, v{UD}")]
    red += [I(f"v_fmac_f32 v{RED+i}, s{sDE}, v{RED+4+i}") for i in range(4)]
    red += [I(f"v_cvt_pk_bf16_f32 v{STG}, v{RED}, v{RED+1}"), I(f"v_cvt_pk_bf16_f32 v{STG+1}, v{RED+2}, v{RED+3}")]
    if sent: red += [I(f"v_min_u32 v{STG}, -2, v{STG}"), I(f"v_min_u32 v{STG+1}, -2, v{STG+1}")]
    red += [lambda: a.lds(f"ds_write_b64 v{vEW}, {pr(STG)}"), lambda: a.lds(f"ds_read_b128 {vr(ES)}, v{vER}", "ES")]
    def estore():
        a.need("ES"); a("s_mov_b32 exec_hi, 0")
        a.vm(f"buffer_store_dwordx4 {vr(ES)}, v4, {sq(SY)}, s{sYE} offen {stflag}")
        a("s_mov_b64 exec, -1")
    for r in range(8):
        plan = {}
        if r < 7: put(plan, 0, [fread((r+1) & 1, c, r + 1, ("F", "b", r + 1, c)) for c in range(6)])
        else: put(plan, 0, [fread(0, c, 0, ("F", "c", 0, c)) for c in range(8)])
        if r == 0: put(plan, 8, [(lambda s_: lambda: a.lds(f"ds_write_b128 v{vRW}, {vr(ACCE+4*s_)} offset:{4096*s_}", ("RW", s_)))(s_) for s_ in range(4)])
        if r == 1: put(plan, 9, [barrier(("RW", 3), ("TW", 3))])
        if r == 2:
            put(plan, 6, [tread(0, TRD), tread(1, TRD + 4)] +
                [(lambda i: lambda: a.lds(f"ds_read_b128 {vr(RED+4*i)}, v{vRR} offset:{1024*i}", ("RR", i)))(i) for i in range(3)])
        if r == 3:
            put(plan, 6, [lambda: a.lds(f"ds_read_b128 {vr(RED+12)}, v{vRR} offset:3072", ("RR", 3)),
                          lambda: a.lds(f"ds_read_b64 {pr(UD)}, v{vUD}", "UD"), tstore(0, TRD), tstore(1, TRD + 4)])
        if r == 4:
            put(plan, 5, [lambda: a.need("UD")])
            put(plan, 6, red[:10], 2)
        if r == 5: put(plan, 6, red[10:], 2)
        if r == 6: put(plan, 6, [estore])
        run(passblk((4, 5), r, "b"), plan)
        if r == 1: qstamp(a, 4)
        if r == 7: qstamp(a, 5)
    for r in range(8):
        plan = {}
        if r < 7: put(plan, 0, [fread((r+1) & 1, c, r + 1, ("F", "c", r + 1, c)) for c in range(8)])
        if r == 0: put(plan, 9, conv(4) + conv(5), 2)
        if r == 1:
            put(plan, 8, [barrier(("TW", 5))])
            put(plan, 10, [tread(2, TRD)])
        if r == 2: put(plan, 9, [tstore(2, TRD)])
        if r == int(opt("x2b", "6")) and not sent and opt("f2a", "1") == "1":
            def f2a():
                a("s_waitcnt vmcnt(0)"); a.vd = a.vn
                a("s_barrier")
                signal(a, 85); a.vn += 1
            put(plan, 9, [f2a])
        if r == int(opt("ypre", "6")) and sent: put(plan, 9, y_issue_ops(a))
        if r == 7: put(plan, 14, conv(6), 5)
        run(passblk((6, 7), r, "c"), plan)
        if r == 1: qstamp(a, 6)
        if r == 5: qstamp(a, 7)
    stamp(a, 7); stamp(a, 25, True)
    a("s_nop 2" if sent else "s_nop 4")
    for op in conv(7): op()
    barrier(("TW", 7))()
    tread(3, TRD + 4)()
    tstore(3, TRD + 4)()
    stamp(a, 8); stamp(a, 26, True)
    qflush(a)

Z, YA, YB, G = 8, 26, 44, 62
SS, QQ, RS, ND, C0 = 80, 82, 84, 86, 88
YW = 96

def p2_sums(a):
    a(f"v_pk_add_f32 {pr(SS)}, {pr(Z)}, {pr(Z+2)}")
    a(f"v_pk_mul_f32 {pr(QQ)}, {pr(Z)}, {pr(Z)}")
    a(f"v_pk_fma_f32 {pr(QQ)}, {pr(Z+2)}, {pr(Z+2)}, {pr(QQ)}")
    for e in range(2, 9):
        a(f"v_pk_add_f32 {pr(SS)}, {pr(SS)}, {pr(Z+2*e)}")
        a(f"v_pk_fma_f32 {pr(QQ)}, {pr(Z+2*e)}, {pr(Z+2*e)}, {pr(QQ)}")

def p2_chain(a, fill):
    fill = list(fill)
    def gap(n):
        for _ in range(n):
            if fill: a(fill.pop(0))
            else: a("s_nop 0")
    T, Uq = 90, 91
    gap(2)
    a(f"v_permlane32_swap_b32 v{SS}, v{SS+1}")
    a(f"v_permlane32_swap_b32 v{QQ}, v{QQ+1}")
    a(f"v_add_f32 v{SS}, v{SS}, v{SS+1}")
    a(f"v_add_f32 v{QQ}, v{QQ}, v{QQ+1}")
    gap(2)
    a(f"v_permlane16_swap_b32 v{SS}, v{QQ}")
    a(f"v_add_f32 v{T}, v{SS}, v{QQ}")
    for m in ("quad_perm:[1,0,3,2]", "quad_perm:[2,3,0,1]", "row_half_mirror", "row_mirror"):
        gap(2)
        a(f"v_add_f32_dpp v{T}, v{T}, v{T} {m} {DPP}")
    a(f"v_mov_b32 v{Uq}, v{T}")
    gap(2)
    a(f"v_permlane16_swap_b32 v{T}, v{Uq}")
    a(f"v_mul_f32 v{T}, s86, v{T}")
    a(f"v_mul_f32 v{Uq}, s86, v{Uq}")
    a(f"v_fma_f32 v{Uq}, -v{T}, v{T}, v{Uq}")
    a(f"v_max_f32 v{Uq}, 0, v{Uq}")
    a(f"v_add_f32 v{Uq}, s87, v{Uq}")
    a(f"v_rsq_f32 v{RS}, v{Uq}")
    gap(1)
    a(f"v_mul_f32 v{ND}, v{RS}, v{T}")
    a(f"v_mov_b32 v{RS+1}, v{RS}")
    a(f"v_mov_b32 v{ND+1}, v{ND}")
    gap(2)
    a(f"v_permlane32_swap_b32 v{RS}, v{RS+1}")
    a(f"v_permlane32_swap_b32 v{ND}, v{ND+1}")
    while fill: a(fill.pop(0))

def p2_first(a):
    a.needv("X")
    for q in range(4):
        for row in range(2):
            a(f"v_lshlrev_b32 v{Z+4*q+row}, 16, v{XR+4*row+q}")
            a(f"v_and_b32 v{Z+4*q+2+row}, 0xffff0000, v{XR+4*row+q}")
    a(f"v_lshlrev_b32 v{Z+16}, 16, v{XR+8}")
    a(f"v_lshlrev_b32 v{Z+17}, 16, v{XR+9}")
    a(f"v_readfirstlane_b32 s92, v{Z}")
    a(f"v_readfirstlane_b32 s93, v{Z+1}")
    a("s_nop 1")
    a(f"v_mov_b32 v{C0}, s92")
    a(f"v_mov_b32 v{C0+1}, s93")
    for e in range(9):
        a(f"v_pk_add_f32 {pr(Z+2*e)}, {pr(Z+2*e)}, {pr(C0)} neg_lo:[0,1] neg_hi:[0,1]")
    p2_sums(a)
    p2_chain(a, [])

def y_ld(i):
    if i == 4: return f"buffer_load_dwordx4 {vr(YP+16)}, v{vYG}, {sq(SY)}, s89 offen sc1"
    return f"buffer_load_dwordx4 {vr(YP+4*i)}, v{vL16}, {sq(SY)}, s88 offen offset:{1024*i} sc1"
def y_issue_ops(a):
    def e():
        a("s_mov_b32 exec_hi, 0"); a.vm(y_ld(4)); a("s_mov_b64 exec, -1")
    return [e] + [(lambda i: lambda: a.vm(y_ld(i)))(i) for i in range(4)]

def y_write(a):
    for q in range(4):
        a(f"ds_write_b128 v{vYM}, {vr(YP+4*q)} offset:{128*q}")
    a("s_mov_b32 exec_hi, 0")
    a(f"ds_write_b128 v{vYE}, {vr(YP+16)}")
    a("s_mov_b64 exec, -1")
    a("s_waitcnt lgkmcnt(0)")

def y_check(a):
    M = [4, 6, 8, 10, 12]
    for i in range(4):
        a(f"s_mov_b64 s[{M[i]}:{M[i]+1}], -1")
    a("s_mov_b32 s12, -1")
    a("s_mov_b32 s13, 0")
    a("s_mov_b32 s92, 0x20000")
    a("s_waitcnt vmcnt(1)")
    a("s_branch yc_chk")
    a.label("yc_loop")
    a("s_waitcnt vmcnt(0)")
    a.label("yc_chk")
    for i in range(5):
        r = YP + 4 * i
        a(f"s_mov_b64 exec, s[{M[i]}:{M[i]+1}]")
        a(f"v_max3_u32 v238, v{r}, v{r+1}, v{r+2}")
        a(f"v_max_u32 v238, v238, v{r+3}")
        a(f"v_cmp_eq_u32 s[{M[i]}:{M[i]+1}], -1, v238")
    a("s_or_b64 s[14:15], s[4:5], s[6:7]")
    a("s_or_b64 s[14:15], s[14:15], s[8:9]")
    a("s_or_b64 s[14:15], s[14:15], s[10:11]")
    a("s_or_b64 s[14:15], s[14:15], s[12:13]")
    a("s_cbranch_scc0 yc_done")
    a("s_sub_u32 s92, s92, 1")
    a("s_cbranch_scc1 yc_done")
    if int(opt("ysleep", "0")): a(f"s_sleep {opt('ysleep','0')}")
    for i in range(5):
        a(f"s_mov_b64 exec, s[{M[i]}:{M[i]+1}]")
        a(f"s_cbranch_execz yc_skip{i}")
        a(y_ld(i))
        a.label(f"yc_skip{i}")
    a("s_branch yc_loop")
    a.label("yc_done")
    a("s_mov_b64 exec, -1")

def p2_rest(a, stflag):
    for b in range(2):
        for e in range(9):
            a(f"ds_read_b64 {pr(YW + 2*(9*b+e))}, v{vYR} offset:{YBR*b + YR*e}")
    a(f"s_and_b32 s90, s{sW}, 1")
    a("s_mul_i32 s90, s90, 0x04040000")
    a("s_add_u32 s91, s90, 0x03020c0c")
    a("s_add_u32 s90, s90, 0x01000c0c")
    def unp(b, e):
        r = YW + 2 * (9 * b + e); y = (YA if b == 0 else YB) + 2 * e
        return [f"v_perm_b32 v{y}, v{r+1}, v{r}, s90", f"v_perm_b32 v{y+1}, v{r+1}, v{r}, s91"]
    for e in range(9):
        a(f"s_waitcnt lgkmcnt({min(15, 17 - e)})")
        for s_ in unp(0, e): a(s_)
        a(f"v_pk_mul_f32 {pr(G+2*e)}, {pr(Z+2*e)}, {pr(YA+2*e)}")
    def post(Y):
        for e in range(9):
            a(f"v_pk_fma_f32 {pr(Z+2*e)}, {pr(G+2*e)}, {pr(RS)}, {pr(Z+2*e)}")
        for e in range(9):
            a(f"v_pk_fma_f32 {pr(Z+2*e)}, {pr(Y+2*e)}, {pr(ND)}, {pr(Z+2*e)} neg_lo:[0,1,0] neg_hi:[0,1,0]")
    post(YA)
    a("s_waitcnt lgkmcnt(0)")
    for layer, Y in ((2, YB), (3, YA), (4, YB)):
        p2_sums(a)
        fill = []
        for e in range(9):
            if layer == 2: fill += unp(1, e)
            fill.append(f"v_pk_mul_f32 {pr(G+2*e)}, {pr(Z+2*e)}, {pr(Y+2*e)}")
        if layer == 4:
            fill += [f"v_pk_add_f32 {pr(Z+2*e)}, {pr(Z+2*e)}, {pr(C0)}" for e in range(9)]
        p2_chain(a, fill)
        a("s_nop 0")
        post(Y)
    for row in range(2):
        for q in range(4):
            a(f"v_cvt_pk_bf16_f32 v{XR+4*row+q}, v{Z+4*q+row}, v{Z+4*q+2+row}")
    a(f"v_cvt_pk_bf16_f32 v{XR+8}, v{Z+16}, v{Z+17}")
    a(f"buffer_store_dwordx4 {vr(XR)}, v{vL16}, {sq(SO)}, s{sXO} offen {stflag}")
    a(f"buffer_store_dwordx4 {vr(XR+4)}, v{vL16}, {sq(SO)}, s{sXO} offen offset:{ROWB} {stflag}")
    a(f"buffer_store_short v{XR+8}, v{vL2}, {sq(SO)}, s{sXO} offen offset:1024 {stflag}")
    a(f"buffer_store_short_d16_hi v{XR+8}, v{vL2}, {sq(SO)}, s{sXO} offen offset:{1024+ROWB} {stflag}")

def signal(a, off_s):
    a(f"v_mov_b32 v238, s{off_s}")
    a(f"v_mov_b32 v239, s{sTAG}")
    a("s_mov_b64 exec, 1")
    a(f"buffer_store_dword v239, v238, {sq(SF)}, 0 offen sc1")
    a("s_mov_b64 exec, -1")

def poll(a, tag, vaddr, all64):
    a("s_mov_b32 s92, 0x20000")
    if not all64: a("s_mov_b32 exec_hi, 0")
    a.label(f"{tag}_poll")
    a(f"buffer_load_dword v238, v{vaddr}, {sq(SF)}, 0 offen sc1")
    a("s_waitcnt vmcnt(0)")
    a(f"v_cmp_ne_u32 vcc, s{sTAG}, v238")
    a("s_and_b64 exec, exec, vcc")
    a(f"s_cbranch_execz {tag}_ok")
    if int(opt("sleep", "2")): a(f"s_sleep {opt('sleep', '2')}")
    a("s_sub_u32 s92, s92, 1")
    a("s_cmp_lg_u32 s92, 0")
    a(f"s_cbranch_scc1 {tag}_poll")
    a.label(f"{tag}_ok")
    a("s_mov_b64 exec, -1")

def epoch_issue(a):
    a(f"v_mov_b32 v253, {EP}")
    a.vm(f"buffer_load_dword v254, v253, {sq(SF)}, 0 offen sc1", "EP")
def epoch_use(a):
    a.needv("EP")
    a(f"v_readfirstlane_b32 s{sTAG}, v254")
    a(f"s_mul_i32 s{sTAG}, s{sTAG}, 0x9E3779B1")
    a(f"s_add_u32 s{sTAG}, s{sTAG}, 0x7F4A7C15")

def elect_and_signal(a, n, skip):
    a(f"v_mov_b32 v238, {LDS_CTR}")
    a("v_mov_b32 v239, 1")
    a(f"s_lshl_b32 s90, s{sFI}, 6")
    a("s_waitcnt vmcnt(0)")
    a("s_mov_b64 exec, 1")
    a("ds_add_rtn_u32 v253, v238, v239")
    a("s_waitcnt lgkmcnt(0)")
    a("v_readfirstlane_b32 s3, v253")
    a("s_mov_b64 exec, -1")
    a(f"s_cmp_eq_u32 s3, {n-1}")
    a(f"s_cbranch_scc0 {skip}")
    signal(a, 90)
    stamp(a, 4)
    a.label(skip)

def kernel(name, body, vgpr, accum):
    return f""".text
.globl {name}
.p2align 8
.type {name},@function
{name}:
{body}{name}_end:
    s_endpgm
.section .rodata,"a"
.p2align 6
.amdhsa_kernel {name}
  .amdhsa_next_free_vgpr {vgpr}
  .amdhsa_next_free_sgpr 102
  .amdhsa_accum_offset {accum}
  .amdhsa_group_segment_fixed_size 0
  .amdhsa_kernarg_size 120
  .amdhsa_user_sgpr_count 2
  .amdhsa_user_sgpr_kernarg_segment_ptr 1
  .amdhsa_system_sgpr_workgroup_id_x 1
.end_amdhsa_kernel
"""
def header(launches):
    hdr = [l for l in open(REF).read().split("\n") if l.startswith(";") and "@launch" not in l]
    return "\n".join(hdr) + "\n" + "\n".join(launches) + '\n.amdgcn_target "amdgcn-amd-amdhsa--gfx950"\n'

def gen_fused():
    K = NAME + "_kernel"
    sent = opt("x2", "flag") == "sent"
    NEL = 4 if sent else 3
    out = header([f"; @launch grid=(256,1,1) block=(256,1,1) lds={LDS_TOT + int(opt('ldsx', '0'))}"])
    a = A()
    hl = opt("hld", "nt")
    stamp(a, 0)
    if int(opt("pad", "0")):
        a("s_memrealtime s[94:95]"); a("s_waitcnt lgkmcnt(0)"); a("v_mov_b32 v255, s94")
    prologue(a, K + "_end")
    a(f"s_cmp_eq_u32 s{sW}, 3")
    a("s_cbranch_scc1 w3_path")
    def common_srds(a):
        srd(a, SH, 10, 11, TENS)
        srd(a, SF, 20, 21, F_BYTES, F_OFF)
        srd(a, SU, 20, 21, U_BYTES, U_OFF)
        srd(a, SY, 20, 21, Y_BYTES, YM_OFF)
        srd(a, SO, 16, 17, TENS)
        a(f"s_lshr_b32 s90, s{sCH}, 1")
        a("s_lshl_b32 s90, s90, 2")
        a(f"s_lshr_b32 s91, s{sCE}, 1")
        a("s_lshl_b32 s91, s91, 2")
        a(f"s_load_dword s{sDM}, s[12:13], s90")
        a(f"s_load_dword s{sDE}, s[12:13], s91")
    late = opt("hw3", "late") == "late"
    p0_addr(a)
    a("s_waitcnt lgkmcnt(0)")
    stamp(a, 1)
    p0_issue(a, opt("p0ld", "nt"))
    common_srds(a)
    epoch_issue(a)
    if not late: a("s_barrier")
    stamp(a, 2)
    p0_compute(a, opt("ust", "sc1"))
    a.vt["UST"] = a.vn
    h_dma(a, sCH, sHB, 0, hl, "h")
    if late: a("s_barrier")
    stamp(a, 3)
    for r in range(124, 128): a(f"v_mov_b32 v{r}, 0")
    epoch_use(a)
    a("s_waitcnt lgkmcnt(0)")
    p1_prep_a(a)
    p1_prep_b(a)
    a(f"v_mov_b32 v238, {LDS_CTR}")
    a("v_mov_b32 v239, 1")
    a(f"s_lshl_b32 s92, s{sFI}, 6")
    a.needv("UST")
    a("s_mov_b64 exec, 1")
    a("ds_add_rtn_u32 v253, v238, v239")
    a("s_waitcnt lgkmcnt(0)")
    a("v_readfirstlane_b32 s3, v253")
    a("s_mov_b64 exec, -1")
    a("s_cmp_eq_u32 s3, 2")
    a("s_cbranch_scc0 no_sig1")
    signal(a, 92)
    stamp(a, 4)
    a("s_waitcnt vmcnt(1)")
    a("s_branch have_h")
    a.label("no_sig1")
    a("s_waitcnt vmcnt(0)")
    a("s_branch have_h")
    a.reset()
    a.label("w3_path")
    npf = int(opt("cpf", "0"))
    if npf:
        a(f"s_cmp_ge_u32 s2, {npf}")
        a("s_cbranch_scc1 no_cpf")
        a("s_getpc_b64 s[96:97]")
        a.label("cpf_base")
        a(f"s_sub_u32 s96, s96, cpf_base - {K}")
        a("s_subb_u32 s97, s97, 0")
        for i in range(3):
            a(f"v_lshlrev_b32 v12, 7, v{vLANE}")
            a(f"v_add_u32 v12, {8192*i}, v12")
            a(f"v_min_u32 v12, {K}_end - {K}, v12")
            a("v_mov_b32 v13, s97")
            a("v_add_co_u32 v12, vcc, s96, v12")
            a("s_nop 1")
            a("v_addc_co_u32 v13, vcc, 0, v13, vcc")
            a(f"global_load_dword v{14+i}, v[12:13], off")
        a.label("no_cpf")
    for r in range(124, 128): a(f"v_mov_b32 v{r}, 0")
    a(f"v_mov_b32 v56, {LDS_CTR}")
    a("ds_write_b32 v56, v124")
    a("s_waitcnt lgkmcnt(0)")
    common_srds(a)
    epoch_issue(a)
    a("s_waitcnt lgkmcnt(0)")
    p1_prep_a(a)
    p1_prep_b(a)
    epoch_use(a)
    a("s_waitcnt lgkmcnt(0)")
    a("s_barrier")
    h_dma(a, sCE, None, 4 * HB, hl, "hE")
    h_dma(a, sCH, sHB, 0, hl, "h")
    stamp(a, 2)
    a.reset(); a.vn = 8; a.vt["hE"] = 4
    a.needv("hE")
    h_copies(a, 249, [], 249)
    a("s_waitcnt vmcnt(0)")
    a.label("have_h")
    a.reset()
    stamp(a, 18)
    h_copies(a, 246, [0, 1], 247)
    p1_aload(a, range(4))
    stamp(a, 5)
    poll(a, "e1", vP1, False)
    a("s_waitcnt lgkmcnt(0)")
    a("s_barrier")
    a.reset()
    stamp(a, 6)
    p1_mfma(a, opt("yst", "sc1"))
    if sent:
        p2_first(a)
        stamp(a, 19)
        y_check(a)
        stamp(a, 11)
        y_write(a)
    else:
        a("s_lshl_b32 s90, s2, 6")
        a(f"s_add_u32 s90, s90, {F2}")
        a("s_waitcnt vmcnt(0)")
        a("s_barrier")
        a(f"s_cmp_eq_u32 s{sW}, 0")
        a("s_cbranch_scc0 no_sig2")
        signal(a, 90)
        a.label("no_sig2")
        stamp(a, 10)
        p2_first(a)
        stamp(a, 19)
        poll(a, "e2", vP2, True)
        a("s_barrier")
        stamp(a, 11)
        for op in y_issue_ops(a): op()
        a("s_waitcnt vmcnt(0)")
        y_write(a)
    a("s_barrier")
    stamp(a, 12)
    a(f"s_or_b32 s3, s2, s{sW}")
    a("s_cmp_eq_u32 s3, 0")
    a("s_cbranch_scc0 no_epoch")
    a(f"s_mov_b32 s3, {EP}")
    signal(a, 3)
    a.label("no_epoch")
    if opt("q2", "0") == "1": stamp(a, 24, True)
    p2_rest(a, opt("ost", "sc1"))
    if opt("q2", "0") == "1": stamp(a, 27, True)
    stamp(a, 13)
    if int(opt("pad", "0")):
        if opt("gpad", "0") == "1":
            srd(a, 96, 18, 19, 256)
            a("v_mov_b32 v13, 0")
            a("buffer_load_dword v12, v13, s[96:99], 0 offen sc1")
            a("s_waitcnt vmcnt(0)")
            a("v_readfirstlane_b32 s100, v12")
            a("s_not_b32 s100, s100")
        a("v_readfirstlane_b32 s100, v255")
        a.label("padl")
        a("s_memrealtime s[98:99]")
        a("s_waitcnt lgkmcnt(0)")
        a("s_sub_u32 s98, s98, s100")
        a(f"s_cmp_lt_u32 s98, {opt('pad', '0')}")
        a("s_cbranch_scc1 padl")
    stamp_flush(a)
    out += kernel(K, a.text(), 512, 256)
    return out

if __name__ == "__main__":
    path = sys.argv[1]
    STAMPS = "--stamps" in sys.argv
    for x in sys.argv[2:]:
        if "=" in x:
            k_, v_ = x.split("=", 1); OPT[k_] = v_
    open(path, "w").write(gen_fused())
```

```python
import sys
NAME = "interleave_layers__ssm_conv_h3__ssm_conv_h3__prompt"
REF = f"cdna_kernels/{NAME}.s.ref"
OPT = {}
STAMPS = False
def opt(k, d): return OPT.get(k, d)
def SPLIT(): return opt("split", "0") == "1"

S, D = 2048, 576
ROWB = D * 2
TENS = S * ROWB
U_OFF = 0;            U_BYTES = 2 * D * 4096
YM_OFF = U_BYTES;     YM_BYTES = 256 * 16384
YE_OFF = YM_BYTES;    YE_BYTES = 64 * 8192
Y_BYTES = YM_BYTES + YE_BYTES
F_OFF = YM_OFF + Y_BYTES
F2 = 16384; F2A = 32768; EP = 49152; FD = 65536; F1B = 131072; F_BYTES = F1B + 16384
ST_OFF = 0xA00000
CS = 4160; HB = 4 * CS
US = 4608; U_BASE = 5 * HB; UE = U_BASE + 4 * US
LDS_CTR = U_BASE + 5 * US
Y_LDS = 0; YR = 1040; YBR = 9 * YR
T_LDS = LDS_CTR + 64; TR = 144
E_LDS = T_LDS + 128 * TR
R_LDS = E_LDS + 2560
LDS_TOT = R_LDS + 16384

class A:
    def __init__(self):
        self.l = []; self.reset()
    def reset(self):
        self.ln = 0; self.ld = 0; self.lt = {}
        self.vn = 0; self.vd = 0; self.vt = {}
    def __call__(self, s): self.l.append("    " + s)
    def label(self, s): self.l.append(s + ":")
    def text(self): return "\n".join(self.l) + "\n"
    def lds(self, s, tag=None):
        self(s); self.ln += 1
        if tag is not None: self.lt[tag] = self.ln
    def vm(self, s, tag=None):
        self(s); self.vn += 1
        if tag is not None: self.vt[tag] = self.vn
    def need(self, *tags):
        k = max([self.lt[t] for t in tags if t in self.lt] + [0])
        if k > self.ld:
            n = min(15, self.ln - k); self(f"s_waitcnt lgkmcnt({n})"); self.ld = self.ln - n
    def needv(self, *tags):
        k = max([self.vt[t] for t in tags] + [0])
        if k > self.vd:
            n = min(63, self.vn - k); self(f"s_waitcnt vmcnt({n})"); self.vd = self.vn - n

def srd(a, d, lo, hi, size, add=None):
    if add:
        a(f"s_add_u32 s{d}, s{lo}, {add}")
        a(f"s_addc_u32 s{d+1}, s{hi}, 0")
    else:
        a(f"s_mov_b32 s{d}, s{lo}")
        a(f"s_mov_b32 s{d+1}, s{hi}")
    a(f"s_mov_b32 s{d+2}, {size}")
    a(f"s_mov_b32 s{d+3}, 0x00020000")

SK, SV, SSH, SH, SU, SY, SX, SO, SF = 24, 28, 32, 36, 40, 44, 48, 52, 56
sX, sQ, sB, sP, sW = 60, 61, 62, 63, 64
sB0, sCF, sRB = 69, 70, 71
sCH, sCE, sJE, sHB, sUB, sDM, sDE, sFI, sHF, sTAG = 72, 73, 74, 75, 76, 77, 78, 79, 82, 83
sYM, sYE, sXO, sT2 = 80, 81, 84, 100
vLANE, vL16, vL2 = 250, 251, 252

def stamp(a, idx, cyc=False):
    if opt("padat", "x") == str(idx) and not cyc:
        a("s_memrealtime s[94:95]"); a("s_waitcnt lgkmcnt(0)"); a("v_mov_b32 v255, s94")
    if not STAMPS: return
    a(("s_memtime" if cyc else "s_memrealtime") + " s[94:95]")
    a("s_waitcnt lgkmcnt(0)")
    a(f"v_writelane_b32 v255, s94, {idx}")
def qstamp(a, i):
    if STAMPS and opt("q", "0") == "1": a(f"s_memtime s[{4+2*i}:{5+2*i}]")
def qflush(a):
    if STAMPS and opt("q", "0") == "1":
        a("s_waitcnt lgkmcnt(0)")
        for i in range(8): a(f"v_writelane_b32 v255, s{4+2*i}, {20+i if i < 4 else 24+i}")
def stamp_flush(a):
    if not STAMPS: return
    srd(a, 96, 20, 21, 0x100000, ST_OFF)
    a("s_lshl_b32 s94, s2, 2")
    a(f"s_add_u32 s94, s94, s{sW}")
    a("s_lshl_b32 s94, s94, 7")
    a(f"v_lshlrev_b32 v254, 2, v{vLANE}")
    a("s_mov_b32 exec_hi, 0")
    a("buffer_store_dword v255, v254, s[96:99], s94 offen")

def vr(r, n=4): return f"v[{r}:{r+n-1}]"
def ar(r, n=4): return f"a[{r}:{r+n-1}]"
def pr(r): return f"v[{r}:{r+1}]"
def sq(r): return f"s[{r}:{r+3}]"
DPP = "row_mask:0xf bank_mask:0xf"

def prologue(a, end):
    a("s_cmp_ge_u32 s2, 256")
    a(f"s_cbranch_scc1 {end}")
    npf = int(opt("cpf", "32"))
    if npf:
        K = NAME + "_kernel"
        a(f"s_cmp_ge_u32 s2, {npf}")
        a("s_cbranch_scc1 no_cpf")
        a("s_getpc_b64 s[96:97]")
        a.label("cpf_base")
        a("v_lshlrev_b32 v12, 7, v0")
        a(f"v_min_u32 v12, {K}_end - cpf_base, v12")
        a("v_mov_b32 v13, s97")
        a("v_add_co_u32 v12, vcc, s96, v12")
        a("s_nop 1")
        a("v_addc_co_u32 v13, vcc, 0, v13, vcc")
        a("global_load_dword v254, v[12:13], off")
        a.label("no_cpf")
    a(f"s_lshr_b32 s{sB0}, s2, 7")
    a(f"s_mul_i32 s3, s{sB0}, 48")
    a("s_add_u32 s22, s0, s3")
    a("s_addc_u32 s23, s1, 0")
    a("s_load_dwordx4 s[4:7], s[22:23], 8")
    a("s_load_dwordx2 s[8:9], s[22:23], 24")
    a(f"s_and_b32 s{sX}, s2, 7")
    a(f"s_lshr_b32 s{sQ}, s2, 3")
    a(f"s_lshr_b32 s{sB}, s{sX}, 2")
    a(f"s_mul_i32 s3, s{sB}, 48")
    a("s_add_u32 s22, s0, s3")
    a("s_addc_u32 s23, s1, 0")
    a("s_load_dwordx2 s[10:11], s[22:23], 32")
    a("s_load_dwordx2 s[12:13], s[22:23], 40")
    a("s_load_dwordx2 s[14:15], s[0:1], 0")
    a("s_load_dwordx4 s[16:19], s[0:1], 96")
    a("s_load_dwordx2 s[20:21], s[0:1], 112")
    a("v_lshrrev_b32 v1, 6, v0")
    a(f"v_and_b32 v{vLANE}, 63, v0")
    a(f"v_readfirstlane_b32 s{sW}, v1")
    a(f"v_lshlrev_b32 v{vL16}, 4, v{vLANE}")
    a(f"v_lshlrev_b32 v{vL2}, 1, v{vLANE}")
    if SPLIT():
        a(f"s_and_b32 s{sCF}, s{sQ}, 3")
        a(f"s_bfe_u32 s{sRB}, s{sQ}, 0x20002")
        a(f"s_lshl_b32 s3, s{sX}, 2")
        a(f"s_add_u32 s{sRB}, s{sRB}, s3")
        a(f"s_lshl_b32 s{sFI}, s{sB0}, 7")
        a(f"s_lshl_b32 s3, s{sCF}, 5")
        a(f"s_add_u32 s{sFI}, s{sFI}, s3")
        a(f"s_add_u32 s{sFI}, s{sFI}, s{sRB}")
        a(f"s_lshr_b32 s{sT2}, s{sW}, 1")
    else:
        a(f"s_and_b32 s{sCF}, s{sQ}, 1")
        a(f"s_bfe_u32 s{sRB}, s{sQ}, 0x30001")
        a(f"s_lshl_b32 s3, s{sX}, 3")
        a(f"s_add_u32 s{sRB}, s{sRB}, s3")
        a(f"s_lshl_b32 s{sFI}, s{sB0}, 7")
        a(f"s_lshl_b32 s3, s{sCF}, 6")
        a(f"s_add_u32 s{sFI}, s{sFI}, s3")
        a(f"s_add_u32 s{sFI}, s{sFI}, s{sRB}")
    a(f"s_and_b32 s{sP}, s{sX}, 3")
    a(f"s_lshl_b32 s{sP}, s{sP}, 4")
    a(f"s_lshr_b32 s3, s{sQ}, 1")
    a(f"s_add_u32 s{sP}, s{sP}, s3")
    a(f"s_and_b32 s{sHF}, s{sQ}, 1")
    a(f"s_lshl_b32 s{sCH}, s{sP}, 3")
    a(f"s_lshl_b32 s3, s{sHF}, 2")
    a(f"s_add_u32 s{sCH}, s{sCH}, s3")
    a(f"s_add_u32 s{sCH}, s{sCH}, s{sW}")
    a(f"s_add_u32 s{sCE}, s{sP}, 512")
    a(f"s_cmp_eq_u32 s{sHF}, 0")
    a(f"s_cselect_b32 s{sJE}, 0x7520, 0x6431") if False else None
    a("s_mov_b32 s3, 0x6431")
    a(f"s_cselect_b32 s{sJE}, 0x7520, s3")
    a(f"s_lshl_b32 s3, s{sW}, 2")
    a(f"s_lshr_b32 s{sJE}, s{sJE}, s3")
    a(f"s_and_b32 s{sJE}, s{sJE}, 7")
    a(f"s_mul_i32 s{sHB}, s{sW}, {HB}")
    a(f"s_mul_i32 s{sUB}, s{sW}, {US}")
    a(f"s_add_u32 s{sUB}, s{sUB}, {U_BASE}")

def kraw(t): return 8 + 4 * t
def hraw(j): return 40 + 4 * j
def vraw(t): return 52 + 4 * t
vA1, vA2, vA3, vA4, vA7 = 242, 243, 244, 245, 246
def EXH(): return 0xf if SPLIT() else 0xffff
def p0_addr(a):
    cw = 72 if SPLIT() else 96
    a(f"v_lshrrev_b32 v247, 2, v{vLANE}")
    a(f"v_and_b32 v248, 3, v{vLANE}")
    if SPLIT():
        a(f"s_lshl_b32 s67, s{sT2}, 5")
        a(f"s_add_u32 s67, s67, s{sRB}")
        a(f"s_and_b32 s68, s{sW}, 1")
        a(f"s_lshl_b32 s66, s{sCF}, 1")
        a("s_add_u32 s68, s68, s66")
    else:
        a(f"s_mov_b32 s67, s{sRB}")
        a(f"s_mul_i32 s68, s{sCF}, 3")
        a(f"s_add_u32 s68, s68, s{sW}")
    a(f"s_mul_i32 s65, s67, {32*ROWB}")
    a(f"s_mul_i32 s66, s68, {2*cw}")
    a("s_add_u32 s65, s65, s66")
    a(f"v_mul_u32_u24 v{vA1}, {8*ROWB}, v248")
    a(f"v_lshlrev_b32 v{vA7}, 4, v247")
    a(f"v_add3_u32 v{vA1}, v{vA1}, v{vA7}, s65")
    a(f"v_add_u32 v{vA2}, {4*ROWB}, v{vA1}")
    a(f"v_subrev_u32 v{vA3}, {3*ROWB}, v{vA1}")
    a(f"s_mul_i32 s66, s68, {cw*8}")
    a(f"v_add_u32 v{vA7}, s66, v{vL16}")
    a(f"s_mul_i32 s65, s{sB0}, 576")
    a(f"s_mul_i32 s66, s68, {cw}")
    a("s_add_u32 s65, s65, s66")
    a("s_lshl_b32 s65, s65, 12")
    a("s_add_u32 s65, s65, 4080")
    a("s_lshl_b32 s66, s67, 6")
    a("s_sub_u32 s65, s65, s66")
    a(f"v_lshlrev_b32 v{vA4}, 15, v247")
    a("v_lshlrev_b32 v248, 4, v248")
    a(f"v_sub_u32 v{vA4}, v{vA4}, v248")
    a(f"v_add_u32 v{vA4}, s65, v{vA4}")

def p0_issue(a, fl):
    def row(t): return (f"v{vA1}", t * ROWB) if t < 4 else (f"v{vA2}", (t - 4) * ROWB)
    def ldk(t):
        b, o = row(t); a.vm(f"buffer_load_dwordx4 {vr(kraw(t))}, {b}, {sq(SK)}, 0 offen offset:{o} {fl}", f"K{t}")
    def ldv(t):
        b, o = row(t); a.vm(f"buffer_load_dwordx4 {vr(vraw(t))}, {b}, {sq(SV)}, 0 offen offset:{o} {fl}", f"V{t}")
    a(f"s_mov_b32 exec_hi, {EXH()}")
    a.vm(f"buffer_load_dwordx4 v[84:87], v{vA7}, {sq(SSH)}, 0 offen", "W")
    for t in (5, 6, 7): ldk(t)
    a("s_mov_b32 exec_lo, 0x11111111")
    a(f"s_mov_b32 exec_hi, {EXH() & 0x1111}")
    for j in range(3):
        a.vm(f"buffer_load_dwordx4 {vr(hraw(j))}, v{vA3}, {sq(SK)}, 0 offen offset:{j*ROWB} {fl}", f"H{j}")
    a("s_mov_b32 exec_lo, -1")
    a(f"s_mov_b32 exec_hi, {EXH()}")
    for t in range(5): ldk(t); ldv(t)
    for t in (5, 6, 7): ldv(t)
    a("s_mov_b64 exec, -1")

def unpack(a, dlo, dhi, src):
    a(f"v_lshlrev_b32 v{dlo}, 16, v{src}")
    a(f"v_and_b32 v{dhi}, 0xffff0000, v{src}")

def p0_compute(a, stflag):
    def W(p, j): return 88 + 8 * p + 2 * j
    def Kf(j, c): return 120 + 8 * (j & 7) + c
    def U(t, c): return 184 + 8 * (t & 3) + c
    OUTS = [hraw(0), hraw(1), hraw(2), kraw(0), kraw(1), vraw(0), vraw(1), 84]
    VT = 216
    a("s_mov_b32 vcc_lo, 0x11111111")
    a("s_mov_b32 vcc_hi, 0x11111111")
    a("v_mov_b32 v224, 0xffff0000")
    for c in range(1, 8):
        a(f"s_mov_b32 s{3+c}, {4096*c}")
    a.needv("W")
    stamp(a, 16)
    for c in range(8):
        p, h = c >> 1, c & 1
        for half in range(2):
            i = 2 * c + half; s_ = i >> 2; qp = f"quad_perm:[{s_},{s_},{s_},{s_}] {DPP}"
            a(f"v_cvt_f32_bf16_dpp v{W(p,2*half)+h}, v{84+(i&3)} {qp}")
            a(f"v_and_b32_dpp v{W(p,2*half+1)+h}, v{84+(i&3)}, v224 {qp}")
    for j in range(3):
        a.needv(f"H{j}")
        for p in range(4):
            a(f"v_cndmask_b32_dpp v{hraw(j)+p}, v{kraw(5+j)+p}, v{hraw(j)+p}, vcc quad_perm:[0,0,1,2] {DPP}")
        for p in range(4): unpack(a, Kf(j, 2*p), Kf(j, 2*p+1), hraw(j) + p)
    def kun(t):
        for p in range(4): unpack(a, Kf(t+3, 2*p), Kf(t+3, 2*p+1), kraw(t) + p)
    def ksum(t):
        for p in range(4):
            a(f"v_pk_mul_f32 {pr(U(t,2*p))}, {pr(Kf(t,2*p))}, {pr(W(p,3))}")
        for jj in (2, 1, 0):
            for p in range(4):
                a(f"v_pk_fma_f32 {pr(U(t,2*p))}, {pr(Kf(t+3-jj,2*p))}, {pr(W(p,jj))}, {pr(U(t,2*p))}")
    def vmul(t):
        a.needv(f"V{t}")
        if t == 7: stamp(a, 17)
        for p in range(4): unpack(a, VT + 2*p, VT + 2*p + 1, vraw(t) + p)
        for p in range(4):
            a(f"v_pk_mul_f32 {pr(U(t,2*p))}, {pr(U(t,2*p))}, {pr(VT+2*p)}")
    def cvt(t):
        q = (7 - t) // 2
        if t == 7: a(f"s_mov_b32 exec_hi, {EXH()}")
        for c in range(8):
            a(f"v_cvt_pk_bf16_f32 v{OUTS[c]+q}, v{U(t, c)}, v{U(t-1, c)}")
            if t == 7:
                so = "0" if c == 0 else f"s{3+c}"
                a.vm(f"buffer_store_dwordx4 {vr(OUTS[c])}, v{vA4}, {sq(SU)}, {so} offen {stflag}", "UST")
        if t == 7: a("s_mov_b64 exec, -1")
    for t in range(5):
        a.needv(f"K{t}")
        kun(t)
        ksum(t)
        if t <= 2: kun(5 + t)
        if t == 4:
            for tt in (5, 6, 7): ksum(tt)
        vmul(t)
        if t & 1: cvt(t)
    for t in (5, 6, 7):
        vmul(t)
        if t & 1: cvt(t)

ACC, ACCE, FB, AE, FE0, PD, EV = 8, 40, 56, 120, 184, 216, 220
vTW, vTR, vFE, vEW, vER, vRW, vRR, vUD, vP1, vP2, vYM, vYE, vYG, vYR = range(224, 238)
vPB = 254
RED, UD, STG, ES, TRD, YP, XR = 120, 136, 138, 140, 144, 152, 240
TJ = ((0, 2, 5, 7), (1, 3, 4, 6))

def h_dma(a, ch, ldsbase_s, ldsconst, flag, tag):
    a(f"s_lshl_b32 s3, s{ch}, 12")
    if ldsbase_s is not None:
        a(f"s_add_u32 s92, s{ldsbase_s}, {ldsconst + 3*CS + 32}")
        a("s_mov_b32 m0, s92")
    else:
        a(f"s_mov_b32 m0, {ldsconst + 3*CS + 32}")
    a("s_nop 0")
    for q in range(4):
        a.vm(f"buffer_load_dwordx4 v{vL16}, {sq(SH)}, s3 offen offset:{1024*q} {flag} lds", tag)

hc_n = [0]
vC1, vC2, vC3, vC4, ZR = 176, 177, 178, 179, 180
def h_copy_ops(a, vR, qs, head=None):
    hc_n[0] += 1; u = hc_n[0]
    Dq = lambda i: 120 + 8 * i
    ops = []
    def L(c, s_, tag=None): ops.append((c, lambda: a.lds(s_, tag)))
    def V(s_, need=None): ops.append((4, lambda: ((a.need(need) if need else None), a(s_))))
    for i, q in enumerate(qs):
        L(6, f"ds_read_b128 {vr(Dq(i))}, v{vR} offset:{3*CS + 32 + 1024*q}")
        L(4, f"ds_read_b64 {pr(Dq(i)+4)}, v{vR} offset:{3*CS + 48 + 1024*q}", ("HC", u, i))
    if head is not None:
        L(4, f"ds_read_b64 v[138:139], v{head} offset:{3*CS + 32}", ("HH", u))
    for i, q in enumerate(qs):
        d = Dq(i); o = 16 * (i & 1); T0, T1, T2, O4 = 144 + o, 148 + o, 152 + o, 156 + o
        for k in range(4):
            V(f"v_alignbit_b32 v{T0+k}, v{d+k+1}, v{d+k}, 16", ("HC", u, i) if k == 0 else None)
        V(f"v_alignbit_b32 v{O4}, v{d+5}, v{d+4}, 16")
        V(f"v_pk_mov_b32 {pr(T1)}, {pr(d)}, {pr(d+2)} op_sel:[1,0]")
        V(f"v_pk_mov_b32 {pr(T1+2)}, {pr(d+2)}, {pr(d+4)} op_sel:[1,0]")
        V(f"v_pk_mov_b32 {pr(T2)}, {pr(T0)}, {pr(T0+2)} op_sel:[1,0]")
        V(f"v_pk_mov_b32 {pr(T2+2)}, {pr(T0+2)}, {pr(O4)} op_sel:[1,0]")
        L(8, f"ds_write_b128 v{vR}, {vr(T0)} offset:{32 + 1024*q}")
        L(8, f"ds_write_b128 v{vR}, {vr(T1)} offset:{CS + 32 + 1024*q}")
        L(8, f"ds_write_b128 v{vR}, {vr(T2)} offset:{2*CS + 32 + 1024*q}", ("HW", u))
    if head is not None:
        V(f"v_sub_u32 v137, 3, v{vLANE}")
        V("v_lshlrev_b32 v137, 4, v137")
        V("v_lshlrev_b64 v[138:139], v137, v[138:139]", ("HH", u))
        V(f"v_cmp_eq_u32 vcc, 3, v{vLANE}")
        V(f"v_mul_u32_u24 v137, {CS}, v{vLANE}")
        V(f"v_add_u32 v140, v137, v{head}")
        V("v_cndmask_b32 v138, v138, 0, vcc")
        V("v_cndmask_b32 v139, v139, 0, vcc")
        V("v_mov_b32 v136, 0")
        V("v_mov_b32 v137, 0")
        def hw():
            a("s_mov_b64 exec, 15")
            a.lds(f"ds_write_b128 v140, {vr(ZR)}")
            a.lds("ds_write_b128 v140, v[136:139] offset:16", ("HW", u))
            a("s_mov_b64 exec, -1")
        ops.append((8, hw))
    return ops, ("HW", u)
def h_copies(a, vR, qs, head=None):
    ops, tag = h_copy_ops(a, vR, qs, head)
    for c, f in ops: f()
    return tag

def p1_prep_a(a):
    a(f"v_and_b32 v1, 15, v{vLANE}")
    a(f"v_lshrrev_b32 v2, 4, v{vLANE}")
    a("v_and_b32 v3, 3, v1")
    a("v_cmp_eq_u32 vcc, 3, v3")
    a(f"v_mul_u32_u24 v3, {CS}, v3")
    a("v_and_b32 v4, 12, v1")
    a("v_lshlrev_b32 v4, 1, v4")
    a("v_add_u32 v3, v3, v4")
    a("v_cndmask_b32 v4, 0, 8, vcc")
    a("v_add_u32 v3, v3, v4")
    a("v_lshl_add_u32 v3, v2, 4, v3")
    a(f"v_add_u32 v5, s{sHB}, v3")
    a(f"s_lshl_b32 s93, s{sW}, 7")
    a(f"s_add_u32 s3, s93, {4*HB}")
    a("v_add_u32 v6, s3, v3")

def p1_prep_b(a):
    a(f"v_add_u32 v8, s{sUB}, v{vL16}")
    a(f"s_add_u32 s3, s93, {UE - 512}")
    a(f"v_add_u32 v9, s3, v{vL16}")
    a(f"v_cmp_gt_u32 vcc, 32, v{vLANE}")
    a("s_mov_b32 exec_hi, 0xff")
    a("s_nop 0")
    a("v_cndmask_b32 v8, v9, v8, vcc")
    a("ds_write_b128 v8, v[180:183] offset:4096")
    a("s_mov_b64 exec, -1")
    for ch, sv in ((sCH, sDM), (sCE, sDE)):
        a(f"s_and_b32 s3, s{ch}, 1")
        a("s_lshl_b32 s3, s3, 4")
        a(f"s_lshr_b32 s{sv}, s{sv}, s3")
        a(f"s_and_b32 s{sv}, s{sv}, 0xffff")
    a(f"s_lshl_b32 s{sDE}, s{sDE}, 16")
    a("v_lshlrev_b32 v3, 3, v2")
    a("v_add_u32 v3, v3, v1")
    a("v_sub_u32 v3, 15, v3")
    a("v_and_b32 v4, 1, v3")
    a("v_lshlrev_b32 v4, 4, v4")
    a("v_ashrrev_i32 v3, 1, v3")
    a(f"v_lshlrev_b32 v8, v4, s{sDM}")
    for q in range(4):
        a(f"v_cmp_eq_u32 vcc, {q}, v3")
        a("s_nop 1")
        a(f"v_cndmask_b32 v{PD+q}, 0, v8, vcc")
    a("v_lshlrev_b32 v3, 4, v2")
    a("v_lshlrev_b32 v4, 5, v1")
    a("v_sub_u32 v3, v3, v4")
    a("v_add_u32 v3, 480, v3")
    a(f"v_add_u32 v7, s{sUB}, v3")
    a(f"s_add_u32 s3, s93, {UE}")
    a(f"v_add_u32 v{vFE}, s3, v3")
    a("v_lshlrev_b32 v3, 3, v2")
    a("v_add_u32 v3, v3, v4")
    a(f"s_lshl_b32 s3, s{sJE}, 9")
    a(f"s_sub_u32 s3, {UE + 4088}, s3")
    a(f"v_sub_u32 v{vUD}, s3, v3")
    a(f"s_lshl_b32 s3, s{sW}, 9")
    a(f"s_add_u32 s3, s3, {E_LDS}")
    a(f"v_add_u32 v{vEW}, s3, v3")
    a(f"v_add_u32 v{vER}, s3, v{vL16}")
    a(f"s_lshl_b32 s3, s{sW}, 10")
    a(f"s_add_u32 s3, s3, {R_LDS}")
    a(f"v_add_u32 v{vRW}, s3, v{vL16}")
    a(f"s_lshl_b32 s3, s{sW}, 12")
    a(f"s_add_u32 s3, s3, {R_LDS}")
    a(f"v_add_u32 v{vRR}, s3, v{vL16}")
    a(f"v_mul_u32_u24 v{vTW}, {TR}, v1")
    a("v_lshrrev_b32 v3, 1, v2")
    a(f"v_lshl_add_u32 v{vTW}, v3, 6, v{vTW}")
    a("v_and_b32 v3, 1, v2")
    a(f"v_lshl_add_u32 v{vTW}, v3, 3, v{vTW}")
    a(f"s_lshl_b32 s3, s{sW}, 4")
    a(f"s_add_u32 s3, s3, {T_LDS}")
    a(f"v_add_u32 v{vTW}, s3, v{vTW}")
    a(f"v_lshrrev_b32 v3, 3, v{vLANE}")
    a(f"v_mul_u32_u24 v{vTR}, {TR}, v3")
    a(f"v_and_b32 v4, 7, v{vLANE}")
    a(f"v_lshl_add_u32 v{vTR}, v4, 4, v{vTR}")
    a(f"s_mul_i32 s3, s{sW}, {8*TR}")
    a(f"s_add_u32 s3, s3, {T_LDS}")
    a(f"v_add_u32 v{vTR}, s3, v{vTR}")
    a(f"v_mul_u32_u24 v{vYM}, {YR}, v4")
    a(f"v_lshl_add_u32 v{vYM}, v3, 4, v{vYM}")
    a(f"s_lshr_b32 s88, s{sW}, 1")
    a(f"s_mul_i32 s89, s88, {YBR}")
    a(f"s_and_b32 s3, s{sW}, 1")
    a("s_lshl_b32 s3, s3, 9")
    a("s_add_u32 s89, s89, s3")
    a(f"s_add_u32 s89, s89, {Y_LDS}")
    a(f"v_add_u32 v{vYM}, s89, v{vYM}")
    a(f"s_add_u32 s89, s89, {8*YR}")
    a(f"v_add_u32 v{vYE}, s89, v{vL16}")
    a(f"v_lshlrev_b32 v{vYG}, 6, v{vLANE}")
    a("s_lshl_b32 s88, s88, 3")
    a(f"s_add_u32 s88, s88, {Y_LDS}")
    a(f"v_add_u32 v{vYR}, s88, v{vL16}")
    a("s_lshl_b32 s88, s2, 14")
    a(f"s_lshl_b32 s3, s{sW}, 12")
    a("s_add_u32 s88, s88, s3")
    a("s_lshr_b32 s89, s2, 2")
    a("s_lshl_b32 s89, s89, 13")
    a(f"s_lshl_b32 s3, s{sW}, 11")
    a("s_add_u32 s89, s89, s3")
    a("s_and_b32 s3, s2, 3")
    a("s_lshl_b32 s3, s3, 4")
    a("s_add_u32 s89, s89, s3")
    a(f"s_add_u32 s89, s89, {YE_OFF}")
    a(f"v_lshrrev_b32 v4, 2, v{vLANE}")
    a(f"v_and_b32 v8, 3, v{vLANE}")
    a("v_lshlrev_b32 v8, 4, v8")
    a("v_lshl_add_u32 v3, v4, 14, v8")
    a("v_lshl_add_u32 v4, v4, 13, v8")
    a(f"s_lshl_b32 s{sYM}, s{sW}, 18")
    a(f"s_lshl_b32 s3, s{sB}, 13")
    a(f"s_add_u32 s{sYM}, s{sYM}, s3")
    a(f"s_sub_u32 s3, s{sCH}, s{sW}")
    a("s_lshl_b32 s3, s3, 4")
    a(f"s_add_u32 s{sYM}, s{sYM}, s3")
    a(f"s_lshl_b32 s{sYE}, s{sJE}, 16")
    a(f"s_lshl_b32 s3, s{sB}, 12")
    a(f"s_add_u32 s{sYE}, s{sYE}, s3")
    a(f"s_lshl_b32 s3, s{sP}, 6")
    a(f"s_add_u32 s{sYE}, s{sYE}, s3")
    a(f"s_add_u32 s{sYE}, s{sYE}, {YE_OFF}")
    srd(a, SX, 14, 15, TENS)
    a(f"s_lshl_b32 s{sXO}, s2, 3")
    a(f"s_lshl_b32 s3, s{sW}, 1")
    a(f"s_add_u32 s{sXO}, s{sXO}, s3")
    a(f"s_mul_i32 s{sXO}, s{sXO}, {ROWB}")
    a(f"s_mul_i32 s3, s{sB}, 576")
    a(f"s_add_u32 s90, s3, s{sCH}")
    a("s_lshl_b32 s90, s90, 12")
    a(f"s_add_u32 s91, s3, s{sCE}")
    a("s_lshl_b32 s91, s91, 12")
    a(f"s_lshl_b32 s85, s{sW}, 10")
    a("s_add_u32 s91, s91, s85")
    a(f"s_add_u32 s85, s85, {UE}")
    if not SPLIT():
        a(f"s_lshl_b32 s92, s{sB}, 2")
        a(f"s_add_u32 s92, s92, s{sW}")
        a("s_lshl_b32 s92, s92, 11")
        a(f"v_and_b32 v8, 31, v{vLANE}")
        a("v_lshlrev_b32 v8, 6, v8")
        a(f"v_add_u32 v{vP1}, s92, v8")
    if SPLIT():
        a(f"s_mul_i32 s92, s{sCH}, 456")
        a("s_lshr_b32 s92, s92, 16")
        a("s_lshl_b32 s92, s92, 11")
        a(f"s_lshl_b32 s3, s{sB}, 13")
        a("s_add_u32 s92, s92, s3")
        a(f"v_and_b32 v8, 31, v{vLANE}")
        a("v_lshlrev_b32 v8, 6, v8")
        a(f"v_add_u32 v{vP1}, s92, v8")
        a(f"s_add_u32 s92, s92, {F1B}")
        a(f"s_add_u32 s3, s3, {96*64}")
        a(f"s_add_u32 s93, s3, {F1B}")
        a(f"s_cmp_eq_u32 s{sW}, 1")
        a("s_cselect_b32 s3, s3, s93")
        a(f"s_cmp_eq_u32 s{sW}, 0")
        a("s_cselect_b32 s3, s92, s3")
        a(f"v_add_u32 v{vPB}, s3, v8")
    if True:
        a(f"s_lshl_b32 s92, s{sW}, 12")
        a(f"s_mov_b32 s3, {F2}")
        a("s_cmp_lt_u32 s2, 128")
        a(f"s_cselect_b32 s3, {F2A if opt('f2a', '1') == '1' else F2}, s3")
        a("s_add_u32 s92, s92, s3")
        a(f"v_add_u32 v{vP2}, s92, v{vYG}")
    a(f"v_add_u32 v{vC1}, s{sHB}, v{vL16}")
    a(f"v_mov_b32 v{vC2}, s{sHB}")
    a(f"s_lshl_b32 s3, s{sW}, 10")
    a(f"s_add_u32 s3, s3, {4*HB}")
    a(f"v_add_u32 v{vC3}, s3, v{vL16}")
    a(f"v_mov_b32 v{vC4}, {4*HB}")
    a("s_lshl_b32 s101, s2, 6")
    a(f"s_add_u32 s101, s101, {F2A}")
    a("s_lshl_b32 s3, s2, 2")
    a(f"s_add_u32 s3, s3, s{sW}")
    a("s_lshl_b32 s3, s3, 6")
    a(f"s_add_u32 s3, s3, {FD}")
    a(f"s_cmp_eq_u32 s{sW}, 0")
    a("s_cselect_b32 s101, s101, s3")
    a(f"s_lshl_b32 s99, s{sFI}, 6")
    a(f"s_add_u32 s99, s99, {F1B}")
    a(f"s_cmp_eq_u32 s{sW}, 0")
    a("s_cselect_b32 s99, s99, s3")
    a("s_mov_b32 s86, 0x3ae38e39")
    a("s_mov_b32 s87, 0x3727c5ac")

def p1_aload(a, aas):
    for r in range(8):
        for aa in aas:
            ks = 8 * aa + r
            a.lds(f"ds_read_b64 a[{4*ks}:{4*ks+1}], v5 offset:{64*ks}")
            a.lds(f"ds_read_b64 a[{4*ks+2}:{4*ks+3}], v5 offset:{64*ks+8}", ("A", ks))

def F(bank, c): return FB + 32 * bank + 4 * c
MF = "v_mfma_f32_16x16x32_bf16"

def p1_mfma(a, stflag, tail):
    inited = set()
    KB = {"a": 0, "b": 8, "c": 16}
    def FG(p, r, c): return FB + 16 * ((KB[p] + r) & 3) + 4 * (c & 3)
    def mfma(acc, A_, B_, needs):
        a.need(*needs)
        c = vr(acc) if acc in inited else "0"
        inited.add(acc)
        a(f"{MF} {vr(acc)}, {A_}, {vr(B_)}, {c}")
    def L(c, s_, tag=None): return (c, lambda: a.lds(s_, tag))
    def I(s_): return (4, lambda: a(s_))
    def fread(p, r, c): return L(6, f"ds_read_b128 {vr(FG(p,r,c))}, v7 offset:{64*r + 512*(7-c)}", ("F", p, r, c))
    def areads(r):
        o = []
        for aa in range(4, 8):
            ks = 8 * aa + r
            o += [L(4, f"ds_read_b64 a[{4*ks}:{4*ks+1}], v5 offset:{64*ks}"), L(4, f"ds_read_b64 a[{4*ks+2}:{4*ks+3}], v5 offset:{64*ks+8}", ("A", ks))]
        return o
    def aeread(rp, aa, half): return L(4, f"ds_read_b64 {pr(AE+32*rp+4*aa+2*half)}, v6 offset:{512*aa + 64*rp + 8*half}", ("AE", rp, aa))
    def FEr(rp, c): return (FE0 + 4 * c) if rp == 0 else FB + 16 * GE + 4 * c
    def feread(rp, c): return L(6, f"ds_read_b128 {vr(FEr(rp,c))}, v{vFE} offset:{64*rp + 512*(7-c)}", ("FE", rp, c))
    evc = [0]
    def conv(j):
        e = EV + 2 * (evc[0] & 1); evc[0] += 1
        return [I(f"v_cvt_pk_bf16_f32 v{e}, v{ACC+4*j}, v{ACC+4*j+1}"), I(f"v_cvt_pk_bf16_f32 v{e+1}, v{ACC+4*j+2}, v{ACC+4*j+3}"),
                L(6, f"ds_write_b64 v{vTW}, {pr(e)} offset:{16*TR*j}", ("TW", j))]
    def barrier(*tags): return (8, lambda: (a.need(*tags), a("s_barrier")))
    def tread(k, reg): return L(6, f"ds_read_b128 {vr(reg)}, v{vTR} offset:{32*TR*k}", ("TRD", k))
    def tstore(k, reg):
        def f():
            a(f"s_add_u32 s3, s{sYM}, {k*64*16384}")
            a.need(("TRD", k))
            a.vm(f"buffer_store_dwordx4 {vr(reg)}, v3, {sq(SY)}, s3 offen {stflag}")
        return (8, f)
    def blk(J, C, r, pname):
        bank = r & 1; items = []
        order = [(c, j) for c in C for j in J if j >= c]
        if pname == "c" and r == 7: order = [(c, j) for j in J for c in C if j >= c]
        for c, j in order:
            tg = [("F", pname, r, c), ("A", 8 * (j - c) + r)]
            if r == 0 and j == c: items.append((ACC + 4*j, vr(PD), FG(pname, r, c), tg))
            items.append((ACC + 4*j, ar(4 * (8 * (j - c) + r)), FG(pname, r, c), tg))
        return items
    EXP = int(opt("exp", "6"))
    GE = (8 + EXP - 2) & 3
    lo, hi = (0, 1, 2, 3), (4, 5, 6, 7)
    seq = [("a", r, blk(lo, lo, r, "a")) for r in range(8)] + [("b", r, blk(hi, lo, r, "b")) for r in range(EXP)] + \
          [("e", 0, [None] * 36)] + [("b", r, blk(hi, lo, r, "b")) for r in range(EXP, 8)] + [("c", r, blk(hi, hi, r, "c")) for r in range(8)]
    start = {}; n = 0
    for p, r, it in seq: start[(p, r)] = n; n += len(it)
    NS = n; assert NS == 332
    plan = [[] for _ in range(NS)]; load = [0] * NS
    def pin(slot, ops):
        for i, (c, f) in enumerate(ops):
            plan[slot + i].append(f); load[slot + i] += c
    def spread(ops, lo_, hi_, cap=8):
        for cap_ in range(cap, 40, 2):
            sl = lo_; pos = []; ld = list(load)
            for c, f in ops:
                while sl <= hi_ and ld[sl] + c > cap_: sl += 1
                if sl > hi_: break
                pos.append(sl); ld[sl] += c
            if len(pos) == len(ops): break
        assert len(pos) == len(ops)
        for (c, f), p_ in zip(ops, pos): plan[p_].append(f); load[p_] += c
        return pos[-1]
    main = [x for x in seq if x[0] != "e"]
    for i, (p, r, it) in enumerate(main):
        if i + 2 >= len(main): break
        p2, r2, _ = main[i + 2]
        pin(start[(p, r)], [fread(p2, r2, c) for c in (hi if p2 == "c" else lo)])
    E0 = start[("e", 0)]
    pin(E0, [feread(1, c) for c in range(8)])
    XA = int(opt("xa", "110")); X0 = int(opt("x0", str(E0 - 14)))
    if SPLIT(): pin(XA - 24, [(8, lambda: a.vm(f"buffer_load_dword v253, v{vPB}, {sq(SF)}, 0 offen sc1", "P1B"))])
    ops_e, hwe = h_copy_ops(a, vC3, [0], vC4)
    XS = int(opt("xs", "38"))
    def xs():
        a("s_waitcnt vmcnt(0)")
        a("s_barrier")
        signal(a, 99); a.vn += 1
    if SPLIT(): pin(XS, [(20, xs)])
    xl = [(8, lambda: a.vm(f"buffer_load_dwordx4 {vr(XR)}, v{vL16}, {sq(SX)}, s{sXO} offen nt")),
          (8, lambda: a.vm(f"buffer_load_dwordx4 {vr(XR+4)}, v{vL16}, {sq(SX)}, s{sXO} offen offset:{ROWB} nt")),
          (8, lambda: a.vm(f"buffer_load_ushort v{XR+8}, v{vL2}, {sq(SX)}, s{sXO} offen offset:1024 nt")),
          (8, lambda: a.vm(f"buffer_load_ushort v{XR+9}, v{vL2}, {sq(SX)}, s{sXO} offen offset:{1024+ROWB} nt", "X"))]
    pin(XS + 1, xl)
    def xa0():
        a.need(hwe, ("TW", 3))
        a.needv("UE")
        a("s_barrier")
    def xa():
        a.needv("P1B")
        a(f"v_cmp_ne_u32 vcc, s{sTAG}, v253")
        a(f"s_mov_b32 m0, s{sUB}")
        a("s_cbranch_vccnz t2_slow")
        a.label("t2_back")
        a.need(hwe, ("TW", 3))
        a("s_barrier")
        for q in (1, 0):
            a.vm(f"buffer_load_dwordx4 v{vL16}, {sq(SU)}, s90 offen offset:{1024*q} sc1 lds", f"U{q}")
        a("s_mov_b32 m0, s85")
        a("s_nop 0")
        a.vm(f"buffer_load_dwordx4 v{vL16}, {sq(SU)}, s91 offen sc1 lds", "UE")
    pin(XA, [(40, xa) if SPLIT() else (8, xa0)])
    def slow(t):
        t.label("t2_slow")
        t("s_mov_b32 s92, 0x20000")
        t.label("t2_spin")
        t(f"buffer_load_dword v253, v{vPB}, {sq(SF)}, 0 offen sc1")
        t("s_waitcnt vmcnt(0)")
        t(f"v_cmp_ne_u32 vcc, s{sTAG}, v253")
        t("s_sub_u32 s92, s92, 1")
        t("s_cbranch_scc1 t2_back")
        t("s_cbranch_vccnz t2_spin")
        t("s_branch t2_back")
    if SPLIT(): tail.append(slow)
    spread(ops_e[:3], 4, 8)
    spread(ops_e[3:], 18, 83, 6)
    if SPLIT(): pin(X0, [(8, lambda: (a.needv("UE"), a("s_barrier")))])
    spread([feread(0, c) for c in range(8)], X0 + 1, E0 - 2)
    spread([aeread(rp, aa, h) for rp in range(2) for aa in range(8) for h in range(2)], XA + 2, X0 - 1, 6)
    B4 = E0 + 36
    spread(conv(0) + conv(1) + conv(2) + conv(3), 94, XA - 2, 6)
    e_ = spread([L(8, f"ds_write_b128 v{vRW}, {vr(ACCE+4*s_)} offset:{4096*s_}", ("RW", s_)) for s_ in range(4)], B4 + 8, B4 + 15)
    X1 = e_ + 6
    pin(X1, [barrier(("RW", 3))])
    e_ = spread([L(6, f"ds_read_b128 {vr(RED+4*i)}, v{vRR} offset:{1024*i}", ("RR", i)) for i in range(4)] +
                [L(4, f"ds_read_b64 {pr(UD)}, v{vUD}", "UD")], X1 + 1, X1 + 14)
    pin(XA + 1, [tread(0, FE0), tread(1, FE0 + 4)])
    pin(XA + 10, [tstore(0, FE0), tstore(1, FE0 + 4)])
    red = [(4, lambda: (a.need("UD"), a(f"v_pk_add_f32 {pr(RED)}, {pr(RED)}, {pr(RED+4)}"))), I(f"v_pk_add_f32 {pr(RED+2)}, {pr(RED+2)}, {pr(RED+6)}"),
           I(f"v_pk_add_f32 {pr(RED+8)}, {pr(RED+8)}, {pr(RED+12)}"), I(f"v_pk_add_f32 {pr(RED+10)}, {pr(RED+10)}, {pr(RED+14)}"),
           I(f"v_pk_add_f32 {pr(RED)}, {pr(RED)}, {pr(RED+8)}"), I(f"v_pk_add_f32 {pr(RED+2)}, {pr(RED+2)}, {pr(RED+10)}"),
           I(f"v_and_b32 v{RED+4}, 0xffff0000, v{UD+1}"), I(f"v_lshlrev_b32 v{RED+5}, 16, v{UD+1}"),
           I(f"v_and_b32 v{RED+6}, 0xffff0000, v{UD}"), I(f"v_lshlrev_b32 v{RED+7}, 16, v{UD}")]
    red += [I(f"v_fmac_f32 v{RED+i}, s{sDE}, v{RED+4+i}") for i in range(4)]
    red += [I(f"v_cvt_pk_bf16_f32 v{STG}, v{RED}, v{RED+1}"), I(f"v_cvt_pk_bf16_f32 v{STG+1}, v{RED+2}, v{RED+3}")]
    red += [L(6, f"ds_write_b64 v{vEW}, {pr(STG)}"), L(6, f"ds_read_b128 {vr(ES)}, v{vER}", "ES")]
    e_ = spread(red, e_ + 8, e_ + 40)
    def estore():
        a.need("ES"); a("s_mov_b32 exec_hi, 0")
        a.vm(f"buffer_store_dwordx4 {vr(ES)}, v4, {sq(SY)}, s{sYE} offen {stflag}")
        a("s_mov_b64 exec, -1")
    e_ = spread([(8, estore)], e_ + 6, e_ + 12)
    def f2a():
        a("s_waitcnt vmcnt(0)"); a.vd = a.vn
        a("s_barrier")
        signal(a, 101); a.vn += 1
    if opt("f2a", "1") == "1": pin(int(opt("x2b", "306")), [(20, f2a)])
    C7 = start[("c", 7)]
    pin(C7 + 9, [(12, lambda: [f() for c, f in conv(4)])])
    if not SPLIT(): a.needv("U2")
    stamp(a, 9); stamp(a, 24, True)
    for r in range(2):
        for c in lo: fread("a", r, c)[1]()
    qs = {("a", 3): 0, ("a", 7): 1, ("b", EXP - 1): 2, ("e", 0): 3, ("b", 7): 4, ("c", 3): 5}
    for p, r, items in seq:
        s0 = start[(p, r)]
        if p != "e":
            for i, it in enumerate(items):
                mfma(*it)
                for f in plan[s0 + i]: f()
        else:
            a(f"s_cmp_eq_u32 s{sHF}, 1")
            a("s_cbranch_scc1 ex_h1")
            save = (a.ln, a.ld, dict(a.lt), set(inited), a.vn, a.vd)
            for h in range(2):
                if h == 1:
                    a("s_branch ex_join")
                    a.label("ex_h1")
                    end0 = (a.ln, a.ld)
                    a.ln, a.ld, a.lt, inited = save[0], save[1], dict(save[2]), set(save[3])
                its = []
                for rp in range(2):
                    for c in range(8):
                        for s_, j in enumerate(TJ[h]):
                            if j >= c:
                                its.append((ACCE + 4*s_, vr(AE + 32*rp + 4*(j - c)), FEr(rp, c), [("AE", rp, j - c), ("FE", rp, c)]))
                for i, it in enumerate(its):
                    mfma(*it)
                    for f in plan[s0 + i]: f()
                assert (a.vn, a.vd) == save[4:6]
            a.label("ex_join")
            assert a.ln == end0[0]
            a.ld = min(a.ld, end0[1])
        if (p, r) in qs: qstamp(a, qs[(p, r)])
    stamp(a, 7); stamp(a, 25, True)
    for j in (5, 6, 7):
        if j == 7: a("s_nop 0")
        for c, f in conv(j): f()
    barrier(("TW", 7))[1]()
    tread(2, TRD)[1](); tread(3, TRD + 4)[1]()
    tstore(2, TRD)[1](); tstore(3, TRD + 4)[1]()
    stamp(a, 8); stamp(a, 26, True)
    qflush(a)
    if "--plan" in sys.argv: print(load)

Z, YA, YB, G = 8, 26, 44, 62
SS, QQ, RS, ND, C0 = 80, 82, 84, 86, 88
YW = 96

def p2_sums(a):
    a(f"v_pk_add_f32 {pr(SS)}, {pr(Z)}, {pr(Z+2)}")
    a(f"v_pk_mul_f32 {pr(QQ)}, {pr(Z)}, {pr(Z)}")
    a(f"v_pk_fma_f32 {pr(QQ)}, {pr(Z+2)}, {pr(Z+2)}, {pr(QQ)}")
    for e in range(2, 9):
        a(f"v_pk_add_f32 {pr(SS)}, {pr(SS)}, {pr(Z+2*e)}")
        a(f"v_pk_fma_f32 {pr(QQ)}, {pr(Z+2*e)}, {pr(Z+2*e)}, {pr(QQ)}")

def p2_chain(a, fill):
    fill = list(fill)
    def gap(n):
        for _ in range(n):
            if fill: a(fill.pop(0))
            else: a("s_nop 0")
    T, Uq = 90, 91
    gap(2)
    a(f"v_permlane32_swap_b32 v{SS}, v{SS+1}")
    a(f"v_permlane32_swap_b32 v{QQ}, v{QQ+1}")
    a(f"v_add_f32 v{SS}, v{SS}, v{SS+1}")
    a(f"v_add_f32 v{QQ}, v{QQ}, v{QQ+1}")
    gap(2)
    a(f"v_permlane16_swap_b32 v{SS}, v{QQ}")
    a(f"v_add_f32 v{T}, v{SS}, v{QQ}")
    for m in ("quad_perm:[1,0,3,2]", "quad_perm:[2,3,0,1]", "row_half_mirror", "row_mirror"):
        gap(2)
        a(f"v_add_f32_dpp v{T}, v{T}, v{T} {m} {DPP}")
    a(f"v_mov_b32 v{Uq}, v{T}")
    gap(2)
    a(f"v_permlane16_swap_b32 v{T}, v{Uq}")
    a(f"v_mul_f32 v{T}, s86, v{T}")
    a(f"v_mul_f32 v{Uq}, s86, v{Uq}")
    a(f"v_fma_f32 v{Uq}, -v{T}, v{T}, v{Uq}")
    a(f"v_max_f32 v{Uq}, 0, v{Uq}")
    a(f"v_add_f32 v{Uq}, s87, v{Uq}")
    a(f"v_rsq_f32 v{RS}, v{Uq}")
    gap(1)
    a(f"v_mul_f32 v{ND}, v{RS}, v{T}")
    a(f"v_mov_b32 v{RS+1}, v{RS}")
    a(f"v_mov_b32 v{ND+1}, v{ND}")
    gap(2)
    a(f"v_permlane32_swap_b32 v{RS}, v{RS+1}")
    a(f"v_permlane32_swap_b32 v{ND}, v{ND+1}")
    while fill: a(fill.pop(0))

def p2_first(a):
    a.needv("X")
    for q in range(4):
        for row in range(2):
            a(f"v_lshlrev_b32 v{Z+4*q+row}, 16, v{XR+4*row+q}")
            a(f"v_and_b32 v{Z+4*q+2+row}, 0xffff0000, v{XR+4*row+q}")
    a(f"v_lshlrev_b32 v{Z+16}, 16, v{XR+8}")
    a(f"v_lshlrev_b32 v{Z+17}, 16, v{XR+9}")
    a(f"v_readfirstlane_b32 s92, v{Z}")
    a(f"v_readfirstlane_b32 s93, v{Z+1}")
    a("s_nop 1")
    a(f"v_mov_b32 v{C0}, s92")
    a(f"v_mov_b32 v{C0+1}, s93")
    for e in range(9):
        a(f"v_pk_add_f32 {pr(Z+2*e)}, {pr(Z+2*e)}, {pr(C0)} neg_lo:[0,1] neg_hi:[0,1]")
    p2_sums(a)
    p2_chain(a, [])

def y_ld(i):
    if i == 4: return f"buffer_load_dwordx4 {vr(YP+16)}, v{vYG}, {sq(SY)}, s89 offen sc1"
    return f"buffer_load_dwordx4 {vr(YP+4*i)}, v{vL16}, {sq(SY)}, s88 offen offset:{1024*i} sc1"
def y_issue_ops(a):
    def e():
        a("s_mov_b32 exec_hi, 0"); a.vm(y_ld(4)); a("s_mov_b64 exec, -1")
    return [e] + [(lambda i: lambda: a.vm(y_ld(i)))(i) for i in range(4)]

def y_write(a):
    for q in range(4):
        a(f"ds_write_b128 v{vYM}, {vr(YP+4*q)} offset:{128*q}")
    a("s_mov_b32 exec_hi, 0")
    a(f"ds_write_b128 v{vYE}, {vr(YP+16)}")
    a("s_mov_b64 exec, -1")
    a("s_waitcnt lgkmcnt(0)")

def y_check(a):
    M = [4, 6, 8, 10, 12]
    for i in range(4):
        a(f"s_mov_b64 s[{M[i]}:{M[i]+1}], -1")
    a("s_mov_b32 s12, -1")
    a("s_mov_b32 s13, 0")
    a("s_mov_b32 s92, 0x20000")
    a("s_waitcnt vmcnt(1)")
    a("s_branch yc_chk")
    a.label("yc_loop")
    a("s_waitcnt vmcnt(0)")
    a.label("yc_chk")
    for i in range(5):
        r = YP + 4 * i
        a(f"s_mov_b64 exec, s[{M[i]}:{M[i]+1}]")
        a(f"v_max3_u32 v238, v{r}, v{r+1}, v{r+2}")
        a(f"v_max_u32 v238, v238, v{r+3}")
        a(f"v_cmp_eq_u32 s[{M[i]}:{M[i]+1}], -1, v238")
    a("s_or_b64 s[14:15], s[4:5], s[6:7]")
    a("s_or_b64 s[14:15], s[14:15], s[8:9]")
    a("s_or_b64 s[14:15], s[14:15], s[10:11]")
    a("s_or_b64 s[14:15], s[14:15], s[12:13]")
    a("s_cbranch_scc0 yc_done")
    a("s_sub_u32 s92, s92, 1")
    a("s_cbranch_scc1 yc_done")
    if int(opt("ysleep", "0")): a(f"s_sleep {opt('ysleep','0')}")
    for i in range(5):
        a(f"s_mov_b64 exec, s[{M[i]}:{M[i]+1}]")
        a(f"s_cbranch_execz yc_skip{i}")
        a(y_ld(i))
        a.label(f"yc_skip{i}")
    a("s_branch yc_loop")
    a.label("yc_done")
    a("s_mov_b64 exec, -1")

def p2_rest(a, stflag):
    for b in range(2):
        for e in range(9):
            a(f"ds_read_b64 {pr(YW + 2*(9*b+e))}, v{vYR} offset:{YBR*b + YR*e}")
    a(f"s_and_b32 s90, s{sW}, 1")
    a("s_mul_i32 s90, s90, 0x04040000")
    a("s_add_u32 s91, s90, 0x03020c0c")
    a("s_add_u32 s90, s90, 0x01000c0c")
    def unp(b, e):
        r = YW + 2 * (9 * b + e); y = (YA if b == 0 else YB) + 2 * e
        return [f"v_perm_b32 v{y}, v{r+1}, v{r}, s90", f"v_perm_b32 v{y+1}, v{r+1}, v{r}, s91"]
    for e in range(9):
        a(f"s_waitcnt lgkmcnt({min(15, 17 - e)})")
        for s_ in unp(0, e): a(s_)
        a(f"v_pk_mul_f32 {pr(G+2*e)}, {pr(Z+2*e)}, {pr(YA+2*e)}")
    def post(Y):
        for e in range(9):
            a(f"v_pk_fma_f32 {pr(Z+2*e)}, {pr(G+2*e)}, {pr(RS)}, {pr(Z+2*e)}")
        for e in range(9):
            a(f"v_pk_fma_f32 {pr(Z+2*e)}, {pr(Y+2*e)}, {pr(ND)}, {pr(Z+2*e)} neg_lo:[0,1,0] neg_hi:[0,1,0]")
    post(YA)
    a("s_waitcnt lgkmcnt(0)")
    for layer, Y in ((2, YB), (3, YA), (4, YB)):
        p2_sums(a)
        fill = []
        for e in range(9):
            if layer == 2: fill += unp(1, e)
            fill.append(f"v_pk_mul_f32 {pr(G+2*e)}, {pr(Z+2*e)}, {pr(Y+2*e)}")
        if layer == 4:
            fill += [f"v_pk_add_f32 {pr(Z+2*e)}, {pr(Z+2*e)}, {pr(C0)}" for e in range(9)]
        p2_chain(a, fill)
        a("s_nop 0")
        post(Y)
    for row in range(2):
        for q in range(4):
            a(f"v_cvt_pk_bf16_f32 v{XR+4*row+q}, v{Z+4*q+row}, v{Z+4*q+2+row}")
    a(f"v_cvt_pk_bf16_f32 v{XR+8}, v{Z+16}, v{Z+17}")
    a(f"buffer_store_dwordx4 {vr(XR)}, v{vL16}, {sq(SO)}, s{sXO} offen {stflag}")
    a(f"buffer_store_dwordx4 {vr(XR+4)}, v{vL16}, {sq(SO)}, s{sXO} offen offset:{ROWB} {stflag}")
    a(f"buffer_store_short v{XR+8}, v{vL2}, {sq(SO)}, s{sXO} offen offset:1024 {stflag}")
    a(f"buffer_store_short_d16_hi v{XR+8}, v{vL2}, {sq(SO)}, s{sXO} offen offset:{1024+ROWB} {stflag}")

def signal(a, off_s):
    a(f"v_mov_b32 v238, s{off_s}")
    a(f"v_mov_b32 v239, s{sTAG}")
    a("s_mov_b64 exec, 1")
    a(f"buffer_store_dword v239, v238, {sq(SF)}, 0 offen sc1")
    a("s_mov_b64 exec, -1")

def poll(a, tag, vaddr, all64):
    a("s_mov_b32 s92, 0x20000")
    if not all64: a("s_mov_b32 exec_hi, 0")
    a.label(f"{tag}_poll")
    a(f"buffer_load_dword v238, v{vaddr}, {sq(SF)}, 0 offen sc1")
    a("s_waitcnt vmcnt(0)")
    a(f"v_cmp_ne_u32 vcc, s{sTAG}, v238")
    a("s_and_b64 exec, exec, vcc")
    a(f"s_cbranch_execz {tag}_ok")
    if int(opt("sleep", "2")): a(f"s_sleep {opt('sleep', '2')}")
    a("s_sub_u32 s92, s92, 1")
    a("s_cmp_lg_u32 s92, 0")
    a(f"s_cbranch_scc1 {tag}_poll")
    a.label(f"{tag}_ok")
    a("s_mov_b64 exec, -1")

def epoch_issue(a):
    a(f"v_mov_b32 v253, {EP}")
    a.vm(f"buffer_load_dword v254, v253, {sq(SF)}, 0 offen sc1", "EP")
def epoch_use(a):
    a.needv("EP")
    a(f"v_readfirstlane_b32 s{sTAG}, v254")
    a(f"s_mul_i32 s{sTAG}, s{sTAG}, 0x9E3779B1")
    a(f"s_add_u32 s{sTAG}, s{sTAG}, 0x7F4A7C15")

def elect_and_signal(a, n, skip):
    a(f"v_mov_b32 v238, {LDS_CTR}")
    a("v_mov_b32 v239, 1")
    a(f"s_lshl_b32 s90, s{sFI}, 6")
    a("s_waitcnt vmcnt(0)")
    a("s_mov_b64 exec, 1")
    a("ds_add_rtn_u32 v253, v238, v239")
    a("s_waitcnt lgkmcnt(0)")
    a("v_readfirstlane_b32 s3, v253")
    a("s_mov_b64 exec, -1")
    a(f"s_cmp_eq_u32 s3, {n-1}")
    a(f"s_cbranch_scc0 {skip}")
    signal(a, 90)
    stamp(a, 4)
    a.label(skip)

def kernel(name, body, vgpr, accum):
    return f""".text
.globl {name}
.p2align 8
.type {name},@function
{name}:
{body}{name}_end:
    s_endpgm
.section .rodata,"a"
.p2align 6
.amdhsa_kernel {name}
  .amdhsa_next_free_vgpr {vgpr}
  .amdhsa_next_free_sgpr 102
  .amdhsa_accum_offset {accum}
  .amdhsa_group_segment_fixed_size 0
  .amdhsa_kernarg_size 120
  .amdhsa_user_sgpr_count 2
  .amdhsa_user_sgpr_kernarg_segment_ptr 1
  .amdhsa_system_sgpr_workgroup_id_x 1
.end_amdhsa_kernel
"""
def header(launches):
    hdr = [l for l in open(REF).read().split("\n") if l.startswith(";") and "@launch" not in l]
    return "\n".join(hdr) + "\n" + "\n".join(launches) + '\n.amdgcn_target "amdgcn-amd-amdhsa--gfx950"\n'

def flow_split(a, hdma5, srds0, common_srds, caddr, elect, hsec, hl):
    p0_addr(a)
    a(f"s_cmp_eq_u32 s{sT2}, 0")
    a("s_cbranch_scc0 t2_path")
    a("s_waitcnt lgkmcnt(0)")
    stamp(a, 1)
    srds0(a)
    p0_issue(a, opt("p0ld", "nt"))
    a("s_barrier")
    srd(a, SH, 10, 11, TENS)
    hdma5(a)
    common_srds(a)
    epoch_issue(a)
    stamp(a, 2)
    p1_prep_a(a)
    p0_compute(a, opt("ust", "sc1"))
    stamp(a, 3)
    caddr(a)
    epoch_use(a)
    stamp(a, 18)
    a("s_waitcnt lgkmcnt(0)")
    a.reset()
    h_copies(a, vC1, [0, 1], vC2)
    p1_aload(a, range(4))
    elect(a, 0, "t1_nosig", 1)
    a.label("t1_nosig")
    a.reset()
    h_copies(a, vC1, [2, 3])
    p1_aload(a, range(4, 8))
    p1_prep_b(a)
    stamp(a, 5)
    poll(a, "e1", vP1, True)
    stamp(a, 6)
    a(f"s_mov_b32 m0, s{sUB}")
    a(f"s_add_u32 s3, s90, {2*4096}")
    for q in (3, 2):
        a(f"buffer_load_dwordx4 v{vL16}, {sq(SU)}, s90 offen offset:{1024*q} sc1 lds")
    a(f"s_add_u32 s92, s{sUB}, {2*US}")
    a("s_mov_b32 m0, s92")
    a("s_nop 0")
    for q in (3, 2):
        a(f"buffer_load_dwordx4 v{vL16}, {sq(SU)}, s3 offen offset:{1024*q} sc1 lds")
    a("s_waitcnt vmcnt(0)")
    a("s_branch join")
    a.label("t2_path")
    a.reset()
    caddr(a)
    a(f"v_mov_b32 v56, {LDS_CTR}")
    a(f"ds_write_b32 v56, v{ZR}")
    p1_prep_a(a)
    a("s_waitcnt lgkmcnt(0)")
    srds0(a)
    srd(a, SH, 10, 11, TENS)
    common_srds(a)
    a("s_barrier")
    hdma5(a)
    p0_issue(a, opt("p0ld", "nt"))
    epoch_issue(a)
    stamp(a, 2)
    a.needv("h")
    a("s_waitcnt lgkmcnt(0)")
    stamp(a, 18)
    sv = (a.vn, a.vd, a.vt)
    hsec(a)
    a.vn, a.vd, a.vt = sv
    p0_compute(a, opt("ust", "sc1"))
    stamp(a, 3)
    caddr(a)
    epoch_use(a)
    p1_prep_b(a)
    a.label("join")
    a("s_waitcnt lgkmcnt(0)")
    a("s_barrier")
    a.reset()

def flow_unsplit(a, hdma5, srds0, common_srds, caddr, elect, hl):
    a(f"s_cmp_eq_u32 s{sW}, 3")
    a("s_cbranch_scc1 w3_path")
    p0_addr(a)
    a("s_waitcnt lgkmcnt(0)")
    stamp(a, 1)
    srds0(a)
    p0_issue(a, opt("p0ld", "nt"))
    srd(a, SH, 10, 11, TENS)
    common_srds(a)
    epoch_issue(a)
    hpos = opt("hpos", "late")
    if hpos == "early":
        a("s_barrier")
        hdma5(a)
    stamp(a, 2)
    p1_prep_a(a)
    p0_compute(a, opt("ust", "sc1"))
    if hpos == "late":
        hdma5(a)
        a("s_barrier")
    stamp(a, 3)
    caddr(a)
    epoch_use(a)
    a("s_waitcnt lgkmcnt(0)")
    p1_prep_b(a)
    if hpos == "late":
        elect(a, 5, "nosig", 2)
        a("s_waitcnt vmcnt(1)")
        a("s_branch have_h")
        a.label("nosig")
        a("s_waitcnt vmcnt(0)")
        a("s_branch have_h")
    else:
        a.reset()
        h_copies(a, vC1, [0, 1], vC2)
        p1_aload(a, range(4))
        elect(a, 0, "part2", 2)
        a("s_branch part2")
    a.reset()
    a.label("w3_path")
    caddr(a)
    a(f"v_mov_b32 v56, {LDS_CTR}")
    a(f"ds_write_b32 v56, v{ZR}")
    p1_prep_a(a)
    a("s_waitcnt lgkmcnt(0)")
    srd(a, SH, 10, 11, TENS)
    common_srds(a)
    epoch_issue(a)
    a("s_waitcnt lgkmcnt(0)")
    p1_prep_b(a)
    epoch_use(a)
    a("s_waitcnt lgkmcnt(0)")
    a("s_barrier")
    hdma5(a)
    a("s_waitcnt vmcnt(0)")
    a.label("have_h")
    a.reset()
    stamp(a, 18)
    h_copies(a, vC1, [0, 1], vC2)
    p1_aload(a, range(4))
    a.label("part2")
    a.reset()
    pre = opt("pre", "0") == "1"
    if pre:
        h_copies(a, vC1, [2, 3])
        p1_aload(a, range(4, 8))
    stamp(a, 5)
    poll(a, "e1", vP1, True)
    a("s_barrier")
    a.reset()
    stamp(a, 6)
    a(f"s_mov_b32 m0, s{sUB}")
    a("s_nop 0")
    for q in (3, 2, 1, 0):
        a.vm(f"buffer_load_dwordx4 v{vL16}, {sq(SU)}, s90 offen offset:{1024*q} sc1 lds", f"U{q}")
    a("s_mov_b32 m0, s85")
    a("s_nop 0")
    a.vm(f"buffer_load_dwordx4 v{vL16}, {sq(SU)}, s91 offen sc1 lds", "UE")
    if not pre:
        h_copies(a, vC1, [2, 3])
        p1_aload(a, range(4, 8))

def gen_fused():
    K = NAME + "_kernel"
    sent = opt("x2", "flag") == "sent"
    NEL = 4 if sent else 3
    out = header([f"; @launch grid=(256,1,1) block=(256,1,1) lds={LDS_TOT + int(opt('ldsx', '0'))}"])
    a = A()
    hl = opt("hld", "nt")
    stamp(a, 0)
    if int(opt("pad", "0")):
        a("s_memrealtime s[94:95]"); a("s_waitcnt lgkmcnt(0)"); a("v_mov_b32 v255, s94")
    prologue(a, K + "_end")
    def common_srds(a):
        srd(a, SF, 20, 21, F_BYTES, F_OFF)
        srd(a, SU, 20, 21, U_BYTES, U_OFF)
        srd(a, SY, 20, 21, Y_BYTES, YM_OFF)
        srd(a, SO, 16, 17, TENS)
        a(f"s_lshr_b32 s90, s{sCH}, 1")
        a("s_lshl_b32 s90, s90, 2")
        a(f"s_lshr_b32 s91, s{sCE}, 1")
        a("s_lshl_b32 s91, s91, 2")
        a(f"s_load_dword s{sDM}, s[12:13], s90")
        a(f"s_load_dword s{sDE}, s[12:13], s91")
    tail = []
    def caddr(a):
        for r in range(ZR, ZR + 4): a(f"v_mov_b32 v{r}, 0")
        a(f"v_add_u32 v{vC1}, s{sHB}, v{vL16}")
        a(f"v_mov_b32 v{vC2}, s{sHB}")
        a(f"v_mov_b32 v{vC4}, {4*HB}")
    def hsec(a):
        a.reset()
        h_copies(a, vC1, [0, 1], vC2)
        p1_aload(a, range(4))
        h_copies(a, vC1, [2, 3])
        p1_aload(a, range(4, 8))
    def elect(a, wait, nxt, last):
        a(f"v_mov_b32 v238, {LDS_CTR}")
        a("v_mov_b32 v239, 1")
        a(f"s_lshl_b32 s92, s{sFI}, 6")
        a(f"s_waitcnt vmcnt({wait})")
        a("s_mov_b64 exec, 1")
        a("ds_add_rtn_u32 v253, v238, v239")
        a("s_waitcnt lgkmcnt(0)")
        a("v_readfirstlane_b32 s3, v253")
        a("s_mov_b64 exec, -1")
        a(f"s_cmp_eq_u32 s3, {last}")
        a(f"s_cbranch_scc0 {nxt}")
        signal(a, 92)
        stamp(a, 4)
    def hdma5(a):
        h_dma(a, sCH, sHB, 0, hl, None)
        a(f"s_lshl_b32 s3, s{sCE}, 12")
        a(f"s_lshl_b32 s92, s{sW}, 10")
        a("s_add_u32 s3, s3, s92")
        a(f"s_add_u32 s92, s92, {4*HB + 3*CS + 32}")
        a("s_mov_b32 m0, s92")
        a("s_nop 0")
        a.vm(f"buffer_load_dwordx4 v{vL16}, {sq(SH)}, s3 offen {hl} lds", "h")
    def srds0(a):
        srd(a, SK, 4, 5, TENS); srd(a, SV, 6, 7, TENS); srd(a, SSH, 8, 9, D * 8)
    if not SPLIT():
        flow_unsplit(a, hdma5, srds0, common_srds, caddr, elect, hl)
    else:
        flow_split(a, hdma5, srds0, common_srds, caddr, elect, hsec, hl)
    p1_mfma(a, opt("yst", "sc1"), tail)
    a("s_lshl_b32 s90, s2, 6")
    a(f"s_add_u32 s90, s90, {F2}")
    p2_first(a)
    a("s_waitcnt vmcnt(0)")
    a("s_barrier")
    a(f"s_cmp_eq_u32 s{sW}, 0")
    a("s_cbranch_scc0 no_sig2")
    signal(a, 90)
    a.label("no_sig2")
    stamp(a, 10)
    poll(a, "e2", vP2, True)
    a("s_barrier")
    stamp(a, 11)
    for op in y_issue_ops(a): op()
    a("s_waitcnt vmcnt(0)")
    y_write(a)
    a("s_barrier")
    stamp(a, 12)
    a(f"s_or_b32 s3, s2, s{sW}")
    a("s_cmp_eq_u32 s3, 0")
    a("s_cbranch_scc0 no_epoch")
    a(f"s_mov_b32 s3, {EP}")
    signal(a, 3)
    a.label("no_epoch")
    if opt("q2", "0") == "1": stamp(a, 24, True)
    p2_rest(a, opt("ost", "sc1"))
    if opt("q2", "0") == "1": stamp(a, 27, True)
    stamp(a, 13)
    if int(opt("pad", "0")):
        if opt("gpad", "0") == "1":
            srd(a, 96, 18, 19, 256)
            a("v_mov_b32 v13, 0")
            a("buffer_load_dword v12, v13, s[96:99], 0 offen sc1")
            a("s_waitcnt vmcnt(0)")
            a("v_readfirstlane_b32 s100, v12")
            a("s_not_b32 s100, s100")
        a("v_readfirstlane_b32 s100, v255")
        a.label("padl")
        a("s_memrealtime s[98:99]")
        a("s_waitcnt lgkmcnt(0)")
        a("s_sub_u32 s98, s98, s100")
        a(f"s_cmp_lt_u32 s98, {opt('pad', '0')}")
        a("s_cbranch_scc1 padl")
    stamp_flush(a)
    a("s_endpgm")
    for f in tail: f(a)
    out += kernel(K, a.text(), 512, 256)
    return out

if __name__ == "__main__":
    path = sys.argv[1]
    STAMPS = "--stamps" in sys.argv
    for x in sys.argv[2:]:
        if "=" in x:
            k_, v_ = x.split("=", 1); OPT[k_] = v_
    open(path, "w").write(gen_fused())
```

```python
import sys
NAME = "interleave_layers__ssm_conv_h3__ssm_conv_h3__prompt"
REF = f"cdna_kernels/{NAME}.s.ref"
OPT = {}
STAMPS = False
def opt(k, d): return OPT.get(k, d)
def SPLIT(): return opt("split", "0") == "1"

S, D = 2048, 576
ROWB = D * 2
TENS = S * ROWB
U_OFF = 0;            U_BYTES = 2 * D * 4096
YM_OFF = U_BYTES;     YM_BYTES = 256 * 16384
YE_OFF = YM_BYTES;    YE_BYTES = 64 * 8192
Y_BYTES = YM_BYTES + YE_BYTES
F_OFF = YM_OFF + Y_BYTES
F2 = 16384; F2A = 32768; EP = 49152; FD = 65536; F1B = 131072; F_BYTES = F1B + 16384
ST_OFF = 0xA00000
CS = 4160; HB = 4 * CS
US = 4608; U_BASE = 5 * HB; UE = U_BASE + 4 * US
LDS_CTR = U_BASE + 5 * US
Y_LDS = 0; YR = 1040; YBR = 9 * YR
T_LDS = LDS_CTR + 64; TR = 144
E_LDS = T_LDS + 128 * TR
R_LDS = E_LDS + 2560
LDS_TOT = R_LDS + 16384

class A:
    def __init__(self):
        self.l = []; self.reset()
    def reset(self):
        self.ln = 0; self.ld = 0; self.lt = {}
        self.vn = 0; self.vd = 0; self.vt = {}
    def __call__(self, s): self.l.append("    " + s)
    def label(self, s): self.l.append(s + ":")
    def text(self): return "\n".join(self.l) + "\n"
    def lds(self, s, tag=None):
        self(s); self.ln += 1
        if tag is not None: self.lt[tag] = self.ln
    def vm(self, s, tag=None):
        self(s); self.vn += 1
        if tag is not None: self.vt[tag] = self.vn
    def need(self, *tags):
        k = max([self.lt[t] for t in tags if t in self.lt] + [0])
        if k > self.ld:
            n = min(15, self.ln - k); self(f"s_waitcnt lgkmcnt({n})"); self.ld = self.ln - n
    def needv(self, *tags):
        k = max([self.vt[t] for t in tags] + [0])
        if k > self.vd:
            n = min(63, self.vn - k); self(f"s_waitcnt vmcnt({n})"); self.vd = self.vn - n

def srd(a, d, lo, hi, size, add=None):
    if add:
        a(f"s_add_u32 s{d}, s{lo}, {add}")
        a(f"s_addc_u32 s{d+1}, s{hi}, 0")
    else:
        a(f"s_mov_b32 s{d}, s{lo}")
        a(f"s_mov_b32 s{d+1}, s{hi}")
    a(f"s_mov_b32 s{d+2}, {size}")
    a(f"s_mov_b32 s{d+3}, 0x00020000")

SK, SV, SSH, SH, SU, SY, SX, SO, SF = 24, 28, 32, 36, 40, 44, 48, 52, 56
sX, sQ, sB, sP, sW = 60, 61, 62, 63, 64
sB0, sCF, sRB = 69, 70, 71
sCH, sCE, sJE, sHB, sUB, sDM, sDE, sFI, sHF, sTAG = 72, 73, 74, 75, 76, 77, 78, 79, 82, 83
sYM, sYE, sXO, sT2 = 80, 81, 84, 100
vLANE, vL16, vL2 = 250, 251, 252

def stamp(a, idx, cyc=False):
    if not STAMPS: return
    a(("s_memtime" if cyc else "s_memrealtime") + " s[94:95]")
    a("s_waitcnt lgkmcnt(0)")
    a(f"v_writelane_b32 v255, s94, {idx}")
def qstamp(a, i):
    if STAMPS and opt("q", "0") == "1": a(f"s_memtime s[{4+2*i}:{5+2*i}]")
def qflush(a):
    if STAMPS and opt("q", "0") == "1":
        a("s_waitcnt lgkmcnt(0)")
        for i in range(8): a(f"v_writelane_b32 v255, s{4+2*i}, {20+i if i < 4 else 24+i}")
def stamp_flush(a):
    if not STAMPS: return
    srd(a, 96, 20, 21, 0x100000, ST_OFF)
    a("s_lshl_b32 s94, s2, 2")
    a(f"s_add_u32 s94, s94, s{sW}")
    a("s_lshl_b32 s94, s94, 7")
    a(f"v_lshlrev_b32 v254, 2, v{vLANE}")
    a("s_mov_b32 exec_hi, 0")
    a("buffer_store_dword v255, v254, s[96:99], s94 offen")

def vr(r, n=4): return f"v[{r}:{r+n-1}]"
def ar(r, n=4): return f"a[{r}:{r+n-1}]"
def pr(r): return f"v[{r}:{r+1}]"
def sq(r): return f"s[{r}:{r+3}]"
DPP = "row_mask:0xf bank_mask:0xf"

def prologue(a, end):
    a("s_cmp_ge_u32 s2, 256")
    a(f"s_cbranch_scc1 {end}")
    npf = int(opt("cpf", "32"))
    if npf:
        K = NAME + "_kernel"
        a(f"s_cmp_ge_u32 s2, {npf}")
        a("s_cbranch_scc1 no_cpf")
        a("s_getpc_b64 s[96:97]")
        a.label("cpf_base")
        a("v_lshlrev_b32 v12, 7, v0")
        a(f"v_min_u32 v12, {K}_end - cpf_base, v12")
        a("v_mov_b32 v13, s97")
        a("v_add_co_u32 v12, vcc, s96, v12")
        a("s_nop 1")
        a("v_addc_co_u32 v13, vcc, 0, v13, vcc")
        a("global_load_dword v254, v[12:13], off")
        a.label("no_cpf")
    a(f"s_lshr_b32 s{sB0}, s2, 7")
    a(f"s_mul_i32 s3, s{sB0}, 48")
    a("s_add_u32 s22, s0, s3")
    a("s_addc_u32 s23, s1, 0")
    a("s_load_dwordx4 s[4:7], s[22:23], 8")
    a("s_load_dwordx2 s[8:9], s[22:23], 24")
    a(f"s_and_b32 s{sX}, s2, 7")
    a(f"s_lshr_b32 s{sQ}, s2, 3")
    a(f"s_lshr_b32 s{sB}, s{sX}, 2")
    a(f"s_mul_i32 s3, s{sB}, 48")
    a("s_add_u32 s22, s0, s3")
    a("s_addc_u32 s23, s1, 0")
    a("s_load_dwordx2 s[10:11], s[22:23], 32")
    a("s_load_dwordx2 s[12:13], s[22:23], 40")
    a("s_load_dwordx2 s[14:15], s[0:1], 0")
    a("s_load_dwordx4 s[16:19], s[0:1], 96")
    a("s_load_dwordx2 s[20:21], s[0:1], 112")
    a("v_lshrrev_b32 v1, 6, v0")
    a(f"v_and_b32 v{vLANE}, 63, v0")
    a(f"v_readfirstlane_b32 s{sW}, v1")
    a(f"v_lshlrev_b32 v{vL16}, 4, v{vLANE}")
    a(f"v_lshlrev_b32 v{vL2}, 1, v{vLANE}")
    if SPLIT():
        a(f"s_and_b32 s{sCF}, s{sQ}, 3")
        a(f"s_bfe_u32 s{sRB}, s{sQ}, 0x20002")
        a(f"s_lshl_b32 s3, s{sX}, 2")
        a(f"s_add_u32 s{sRB}, s{sRB}, s3")
        a(f"s_lshl_b32 s{sFI}, s{sB0}, 7")
        a(f"s_lshl_b32 s3, s{sCF}, 5")
        a(f"s_add_u32 s{sFI}, s{sFI}, s3")
        a(f"s_add_u32 s{sFI}, s{sFI}, s{sRB}")
        a(f"s_lshr_b32 s{sT2}, s{sW}, 1")
    else:
        a(f"s_and_b32 s{sCF}, s{sQ}, 1")
        a(f"s_bfe_u32 s{sRB}, s{sQ}, 0x30001")
        a(f"s_lshl_b32 s3, s{sX}, 3")
        a(f"s_add_u32 s{sRB}, s{sRB}, s3")
        a(f"s_lshl_b32 s{sFI}, s{sB0}, 7")
        a(f"s_lshl_b32 s3, s{sCF}, 6")
        a(f"s_add_u32 s{sFI}, s{sFI}, s3")
        a(f"s_add_u32 s{sFI}, s{sFI}, s{sRB}")
    a(f"s_and_b32 s{sP}, s{sX}, 3")
    a(f"s_lshl_b32 s{sP}, s{sP}, 4")
    a(f"s_lshr_b32 s3, s{sQ}, 1")
    a(f"s_add_u32 s{sP}, s{sP}, s3")
    a(f"s_and_b32 s{sHF}, s{sQ}, 1")
    a(f"s_lshl_b32 s{sCH}, s{sP}, 3")
    a(f"s_lshl_b32 s3, s{sHF}, 2")
    a(f"s_add_u32 s{sCH}, s{sCH}, s3")
    a(f"s_add_u32 s{sCH}, s{sCH}, s{sW}")
    a(f"s_add_u32 s{sCE}, s{sP}, 512")
    a(f"s_cmp_eq_u32 s{sHF}, 0")
    a(f"s_cselect_b32 s{sJE}, 0x7520, 0x6431") if False else None
    a("s_mov_b32 s3, 0x6431")
    a(f"s_cselect_b32 s{sJE}, 0x7520, s3")
    a(f"s_lshl_b32 s3, s{sW}, 2")
    a(f"s_lshr_b32 s{sJE}, s{sJE}, s3")
    a(f"s_and_b32 s{sJE}, s{sJE}, 7")
    a(f"s_mul_i32 s{sHB}, s{sW}, {HB}")
    a(f"s_mul_i32 s{sUB}, s{sW}, {US}")
    a(f"s_add_u32 s{sUB}, s{sUB}, {U_BASE}")

def kraw(t): return 8 + 4 * t
def hraw(j): return 40 + 4 * j
def vraw(t): return 52 + 4 * t
vA1, vA2, vA3, vA4, vA7 = 242, 243, 244, 245, 246
def EXH(): return 0xf if SPLIT() else 0xffff
def p0_addr(a):
    cw = 72 if SPLIT() else 96
    a(f"v_lshrrev_b32 v247, 2, v{vLANE}")
    a(f"v_and_b32 v248, 3, v{vLANE}")
    if SPLIT():
        a(f"s_lshl_b32 s67, s{sT2}, 5")
        a(f"s_add_u32 s67, s67, s{sRB}")
        a(f"s_and_b32 s68, s{sW}, 1")
        a(f"s_lshl_b32 s66, s{sCF}, 1")
        a("s_add_u32 s68, s68, s66")
    else:
        a(f"s_mov_b32 s67, s{sRB}")
        a(f"s_mul_i32 s68, s{sCF}, 3")
        a(f"s_add_u32 s68, s68, s{sW}")
    a(f"s_mul_i32 s65, s67, {32*ROWB}")
    a(f"s_mul_i32 s66, s68, {2*cw}")
    a("s_add_u32 s65, s65, s66")
    a(f"v_mul_u32_u24 v{vA1}, {8*ROWB}, v248")
    a(f"v_lshlrev_b32 v{vA7}, 4, v247")
    a(f"v_add3_u32 v{vA1}, v{vA1}, v{vA7}, s65")
    a(f"v_add_u32 v{vA2}, {4*ROWB}, v{vA1}")
    a(f"v_subrev_u32 v{vA3}, {3*ROWB}, v{vA1}")
    a(f"s_mul_i32 s66, s68, {cw*8}")
    a(f"v_add_u32 v{vA7}, s66, v{vL16}")
    a(f"s_mul_i32 s65, s{sB0}, 576")
    a(f"s_mul_i32 s66, s68, {cw}")
    a("s_add_u32 s65, s65, s66")
    a("s_lshl_b32 s65, s65, 12")
    a("s_add_u32 s65, s65, 4080")
    a("s_lshl_b32 s66, s67, 6")
    a("s_sub_u32 s65, s65, s66")
    a(f"v_lshlrev_b32 v{vA4}, 15, v247")
    a("v_lshlrev_b32 v248, 4, v248")
    a(f"v_sub_u32 v{vA4}, v{vA4}, v248")
    a(f"v_add_u32 v{vA4}, s65, v{vA4}")

def p0_issue(a, fl):
    def row(t): return (f"v{vA1}", t * ROWB) if t < 4 else (f"v{vA2}", (t - 4) * ROWB)
    def ldk(t):
        b, o = row(t); a.vm(f"buffer_load_dwordx4 {vr(kraw(t))}, {b}, {sq(SK)}, 0 offen offset:{o} {fl}", f"K{t}")
    def ldv(t):
        b, o = row(t); a.vm(f"buffer_load_dwordx4 {vr(vraw(t))}, {b}, {sq(SV)}, 0 offen offset:{o} {fl}", f"V{t}")
    a(f"s_mov_b32 exec_hi, {EXH()}")
    a.vm(f"buffer_load_dwordx4 v[84:87], v{vA7}, {sq(SSH)}, 0 offen", "W")
    for t in (5, 6, 7): ldk(t)
    a("s_mov_b32 exec_lo, 0x11111111")
    a(f"s_mov_b32 exec_hi, {EXH() & 0x1111}")
    for j in range(3):
        a.vm(f"buffer_load_dwordx4 {vr(hraw(j))}, v{vA3}, {sq(SK)}, 0 offen offset:{j*ROWB} {fl}", f"H{j}")
    a("s_mov_b32 exec_lo, -1")
    a(f"s_mov_b32 exec_hi, {EXH()}")
    for t in range(5): ldk(t); ldv(t)
    for t in (5, 6, 7): ldv(t)
    a("s_mov_b64 exec, -1")

def unpack(a, dlo, dhi, src):
    a(f"v_lshlrev_b32 v{dlo}, 16, v{src}")
    a(f"v_and_b32 v{dhi}, 0xffff0000, v{src}")

def p0_compute(a, stflag):
    def W(p, j): return 88 + 8 * p + 2 * j
    def Kf(j, c): return 120 + 8 * (j & 7) + c
    def U(t, c): return 184 + 8 * (t & 3) + c
    OUTS = [hraw(0), hraw(1), hraw(2), kraw(0), kraw(1), vraw(0), vraw(1), 84]
    VT = 216
    a("s_mov_b32 vcc_lo, 0x11111111")
    a("s_mov_b32 vcc_hi, 0x11111111")
    a("v_mov_b32 v224, 0xffff0000")
    for c in range(1, 8):
        a(f"s_mov_b32 s{3+c}, {4096*c}")
    a.needv("W")
    stamp(a, 16)
    for c in range(8):
        p, h = c >> 1, c & 1
        for half in range(2):
            i = 2 * c + half; s_ = i >> 2; qp = f"quad_perm:[{s_},{s_},{s_},{s_}] {DPP}"
            a(f"v_cvt_f32_bf16_dpp v{W(p,2*half)+h}, v{84+(i&3)} {qp}")
            a(f"v_and_b32_dpp v{W(p,2*half+1)+h}, v{84+(i&3)}, v224 {qp}")
    for j in range(3):
        a.needv(f"H{j}")
        for p in range(4):
            a(f"v_cndmask_b32_dpp v{hraw(j)+p}, v{kraw(5+j)+p}, v{hraw(j)+p}, vcc quad_perm:[0,0,1,2] {DPP}")
        for p in range(4): unpack(a, Kf(j, 2*p), Kf(j, 2*p+1), hraw(j) + p)
    def kun(t):
        for p in range(4): unpack(a, Kf(t+3, 2*p), Kf(t+3, 2*p+1), kraw(t) + p)
    def ksum(t):
        for p in range(4):
            a(f"v_pk_mul_f32 {pr(U(t,2*p))}, {pr(Kf(t,2*p))}, {pr(W(p,3))}")
        for jj in (2, 1, 0):
            for p in range(4):
                a(f"v_pk_fma_f32 {pr(U(t,2*p))}, {pr(Kf(t+3-jj,2*p))}, {pr(W(p,jj))}, {pr(U(t,2*p))}")
    def vmul(t):
        a.needv(f"V{t}")
        if t == 7: stamp(a, 17)
        for p in range(4): unpack(a, VT + 2*p, VT + 2*p + 1, vraw(t) + p)
        for p in range(4):
            a(f"v_pk_mul_f32 {pr(U(t,2*p))}, {pr(U(t,2*p))}, {pr(VT+2*p)}")
    def cvt(t):
        q = (7 - t) // 2
        if t == 7: a(f"s_mov_b32 exec_hi, {EXH()}")
        for c in range(8):
            a(f"v_cvt_pk_bf16_f32 v{OUTS[c]+q}, v{U(t, c)}, v{U(t-1, c)}")
            if t == 7:
                so = "0" if c == 0 else f"s{3+c}"
                a.vm(f"buffer_store_dwordx4 {vr(OUTS[c])}, v{vA4}, {sq(SU)}, {so} offen {stflag}", "UST")
        if t == 7: a("s_mov_b64 exec, -1")
    for t in range(5):
        a.needv(f"K{t}")
        kun(t)
        ksum(t)
        if t <= 2: kun(5 + t)
        if t == 4:
            for tt in (5, 6, 7): ksum(tt)
        vmul(t)
        if t & 1: cvt(t)
    for t in (5, 6, 7):
        vmul(t)
        if t & 1: cvt(t)

ACC, ACCE, FB, AE, FE0, PD, EV = 8, 40, 56, 120, 184, 216, 220
vTW, vTR, vFE, vEW, vER, vRW, vRR, vUD, vP1, vP2, vYM, vYE, vYG, vYR = range(224, 238)
vPB = 254
RED, UD, STG, ES, TRD, YP, XR = 120, 136, 138, 140, 144, 152, 240
TJ = ((0, 2, 5, 7), (1, 3, 4, 6))

def h_dma(a, ch, ldsbase_s, ldsconst, flag, tag):
    a(f"s_lshl_b32 s3, s{ch}, 12")
    if ldsbase_s is not None:
        a(f"s_add_u32 s92, s{ldsbase_s}, {ldsconst + 3*CS + 32}")
        a("s_mov_b32 m0, s92")
    else:
        a(f"s_mov_b32 m0, {ldsconst + 3*CS + 32}")
    a("s_nop 0")
    for q in range(4):
        a.vm(f"buffer_load_dwordx4 v{vL16}, {sq(SH)}, s3 offen offset:{1024*q} {flag} lds", tag)

hc_n = [0]
vC1, vC2, vC3, vC4, ZR = 176, 177, 178, 179, 180
def h_copy_ops(a, vR, qs, head=None):
    hc_n[0] += 1; u = hc_n[0]
    Dq = lambda i: 120 + 8 * i
    ops = []
    def L(c, s_, tag=None): ops.append((c, lambda: a.lds(s_, tag)))
    def V(s_, need=None): ops.append((4, lambda: ((a.need(need) if need else None), a(s_))))
    for i, q in enumerate(qs):
        L(6, f"ds_read_b128 {vr(Dq(i))}, v{vR} offset:{3*CS + 32 + 1024*q}")
        L(4, f"ds_read_b64 {pr(Dq(i)+4)}, v{vR} offset:{3*CS + 48 + 1024*q}", ("HC", u, i))
    if head is not None:
        L(4, f"ds_read_b64 v[138:139], v{head} offset:{3*CS + 32}", ("HH", u))
    for i, q in enumerate(qs):
        d = Dq(i); o = 16 * (i & 1); T0, T1, T2, O4 = 144 + o, 148 + o, 152 + o, 156 + o
        for k in range(4):
            V(f"v_alignbit_b32 v{T0+k}, v{d+k+1}, v{d+k}, 16", ("HC", u, i) if k == 0 else None)
        V(f"v_alignbit_b32 v{O4}, v{d+5}, v{d+4}, 16")
        V(f"v_pk_mov_b32 {pr(T1)}, {pr(d)}, {pr(d+2)} op_sel:[1,0]")
        V(f"v_pk_mov_b32 {pr(T1+2)}, {pr(d+2)}, {pr(d+4)} op_sel:[1,0]")
        V(f"v_pk_mov_b32 {pr(T2)}, {pr(T0)}, {pr(T0+2)} op_sel:[1,0]")
        V(f"v_pk_mov_b32 {pr(T2+2)}, {pr(T0+2)}, {pr(O4)} op_sel:[1,0]")
        L(8, f"ds_write_b128 v{vR}, {vr(T0)} offset:{32 + 1024*q}")
        L(8, f"ds_write_b128 v{vR}, {vr(T1)} offset:{CS + 32 + 1024*q}")
        L(8, f"ds_write_b128 v{vR}, {vr(T2)} offset:{2*CS + 32 + 1024*q}", ("HW", u))
    if head is not None:
        V(f"v_sub_u32 v137, 3, v{vLANE}")
        V("v_lshlrev_b32 v137, 4, v137")
        V("v_lshlrev_b64 v[138:139], v137, v[138:139]", ("HH", u))
        V(f"v_cmp_eq_u32 vcc, 3, v{vLANE}")
        V(f"v_mul_u32_u24 v137, {CS}, v{vLANE}")
        V(f"v_add_u32 v140, v137, v{head}")
        V("v_cndmask_b32 v138, v138, 0, vcc")
        V("v_cndmask_b32 v139, v139, 0, vcc")
        V("v_mov_b32 v136, 0")
        V("v_mov_b32 v137, 0")
        def hw():
            a("s_mov_b64 exec, 15")
            a.lds(f"ds_write_b128 v140, {vr(ZR)}")
            a.lds("ds_write_b128 v140, v[136:139] offset:16", ("HW", u))
            a("s_mov_b64 exec, -1")
        ops.append((8, hw))
    return ops, ("HW", u)
def h_copies(a, vR, qs, head=None):
    ops, tag = h_copy_ops(a, vR, qs, head)
    for c, f in ops: f()
    return tag

def p1_prep_a(a):
    a(f"v_and_b32 v1, 15, v{vLANE}")
    a(f"v_lshrrev_b32 v2, 4, v{vLANE}")
    a("v_and_b32 v3, 3, v1")
    a("v_cmp_eq_u32 vcc, 3, v3")
    a(f"v_mul_u32_u24 v3, {CS}, v3")
    a("v_and_b32 v4, 12, v1")
    a("v_lshlrev_b32 v4, 1, v4")
    a("v_add_u32 v3, v3, v4")
    a("v_cndmask_b32 v4, 0, 8, vcc")
    a("v_add_u32 v3, v3, v4")
    a("v_lshl_add_u32 v3, v2, 4, v3")
    a(f"v_add_u32 v5, s{sHB}, v3")
    a(f"s_lshl_b32 s93, s{sW}, 7")
    a(f"s_add_u32 s3, s93, {4*HB}")
    a("v_add_u32 v6, s3, v3")

def p1_prep_b(a):
    a(f"v_add_u32 v8, s{sUB}, v{vL16}")
    a(f"s_add_u32 s3, s93, {UE - 512}")
    a(f"v_add_u32 v9, s3, v{vL16}")
    a(f"v_cmp_gt_u32 vcc, 32, v{vLANE}")
    a("s_mov_b32 exec_hi, 0xff")
    a("s_nop 0")
    a("v_cndmask_b32 v8, v9, v8, vcc")
    a("ds_write_b128 v8, v[180:183] offset:4096")
    a("s_mov_b64 exec, -1")
    for ch, sv in ((sCH, sDM), (sCE, sDE)):
        a(f"s_and_b32 s3, s{ch}, 1")
        a("s_lshl_b32 s3, s3, 4")
        a(f"s_lshr_b32 s{sv}, s{sv}, s3")
        a(f"s_and_b32 s{sv}, s{sv}, 0xffff")
    a(f"s_lshl_b32 s{sDE}, s{sDE}, 16")
    a("v_lshlrev_b32 v3, 3, v2")
    a("v_add_u32 v3, v3, v1")
    a("v_sub_u32 v3, 15, v3")
    a("v_and_b32 v4, 1, v3")
    a("v_lshlrev_b32 v4, 4, v4")
    a("v_ashrrev_i32 v3, 1, v3")
    a(f"v_lshlrev_b32 v8, v4, s{sDM}")
    for q in range(4):
        a(f"v_cmp_eq_u32 vcc, {q}, v3")
        a("s_nop 1")
        a(f"v_cndmask_b32 v{PD+q}, 0, v8, vcc")
    a("v_lshlrev_b32 v3, 4, v2")
    a("v_lshlrev_b32 v4, 5, v1")
    a("v_sub_u32 v3, v3, v4")
    a("v_add_u32 v3, 480, v3")
    a(f"v_add_u32 v7, s{sUB}, v3")
    a(f"s_add_u32 s3, s93, {UE}")
    a(f"v_add_u32 v{vFE}, s3, v3")
    a("v_lshlrev_b32 v3, 3, v2")
    a("v_add_u32 v3, v3, v4")
    a(f"s_lshl_b32 s3, s{sJE}, 9")
    a(f"s_sub_u32 s3, {UE + 4088}, s3")
    a(f"v_sub_u32 v{vUD}, s3, v3")
    a(f"s_lshl_b32 s3, s{sW}, 9")
    a(f"s_add_u32 s3, s3, {E_LDS}")
    a(f"v_add_u32 v{vEW}, s3, v3")
    a(f"v_add_u32 v{vER}, s3, v{vL16}")
    a(f"s_lshl_b32 s3, s{sW}, 10")
    a(f"s_add_u32 s3, s3, {R_LDS}")
    a(f"v_add_u32 v{vRW}, s3, v{vL16}")
    a(f"s_lshl_b32 s3, s{sW}, 12")
    a(f"s_add_u32 s3, s3, {R_LDS}")
    a(f"v_add_u32 v{vRR}, s3, v{vL16}")
    a(f"v_mul_u32_u24 v{vTW}, {TR}, v1")
    a("v_lshrrev_b32 v3, 1, v2")
    a(f"v_lshl_add_u32 v{vTW}, v3, 6, v{vTW}")
    a("v_and_b32 v3, 1, v2")
    a(f"v_lshl_add_u32 v{vTW}, v3, 3, v{vTW}")
    a(f"s_lshl_b32 s3, s{sW}, 4")
    a(f"s_add_u32 s3, s3, {T_LDS}")
    a(f"v_add_u32 v{vTW}, s3, v{vTW}")
    a(f"v_lshrrev_b32 v3, 3, v{vLANE}")
    a(f"v_mul_u32_u24 v{vTR}, {TR}, v3")
    a(f"v_and_b32 v4, 7, v{vLANE}")
    a(f"v_lshl_add_u32 v{vTR}, v4, 4, v{vTR}")
    a(f"s_mul_i32 s3, s{sW}, {8*TR}")
    a(f"s_add_u32 s3, s3, {T_LDS}")
    a(f"v_add_u32 v{vTR}, s3, v{vTR}")
    a(f"v_mul_u32_u24 v{vYM}, {YR}, v4")
    a(f"v_lshl_add_u32 v{vYM}, v3, 4, v{vYM}")
    a(f"s_lshr_b32 s88, s{sW}, 1")
    a(f"s_mul_i32 s89, s88, {YBR}")
    a(f"s_and_b32 s3, s{sW}, 1")
    a("s_lshl_b32 s3, s3, 9")
    a("s_add_u32 s89, s89, s3")
    a(f"s_add_u32 s89, s89, {Y_LDS}")
    a(f"v_add_u32 v{vYM}, s89, v{vYM}")
    a(f"s_add_u32 s89, s89, {8*YR}")
    a(f"v_add_u32 v{vYE}, s89, v{vL16}")
    a(f"v_lshlrev_b32 v{vYG}, 6, v{vLANE}")
    a("s_lshl_b32 s88, s88, 3")
    a(f"s_add_u32 s88, s88, {Y_LDS}")
    a(f"v_add_u32 v{vYR}, s88, v{vL16}")
    a("s_lshl_b32 s88, s2, 14")
    a(f"s_lshl_b32 s3, s{sW}, 12")
    a("s_add_u32 s88, s88, s3")
    a("s_lshr_b32 s89, s2, 2")
    a("s_lshl_b32 s89, s89, 13")
    a(f"s_lshl_b32 s3, s{sW}, 11")
    a("s_add_u32 s89, s89, s3")
    a("s_and_b32 s3, s2, 3")
    a("s_lshl_b32 s3, s3, 4")
    a("s_add_u32 s89, s89, s3")
    a(f"s_add_u32 s89, s89, {YE_OFF}")
    a(f"v_lshrrev_b32 v4, 2, v{vLANE}")
    a(f"v_and_b32 v8, 3, v{vLANE}")
    a("v_lshlrev_b32 v8, 4, v8")
    a("v_lshl_add_u32 v3, v4, 14, v8")
    a("v_lshl_add_u32 v4, v4, 13, v8")
    a(f"s_lshl_b32 s{sYM}, s{sW}, 18")
    a(f"s_lshl_b32 s3, s{sB}, 13")
    a(f"s_add_u32 s{sYM}, s{sYM}, s3")
    a(f"s_sub_u32 s3, s{sCH}, s{sW}")
    a("s_lshl_b32 s3, s3, 4")
    a(f"s_add_u32 s{sYM}, s{sYM}, s3")
    a(f"s_lshl_b32 s{sYE}, s{sJE}, 16")
    a(f"s_lshl_b32 s3, s{sB}, 12")
    a(f"s_add_u32 s{sYE}, s{sYE}, s3")
    a(f"s_lshl_b32 s3, s{sP}, 6")
    a(f"s_add_u32 s{sYE}, s{sYE}, s3")
    a(f"s_add_u32 s{sYE}, s{sYE}, {YE_OFF}")
    srd(a, SX, 14, 15, TENS)
    a(f"s_lshl_b32 s{sXO}, s2, 3")
    a(f"s_lshl_b32 s3, s{sW}, 1")
    a(f"s_add_u32 s{sXO}, s{sXO}, s3")
    a(f"s_mul_i32 s{sXO}, s{sXO}, {ROWB}")
    a(f"s_mul_i32 s3, s{sB}, 576")
    a(f"s_add_u32 s90, s3, s{sCH}")
    a("s_lshl_b32 s90, s90, 12")
    a(f"s_add_u32 s91, s3, s{sCE}")
    a("s_lshl_b32 s91, s91, 12")
    a(f"s_lshl_b32 s85, s{sW}, 10")
    a("s_add_u32 s91, s91, s85")
    a(f"s_add_u32 s85, s85, {UE}")
    if not SPLIT():
        a(f"s_lshl_b32 s92, s{sB}, 2")
        a(f"s_add_u32 s92, s92, s{sW}")
        a("s_lshl_b32 s92, s92, 11")
        a(f"v_and_b32 v8, 31, v{vLANE}")
        a("v_lshlrev_b32 v8, 6, v8")
        a(f"v_add_u32 v{vP1}, s92, v8")
    if SPLIT():
        a(f"s_mul_i32 s92, s{sCH}, 456")
        a("s_lshr_b32 s92, s92, 16")
        a("s_lshl_b32 s92, s92, 11")
        a(f"s_lshl_b32 s3, s{sB}, 13")
        a("s_add_u32 s92, s92, s3")
        a(f"v_and_b32 v8, 31, v{vLANE}")
        a("v_lshlrev_b32 v8, 6, v8")
        a(f"v_add_u32 v{vP1}, s92, v8")
        a(f"s_add_u32 s92, s92, {F1B}")
        a(f"s_add_u32 s3, s3, {96*64}")
        a(f"s_add_u32 s93, s3, {F1B}")
        a(f"s_cmp_eq_u32 s{sW}, 1")
        a("s_cselect_b32 s3, s3, s93")
        a(f"s_cmp_eq_u32 s{sW}, 0")
        a("s_cselect_b32 s3, s92, s3")
        a(f"v_add_u32 v{vPB}, s3, v8")
    if True:
        a(f"s_lshl_b32 s92, s{sW}, 12")
        a(f"s_mov_b32 s3, {F2}")
        a("s_cmp_lt_u32 s2, 128")
        a(f"s_cselect_b32 s3, {F2A if opt('f2a', '1') == '1' else F2}, s3")
        a("s_add_u32 s92, s92, s3")
        a(f"v_add_u32 v{vP2}, s92, v{vYG}")
    a(f"v_add_u32 v{vC1}, s{sHB}, v{vL16}")
    a(f"v_mov_b32 v{vC2}, s{sHB}")
    a(f"s_lshl_b32 s3, s{sW}, 10")
    a(f"s_add_u32 s3, s3, {4*HB}")
    a(f"v_add_u32 v{vC3}, s3, v{vL16}")
    a(f"v_mov_b32 v{vC4}, {4*HB}")
    a("s_lshl_b32 s101, s2, 6")
    a(f"s_add_u32 s101, s101, {F2A}")
    a("s_lshl_b32 s3, s2, 2")
    a(f"s_add_u32 s3, s3, s{sW}")
    a("s_lshl_b32 s3, s3, 6")
    a(f"s_add_u32 s3, s3, {FD}")
    a(f"s_cmp_eq_u32 s{sW}, 0")
    a("s_cselect_b32 s101, s101, s3")
    a(f"s_lshl_b32 s99, s{sFI}, 6")
    a(f"s_add_u32 s99, s99, {F1B}")
    a(f"s_cmp_eq_u32 s{sW}, 0")
    a("s_cselect_b32 s99, s99, s3")
    a("s_mov_b32 s86, 0x3ae38e39")
    a("s_mov_b32 s87, 0x3727c5ac")

def p1_aload(a, aas):
    for r in range(8):
        for aa in aas:
            ks = 8 * aa + r
            a.lds(f"ds_read_b64 a[{4*ks}:{4*ks+1}], v5 offset:{64*ks}")
            a.lds(f"ds_read_b64 a[{4*ks+2}:{4*ks+3}], v5 offset:{64*ks+8}", ("A", ks))

def F(bank, c): return FB + 32 * bank + 4 * c
MF = "v_mfma_f32_16x16x32_bf16"

def p1_mfma(a, stflag, tail):
    inited = set()
    KB = {"a": 0, "b": 8, "c": 16}
    def FG(p, r, c): return FB + 16 * ((KB[p] + r) & 3) + 4 * (c & 3)
    def mfma(acc, A_, B_, needs):
        a.need(*needs)
        c = vr(acc) if acc in inited else "0"
        inited.add(acc)
        a(f"{MF} {vr(acc)}, {A_}, {vr(B_)}, {c}")
    def L(c, s_, tag=None): return (c, lambda: a.lds(s_, tag))
    def I(s_): return (4, lambda: a(s_))
    def fread(p, r, c): return L(6, f"ds_read_b128 {vr(FG(p,r,c))}, v7 offset:{64*r + 512*(7-c)}", ("F", p, r, c))
    def areads(r):
        o = []
        for aa in range(4, 8):
            ks = 8 * aa + r
            o += [L(4, f"ds_read_b64 a[{4*ks}:{4*ks+1}], v5 offset:{64*ks}"), L(4, f"ds_read_b64 a[{4*ks+2}:{4*ks+3}], v5 offset:{64*ks+8}", ("A", ks))]
        return o
    def aeread(rp, aa, half): return L(4, f"ds_read_b64 {pr(AE+32*rp+4*aa+2*half)}, v6 offset:{512*aa + 64*rp + 8*half}", ("AE", rp, aa))
    def FEr(rp, c): return (FE0 + 4 * c) if rp == 0 else FB + 16 * GE + 4 * c
    def feread(rp, c): return L(6, f"ds_read_b128 {vr(FEr(rp,c))}, v{vFE} offset:{64*rp + 512*(7-c)}", ("FE", rp, c))
    evc = [0]
    def conv(j):
        e = EV + 2 * (evc[0] & 1); evc[0] += 1
        return [I(f"v_cvt_pk_bf16_f32 v{e}, v{ACC+4*j}, v{ACC+4*j+1}"), I(f"v_cvt_pk_bf16_f32 v{e+1}, v{ACC+4*j+2}, v{ACC+4*j+3}"),
                L(6, f"ds_write_b64 v{vTW}, {pr(e)} offset:{16*TR*j}", ("TW", j))]
    def barrier(*tags): return (8, lambda: (a.need(*tags), a("s_barrier")))
    def tread(k, reg): return L(6, f"ds_read_b128 {vr(reg)}, v{vTR} offset:{32*TR*k}", ("TRD", k))
    def tstore(k, reg):
        def f():
            a(f"s_add_u32 s3, s{sYM}, {k*64*16384}")
            a.need(("TRD", k))
            a.vm(f"buffer_store_dwordx4 {vr(reg)}, v3, {sq(SY)}, s3 offen {stflag}")
        return (8, f)
    def blk(J, C, r, pname):
        bank = r & 1; items = []
        order = [(c, j) for c in C for j in J if j >= c]
        if pname == "c" and r == 7: order = [(c, j) for j in J for c in C if j >= c]
        for c, j in order:
            tg = [("F", pname, r, c), ("A", 8 * (j - c) + r)]
            if r == 0 and j == c: items.append((ACC + 4*j, vr(PD), FG(pname, r, c), tg))
            items.append((ACC + 4*j, ar(4 * (8 * (j - c) + r)), FG(pname, r, c), tg))
        return items
    EXP = int(opt("exp", "6"))
    GE = (8 + EXP - 2) & 3
    lo, hi = (0, 1, 2, 3), (4, 5, 6, 7)
    seq = [("a", r, blk(lo, lo, r, "a")) for r in range(8)] + [("b", r, blk(hi, lo, r, "b")) for r in range(EXP)] + \
          [("e", 0, [None] * 36)] + [("b", r, blk(hi, lo, r, "b")) for r in range(EXP, 8)] + [("c", r, blk(hi, hi, r, "c")) for r in range(8)]
    start = {}; n = 0
    for p, r, it in seq: start[(p, r)] = n; n += len(it)
    NS = n; assert NS == 332
    plan = [[] for _ in range(NS)]; load = [0] * NS
    def pin(slot, ops):
        for i, (c, f) in enumerate(ops):
            plan[slot + i].append(f); load[slot + i] += c
    def spread(ops, lo_, hi_, cap=8):
        for cap_ in range(cap, 40, 2):
            sl = lo_; pos = []; ld = list(load)
            for c, f in ops:
                while sl <= hi_ and ld[sl] + c > cap_: sl += 1
                if sl > hi_: break
                pos.append(sl); ld[sl] += c
            if len(pos) == len(ops): break
        assert len(pos) == len(ops)
        for (c, f), p_ in zip(ops, pos): plan[p_].append(f); load[p_] += c
        return pos[-1]
    main = [x for x in seq if x[0] != "e"]
    for i, (p, r, it) in enumerate(main):
        if i + 2 >= len(main): break
        p2, r2, _ = main[i + 2]
        pin(start[(p, r)], [fread(p2, r2, c) for c in (hi if p2 == "c" else lo)])
    E0 = start[("e", 0)]
    pin(E0, [feread(1, c) for c in range(8)])
    XA = int(opt("xa", "110")); X0 = int(opt("x0", str(E0 - 14)))
    if SPLIT(): pin(XA - 24, [(8, lambda: a.vm(f"buffer_load_dword v253, v{vPB}, {sq(SF)}, 0 offen sc1", "P1B"))])
    ops_e, hwe = h_copy_ops(a, vC3, [0], vC4)
    XS = int(opt("xs", "38"))
    def xs():
        a("s_waitcnt vmcnt(0)")
        a("s_barrier")
        signal(a, 99); a.vn += 1
    if SPLIT(): pin(XS, [(20, xs)])
    xl = [(8, lambda: a.vm(f"buffer_load_dwordx4 {vr(XR)}, v{vL16}, {sq(SX)}, s{sXO} offen nt")),
          (8, lambda: a.vm(f"buffer_load_dwordx4 {vr(XR+4)}, v{vL16}, {sq(SX)}, s{sXO} offen offset:{ROWB} nt")),
          (8, lambda: a.vm(f"buffer_load_ushort v{XR+8}, v{vL2}, {sq(SX)}, s{sXO} offen offset:1024 nt")),
          (8, lambda: a.vm(f"buffer_load_ushort v{XR+9}, v{vL2}, {sq(SX)}, s{sXO} offen offset:{1024+ROWB} nt", "X"))]
    pin(XS + 1, xl)
    def xa0():
        a.need(hwe, ("TW", 3))
        a.needv("UE")
        a("s_barrier")
    def xa():
        a.needv("P1B")
        a(f"v_cmp_ne_u32 vcc, s{sTAG}, v253")
        a(f"s_mov_b32 m0, s{sUB}")
        a("s_cbranch_vccnz t2_slow")
        a.label("t2_back")
        a.need(hwe, ("TW", 3))
        a("s_barrier")
        for q in (1, 0):
            a.vm(f"buffer_load_dwordx4 v{vL16}, {sq(SU)}, s90 offen offset:{1024*q} sc1 lds", f"U{q}")
        a("s_mov_b32 m0, s85")
        a("s_nop 0")
        a.vm(f"buffer_load_dwordx4 v{vL16}, {sq(SU)}, s91 offen sc1 lds", "UE")
    pin(XA, [(40, xa) if SPLIT() else (8, xa0)])
    def slow(t):
        t.label("t2_slow")
        t("s_mov_b32 s92, 0x20000")
        t.label("t2_spin")
        t(f"buffer_load_dword v253, v{vPB}, {sq(SF)}, 0 offen sc1")
        t("s_waitcnt vmcnt(0)")
        t(f"v_cmp_ne_u32 vcc, s{sTAG}, v253")
        t("s_sub_u32 s92, s92, 1")
        t("s_cbranch_scc1 t2_back")
        t("s_cbranch_vccnz t2_spin")
        t("s_branch t2_back")
    if SPLIT(): tail.append(slow)
    spread(ops_e[:3], 4, 8)
    spread(ops_e[3:], 18, 83, 6)
    if SPLIT(): pin(X0, [(8, lambda: (a.needv("UE"), a("s_barrier")))])
    spread([feread(0, c) for c in range(8)], X0 + 1, E0 - 2)
    spread([aeread(rp, aa, h) for rp in range(2) for aa in range(8) for h in range(2)], XA + 2, X0 - 1, 6)
    B4 = E0 + 36
    spread(conv(0) + conv(1) + conv(2) + conv(3), 94, XA - 2, 6)
    e_ = spread([L(8, f"ds_write_b128 v{vRW}, {vr(ACCE+4*s_)} offset:{4096*s_}", ("RW", s_)) for s_ in range(4)], B4 + 8, B4 + 15)
    X1 = e_ + 6
    pin(X1, [barrier(("RW", 3))])
    e_ = spread([L(6, f"ds_read_b128 {vr(RED+4*i)}, v{vRR} offset:{1024*i}", ("RR", i)) for i in range(4)] +
                [L(4, f"ds_read_b64 {pr(UD)}, v{vUD}", "UD")], X1 + 1, X1 + 14)
    pin(XA + 1, [tread(0, FE0), tread(1, FE0 + 4)])
    pin(XA + 10, [tstore(0, FE0), tstore(1, FE0 + 4)])
    red = [(4, lambda: (a.need("UD"), a(f"v_pk_add_f32 {pr(RED)}, {pr(RED)}, {pr(RED+4)}"))), I(f"v_pk_add_f32 {pr(RED+2)}, {pr(RED+2)}, {pr(RED+6)}"),
           I(f"v_pk_add_f32 {pr(RED+8)}, {pr(RED+8)}, {pr(RED+12)}"), I(f"v_pk_add_f32 {pr(RED+10)}, {pr(RED+10)}, {pr(RED+14)}"),
           I(f"v_pk_add_f32 {pr(RED)}, {pr(RED)}, {pr(RED+8)}"), I(f"v_pk_add_f32 {pr(RED+2)}, {pr(RED+2)}, {pr(RED+10)}"),
           I(f"v_and_b32 v{RED+4}, 0xffff0000, v{UD+1}"), I(f"v_lshlrev_b32 v{RED+5}, 16, v{UD+1}"),
           I(f"v_and_b32 v{RED+6}, 0xffff0000, v{UD}"), I(f"v_lshlrev_b32 v{RED+7}, 16, v{UD}")]
    red += [I(f"v_fmac_f32 v{RED+i}, s{sDE}, v{RED+4+i}") for i in range(4)]
    red += [I(f"v_cvt_pk_bf16_f32 v{STG}, v{RED}, v{RED+1}"), I(f"v_cvt_pk_bf16_f32 v{STG+1}, v{RED+2}, v{RED+3}")]
    red += [L(6, f"ds_write_b64 v{vEW}, {pr(STG)}"), L(6, f"ds_read_b128 {vr(ES)}, v{vER}", "ES")]
    e_ = spread(red, e_ + 8, e_ + 40)
    def estore():
        a.need("ES"); a("s_mov_b32 exec_hi, 0")
        a.vm(f"buffer_store_dwordx4 {vr(ES)}, v4, {sq(SY)}, s{sYE} offen {stflag}")
        a("s_mov_b64 exec, -1")
    e_ = spread([(8, estore)], e_ + 6, e_ + 12)
    def f2a():
        a("s_waitcnt vmcnt(0)"); a.vd = a.vn
        a("s_barrier")
        signal(a, 101); a.vn += 1
    if opt("f2a", "1") == "1": pin(int(opt("x2b", "306")), [(20, f2a)])
    C7 = start[("c", 7)]
    pin(C7 + 9, [(12, lambda: [f() for c, f in conv(4)])])
    if not SPLIT(): a.needv("U2")
    stamp(a, 9); stamp(a, 24, True)
    for r in range(2):
        for c in lo: fread("a", r, c)[1]()
    qs = {("a", 3): 0, ("a", 7): 1, ("b", EXP - 1): 2, ("e", 0): 3, ("b", 7): 4, ("c", 3): 5}
    for p, r, items in seq:
        s0 = start[(p, r)]
        if p != "e":
            for i, it in enumerate(items):
                mfma(*it)
                for f in plan[s0 + i]: f()
        else:
            a(f"s_cmp_eq_u32 s{sHF}, 1")
            a("s_cbranch_scc1 ex_h1")
            save = (a.ln, a.ld, dict(a.lt), set(inited), a.vn, a.vd)
            for h in range(2):
                if h == 1:
                    a("s_branch ex_join")
                    a.label("ex_h1")
                    end0 = (a.ln, a.ld)
                    a.ln, a.ld, a.lt, inited = save[0], save[1], dict(save[2]), set(save[3])
                its = []
                for rp in range(2):
                    for c in range(8):
                        for s_, j in enumerate(TJ[h]):
                            if j >= c:
                                its.append((ACCE + 4*s_, vr(AE + 32*rp + 4*(j - c)), FEr(rp, c), [("AE", rp, j - c), ("FE", rp, c)]))
                for i, it in enumerate(its):
                    mfma(*it)
                    for f in plan[s0 + i]: f()
                assert (a.vn, a.vd) == save[4:6]
            a.label("ex_join")
            assert a.ln == end0[0]
            a.ld = min(a.ld, end0[1])
        if (p, r) in qs: qstamp(a, qs[(p, r)])
    stamp(a, 7); stamp(a, 25, True)
    for j in (5, 6, 7):
        if j == 7: a("s_nop 0")
        for c, f in conv(j): f()
    barrier(("TW", 7))[1]()
    tread(2, TRD)[1](); tread(3, TRD + 4)[1]()
    tstore(2, TRD)[1](); tstore(3, TRD + 4)[1]()
    stamp(a, 8); stamp(a, 26, True)
    qflush(a)
    if "--plan" in sys.argv: print(load)

Z, YA, YB, G = 8, 26, 44, 62
SS, QQ, RS, ND, C0 = 80, 82, 84, 86, 88
YW = 96

def p2_sums(a):
    a(f"v_pk_add_f32 {pr(SS)}, {pr(Z)}, {pr(Z+2)}")
    a(f"v_pk_mul_f32 {pr(QQ)}, {pr(Z)}, {pr(Z)}")
    a(f"v_pk_fma_f32 {pr(QQ)}, {pr(Z+2)}, {pr(Z+2)}, {pr(QQ)}")
    for e in range(2, 9):
        a(f"v_pk_add_f32 {pr(SS)}, {pr(SS)}, {pr(Z+2*e)}")
        a(f"v_pk_fma_f32 {pr(QQ)}, {pr(Z+2*e)}, {pr(Z+2*e)}, {pr(QQ)}")

def p2_chain(a, fill):
    fill = list(fill)
    def gap(n):
        for _ in range(n):
            if fill: a(fill.pop(0))
            else: a("s_nop 0")
    T, Uq = 90, 91
    gap(2)
    a(f"v_permlane32_swap_b32 v{SS}, v{SS+1}")
    a(f"v_permlane32_swap_b32 v{QQ}, v{QQ+1}")
    a(f"v_add_f32 v{SS}, v{SS}, v{SS+1}")
    a(f"v_add_f32 v{QQ}, v{QQ}, v{QQ+1}")
    gap(2)
    a(f"v_permlane16_swap_b32 v{SS}, v{QQ}")
    a(f"v_add_f32 v{T}, v{SS}, v{QQ}")
    for m in ("quad_perm:[1,0,3,2]", "quad_perm:[2,3,0,1]", "row_half_mirror", "row_mirror"):
        gap(2)
        a(f"v_add_f32_dpp v{T}, v{T}, v{T} {m} {DPP}")
    a(f"v_mov_b32 v{Uq}, v{T}")
    gap(2)
    a(f"v_permlane16_swap_b32 v{T}, v{Uq}")
    a(f"v_mul_f32 v{T}, s86, v{T}")
    a(f"v_mul_f32 v{Uq}, s86, v{Uq}")
    a(f"v_fma_f32 v{Uq}, -v{T}, v{T}, v{Uq}")
    a(f"v_max_f32 v{Uq}, 0, v{Uq}")
    a(f"v_add_f32 v{Uq}, s87, v{Uq}")
    a(f"v_rsq_f32 v{RS}, v{Uq}")
    gap(1)
    a(f"v_mul_f32 v{ND}, v{RS}, v{T}")
    a(f"v_mov_b32 v{RS+1}, v{RS}")
    a(f"v_mov_b32 v{ND+1}, v{ND}")
    gap(2)
    a(f"v_permlane32_swap_b32 v{RS}, v{RS+1}")
    a(f"v_permlane32_swap_b32 v{ND}, v{ND+1}")
    while fill: a(fill.pop(0))

def p2_first(a):
    a.needv("X")
    for q in range(4):
        for row in range(2):
            a(f"v_lshlrev_b32 v{Z+4*q+row}, 16, v{XR+4*row+q}")
            a(f"v_and_b32 v{Z+4*q+2+row}, 0xffff0000, v{XR+4*row+q}")
    a(f"v_lshlrev_b32 v{Z+16}, 16, v{XR+8}")
    a(f"v_lshlrev_b32 v{Z+17}, 16, v{XR+9}")
    a(f"v_readfirstlane_b32 s92, v{Z}")
    a(f"v_readfirstlane_b32 s93, v{Z+1}")
    a("s_nop 1")
    a(f"v_mov_b32 v{C0}, s92")
    a(f"v_mov_b32 v{C0+1}, s93")
    for e in range(9):
        a(f"v_pk_add_f32 {pr(Z+2*e)}, {pr(Z+2*e)}, {pr(C0)} neg_lo:[0,1] neg_hi:[0,1]")
    p2_sums(a)
    p2_chain(a, [])

def y_ld(i):
    if i == 4: return f"buffer_load_dwordx4 {vr(YP+16)}, v{vYG}, {sq(SY)}, s89 offen sc1"
    return f"buffer_load_dwordx4 {vr(YP+4*i)}, v{vL16}, {sq(SY)}, s88 offen offset:{1024*i} sc1"
def y_issue_ops(a):
    def e():
        a("s_mov_b32 exec_hi, 0"); a.vm(y_ld(4)); a("s_mov_b64 exec, -1")
    return [e] + [(lambda i: lambda: a.vm(y_ld(i)))(i) for i in range(4)]

def y_write(a):
    for q in range(4):
        a(f"ds_write_b128 v{vYM}, {vr(YP+4*q)} offset:{128*q}")
    a("s_mov_b32 exec_hi, 0")
    a(f"ds_write_b128 v{vYE}, {vr(YP+16)}")
    a("s_mov_b64 exec, -1")
    a("s_waitcnt lgkmcnt(0)")

def y_check(a):
    M = [4, 6, 8, 10, 12]
    for i in range(4):
        a(f"s_mov_b64 s[{M[i]}:{M[i]+1}], -1")
    a("s_mov_b32 s12, -1")
    a("s_mov_b32 s13, 0")
    a("s_mov_b32 s92, 0x20000")
    a("s_waitcnt vmcnt(1)")
    a("s_branch yc_chk")
    a.label("yc_loop")
    a("s_waitcnt vmcnt(0)")
    a.label("yc_chk")
    for i in range(5):
        r = YP + 4 * i
        a(f"s_mov_b64 exec, s[{M[i]}:{M[i]+1}]")
        a(f"v_max3_u32 v238, v{r}, v{r+1}, v{r+2}")
        a(f"v_max_u32 v238, v238, v{r+3}")
        a(f"v_cmp_eq_u32 s[{M[i]}:{M[i]+1}], -1, v238")
    a("s_or_b64 s[14:15], s[4:5], s[6:7]")
    a("s_or_b64 s[14:15], s[14:15], s[8:9]")
    a("s_or_b64 s[14:15], s[14:15], s[10:11]")
    a("s_or_b64 s[14:15], s[14:15], s[12:13]")
    a("s_cbranch_scc0 yc_done")
    a("s_sub_u32 s92, s92, 1")
    a("s_cbranch_scc1 yc_done")
    if int(opt("ysleep", "0")): a(f"s_sleep {opt('ysleep','0')}")
    for i in range(5):
        a(f"s_mov_b64 exec, s[{M[i]}:{M[i]+1}]")
        a(f"s_cbranch_execz yc_skip{i}")
        a(y_ld(i))
        a.label(f"yc_skip{i}")
    a("s_branch yc_loop")
    a.label("yc_done")
    a("s_mov_b64 exec, -1")

def p2_rest(a, stflag):
    for b in range(2):
        for e in range(9):
            a(f"ds_read_b64 {pr(YW + 2*(9*b+e))}, v{vYR} offset:{YBR*b + YR*e}")
    a(f"s_and_b32 s90, s{sW}, 1")
    a("s_mul_i32 s90, s90, 0x04040000")
    a("s_add_u32 s91, s90, 0x03020c0c")
    a("s_add_u32 s90, s90, 0x01000c0c")
    def unp(b, e):
        r = YW + 2 * (9 * b + e); y = (YA if b == 0 else YB) + 2 * e
        return [f"v_perm_b32 v{y}, v{r+1}, v{r}, s90", f"v_perm_b32 v{y+1}, v{r+1}, v{r}, s91"]
    for e in range(9):
        a(f"s_waitcnt lgkmcnt({min(15, 17 - e)})")
        for s_ in unp(0, e): a(s_)
        a(f"v_pk_mul_f32 {pr(G+2*e)}, {pr(Z+2*e)}, {pr(YA+2*e)}")
    def post(Y):
        for e in range(9):
            a(f"v_pk_fma_f32 {pr(Z+2*e)}, {pr(G+2*e)}, {pr(RS)}, {pr(Z+2*e)}")
        for e in range(9):
            a(f"v_pk_fma_f32 {pr(Z+2*e)}, {pr(Y+2*e)}, {pr(ND)}, {pr(Z+2*e)} neg_lo:[0,1,0] neg_hi:[0,1,0]")
    post(YA)
    a("s_waitcnt lgkmcnt(0)")
    for layer, Y in ((2, YB), (3, YA), (4, YB)):
        p2_sums(a)
        fill = []
        for e in range(9):
            if layer == 2: fill += unp(1, e)
            fill.append(f"v_pk_mul_f32 {pr(G+2*e)}, {pr(Z+2*e)}, {pr(Y+2*e)}")
        if layer == 4:
            fill += [f"v_pk_add_f32 {pr(Z+2*e)}, {pr(Z+2*e)}, {pr(C0)}" for e in range(9)]
        p2_chain(a, fill)
        a("s_nop 0")
        post(Y)
    for row in range(2):
        for q in range(4):
            a(f"v_cvt_pk_bf16_f32 v{XR+4*row+q}, v{Z+4*q+row}, v{Z+4*q+2+row}")
    a(f"v_cvt_pk_bf16_f32 v{XR+8}, v{Z+16}, v{Z+17}")
    a(f"buffer_store_dwordx4 {vr(XR)}, v{vL16}, {sq(SO)}, s{sXO} offen {stflag}")
    a(f"buffer_store_dwordx4 {vr(XR+4)}, v{vL16}, {sq(SO)}, s{sXO} offen offset:{ROWB} {stflag}")
    a(f"buffer_store_short v{XR+8}, v{vL2}, {sq(SO)}, s{sXO} offen offset:1024 {stflag}")
    a(f"buffer_store_short_d16_hi v{XR+8}, v{vL2}, {sq(SO)}, s{sXO} offen offset:{1024+ROWB} {stflag}")

def signal(a, off_s):
    a(f"v_mov_b32 v238, s{off_s}")
    a(f"v_mov_b32 v239, s{sTAG}")
    a("s_mov_b64 exec, 1")
    a(f"buffer_store_dword v239, v238, {sq(SF)}, 0 offen sc1")
    a("s_mov_b64 exec, -1")

def poll(a, tag, vaddr, all64):
    a("s_mov_b32 s92, 0x20000")
    if not all64: a("s_mov_b32 exec_hi, 0")
    a.label(f"{tag}_poll")
    a(f"buffer_load_dword v238, v{vaddr}, {sq(SF)}, 0 offen sc1")
    a("s_waitcnt vmcnt(0)")
    a(f"v_cmp_ne_u32 vcc, s{sTAG}, v238")
    a("s_and_b64 exec, exec, vcc")
    a(f"s_cbranch_execz {tag}_ok")
    if int(opt("sleep", "2")): a(f"s_sleep {opt('sleep', '2')}")
    a("s_sub_u32 s92, s92, 1")
    a("s_cmp_lg_u32 s92, 0")
    a(f"s_cbranch_scc1 {tag}_poll")
    a.label(f"{tag}_ok")
    a("s_mov_b64 exec, -1")

def epoch_issue(a):
    a(f"v_mov_b32 v253, {EP}")
    a.vm(f"buffer_load_dword v254, v253, {sq(SF)}, 0 offen sc1", "EP")
def epoch_use(a):
    a.needv("EP")
    a(f"v_readfirstlane_b32 s{sTAG}, v254")
    a(f"s_mul_i32 s{sTAG}, s{sTAG}, 0x9E3779B1")
    a(f"s_add_u32 s{sTAG}, s{sTAG}, 0x7F4A7C15")

def elect_and_signal(a, n, skip):
    a(f"v_mov_b32 v238, {LDS_CTR}")
    a("v_mov_b32 v239, 1")
    a(f"s_lshl_b32 s90, s{sFI}, 6")
    a("s_waitcnt vmcnt(0)")
    a("s_mov_b64 exec, 1")
    a("ds_add_rtn_u32 v253, v238, v239")
    a("s_waitcnt lgkmcnt(0)")
    a("v_readfirstlane_b32 s3, v253")
    a("s_mov_b64 exec, -1")
    a(f"s_cmp_eq_u32 s3, {n-1}")
    a(f"s_cbranch_scc0 {skip}")
    signal(a, 90)
    stamp(a, 4)
    a.label(skip)

def kernel(name, body, vgpr, accum):
    return f""".text
.globl {name}
.p2align 8
.type {name},@function
{name}:
{body}{name}_end:
    s_endpgm
.section .rodata,"a"
.p2align 6
.amdhsa_kernel {name}
  .amdhsa_next_free_vgpr {vgpr}
  .amdhsa_next_free_sgpr 102
  .amdhsa_accum_offset {accum}
  .amdhsa_group_segment_fixed_size 0
  .amdhsa_kernarg_size 120
  .amdhsa_user_sgpr_count 2
  .amdhsa_user_sgpr_kernarg_segment_ptr 1
  .amdhsa_system_sgpr_workgroup_id_x 1
.end_amdhsa_kernel
"""
def header(launches):
    hdr = [l for l in open(REF).read().split("\n") if l.startswith(";") and "@launch" not in l]
    return "\n".join(hdr) + "\n" + "\n".join(launches) + '\n.amdgcn_target "amdgcn-amd-amdhsa--gfx950"\n'

def flow_split(a, hdma5, srds0, common_srds, caddr, elect, hsec, hl):
    p0_addr(a)
    a(f"s_cmp_eq_u32 s{sT2}, 0")
    a("s_cbranch_scc0 t2_path")
    a("s_waitcnt lgkmcnt(0)")
    stamp(a, 1)
    srds0(a)
    p0_issue(a, opt("p0ld", "nt"))
    a("s_barrier")
    srd(a, SH, 10, 11, TENS)
    hdma5(a)
    common_srds(a)
    epoch_issue(a)
    stamp(a, 2)
    p1_prep_a(a)
    p0_compute(a, opt("ust", "sc1"))
    stamp(a, 3)
    caddr(a)
    epoch_use(a)
    stamp(a, 18)
    a("s_waitcnt lgkmcnt(0)")
    a.reset()
    h_copies(a, vC1, [0, 1], vC2)
    p1_aload(a, range(4))
    elect(a, 0, "t1_nosig", 1)
    a.label("t1_nosig")
    a.reset()
    h_copies(a, vC1, [2, 3])
    p1_aload(a, range(4, 8))
    p1_prep_b(a)
    stamp(a, 5)
    poll(a, "e1", vP1, True)
    stamp(a, 6)
    a(f"s_mov_b32 m0, s{sUB}")
    a(f"s_add_u32 s3, s90, {2*4096}")
    for q in (3, 2):
        a(f"buffer_load_dwordx4 v{vL16}, {sq(SU)}, s90 offen offset:{1024*q} sc1 lds")
    a(f"s_add_u32 s92, s{sUB}, {2*US}")
    a("s_mov_b32 m0, s92")
    a("s_nop 0")
    for q in (3, 2):
        a(f"buffer_load_dwordx4 v{vL16}, {sq(SU)}, s3 offen offset:{1024*q} sc1 lds")
    a("s_waitcnt vmcnt(0)")
    a("s_branch join")
    a.label("t2_path")
    a.reset()
    caddr(a)
    a(f"v_mov_b32 v56, {LDS_CTR}")
    a(f"ds_write_b32 v56, v{ZR}")
    p1_prep_a(a)
    a("s_waitcnt lgkmcnt(0)")
    srds0(a)
    srd(a, SH, 10, 11, TENS)
    common_srds(a)
    a("s_barrier")
    hdma5(a)
    p0_issue(a, opt("p0ld", "nt"))
    epoch_issue(a)
    stamp(a, 2)
    a.needv("h")
    a("s_waitcnt lgkmcnt(0)")
    stamp(a, 18)
    sv = (a.vn, a.vd, a.vt)
    hsec(a)
    a.vn, a.vd, a.vt = sv
    p0_compute(a, opt("ust", "sc1"))
    stamp(a, 3)
    caddr(a)
    epoch_use(a)
    p1_prep_b(a)
    a.label("join")
    a("s_waitcnt lgkmcnt(0)")
    a("s_barrier")
    a.reset()

def flow_unsplit(a, hdma5, srds0, common_srds, caddr, elect, hl):
    a(f"s_cmp_eq_u32 s{sW}, 3")
    a("s_cbranch_scc1 w3_path")
    p0_addr(a)
    a("s_waitcnt lgkmcnt(0)")
    stamp(a, 1)
    srds0(a)
    p0_issue(a, opt("p0ld", "nt"))
    srd(a, SH, 10, 11, TENS)
    common_srds(a)
    epoch_issue(a)
    hpos = opt("hpos", "late")
    if hpos == "early":
        a("s_barrier")
        hdma5(a)
    stamp(a, 2)
    p1_prep_a(a)
    p0_compute(a, opt("ust", "sc1"))
    if hpos == "late":
        hdma5(a)
        a("s_barrier")
    stamp(a, 3)
    caddr(a)
    epoch_use(a)
    a("s_waitcnt lgkmcnt(0)")
    p1_prep_b(a)
    if hpos == "late":
        elect(a, 5, "nosig", 2)
        a("s_waitcnt vmcnt(1)")
        a("s_branch have_h")
        a.label("nosig")
        a("s_waitcnt vmcnt(0)")
        a("s_branch have_h")
    else:
        a.reset()
        h_copies(a, vC1, [0, 1], vC2)
        p1_aload(a, range(4))
        elect(a, 0, "part2", 2)
        a("s_branch part2")
    a.reset()
    a.label("w3_path")
    caddr(a)
    a(f"v_mov_b32 v56, {LDS_CTR}")
    a(f"ds_write_b32 v56, v{ZR}")
    p1_prep_a(a)
    a("s_waitcnt lgkmcnt(0)")
    srd(a, SH, 10, 11, TENS)
    common_srds(a)
    epoch_issue(a)
    a("s_waitcnt lgkmcnt(0)")
    p1_prep_b(a)
    epoch_use(a)
    a("s_waitcnt lgkmcnt(0)")
    a("s_barrier")
    hdma5(a)
    a("s_waitcnt vmcnt(0)")
    a.label("have_h")
    a.reset()
    stamp(a, 18)
    h_copies(a, vC1, [0, 1], vC2)
    p1_aload(a, range(4))
    a.label("part2")
    a.reset()
    pre = opt("pre", "0") == "1"
    if pre:
        h_copies(a, vC1, [2, 3])
        p1_aload(a, range(4, 8))
    stamp(a, 5)
    poll(a, "e1", vP1, True)
    a("s_barrier")
    a.reset()
    stamp(a, 6)
    a(f"s_mov_b32 m0, s{sUB}")
    a("s_nop 0")
    for q in (3, 2, 1, 0):
        a.vm(f"buffer_load_dwordx4 v{vL16}, {sq(SU)}, s90 offen offset:{1024*q} sc1 lds", f"U{q}")
    a("s_mov_b32 m0, s85")
    a("s_nop 0")
    a.vm(f"buffer_load_dwordx4 v{vL16}, {sq(SU)}, s91 offen sc1 lds", "UE")
    if not pre:
        h_copies(a, vC1, [2, 3])
        p1_aload(a, range(4, 8))

def gen_fused():
    K = NAME + "_kernel"
    sent = opt("x2", "flag") == "sent"
    NEL = 4 if sent else 3
    out = header([f"; @launch grid=(256,1,1) block=(256,1,1) lds={LDS_TOT}"])
    a = A()
    hl = opt("hld", "nt")
    stamp(a, 0)
    if int(opt("pad", "0")): a("s_memrealtime s[100:101]")
    prologue(a, K + "_end")
    def common_srds(a):
        srd(a, SF, 20, 21, F_BYTES, F_OFF)
        srd(a, SU, 20, 21, U_BYTES, U_OFF)
        srd(a, SY, 20, 21, Y_BYTES, YM_OFF)
        srd(a, SO, 16, 17, TENS)
        a(f"s_lshr_b32 s90, s{sCH}, 1")
        a("s_lshl_b32 s90, s90, 2")
        a(f"s_lshr_b32 s91, s{sCE}, 1")
        a("s_lshl_b32 s91, s91, 2")
        a(f"s_load_dword s{sDM}, s[12:13], s90")
        a(f"s_load_dword s{sDE}, s[12:13], s91")
    tail = []
    def caddr(a):
        for r in range(ZR, ZR + 4): a(f"v_mov_b32 v{r}, 0")
        a(f"v_add_u32 v{vC1}, s{sHB}, v{vL16}")
        a(f"v_mov_b32 v{vC2}, s{sHB}")
        a(f"v_mov_b32 v{vC4}, {4*HB}")
    def hsec(a):
        a.reset()
        h_copies(a, vC1, [0, 1], vC2)
        p1_aload(a, range(4))
        h_copies(a, vC1, [2, 3])
        p1_aload(a, range(4, 8))
    def elect(a, wait, nxt, last):
        a(f"v_mov_b32 v238, {LDS_CTR}")
        a("v_mov_b32 v239, 1")
        a(f"s_lshl_b32 s92, s{sFI}, 6")
        a(f"s_waitcnt vmcnt({wait})")
        a("s_mov_b64 exec, 1")
        a("ds_add_rtn_u32 v253, v238, v239")
        a("s_waitcnt lgkmcnt(0)")
        a("v_readfirstlane_b32 s3, v253")
        a("s_mov_b64 exec, -1")
        a(f"s_cmp_eq_u32 s3, {last}")
        a(f"s_cbranch_scc0 {nxt}")
        signal(a, 92)
        stamp(a, 4)
    def hdma5(a):
        h_dma(a, sCH, sHB, 0, hl, None)
        a(f"s_lshl_b32 s3, s{sCE}, 12")
        a(f"s_lshl_b32 s92, s{sW}, 10")
        a("s_add_u32 s3, s3, s92")
        a(f"s_add_u32 s92, s92, {4*HB + 3*CS + 32}")
        a("s_mov_b32 m0, s92")
        a("s_nop 0")
        a.vm(f"buffer_load_dwordx4 v{vL16}, {sq(SH)}, s3 offen {hl} lds", "h")
    def srds0(a):
        srd(a, SK, 4, 5, TENS); srd(a, SV, 6, 7, TENS); srd(a, SSH, 8, 9, D * 8)
    if not SPLIT():
        flow_unsplit(a, hdma5, srds0, common_srds, caddr, elect, hl)
    else:
        flow_split(a, hdma5, srds0, common_srds, caddr, elect, hsec, hl)
    p1_mfma(a, opt("yst", "sc1"), tail)
    a("s_lshl_b32 s90, s2, 6")
    a(f"s_add_u32 s90, s90, {F2}")
    p2_first(a)
    a("s_waitcnt vmcnt(0)")
    a("s_barrier")
    a(f"s_cmp_eq_u32 s{sW}, 0")
    a("s_cbranch_scc0 no_sig2")
    signal(a, 90)
    a.label("no_sig2")
    stamp(a, 10)
    poll(a, "e2", vP2, True)
    a("s_barrier")
    stamp(a, 11)
    for op in y_issue_ops(a): op()
    a("s_waitcnt vmcnt(0)")
    y_write(a)
    a("s_barrier")
    stamp(a, 12)
    a(f"s_or_b32 s3, s2, s{sW}")
    a("s_cmp_eq_u32 s3, 0")
    a("s_cbranch_scc0 no_epoch")
    a(f"s_mov_b32 s3, {EP}")
    signal(a, 3)
    a.label("no_epoch")
    if opt("q2", "0") == "1": stamp(a, 24, True)
    p2_rest(a, opt("ost", "sc1"))
    if opt("q2", "0") == "1": stamp(a, 27, True)
    stamp(a, 13)
    if int(opt("pad", "0")):
        if opt("gpad", "0") == "1":
            srd(a, 96, 18, 19, 256)
            a("v_mov_b32 v13, 0")
            a("buffer_load_dword v12, v13, s[96:99], 0 offen sc1")
            a("s_waitcnt vmcnt(0)")
            a("v_readfirstlane_b32 s100, v12")
            a("s_not_b32 s100, s100")
        a.label("padl")
        a("s_memrealtime s[98:99]")
        a("s_waitcnt lgkmcnt(0)")
        a("s_sub_u32 s98, s98, s100")
        a(f"s_cmp_lt_u32 s98, {opt('pad', '0')}")
        a("s_cbranch_scc1 padl")
    stamp_flush(a)
    a("s_endpgm")
    for f in tail: f(a)
    out += kernel(K, a.text(), 512, 256)
    return out

if __name__ == "__main__":
    path = sys.argv[1]
    STAMPS = "--stamps" in sys.argv
    for x in sys.argv[2:]:
        if "=" in x:
            k_, v_ = x.split("=", 1); OPT[k_] = v_
    open(path, "w").write(gen_fused())
```

```python
import sys
NAME = "interleave_layers__ssm_conv_h3__ssm_conv_h3__prompt"
REF = f"cdna_kernels/{NAME}.s.ref"
OPT = {}
STAMPS = False
def opt(k, d): return OPT.get(k, d)
def SPLIT(): return opt("split", "0") == "1"

S, D = 2048, 576
ROWB = D * 2
TENS = S * ROWB
U_OFF = 0;            U_BYTES = 2 * D * 4096
YM_OFF = U_BYTES;     YM_BYTES = 256 * 16384
YE_OFF = YM_BYTES;    YE_BYTES = 64 * 8192
Y_BYTES = YM_BYTES + YE_BYTES
F_OFF = YM_OFF + Y_BYTES
F2 = 16384; F2A = 32768; EP = 49152; FD = 65536; F1B = 131072; F_BYTES = F1B + 16384
ST_OFF = 0xA00000
CS = 4160; HB = 4 * CS
US = 4608; U_BASE = 5 * HB; UE = U_BASE + 4 * US
LDS_CTR = U_BASE + 5 * US
Y_LDS = 0; YR = 1040; YBR = 9 * YR
T_LDS = LDS_CTR + 64; TR = 144
E_LDS = T_LDS + 128 * TR
R_LDS = E_LDS + 2560
LDS_TOT = R_LDS + 16384

class A:
    def __init__(self):
        self.l = []; self.reset()
    def reset(self):
        self.ln = 0; self.ld = 0; self.lt = {}
        self.vn = 0; self.vd = 0; self.vt = {}
    def __call__(self, s): self.l.append("    " + s)
    def label(self, s): self.l.append(s + ":")
    def text(self): return "\n".join(self.l) + "\n"
    def lds(self, s, tag=None):
        self(s); self.ln += 1
        if tag is not None: self.lt[tag] = self.ln
    def vm(self, s, tag=None):
        self(s); self.vn += 1
        if tag is not None: self.vt[tag] = self.vn
    def need(self, *tags):
        k = max([self.lt[t] for t in tags if t in self.lt] + [0])
        if k > self.ld:
            n = min(15, self.ln - k); self(f"s_waitcnt lgkmcnt({n})"); self.ld = self.ln - n
    def needv(self, *tags):
        k = max([self.vt[t] for t in tags] + [0])
        if k > self.vd:
            n = min(63, self.vn - k); self(f"s_waitcnt vmcnt({n})"); self.vd = self.vn - n

def srd(a, d, lo, hi, size, add=None):
    if add:
        a(f"s_add_u32 s{d}, s{lo}, {add}")
        a(f"s_addc_u32 s{d+1}, s{hi}, 0")
    else:
        a(f"s_mov_b32 s{d}, s{lo}")
        a(f"s_mov_b32 s{d+1}, s{hi}")
    a(f"s_mov_b32 s{d+2}, {size}")
    a(f"s_mov_b32 s{d+3}, 0x00020000")

SK, SV, SSH, SH, SU, SY, SX, SO, SF = 24, 28, 32, 36, 40, 44, 48, 52, 56
sX, sQ, sB, sP, sW = 60, 61, 62, 63, 64
sB0, sCF, sRB = 69, 70, 71
sCH, sCE, sJE, sHB, sUB, sDM, sDE, sFI, sHF, sTAG = 72, 73, 74, 75, 76, 77, 78, 79, 82, 83
sYM, sYE, sXO, sT2 = 80, 81, 84, 100
vLANE, vL16, vL2 = 250, 251, 252

def stamp(a, idx, cyc=False):
    if opt("padat", "x") == str(idx) and not cyc:
        a("s_memrealtime s[94:95]"); a("s_waitcnt lgkmcnt(0)"); a("v_mov_b32 v255, s94")
    if not STAMPS: return
    a(("s_memtime" if cyc else "s_memrealtime") + " s[94:95]")
    a("s_waitcnt lgkmcnt(0)")
    a(f"v_writelane_b32 v255, s94, {idx}")
def qstamp(a, i):
    if STAMPS and opt("q", "0") == "1": a(f"s_memtime s[{4+2*i}:{5+2*i}]")
def qflush(a):
    if STAMPS and opt("q", "0") == "1":
        a("s_waitcnt lgkmcnt(0)")
        for i in range(8): a(f"v_writelane_b32 v255, s{4+2*i}, {20+i if i < 4 else 24+i}")
def stamp_flush(a):
    if not STAMPS: return
    srd(a, 96, 20, 21, 0x100000, ST_OFF)
    a("s_lshl_b32 s94, s2, 2")
    a(f"s_add_u32 s94, s94, s{sW}")
    a("s_lshl_b32 s94, s94, 7")
    a(f"v_lshlrev_b32 v254, 2, v{vLANE}")
    a("s_mov_b32 exec_hi, 0")
    a("buffer_store_dword v255, v254, s[96:99], s94 offen sc1")

def vr(r, n=4): return f"v[{r}:{r+n-1}]"
def ar(r, n=4): return f"a[{r}:{r+n-1}]"
def pr(r): return f"v[{r}:{r+1}]"
def sq(r): return f"s[{r}:{r+3}]"
DPP = "row_mask:0xf bank_mask:0xf"

def prologue(a, end):
    a("s_cmp_ge_u32 s2, 256")
    a(f"s_cbranch_scc1 {end}")
    npf = int(opt("cpf", "32"))
    if npf:
        K = NAME + "_kernel"
        a(f"s_cmp_ge_u32 s2, {npf}")
        a("s_cbranch_scc1 no_cpf")
        a("s_getpc_b64 s[96:97]")
        a.label("cpf_base")
        a("v_lshlrev_b32 v12, 7, v0")
        a(f"v_min_u32 v12, {K}_end - cpf_base, v12")
        a("v_mov_b32 v13, s97")
        a("v_add_co_u32 v12, vcc, s96, v12")
        a("s_nop 1")
        a("v_addc_co_u32 v13, vcc, 0, v13, vcc")
        a("global_load_dword v254, v[12:13], off")
        a.label("no_cpf")
    a(f"s_lshr_b32 s{sB0}, s2, 7")
    a(f"s_mul_i32 s3, s{sB0}, 48")
    a("s_add_u32 s22, s0, s3")
    a("s_addc_u32 s23, s1, 0")
    a("s_load_dwordx4 s[4:7], s[22:23], 8")
    a("s_load_dwordx2 s[8:9], s[22:23], 24")
    a(f"s_and_b32 s{sX}, s2, 7")
    a(f"s_lshr_b32 s{sQ}, s2, 3")
    a(f"s_lshr_b32 s{sB}, s{sX}, 2")
    a(f"s_mul_i32 s3, s{sB}, 48")
    a("s_add_u32 s22, s0, s3")
    a("s_addc_u32 s23, s1, 0")
    a("s_load_dwordx2 s[10:11], s[22:23], 32")
    a("s_load_dwordx2 s[12:13], s[22:23], 40")
    a("s_load_dwordx2 s[14:15], s[0:1], 0")
    a("s_load_dwordx4 s[16:19], s[0:1], 96")
    a("s_load_dwordx2 s[20:21], s[0:1], 112")
    a("v_lshrrev_b32 v1, 6, v0")
    a(f"v_and_b32 v{vLANE}, 63, v0")
    a(f"v_readfirstlane_b32 s{sW}, v1")
    a(f"v_lshlrev_b32 v{vL16}, 4, v{vLANE}")
    a(f"v_lshlrev_b32 v{vL2}, 1, v{vLANE}")
    if SPLIT():
        a(f"s_and_b32 s{sCF}, s{sQ}, 3")
        a(f"s_bfe_u32 s{sRB}, s{sQ}, 0x20002")
        a(f"s_lshl_b32 s3, s{sX}, 2")
        a(f"s_add_u32 s{sRB}, s{sRB}, s3")
        a(f"s_lshl_b32 s{sFI}, s{sB0}, 7")
        a(f"s_lshl_b32 s3, s{sCF}, 5")
        a(f"s_add_u32 s{sFI}, s{sFI}, s3")
        a(f"s_add_u32 s{sFI}, s{sFI}, s{sRB}")
        a(f"s_lshr_b32 s{sT2}, s{sW}, 1")
    else:
        a(f"s_and_b32 s{sCF}, s{sQ}, 1")
        a(f"s_bfe_u32 s{sRB}, s{sQ}, 0x30001")
        a(f"s_lshl_b32 s3, s{sX}, 3")
        a(f"s_add_u32 s{sRB}, s{sRB}, s3")
        a(f"s_lshl_b32 s{sFI}, s{sB0}, 7")
        a(f"s_lshl_b32 s3, s{sCF}, 6")
        a(f"s_add_u32 s{sFI}, s{sFI}, s3")
        a(f"s_add_u32 s{sFI}, s{sFI}, s{sRB}")
    a(f"s_and_b32 s{sP}, s{sX}, 3")
    a(f"s_lshl_b32 s{sP}, s{sP}, 4")
    a(f"s_lshr_b32 s3, s{sQ}, 1")
    a(f"s_add_u32 s{sP}, s{sP}, s3")
    a(f"s_and_b32 s{sHF}, s{sQ}, 1")
    a(f"s_lshl_b32 s{sCH}, s{sP}, 3")
    a(f"s_lshl_b32 s3, s{sHF}, 2")
    a(f"s_add_u32 s{sCH}, s{sCH}, s3")
    a(f"s_add_u32 s{sCH}, s{sCH}, s{sW}")
    a(f"s_add_u32 s{sCE}, s{sP}, 512")
    a(f"s_cmp_eq_u32 s{sHF}, 0")
    a(f"s_cselect_b32 s{sJE}, 0x7520, 0x6431") if False else None
    a("s_mov_b32 s3, 0x6431")
    a(f"s_cselect_b32 s{sJE}, 0x7520, s3")
    a(f"s_lshl_b32 s3, s{sW}, 2")
    a(f"s_lshr_b32 s{sJE}, s{sJE}, s3")
    a(f"s_and_b32 s{sJE}, s{sJE}, 7")
    a(f"s_mul_i32 s{sHB}, s{sW}, {HB}")
    a(f"s_mul_i32 s{sUB}, s{sW}, {US}")
    a(f"s_add_u32 s{sUB}, s{sUB}, {U_BASE}")

def kraw(t): return 8 + 4 * t
def hraw(j): return 40 + 4 * j
def vraw(t): return 52 + 4 * t
vA1, vA2, vA3, vA4, vA7 = 242, 243, 244, 245, 246
def EXH(): return 0xf if SPLIT() else 0xffff
def p0_addr(a):
    cw = 72 if SPLIT() else 96
    a(f"v_lshrrev_b32 v247, 2, v{vLANE}")
    a(f"v_and_b32 v248, 3, v{vLANE}")
    if SPLIT():
        a(f"s_lshl_b32 s67, s{sT2}, 5")
        a(f"s_add_u32 s67, s67, s{sRB}")
        a(f"s_and_b32 s68, s{sW}, 1")
        a(f"s_lshl_b32 s66, s{sCF}, 1")
        a("s_add_u32 s68, s68, s66")
    else:
        a(f"s_mov_b32 s67, s{sRB}")
        a(f"s_mul_i32 s68, s{sCF}, 3")
        a(f"s_add_u32 s68, s68, s{sW}")
    a(f"s_mul_i32 s65, s67, {32*ROWB}")
    a(f"s_mul_i32 s66, s68, {2*cw}")
    a("s_add_u32 s65, s65, s66")
    a(f"v_mul_u32_u24 v{vA1}, {8*ROWB}, v248")
    a(f"v_lshlrev_b32 v{vA7}, 4, v247")
    a(f"v_add3_u32 v{vA1}, v{vA1}, v{vA7}, s65")
    a(f"v_add_u32 v{vA2}, {4*ROWB}, v{vA1}")
    a(f"v_subrev_u32 v{vA3}, {3*ROWB}, v{vA1}")
    a(f"s_mul_i32 s66, s68, {cw*8}")
    a(f"v_add_u32 v{vA7}, s66, v{vL16}")
    a(f"s_mul_i32 s65, s{sB0}, 576")
    a(f"s_mul_i32 s66, s68, {cw}")
    a("s_add_u32 s65, s65, s66")
    a("s_lshl_b32 s65, s65, 12")
    a("s_add_u32 s65, s65, 4080")
    a("s_lshl_b32 s66, s67, 6")
    a("s_sub_u32 s65, s65, s66")
    a(f"v_lshlrev_b32 v{vA4}, 15, v247")
    a("v_lshlrev_b32 v248, 4, v248")
    a(f"v_sub_u32 v{vA4}, v{vA4}, v248")
    a(f"v_add_u32 v{vA4}, s65, v{vA4}")

def p0_issue(a, fl):
    def row(t): return (f"v{vA1}", t * ROWB) if t < 4 else (f"v{vA2}", (t - 4) * ROWB)
    def ldk(t):
        b, o = row(t); a.vm(f"buffer_load_dwordx4 {vr(kraw(t))}, {b}, {sq(SK)}, 0 offen offset:{o} {fl}", f"K{t}")
    def ldv(t):
        b, o = row(t); a.vm(f"buffer_load_dwordx4 {vr(vraw(t))}, {b}, {sq(SV)}, 0 offen offset:{o} {fl}", f"V{t}")
    a(f"s_mov_b32 exec_hi, {EXH()}")
    a.vm(f"buffer_load_dwordx4 v[84:87], v{vA7}, {sq(SSH)}, 0 offen", "W")
    for t in (5, 6, 7): ldk(t)
    a("s_mov_b32 exec_lo, 0x11111111")
    a(f"s_mov_b32 exec_hi, {EXH() & 0x1111}")
    for j in range(3):
        a.vm(f"buffer_load_dwordx4 {vr(hraw(j))}, v{vA3}, {sq(SK)}, 0 offen offset:{j*ROWB} {fl}", f"H{j}")
    a("s_mov_b32 exec_lo, -1")
    a(f"s_mov_b32 exec_hi, {EXH()}")
    for t in range(5): ldk(t); ldv(t)
    for t in (5, 6, 7): ldv(t)
    a("s_mov_b64 exec, -1")

def unpack(a, dlo, dhi, src):
    a(f"v_lshlrev_b32 v{dlo}, 16, v{src}")
    a(f"v_and_b32 v{dhi}, 0xffff0000, v{src}")

def p0_compute(a, stflag):
    def W(p, j): return 88 + 8 * p + 2 * j
    def Kf(j, c): return 120 + 8 * (j & 7) + c
    def U(t, c): return 184 + 8 * (t & 3) + c
    OUTS = [hraw(0), hraw(1), hraw(2), kraw(0), kraw(1), vraw(0), vraw(1), 84]
    VT = 216
    a("s_mov_b32 vcc_lo, 0x11111111")
    a("s_mov_b32 vcc_hi, 0x11111111")
    a("v_mov_b32 v224, 0xffff0000")
    for c in range(1, 8):
        a(f"s_mov_b32 s{3+c}, {4096*c}")
    a.needv("W")
    stamp(a, 16)
    for c in range(8):
        p, h = c >> 1, c & 1
        for half in range(2):
            i = 2 * c + half; s_ = i >> 2; qp = f"quad_perm:[{s_},{s_},{s_},{s_}] {DPP}"
            a(f"v_cvt_f32_bf16_dpp v{W(p,2*half)+h}, v{84+(i&3)} {qp}")
            a(f"v_and_b32_dpp v{W(p,2*half+1)+h}, v{84+(i&3)}, v224 {qp}")
    for j in range(3):
        a.needv(f"H{j}")
        for p in range(4):
            a(f"v_cndmask_b32_dpp v{hraw(j)+p}, v{kraw(5+j)+p}, v{hraw(j)+p}, vcc quad_perm:[0,0,1,2] {DPP}")
        for p in range(4): unpack(a, Kf(j, 2*p), Kf(j, 2*p+1), hraw(j) + p)
    def kun(t):
        for p in range(4): unpack(a, Kf(t+3, 2*p), Kf(t+3, 2*p+1), kraw(t) + p)
    def ksum(t):
        for p in range(4):
            a(f"v_pk_mul_f32 {pr(U(t,2*p))}, {pr(Kf(t,2*p))}, {pr(W(p,3))}")
        for jj in (2, 1, 0):
            for p in range(4):
                a(f"v_pk_fma_f32 {pr(U(t,2*p))}, {pr(Kf(t+3-jj,2*p))}, {pr(W(p,jj))}, {pr(U(t,2*p))}")
    def vmul(t):
        a.needv(f"V{t}")
        if t == 7: stamp(a, 17)
        for p in range(4): unpack(a, VT + 2*p, VT + 2*p + 1, vraw(t) + p)
        for p in range(4):
            a(f"v_pk_mul_f32 {pr(U(t,2*p))}, {pr(U(t,2*p))}, {pr(VT+2*p)}")
    def cvt(t):
        q = (7 - t) // 2
        if t == 7: a(f"s_mov_b32 exec_hi, {EXH()}")
        for c in range(8):
            a(f"v_cvt_pk_bf16_f32 v{OUTS[c]+q}, v{U(t, c)}, v{U(t-1, c)}")
            if t == 7:
                so = "0" if c == 0 else f"s{3+c}"
                a.vm(f"buffer_store_dwordx4 {vr(OUTS[c])}, v{vA4}, {sq(SU)}, {so} offen {stflag}", "UST")
        if t == 7: a("s_mov_b64 exec, -1")
    for t in range(5):
        a.needv(f"K{t}")
        kun(t)
        ksum(t)
        if t <= 2: kun(5 + t)
        if t == 4:
            for tt in (5, 6, 7): ksum(tt)
        vmul(t)
        if t & 1: cvt(t)
    for t in (5, 6, 7):
        vmul(t)
        if t & 1: cvt(t)

ACC, ACCE, FB, AE, FE0, PD, EV = 8, 40, 56, 120, 184, 216, 220
vTW, vTR, vFE, vEW, vER, vRW, vRR, vUD, vP1, vP2, vYM, vYE, vYG, vYR = range(224, 238)
vPB = 254
RED, UD, STG, ES, TRD, YP, XR = 120, 136, 138, 140, 144, 152, 240
TJ = ((0, 2, 5, 7), (1, 3, 4, 6))

def h_dma(a, ch, ldsbase_s, ldsconst, flag, tag):
    a(f"s_lshl_b32 s3, s{ch}, 12")
    if ldsbase_s is not None:
        a(f"s_add_u32 s92, s{ldsbase_s}, {ldsconst + 3*CS + 32}")
        a("s_mov_b32 m0, s92")
    else:
        a(f"s_mov_b32 m0, {ldsconst + 3*CS + 32}")
    a("s_nop 0")
    for q in range(4):
        a.vm(f"buffer_load_dwordx4 v{vL16}, {sq(SH)}, s3 offen offset:{1024*q} {flag} lds", tag)

hc_n = [0]
vC1, vC2, vC3, vC4, ZR = 176, 177, 178, 179, 180
def h_copy_ops(a, vR, qs, head=None):
    hc_n[0] += 1; u = hc_n[0]
    Dq = lambda i: 120 + 8 * i
    ops = []
    def L(c, s_, tag=None): ops.append((c, lambda: a.lds(s_, tag)))
    def V(s_, need=None): ops.append((4, lambda: ((a.need(need) if need else None), a(s_))))
    for i, q in enumerate(qs):
        L(6, f"ds_read_b128 {vr(Dq(i))}, v{vR} offset:{3*CS + 32 + 1024*q}")
        L(4, f"ds_read_b64 {pr(Dq(i)+4)}, v{vR} offset:{3*CS + 48 + 1024*q}", ("HC", u, i))
    if head is not None:
        L(4, f"ds_read_b64 v[138:139], v{head} offset:{3*CS + 32}", ("HH", u))
    for i, q in enumerate(qs):
        d = Dq(i); o = 16 * (i & 1); T0, T1, T2, O4 = 144 + o, 148 + o, 152 + o, 156 + o
        for k in range(4):
            V(f"v_alignbit_b32 v{T0+k}, v{d+k+1}, v{d+k}, 16", ("HC", u, i) if k == 0 else None)
        V(f"v_alignbit_b32 v{O4}, v{d+5}, v{d+4}, 16")
        V(f"v_pk_mov_b32 {pr(T1)}, {pr(d)}, {pr(d+2)} op_sel:[1,0]")
        V(f"v_pk_mov_b32 {pr(T1+2)}, {pr(d+2)}, {pr(d+4)} op_sel:[1,0]")
        V(f"v_pk_mov_b32 {pr(T2)}, {pr(T0)}, {pr(T0+2)} op_sel:[1,0]")
        V(f"v_pk_mov_b32 {pr(T2+2)}, {pr(T0+2)}, {pr(O4)} op_sel:[1,0]")
        L(8, f"ds_write_b128 v{vR}, {vr(T0)} offset:{32 + 1024*q}")
        L(8, f"ds_write_b128 v{vR}, {vr(T1)} offset:{CS + 32 + 1024*q}")
        L(8, f"ds_write_b128 v{vR}, {vr(T2)} offset:{2*CS + 32 + 1024*q}", ("HW", u))
    if head is not None:
        V(f"v_sub_u32 v137, 3, v{vLANE}")
        V("v_lshlrev_b32 v137, 4, v137")
        V("v_lshlrev_b64 v[138:139], v137, v[138:139]", ("HH", u))
        V(f"v_cmp_eq_u32 vcc, 3, v{vLANE}")
        V(f"v_mul_u32_u24 v137, {CS}, v{vLANE}")
        V(f"v_add_u32 v140, v137, v{head}")
        V("v_cndmask_b32 v138, v138, 0, vcc")
        V("v_cndmask_b32 v139, v139, 0, vcc")
        V("v_mov_b32 v136, 0")
        V("v_mov_b32 v137, 0")
        def hw():
            a("s_mov_b64 exec, 15")
            a.lds(f"ds_write_b128 v140, {vr(ZR)}")
            a.lds("ds_write_b128 v140, v[136:139] offset:16", ("HW", u))
            a("s_mov_b64 exec, -1")
        ops.append((8, hw))
    return ops, ("HW", u)
def h_copies(a, vR, qs, head=None):
    ops, tag = h_copy_ops(a, vR, qs, head)
    for c, f in ops: f()
    return tag

def p1_prep_a(a):
    a(f"v_and_b32 v1, 15, v{vLANE}")
    a(f"v_lshrrev_b32 v2, 4, v{vLANE}")
    a("v_and_b32 v3, 3, v1")
    a("v_cmp_eq_u32 vcc, 3, v3")
    a(f"v_mul_u32_u24 v3, {CS}, v3")
    a("v_and_b32 v4, 12, v1")
    a("v_lshlrev_b32 v4, 1, v4")
    a("v_add_u32 v3, v3, v4")
    a("v_cndmask_b32 v4, 0, 8, vcc")
    a("v_add_u32 v3, v3, v4")
    a("v_lshl_add_u32 v3, v2, 4, v3")
    a(f"v_add_u32 v5, s{sHB}, v3")
    a(f"s_lshl_b32 s93, s{sW}, 7")
    a(f"s_add_u32 s3, s93, {4*HB}")
    a("v_add_u32 v6, s3, v3")

def p1_prep_b(a):
    a(f"v_add_u32 v8, s{sUB}, v{vL16}")
    a(f"s_add_u32 s3, s93, {UE - 512}")
    a(f"v_add_u32 v9, s3, v{vL16}")
    a(f"v_cmp_gt_u32 vcc, 32, v{vLANE}")
    a("s_mov_b32 exec_hi, 0xff")
    a("s_nop 0")
    a("v_cndmask_b32 v8, v9, v8, vcc")
    a("ds_write_b128 v8, v[180:183] offset:4096")
    a("s_mov_b64 exec, -1")
    for ch, sv in ((sCH, sDM), (sCE, sDE)):
        a(f"s_and_b32 s3, s{ch}, 1")
        a("s_lshl_b32 s3, s3, 4")
        a(f"s_lshr_b32 s{sv}, s{sv}, s3")
        a(f"s_and_b32 s{sv}, s{sv}, 0xffff")
    a(f"s_lshl_b32 s{sDE}, s{sDE}, 16")
    a("v_lshlrev_b32 v3, 3, v2")
    a("v_add_u32 v3, v3, v1")
    a("v_sub_u32 v3, 15, v3")
    a("v_and_b32 v4, 1, v3")
    a("v_lshlrev_b32 v4, 4, v4")
    a("v_ashrrev_i32 v3, 1, v3")
    a(f"v_lshlrev_b32 v8, v4, s{sDM}")
    for q in range(4):
        a(f"v_cmp_eq_u32 vcc, {q}, v3")
        a("s_nop 1")
        a(f"v_cndmask_b32 v{PD+q}, 0, v8, vcc")
    a("v_lshlrev_b32 v3, 4, v2")
    a("v_lshlrev_b32 v4, 5, v1")
    a("v_sub_u32 v3, v3, v4")
    a("v_add_u32 v3, 480, v3")
    a(f"v_add_u32 v7, s{sUB}, v3")
    a(f"s_add_u32 s3, s93, {UE}")
    a(f"v_add_u32 v{vFE}, s3, v3")
    a("v_lshlrev_b32 v3, 3, v2")
    a("v_add_u32 v3, v3, v4")
    a(f"s_lshl_b32 s3, s{sJE}, 9")
    a(f"s_sub_u32 s3, {UE + 4088}, s3")
    a(f"v_sub_u32 v{vUD}, s3, v3")
    a(f"s_lshl_b32 s3, s{sW}, 9")
    a(f"s_add_u32 s3, s3, {E_LDS}")
    a(f"v_add_u32 v{vEW}, s3, v3")
    a(f"v_add_u32 v{vER}, s3, v{vL16}")
    a(f"s_lshl_b32 s3, s{sW}, 10")
    a(f"s_add_u32 s3, s3, {R_LDS}")
    a(f"v_add_u32 v{vRW}, s3, v{vL16}")
    a(f"s_lshl_b32 s3, s{sW}, 12")
    a(f"s_add_u32 s3, s3, {R_LDS}")
    a(f"v_add_u32 v{vRR}, s3, v{vL16}")
    a(f"v_mul_u32_u24 v{vTW}, {TR}, v1")
    a("v_lshrrev_b32 v3, 1, v2")
    a(f"v_lshl_add_u32 v{vTW}, v3, 6, v{vTW}")
    a("v_and_b32 v3, 1, v2")
    a(f"v_lshl_add_u32 v{vTW}, v3, 3, v{vTW}")
    a(f"s_lshl_b32 s3, s{sW}, 4")
    a(f"s_add_u32 s3, s3, {T_LDS}")
    a(f"v_add_u32 v{vTW}, s3, v{vTW}")
    a(f"v_lshrrev_b32 v3, 3, v{vLANE}")
    a(f"v_mul_u32_u24 v{vTR}, {TR}, v3")
    a(f"v_and_b32 v4, 7, v{vLANE}")
    a(f"v_lshl_add_u32 v{vTR}, v4, 4, v{vTR}")
    a(f"s_mul_i32 s3, s{sW}, {8*TR}")
    a(f"s_add_u32 s3, s3, {T_LDS}")
    a(f"v_add_u32 v{vTR}, s3, v{vTR}")
    a(f"v_mul_u32_u24 v{vYM}, {YR}, v4")
    a(f"v_lshl_add_u32 v{vYM}, v3, 4, v{vYM}")
    a(f"s_lshr_b32 s88, s{sW}, 1")
    a(f"s_mul_i32 s89, s88, {YBR}")
    a(f"s_and_b32 s3, s{sW}, 1")
    a("s_lshl_b32 s3, s3, 9")
    a("s_add_u32 s89, s89, s3")
    a(f"s_add_u32 s89, s89, {Y_LDS}")
    a(f"v_add_u32 v{vYM}, s89, v{vYM}")
    a(f"s_add_u32 s89, s89, {8*YR}")
    a(f"v_add_u32 v{vYE}, s89, v{vL16}")
    a(f"v_lshlrev_b32 v{vYG}, 6, v{vLANE}")
    a("s_lshl_b32 s88, s88, 3")
    a(f"s_add_u32 s88, s88, {Y_LDS}")
    a(f"v_add_u32 v{vYR}, s88, v{vL16}")
    a("s_lshl_b32 s88, s2, 14")
    a(f"s_lshl_b32 s3, s{sW}, 12")
    a("s_add_u32 s88, s88, s3")
    a("s_lshr_b32 s89, s2, 2")
    a("s_lshl_b32 s89, s89, 13")
    a(f"s_lshl_b32 s3, s{sW}, 11")
    a("s_add_u32 s89, s89, s3")
    a("s_and_b32 s3, s2, 3")
    a("s_lshl_b32 s3, s3, 4")
    a("s_add_u32 s89, s89, s3")
    a(f"s_add_u32 s89, s89, {YE_OFF}")
    a(f"v_lshrrev_b32 v4, 2, v{vLANE}")
    a(f"v_and_b32 v8, 3, v{vLANE}")
    a("v_lshlrev_b32 v8, 4, v8")
    a("v_lshl_add_u32 v3, v4, 14, v8")
    a("v_lshl_add_u32 v4, v4, 13, v8")
    a(f"s_lshl_b32 s{sYM}, s{sW}, 18")
    a(f"s_lshl_b32 s3, s{sB}, 13")
    a(f"s_add_u32 s{sYM}, s{sYM}, s3")
    a(f"s_sub_u32 s3, s{sCH}, s{sW}")
    a("s_lshl_b32 s3, s3, 4")
    a(f"s_add_u32 s{sYM}, s{sYM}, s3")
    a(f"s_lshl_b32 s{sYE}, s{sJE}, 16")
    a(f"s_lshl_b32 s3, s{sB}, 12")
    a(f"s_add_u32 s{sYE}, s{sYE}, s3")
    a(f"s_lshl_b32 s3, s{sP}, 6")
    a(f"s_add_u32 s{sYE}, s{sYE}, s3")
    a(f"s_add_u32 s{sYE}, s{sYE}, {YE_OFF}")
    srd(a, SX, 14, 15, TENS)
    a(f"s_lshl_b32 s{sXO}, s2, 3")
    a(f"s_lshl_b32 s3, s{sW}, 1")
    a(f"s_add_u32 s{sXO}, s{sXO}, s3")
    a(f"s_mul_i32 s{sXO}, s{sXO}, {ROWB}")
    a(f"s_mul_i32 s3, s{sB}, 576")
    a(f"s_add_u32 s90, s3, s{sCH}")
    a("s_lshl_b32 s90, s90, 12")
    a(f"s_add_u32 s91, s3, s{sCE}")
    a("s_lshl_b32 s91, s91, 12")
    a(f"s_lshl_b32 s85, s{sW}, 10")
    a("s_add_u32 s91, s91, s85")
    a(f"s_add_u32 s85, s85, {UE}")
    if opt("clr", "fill") == "w23":
        a(f"s_lshl_b32 s92, s{sB}, 1")
        a(f"s_add_u32 s92, s92, s{sW}")
        a("s_lshl_b32 s92, s92, 12")
        a(f"v_add_u32 v{vP1}, s92, v{vYG}")
    else:
        a(f"s_lshl_b32 s92, s{sB}, 2")
        a(f"s_add_u32 s92, s92, s{sW}")
        a("s_lshl_b32 s92, s92, 11")
        a(f"v_and_b32 v8, 31, v{vLANE}")
        a("v_lshlrev_b32 v8, 6, v8")
        a(f"v_add_u32 v{vP1}, s92, v8")
    a(f"s_lshl_b32 s92, s{sW}, 12")
    a(f"s_add_u32 s92, s92, {F2A}")
    a(f"v_add_u32 v{vP2}, s92, v{vYG}")
    a(f"v_add_u32 v{vC1}, s{sHB}, v{vL16}")
    a(f"v_mov_b32 v{vC2}, s{sHB}")
    a(f"s_lshl_b32 s3, s{sW}, 10")
    a(f"s_add_u32 s3, s3, {4*HB}")
    a(f"v_add_u32 v{vC3}, s3, v{vL16}")
    a(f"v_mov_b32 v{vC4}, {4*HB}")
    a("s_lshl_b32 s101, s2, 6")
    a(f"s_add_u32 s101, s101, {F2A}")
    a("s_lshl_b32 s3, s2, 2")
    a(f"s_add_u32 s3, s3, s{sW}")
    a("s_lshl_b32 s3, s3, 6")
    a(f"s_add_u32 s3, s3, {FD}")
    a(f"s_cmp_eq_u32 s{sW}, 0")
    a("s_cselect_b32 s101, s101, s3")
    a("s_lshl_b32 s99, s2, 11")
    if opt("clr", "fill") == "w23":
        a(f"s_and_b32 s3, s{sW}, 1")
        a("s_lshl_b32 s3, s3, 10")
    else:
        a(f"s_lshl_b32 s3, s{sW}, 9")
    a("s_add_u32 s99, s99, s3")
    a(f"s_add_u32 s99, s99, {YE_OFF}")
    a("s_mov_b32 s97, 4096")
    a("s_mov_b32 s86, 0x3ae38e39")
    a("s_mov_b32 s87, 0x3727c5ac")

def p1_aload(a, aas):
    for r in range(8):
        for aa in aas:
            ks = 8 * aa + r
            a.lds(f"ds_read_b64 a[{4*ks}:{4*ks+1}], v5 offset:{64*ks}")
            a.lds(f"ds_read_b64 a[{4*ks+2}:{4*ks+3}], v5 offset:{64*ks+8}", ("A", ks))

def F(bank, c): return FB + 32 * bank + 4 * c
MF = "v_mfma_f32_16x16x32_bf16"

def p1_mfma(a, stflag, tail):
    inited = set()
    def mfma(acc, A_, B_, needs):
        a.need(*needs)
        c = vr(acc) if acc in inited else "0"
        inited.add(acc)
        a(f"{MF} {vr(acc)}, {A_}, {vr(B_)}, {c}")
    def L(c, s_, tag=None): return (c, lambda: a.lds(s_, tag))
    def I(s_): return (4, lambda: a(s_))
    def V(s_, tag=None): return (8, lambda: a.vm(s_, tag))
    def aeread(rp, aa, half): return L(4, f"ds_read_b64 {pr(AE+32*rp+4*aa+2*half)}, v6 offset:{512*aa + 64*rp + 8*half}", ("AE", rp, aa))
    evc = [0]
    def conv(j):
        e = EV + 2 * (evc[0] & 1); evc[0] += 1
        return [I(f"v_cvt_pk_bf16_f32 v{e}, v{ACC+4*j}, v{ACC+4*j+1}"), I(f"v_cvt_pk_bf16_f32 v{e+1}, v{ACC+4*j+2}, v{ACC+4*j+3}"),
                I(f"v_min_u32 v{e}, -2, v{e}"), I(f"v_min_u32 v{e+1}, -2, v{e+1}"),
                L(6, f"ds_write_b64 v{vTW}, {pr(e)} offset:{16*TR*j}", ("TW", j))]
    def barrier(*tags): return (8, lambda: (a.need(*tags), a("s_barrier")))
    def tread(k, reg): return L(6, f"ds_read_b128 {vr(reg)}, v{vTR} offset:{32*TR*k}", ("TRD", k))
    def tstore(k, reg):
        def f():
            a(f"s_add_u32 s3, s{sYM}, {k*64*16384}")
            a.need(("TRD", k))
            a.vm(f"buffer_store_dwordx4 {vr(reg)}, v3, {sq(SY)}, s3 offen {stflag}")
        return (8, f)
    EXP = int(opt("exp", "6"))
    blocks = []
    for r in range(8): blocks.append(("a", [(c, r) for c in range(4)], (0, 1, 2, 3)))
    for r in range(8): blocks.append(("b", [(c, r) for c in range(4)], (4, 5, 6, 7)))
    for r in range(0, 8, 2): blocks.append(("c", [(4, r), (5, r), (4, r + 1), (5, r + 1)], (4, 5)))
    for r in range(8): blocks.append(("d", [(c, r) for c in range(4, 8)], (6, 7)))
    def FG(k, i): return FB + 16 * (k & 3) + 4 * i
    def fread(k, i):
        c, r = blocks[k][1][i]
        return L(6, f"ds_read_b128 {vr(FG(k,i))}, v7 offset:{64*r + 512*(7-c)}", ("F", k, i))
    def items_of(k):
        name, fr, J = blocks[k]; it = []
        order = [(i, j) for i in range(4) for j in J if j >= fr[i][0]]
        if k == len(blocks) - 1: order = [(i, j) for j in J for i in range(4) if j >= fr[i][0]]
        for i, j in order:
            c, r = fr[i]; tg = [("F", k, i), ("A", 8 * (j - c) + r)]
            if r == 0 and j == c: it.append((ACC + 4*j, vr(PD), FG(k, i), tg))
            it.append((ACC + 4*j, ar(4 * (8 * (j - c) + r)), FG(k, i), tg))
        return it
    KE = 8 + EXP
    GE = (KE - 2) & 3
    def FEr(rp, c): return (FE0 + 4 * c) if rp == 0 else FB + 16 * GE + 4 * c
    def feread(rp, c): return L(6, f"ds_read_b128 {vr(FEr(rp,c))}, v{vFE} offset:{64*rp + 512*(7-c)}", ("FE", rp, c))
    start = []; n = 0
    for k in range(len(blocks)):
        if k == KE: E0 = n; n += 36
        start.append(n); n += len(items_of(k))
    NS = n; assert NS == 332
    plan = [[] for _ in range(NS)]; load = [0] * NS
    def pin(slot, ops):
        for i, (c, f) in enumerate(ops):
            plan[slot + i].append(f); load[slot + i] += c
    def spread(ops, lo_, hi_, cap=8):
        for cap_ in range(cap, 40, 2):
            sl = lo_; pos = []; ld = list(load)
            for c, f in ops:
                while sl <= hi_ and ld[sl] + c > cap_: sl += 1
                if sl > hi_: break
                pos.append(sl); ld[sl] += c
            if len(pos) == len(ops): break
        assert len(pos) == len(ops)
        for (c, f), p_ in zip(ops, pos): plan[p_].append(f); load[p_] += c
        return pos[-1]
    for k in range(len(blocks) - 2):
        pin(start[k], [fread(k + 2, i) for i in range(4)])
    pin(E0, [feread(1, c) for c in range(8)])
    xl = [V(f"buffer_load_dwordx4 {vr(XR)}, v{vL16}, {sq(SX)}, s{sXO} offen nt"),
          V(f"buffer_load_dwordx4 {vr(XR+4)}, v{vL16}, {sq(SX)}, s{sXO} offen offset:{ROWB} nt"),
          V(f"buffer_load_ushort v{XR+8}, v{vL2}, {sq(SX)}, s{sXO} offen offset:1024 nt"),
          V(f"buffer_load_ushort v{XR+9}, v{vL2}, {sq(SX)}, s{sXO} offen offset:{1024+ROWB} nt", "X")]
    if opt("clr", "fill") == "fill":
        clr = [V(f"buffer_store_dwordx4 {vr(FE0)}, v{vL16}, {sq(SY)}, s88 offen offset:{1024*q} sc1") for q in range(4)]
        def clre():
            a("s_mov_b32 exec_hi, 0")
            a.vm(f"buffer_store_dwordx4 {vr(FE0)}, v{vL16}, {sq(SY)}, s99 offen sc1")
            a("s_mov_b64 exec, -1")
        cs = int(opt("cs", "6")); cd = int(opt("cd", "2"))
        for i, op in enumerate(clr + [(8, clre)]): spread([op], cs + cd * i, cs + cd * i + 10)
    if opt("ein", "0") == "1":
        ops_e, hwe = h_copy_ops(a, vC3, [0], vC4)
        spread(ops_e[:3], 4, 8)
        spread(ops_e[3:], 18, 70, 6)
    else:
        hwe = ("none",)
        ao = []
        for r in range(8):
            for aa in range(4, 8):
                ks = 8 * aa + r
                ao += [L(4, f"ds_read_b64 a[{4*ks}:{4*ks+1}], v5 offset:{64*ks}"), L(4, f"ds_read_b64 a[{4*ks+2}:{4*ks+3}], v5 offset:{64*ks+8}", ("A", ks))]
        spread(ao, 4, 110, int(opt("acap", "6")))
    XA = int(opt("xa", "92"))
    def xa():
        a("s_waitcnt vmcnt(0)"); a.vd = a.vn
        a.need(hwe)
        a("s_barrier")
        signal(a, 101); a.vn += 1
    pin(XA, [(20, xa)])
    for i, op in enumerate(xl): spread([op], XA + 2 + 3 * i, XA + 12 + 3 * i)
    spread([aeread(rp, aa, h) for rp in range(2) for aa in range(8) for h in range(2)], XA + 1, E0 - 12, 6)
    spread([feread(0, c) for c in range(8)], E0 - 14, E0 - 2)
    B4 = E0 + 36
    spread(conv(0) + conv(1) + conv(2) + conv(3), E0 + 9, B4 + 7, 6)
    e_ = spread([L(8, f"ds_write_b128 v{vRW}, {vr(ACCE+4*s_)} offset:{4096*s_}", ("RW", s_)) for s_ in range(4)], B4 + 8, B4 + 15)
    X1 = e_ + 6
    pin(X1, [barrier(("RW", 3), ("TW", 3))])
    XD = int(opt("xd", "262"))
    pin(XD - int(opt("pcd", "44")), [V(f"buffer_load_dword v253, v{vP2}, {sq(SF)}, 0 offen sc1", "PC")])
    def xd():
        a.needv("PC")
        a(f"v_cmp_ne_u32 vcc, s{sTAG}, v253")
        a("s_nop 0")
        a("s_cbranch_vccnz c_slow")
        a.label("c_back")
        a("s_barrier")
    pin(XD, [(16, xd)])
    def slow(t):
        t.label("c_slow")
        t("s_mov_b32 s92, 0x20000")
        t.label("c_spin")
        t("s_sleep 4")
        t(f"buffer_load_dword v253, v{vP2}, {sq(SF)}, 0 offen sc1")
        t("s_waitcnt vmcnt(0)")
        t(f"v_cmp_ne_u32 vcc, s{sTAG}, v253")
        t("s_sub_u32 s92, s92, 1")
        t("s_cbranch_scc1 c_back")
        t("s_cbranch_vccnz c_spin")
        t("s_branch c_back")
    tail.append(slow)
    e_ = spread([tread(0, TRD), tread(1, TRD + 4)] +
                [L(6, f"ds_read_b128 {vr(RED+4*i)}, v{vRR} offset:{1024*i}", ("RR", i)) for i in range(4)] +
                [L(4, f"ds_read_b64 {pr(UD)}, v{vUD}", "UD")], X1 + 1, X1 + 16)
    spread([tstore(0, TRD)], XD + 1, XD + 8); spread([tstore(1, TRD + 4)], XD + 3, XD + 12)
    red = [(4, lambda: (a.need("UD"), a(f"v_pk_add_f32 {pr(RED)}, {pr(RED)}, {pr(RED+4)}"))), I(f"v_pk_add_f32 {pr(RED+2)}, {pr(RED+2)}, {pr(RED+6)}"),
           I(f"v_pk_add_f32 {pr(RED+8)}, {pr(RED+8)}, {pr(RED+12)}"), I(f"v_pk_add_f32 {pr(RED+10)}, {pr(RED+10)}, {pr(RED+14)}"),
           I(f"v_pk_add_f32 {pr(RED)}, {pr(RED)}, {pr(RED+8)}"), I(f"v_pk_add_f32 {pr(RED+2)}, {pr(RED+2)}, {pr(RED+10)}"),
           I(f"v_and_b32 v{RED+4}, 0xffff0000, v{UD+1}"), I(f"v_lshlrev_b32 v{RED+5}, 16, v{UD+1}"),
           I(f"v_and_b32 v{RED+6}, 0xffff0000, v{UD}"), I(f"v_lshlrev_b32 v{RED+7}, 16, v{UD}")]
    red += [I(f"v_fmac_f32 v{RED+i}, s{sDE}, v{RED+4+i}") for i in range(4)]
    red += [I(f"v_cvt_pk_bf16_f32 v{STG}, v{RED}, v{RED+1}"), I(f"v_cvt_pk_bf16_f32 v{STG+1}, v{RED+2}, v{RED+3}"),
            I(f"v_min_u32 v{STG}, -2, v{STG}"), I(f"v_min_u32 v{STG+1}, -2, v{STG+1}")]
    red += [L(6, f"ds_write_b64 v{vEW}, {pr(STG)}"), L(6, f"ds_read_b128 {vr(ES)}, v{vER}", "ES")]
    e_ = spread(red, e_ + 8, e_ + 44)
    def estore():
        a.need("ES"); a("s_mov_b32 exec_hi, 0")
        a.vm(f"buffer_store_dwordx4 {vr(ES)}, v4, {sq(SY)}, s{sYE} offen {stflag}")
        a("s_mov_b64 exec, -1")
    spread([(8, estore)], max(e_ + 6, XD + 5), max(e_ + 6, XD + 5) + 10)
    D0 = start[20]
    e_ = spread(conv(4) + conv(5), D0 + 8, D0 + 22)
    pin(e_ + 5, [barrier(("TW", 5))])
    spread([tread(2, FE0)], e_ + 6, e_ + 10)
    e_ = spread([tstore(2, FE0)], max(e_ + 14, XD + 7), max(e_ + 14, XD + 7) + 6)
    if opt("ypre", "0") == "1":
        def ypre():
            a(f"s_cmp_ge_u32 s2, {opt('late', '192')}")
            a("s_cbranch_scc1 no_ypre")
            for f in y_issue_ops(a): f()
            a.vn -= 5
            a.label("no_ypre")
        pin(max(int(opt("yp", str(NS - 10))), e_ + 1), [(40, ypre)])
    a.needv("U2")
    stamp(a, 9); stamp(a, 24, True)
    for k in range(2):
        for i in range(4): fread(k, i)[1]()
    qs = {7: 0, 9: 1, KE - 1: 2, 15: 4, 19: 5, 23: 6, 26: 7}
    for k in range(len(blocks)):
        if k == KE:
            a(f"s_cmp_eq_u32 s{sHF}, 1")
            a("s_cbranch_scc1 ex_h1")
            save = (a.ln, a.ld, dict(a.lt), set(inited), a.vn, a.vd)
            for h in range(2):
                if h == 1:
                    a("s_branch ex_join")
                    a.label("ex_h1")
                    end0 = (a.ln, a.ld)
                    a.ln, a.ld, a.lt, inited = save[0], save[1], dict(save[2]), set(save[3])
                    vend = (a.vn, a.vd); a.vn, a.vd = save[4:6]
                its = []
                for rp in range(2):
                    for c in range(8):
                        for s_, j in enumerate(TJ[h]):
                            if j >= c:
                                its.append((ACCE + 4*s_, vr(AE + 32*rp + 4*(j - c)), FEr(rp, c), [("AE", rp, j - c), ("FE", rp, c)]))
                for i, it in enumerate(its):
                    mfma(*it)
                    for f in plan[E0 + i]: f()
            a.label("ex_join")
            assert a.ln == end0[0] and a.vn == vend[0]
            a.vd = min(a.vd, vend[1])
            a.ld = min(a.ld, end0[1])
            qstamp(a, 3)
        for i, it in enumerate(items_of(k)):
            mfma(*it)
            for f in plan[start[k] + i]: f()
        if k in qs: qstamp(a, qs[k])
    stamp(a, 7); stamp(a, 25, True)
    a("s_nop 3")
    for j in (6, 7):
        for c, f in conv(j): f()
    barrier(("TW", 7))[1]()
    tread(3, TRD + 4)[1]()
    tstore(3, TRD + 4)[1]()
    stamp(a, 8); stamp(a, 26, True)
    qflush(a)
    if "--plan" in sys.argv: print(load, XA, X1, E0, D0)

Z, YA, YB, G = 8, 26, 44, 62
SS, QQ, RS, ND, C0 = 80, 82, 84, 86, 88
YW = 96

def p2_sums(a):
    a(f"v_pk_add_f32 {pr(SS)}, {pr(Z)}, {pr(Z+2)}")
    a(f"v_pk_mul_f32 {pr(QQ)}, {pr(Z)}, {pr(Z)}")
    a(f"v_pk_fma_f32 {pr(QQ)}, {pr(Z+2)}, {pr(Z+2)}, {pr(QQ)}")
    for e in range(2, 9):
        a(f"v_pk_add_f32 {pr(SS)}, {pr(SS)}, {pr(Z+2*e)}")
        a(f"v_pk_fma_f32 {pr(QQ)}, {pr(Z+2*e)}, {pr(Z+2*e)}, {pr(QQ)}")

def p2_chain(a, fill):
    fill = list(fill)
    def gap(n):
        for _ in range(n):
            if fill: a(fill.pop(0))
            else: a("s_nop 0")
    T, Uq = 90, 91
    gap(2)
    a(f"v_permlane32_swap_b32 v{SS}, v{SS+1}")
    a(f"v_permlane32_swap_b32 v{QQ}, v{QQ+1}")
    a(f"v_add_f32 v{SS}, v{SS}, v{SS+1}")
    a(f"v_add_f32 v{QQ}, v{QQ}, v{QQ+1}")
    gap(2)
    a(f"v_permlane16_swap_b32 v{SS}, v{QQ}")
    a(f"v_add_f32 v{T}, v{SS}, v{QQ}")
    for m in ("quad_perm:[1,0,3,2]", "quad_perm:[2,3,0,1]", "row_half_mirror", "row_mirror"):
        gap(2)
        a(f"v_add_f32_dpp v{T}, v{T}, v{T} {m} {DPP}")
    a(f"v_mov_b32 v{Uq}, v{T}")
    gap(2)
    a(f"v_permlane16_swap_b32 v{T}, v{Uq}")
    a(f"v_mul_f32 v{T}, s86, v{T}")
    a(f"v_mul_f32 v{Uq}, s86, v{Uq}")
    a(f"v_fma_f32 v{Uq}, -v{T}, v{T}, v{Uq}")
    a(f"v_max_f32 v{Uq}, 0, v{Uq}")
    a(f"v_add_f32 v{Uq}, s87, v{Uq}")
    a(f"v_rsq_f32 v{RS}, v{Uq}")
    gap(1)
    a(f"v_mul_f32 v{ND}, v{RS}, v{T}")
    a(f"v_mov_b32 v{RS+1}, v{RS}")
    a(f"v_mov_b32 v{ND+1}, v{ND}")
    gap(2)
    a(f"v_permlane32_swap_b32 v{RS}, v{RS+1}")
    a(f"v_permlane32_swap_b32 v{ND}, v{ND+1}")
    while fill: a(fill.pop(0))

def p2_first(a):
    a.needv("X")
    for q in range(4):
        for row in range(2):
            a(f"v_lshlrev_b32 v{Z+4*q+row}, 16, v{XR+4*row+q}")
            a(f"v_and_b32 v{Z+4*q+2+row}, 0xffff0000, v{XR+4*row+q}")
    a(f"v_lshlrev_b32 v{Z+16}, 16, v{XR+8}")
    a(f"v_lshlrev_b32 v{Z+17}, 16, v{XR+9}")
    a(f"v_readfirstlane_b32 s92, v{Z}")
    a(f"v_readfirstlane_b32 s93, v{Z+1}")
    a("s_nop 1")
    a(f"v_mov_b32 v{C0}, s92")
    a(f"v_mov_b32 v{C0+1}, s93")
    for e in range(9):
        a(f"v_pk_add_f32 {pr(Z+2*e)}, {pr(Z+2*e)}, {pr(C0)} neg_lo:[0,1] neg_hi:[0,1]")
    p2_sums(a)
    p2_chain(a, [])

def y_ld(i):
    if i == 4: return f"buffer_load_dwordx4 {vr(YP+16)}, v{vYG}, {sq(SY)}, s89 offen sc1"
    return f"buffer_load_dwordx4 {vr(YP+4*i)}, v{vL16}, {sq(SY)}, s88 offen offset:{1024*i} sc1"
def y_issue_ops(a):
    def e():
        a("s_mov_b32 exec_hi, 0"); a.vm(y_ld(4)); a("s_mov_b64 exec, -1")
    return [e] + [(lambda i: lambda: a.vm(y_ld(i)))(i) for i in range(4)]

def y_write(a):
    for q in range(4):
        a(f"ds_write_b128 v{vYM}, {vr(YP+4*q)} offset:{128*q}")
    a("s_mov_b32 exec_hi, 0")
    a(f"ds_write_b128 v{vYE}, {vr(YP+16)}")
    a("s_mov_b64 exec, -1")
    a("s_waitcnt lgkmcnt(0)")

def y_check(a):
    M = [4, 6, 8, 10, 12]
    for i in range(4):
        a(f"s_mov_b64 s[{M[i]}:{M[i]+1}], -1")
    a("s_mov_b32 s12, -1")
    a("s_mov_b32 s13, 0")
    a("s_mov_b32 s92, 0x20000")
    if opt("ypre", "0") == "1":
        a(f"s_cmp_ge_u32 s2, {opt('late', '192')}")
        a("s_cbranch_scc1 yc_late")
        a("s_waitcnt vmcnt(1)")
        a("s_branch yc_chk")
        a.label("yc_late")
    a("s_waitcnt vmcnt(0)")
    a("s_branch yc_load")
    a.label("yc_loop")
    a("s_waitcnt vmcnt(0)")
    a.label("yc_chk")
    for i in range(5):
        r = YP + 4 * i
        a(f"s_mov_b64 exec, s[{M[i]}:{M[i]+1}]")
        a(f"v_max3_u32 v238, v{r}, v{r+1}, v{r+2}")
        a(f"v_max_u32 v238, v238, v{r+3}")
        a(f"v_cmp_eq_u32 s[{M[i]}:{M[i]+1}], -1, v238")
    a("s_or_b64 s[14:15], s[4:5], s[6:7]")
    a("s_or_b64 s[14:15], s[14:15], s[8:9]")
    a("s_or_b64 s[14:15], s[14:15], s[10:11]")
    a("s_or_b64 s[14:15], s[14:15], s[12:13]")
    a("s_cbranch_scc0 yc_done")
    a("s_sub_u32 s92, s92, 1")
    a("s_cbranch_scc1 yc_done")
    if int(opt("ysleep", "2")): a(f"s_sleep {opt('ysleep','2')}")
    a.label("yc_load")
    for i in range(5):
        a(f"s_mov_b64 exec, s[{M[i]}:{M[i]+1}]")
        a(f"s_cbranch_execz yc_skip{i}")
        a(y_ld(i))
        a.label(f"yc_skip{i}")
    a("s_branch yc_loop")
    a.label("yc_done")
    a("s_mov_b64 exec, -1")

def p2_rest(a, stflag):
    for b in range(2):
        for e in range(9):
            a(f"ds_read_b64 {pr(YW + 2*(9*b+e))}, v{vYR} offset:{YBR*b + YR*e}")
    a(f"s_and_b32 s90, s{sW}, 1")
    a("s_mul_i32 s90, s90, 0x04040000")
    a("s_add_u32 s91, s90, 0x03020c0c")
    a("s_add_u32 s90, s90, 0x01000c0c")
    def unp(b, e):
        r = YW + 2 * (9 * b + e); y = (YA if b == 0 else YB) + 2 * e
        return [f"v_perm_b32 v{y}, v{r+1}, v{r}, s90", f"v_perm_b32 v{y+1}, v{r+1}, v{r}, s91"]
    for e in range(9):
        a(f"s_waitcnt lgkmcnt({min(15, 17 - e)})")
        for s_ in unp(0, e): a(s_)
        a(f"v_pk_mul_f32 {pr(G+2*e)}, {pr(Z+2*e)}, {pr(YA+2*e)}")
    def post(Y):
        for e in range(9):
            a(f"v_pk_fma_f32 {pr(Z+2*e)}, {pr(G+2*e)}, {pr(RS)}, {pr(Z+2*e)}")
        for e in range(9):
            a(f"v_pk_fma_f32 {pr(Z+2*e)}, {pr(Y+2*e)}, {pr(ND)}, {pr(Z+2*e)} neg_lo:[0,1,0] neg_hi:[0,1,0]")
    post(YA)
    a("s_waitcnt lgkmcnt(0)")
    for layer, Y in ((2, YB), (3, YA), (4, YB)):
        p2_sums(a)
        fill = []
        for e in range(9):
            if layer == 2: fill += unp(1, e)
            fill.append(f"v_pk_mul_f32 {pr(G+2*e)}, {pr(Z+2*e)}, {pr(Y+2*e)}")
        if layer == 4:
            fill += [f"v_pk_add_f32 {pr(Z+2*e)}, {pr(Z+2*e)}, {pr(C0)}" for e in range(9)]
        p2_chain(a, fill)
        a("s_nop 0")
        post(Y)
    for row in range(2):
        for q in range(4):
            a(f"v_cvt_pk_bf16_f32 v{XR+4*row+q}, v{Z+4*q+row}, v{Z+4*q+2+row}")
    a(f"v_cvt_pk_bf16_f32 v{XR+8}, v{Z+16}, v{Z+17}")
    a(f"buffer_store_dwordx4 {vr(XR)}, v{vL16}, {sq(SO)}, s{sXO} offen {stflag}")
    a(f"buffer_store_dwordx4 {vr(XR+4)}, v{vL16}, {sq(SO)}, s{sXO} offen offset:{ROWB} {stflag}")
    a(f"buffer_store_short v{XR+8}, v{vL2}, {sq(SO)}, s{sXO} offen offset:1024 {opt('ost2', stflag)}")
    a(f"buffer_store_short_d16_hi v{XR+8}, v{vL2}, {sq(SO)}, s{sXO} offen offset:{1024+ROWB} {opt('ost2', stflag)}")

def signal(a, off_s):
    a(f"v_mov_b32 v238, s{off_s}")
    a(f"v_mov_b32 v239, s{sTAG}")
    a("s_mov_b64 exec, 1")
    a(f"buffer_store_dword v239, v238, {sq(SF)}, 0 offen sc1")
    a("s_mov_b64 exec, -1")

def poll(a, tag, vaddr, all64):
    a("s_mov_b32 s92, 0x20000")
    if not all64: a("s_mov_b32 exec_hi, 0")
    a.label(f"{tag}_poll")
    a(f"buffer_load_dword v238, v{vaddr}, {sq(SF)}, 0 offen sc1")
    a("s_waitcnt vmcnt(0)")
    a(f"v_cmp_ne_u32 vcc, s{sTAG}, v238")
    a("s_and_b64 exec, exec, vcc")
    a(f"s_cbranch_execz {tag}_ok")
    if int(opt("sleep", "2")): a(f"s_sleep {opt('sleep', '2')}")
    a("s_sub_u32 s92, s92, 1")
    a("s_cmp_lg_u32 s92, 0")
    a(f"s_cbranch_scc1 {tag}_poll")
    a.label(f"{tag}_ok")
    a("s_mov_b64 exec, -1")

def epoch_issue(a):
    a(f"v_mov_b32 v253, {EP}")
    a.vm(f"buffer_load_dword v254, v253, {sq(SF)}, 0 offen sc1", "EP")
def epoch_use(a):
    a.needv("EP")
    a(f"v_readfirstlane_b32 s{sTAG}, v254")
    a(f"s_mul_i32 s{sTAG}, s{sTAG}, 0x9E3779B1")
    a(f"s_add_u32 s{sTAG}, s{sTAG}, 0x7F4A7C15")

def elect_and_signal(a, n, skip):
    a(f"v_mov_b32 v238, {LDS_CTR}")
    a("v_mov_b32 v239, 1")
    a(f"s_lshl_b32 s90, s{sFI}, 6")
    a("s_waitcnt vmcnt(0)")
    a("s_mov_b64 exec, 1")
    a("ds_add_rtn_u32 v253, v238, v239")
    a("s_waitcnt lgkmcnt(0)")
    a("v_readfirstlane_b32 s3, v253")
    a("s_mov_b64 exec, -1")
    a(f"s_cmp_eq_u32 s3, {n-1}")
    a(f"s_cbranch_scc0 {skip}")
    signal(a, 90)
    stamp(a, 4)
    a.label(skip)

def kernel(name, body, vgpr, accum):
    return f""".text
.globl {name}
.p2align 8
.type {name},@function
{name}:
{body}{name}_end:
    s_endpgm
.section .rodata,"a"
.p2align 6
.amdhsa_kernel {name}
  .amdhsa_next_free_vgpr {vgpr}
  .amdhsa_next_free_sgpr 102
  .amdhsa_accum_offset {accum}
  .amdhsa_group_segment_fixed_size 0
  .amdhsa_kernarg_size 120
  .amdhsa_user_sgpr_count 2
  .amdhsa_user_sgpr_kernarg_segment_ptr 1
  .amdhsa_system_sgpr_workgroup_id_x 1
.end_amdhsa_kernel
"""
def header(launches):
    hdr = [l for l in open(REF).read().split("\n") if l.startswith(";") and "@launch" not in l]
    return "\n".join(hdr) + "\n" + "\n".join(launches) + '\n.amdgcn_target "amdgcn-amd-amdhsa--gfx950"\n'

def flow_unsplit(a, hdma5, srds0, common_srds, caddr, elect, hl):
    a(f"s_cmp_eq_u32 s{sW}, 3")
    a("s_cbranch_scc1 w3_path")
    p0_addr(a)
    a("s_waitcnt lgkmcnt(0)")
    stamp(a, 1)
    srds0(a)
    p0_issue(a, opt("p0ld", "nt"))
    srd(a, SH, 10, 11, TENS)
    common_srds(a)
    epoch_issue(a)
    hpos = opt("hpos", "late")
    if hpos == "early":
        a("s_barrier")
        hdma5(a)
    stamp(a, 2)
    p1_prep_a(a)
    p0_compute(a, opt("ust", "sc1"))
    if hpos == "late":
        hdma5(a)
        a("s_barrier")
    stamp(a, 3)
    caddr(a)
    epoch_use(a)
    a("s_waitcnt lgkmcnt(0)")
    p1_prep_b(a)
    if hpos == "late":
        elect(a, 5, "nosig", 2)
        a("s_waitcnt vmcnt(1)")
        a("s_branch have_h")
        a.label("nosig")
        a("s_waitcnt vmcnt(0)")
        a("s_branch have_h")
    else:
        a.reset()
        h_copies(a, vC1, [0, 1], vC2)
        p1_aload(a, range(4))
        elect(a, 0, "part2", 2)
        a("s_branch part2")
    a.reset()
    a.label("w3_path")
    caddr(a)
    a(f"v_mov_b32 v56, {LDS_CTR}")
    a(f"ds_write_b32 v56, v{ZR}")
    p1_prep_a(a)
    a("s_waitcnt lgkmcnt(0)")
    srd(a, SH, 10, 11, TENS)
    common_srds(a)
    epoch_issue(a)
    a("s_waitcnt lgkmcnt(0)")
    p1_prep_b(a)
    epoch_use(a)
    a("s_waitcnt lgkmcnt(0)")
    a("s_barrier")
    hdma5(a)
    a("s_waitcnt vmcnt(0)")
    a.label("have_h")
    a.reset()
    stamp(a, 18)
    h_copies(a, vC1, [0, 1], vC2)
    p1_aload(a, range(4))
    a.label("part2")
    a.reset()
    pre = opt("pre", "0") == "1"
    if pre:
        h_copies(a, vC1, [2, 3])
        p1_aload(a, range(4, 8))
    stamp(a, 5)
    if opt("clr", "fill") == "w23":
        a(f"s_cmp_lt_u32 s{sW}, 2")
        a("s_cbranch_scc1 do_poll")
        for r in range(FE0, FE0 + 4): a(f"v_mov_b32 v{r}, -1")
        a("s_sub_u32 s92, s88, 8192")
        for so in ("s92", "s88"):
            for q in range(4):
                a(f"buffer_store_dwordx4 {vr(FE0)}, v{vL16}, {sq(SY)}, {so} offen offset:{1024*q} sc1")
        a(f"buffer_store_dwordx4 {vr(FE0)}, v{vL16}, {sq(SY)}, s99 offen sc1")
        a("s_branch e1_ok")
        a.label("do_poll")
    poll(a, "e1", vP1, True)
    a("s_barrier")
    a.reset()
    stamp(a, 6)
    a(f"s_mov_b32 m0, s{sUB}")
    a("s_nop 0")
    for q in (3, 2, 1, 0):
        a.vm(f"buffer_load_dwordx4 v{vL16}, {sq(SU)}, s90 offen offset:{1024*q} sc1 lds", f"U{q}")
    a("s_mov_b32 m0, s85")
    a("s_nop 0")
    a.vm(f"buffer_load_dwordx4 v{vL16}, {sq(SU)}, s91 offen sc1 lds", "UE")
    for r in range(FE0, FE0 + 4): a(f"v_mov_b32 v{r}, -1")
    if opt("clr", "fill") == "pre":
        for q in range(4):
            a.vm(f"buffer_store_dwordx4 {vr(FE0)}, v{vL16}, {sq(SY)}, s88 offen offset:{1024*q} sc1")
        a("s_mov_b32 exec_hi, 0")
        a.vm(f"buffer_store_dwordx4 {vr(FE0)}, v{vL16}, {sq(SY)}, s99 offen sc1")
        a("s_mov_b64 exec, -1")
    if not pre:
        h_copies(a, vC1, [2, 3])
        if opt("ein", "0") == "1": p1_aload(a, range(4, 8))
        else: h_copies(a, vC3, [0], vC4)

def gen_fused():
    K = NAME + "_kernel"
    sent = opt("x2", "flag") == "sent"
    NEL = 4 if sent else 3
    out = header([f"; @launch grid=(256,1,1) block=(256,1,1) lds={LDS_TOT + int(opt('ldsx', '0'))}"])
    a = A()
    hl = opt("hld", "nt")
    stamp(a, 0)
    if int(opt("pad", "0")):
        a("s_memrealtime s[94:95]"); a("s_waitcnt lgkmcnt(0)"); a("v_mov_b32 v255, s94")
    prologue(a, K + "_end")
    def common_srds(a):
        srd(a, SF, 20, 21, F_BYTES, F_OFF)
        srd(a, SU, 20, 21, U_BYTES, U_OFF)
        srd(a, SY, 20, 21, Y_BYTES, YM_OFF)
        srd(a, SO, 16, 17, TENS)
        a(f"s_lshr_b32 s90, s{sCH}, 1")
        a("s_lshl_b32 s90, s90, 2")
        a(f"s_lshr_b32 s91, s{sCE}, 1")
        a("s_lshl_b32 s91, s91, 2")
        a(f"s_load_dword s{sDM}, s[12:13], s90")
        a(f"s_load_dword s{sDE}, s[12:13], s91")
    tail = []
    def caddr(a):
        for r in range(ZR, ZR + 4): a(f"v_mov_b32 v{r}, 0")
        a(f"v_add_u32 v{vC1}, s{sHB}, v{vL16}")
        a(f"v_mov_b32 v{vC2}, s{sHB}")
        a(f"v_mov_b32 v{vC4}, {4*HB}")
    def hsec(a):
        a.reset()
        h_copies(a, vC1, [0, 1], vC2)
        p1_aload(a, range(4))
        h_copies(a, vC1, [2, 3])
        p1_aload(a, range(4, 8))
    def elect(a, wait, nxt, last):
        a(f"v_mov_b32 v238, {LDS_CTR}")
        a("v_mov_b32 v239, 1")
        a(f"s_lshl_b32 s92, s{sFI}, 6")
        a(f"s_waitcnt vmcnt({wait})")
        a("s_mov_b64 exec, 1")
        a("ds_add_rtn_u32 v253, v238, v239")
        a("s_waitcnt lgkmcnt(0)")
        a("v_readfirstlane_b32 s3, v253")
        a("s_mov_b64 exec, -1")
        a(f"s_cmp_eq_u32 s3, {last}")
        a(f"s_cbranch_scc0 {nxt}")
        signal(a, 92)
        stamp(a, 4)
    def hdma5(a):
        h_dma(a, sCH, sHB, 0, hl, None)
        a(f"s_lshl_b32 s3, s{sCE}, 12")
        a(f"s_lshl_b32 s92, s{sW}, 10")
        a("s_add_u32 s3, s3, s92")
        a(f"s_add_u32 s92, s92, {4*HB + 3*CS + 32}")
        a("s_mov_b32 m0, s92")
        a("s_nop 0")
        a.vm(f"buffer_load_dwordx4 v{vL16}, {sq(SH)}, s3 offen {hl} lds", "h")
    def srds0(a):
        srd(a, SK, 4, 5, TENS); srd(a, SV, 6, 7, TENS); srd(a, SSH, 8, 9, D * 8)
    flow_unsplit(a, hdma5, srds0, common_srds, caddr, elect, hl)
    p1_mfma(a, opt("yst", "sc1"), tail)
    p2_first(a)
    stamp(a, 10)
    y_check(a)
    stamp(a, 11)
    y_write(a)
    a("s_barrier")
    stamp(a, 12)
    a(f"s_or_b32 s3, s2, s{sW}")
    a("s_cmp_eq_u32 s3, 0")
    a("s_cbranch_scc0 no_epoch")
    a(f"s_mov_b32 s3, {EP}")
    signal(a, 3)
    a.label("no_epoch")
    if opt("q2", "0") == "1": stamp(a, 24, True)
    p2_rest(a, opt("ost", "sc1"))
    if opt("q2", "0") == "1": stamp(a, 27, True)
    stamp(a, 13)
    if STAMPS: a("s_waitcnt vmcnt(0)")
    stamp(a, 14)
    if int(opt("pad", "0")):
        if opt("gpad", "0") == "1":
            srd(a, 96, 18, 19, 256)
            a("v_mov_b32 v13, 0")
            a("buffer_load_dword v12, v13, s[96:99], 0 offen sc1")
            a("s_waitcnt vmcnt(0)")
            a("v_readfirstlane_b32 s100, v12")
            a("s_not_b32 s100, s100")
        a("v_readfirstlane_b32 s100, v255")
        a.label("padl")
        a("s_memrealtime s[98:99]")
        a("s_waitcnt lgkmcnt(0)")
        a("s_sub_u32 s98, s98, s100")
        a(f"s_cmp_lt_u32 s98, {opt('pad', '0')}")
        a("s_cbranch_scc1 padl")
    stamp_flush(a)
    a("s_endpgm")
    for f in tail: f(a)
    out += kernel(K, a.text(), 512, 256)
    return out

if __name__ == "__main__":
    path = sys.argv[1]
    STAMPS = "--stamps" in sys.argv
    for x in sys.argv[2:]:
        if "=" in x:
            k_, v_ = x.split("=", 1); OPT[k_] = v_
    open(path, "w").write(gen_fused())
```

```python
import sys
NAME = "interleave_layers__ssm_conv_h3__ssm_conv_h3__prompt"
REF = f"cdna_kernels/{NAME}.s.ref"
OPT = {}
STAMPS = False
def opt(k, d): return OPT.get(k, d)
def SPLIT(): return opt("split", "0") == "1"

S, D = 2048, 576
ROWB = D * 2
TENS = S * ROWB
U_OFF = 0;            U_BYTES = 2 * D * 4096
YM_OFF = U_BYTES;     YM_BYTES = 256 * 16384
YE_OFF = YM_BYTES;    YE_BYTES = 64 * 8192
Y_BYTES = YM_BYTES + YE_BYTES
F_OFF = YM_OFF + Y_BYTES
F2 = 16384; F2A = 32768; EP = 49152; FD = 65536; F1B = 131072; F_BYTES = F1B + 16384
ST_OFF = 0xA00000
CS = 4160; HB = 4 * CS
US = 4608; U_BASE = 5 * HB; UE = U_BASE + 4 * US
LDS_CTR = U_BASE + 5 * US
Y_LDS = 0; YR = 1040; YBR = 9 * YR
T_LDS = LDS_CTR + 64; TR = 144
E_LDS = T_LDS + 128 * TR
R_LDS = E_LDS + 2560
LDS_TOT = R_LDS + 16384

class A:
    def __init__(self):
        self.l = []; self.reset()
    def reset(self):
        self.ln = 0; self.ld = 0; self.lt = {}
        self.vn = 0; self.vd = 0; self.vt = {}
    def __call__(self, s): self.l.append("    " + s)
    def label(self, s): self.l.append(s + ":")
    def text(self): return "\n".join(self.l) + "\n"
    def lds(self, s, tag=None):
        self(s); self.ln += 1
        if tag is not None: self.lt[tag] = self.ln
    def vm(self, s, tag=None):
        self(s); self.vn += 1
        if tag is not None: self.vt[tag] = self.vn
    def need(self, *tags):
        k = max([self.lt[t] for t in tags if t in self.lt] + [0])
        if k > self.ld:
            n = min(15, self.ln - k); self(f"s_waitcnt lgkmcnt({n})"); self.ld = self.ln - n
    def needv(self, *tags):
        k = max([self.vt[t] for t in tags] + [0])
        if k > self.vd:
            n = min(63, self.vn - k); self(f"s_waitcnt vmcnt({n})"); self.vd = self.vn - n

def srd(a, d, lo, hi, size, add=None):
    if add:
        a(f"s_add_u32 s{d}, s{lo}, {add}")
        a(f"s_addc_u32 s{d+1}, s{hi}, 0")
    else:
        a(f"s_mov_b32 s{d}, s{lo}")
        a(f"s_mov_b32 s{d+1}, s{hi}")
    a(f"s_mov_b32 s{d+2}, {size}")
    a(f"s_mov_b32 s{d+3}, 0x00020000")

SK, SV, SSH, SH, SU, SY, SX, SO, SF = 24, 28, 32, 36, 40, 44, 48, 52, 56
sX, sQ, sB, sP, sW = 60, 61, 62, 63, 64
sB0, sCF, sRB = 69, 70, 71
sCH, sCE, sJE, sHB, sUB, sDM, sDE, sFI, sHF, sTAG = 72, 73, 74, 75, 76, 77, 78, 79, 82, 83
sYM, sYE, sXO, sT2 = 80, 81, 84, 100
vLANE, vL16, vL2 = 250, 251, 252

def stamp(a, idx, cyc=False):
    if opt("padat", "x") == str(idx) and not cyc:
        a("s_memrealtime s[94:95]"); a("s_waitcnt lgkmcnt(0)"); a("v_mov_b32 v255, s94")
    if not STAMPS: return
    a(("s_memtime" if cyc else "s_memrealtime") + " s[94:95]")
    a("s_waitcnt lgkmcnt(0)")
    a(f"v_writelane_b32 v255, s94, {idx}")
def qstamp(a, i, mode="1"):
    if STAMPS and opt("q", "0") == mode: a(f"s_memtime s[{4+2*i}:{5+2*i}]")
def qflush(a, mode="1"):
    if STAMPS and opt("q", "0") == mode:
        a("s_waitcnt lgkmcnt(0)")
        for i in range(8): a(f"v_writelane_b32 v255, s{4+2*i}, {20+i if i < 4 else 24+i}")
def stamp_flush(a):
    if not STAMPS: return
    srd(a, 96, 20, 21, 0x100000, ST_OFF)
    a("s_lshl_b32 s94, s2, 2")
    a(f"s_add_u32 s94, s94, s{sW}")
    a("s_lshl_b32 s94, s94, 7")
    a(f"v_lshlrev_b32 v254, 2, v{vLANE}")
    a("s_mov_b32 exec_hi, 0")
    a("buffer_store_dword v255, v254, s[96:99], s94 offen sc1")

def vr(r, n=4): return f"v[{r}:{r+n-1}]"
def ar(r, n=4): return f"a[{r}:{r+n-1}]"
def pr(r): return f"v[{r}:{r+1}]"
def sq(r): return f"s[{r}:{r+3}]"
DPP = "row_mask:0xf bank_mask:0xf"

def prologue(a, end):
    a("s_cmp_ge_u32 s2, 256")
    a(f"s_cbranch_scc1 {end}")
    npf = int(opt("cpf", "32"))
    if npf:
        K = NAME + "_kernel"
        a(f"s_cmp_ge_u32 s2, {npf}")
        a("s_cbranch_scc1 no_cpf")
        a("s_getpc_b64 s[96:97]")
        a.label("cpf_base")
        a("v_lshlrev_b32 v12, 7, v0")
        a(f"v_min_u32 v12, {K}_end - cpf_base, v12")
        a("v_mov_b32 v13, s97")
        a("v_add_co_u32 v12, vcc, s96, v12")
        a("s_nop 1")
        a("v_addc_co_u32 v13, vcc, 0, v13, vcc")
        a("global_load_dword v254, v[12:13], off")
        a.label("no_cpf")
    a(f"s_lshr_b32 s{sB0}, s2, 7")
    a(f"s_mul_i32 s3, s{sB0}, 48")
    a("s_add_u32 s22, s0, s3")
    a("s_addc_u32 s23, s1, 0")
    a("s_load_dwordx4 s[4:7], s[22:23], 8")
    a("s_load_dwordx2 s[8:9], s[22:23], 24")
    a(f"s_and_b32 s{sX}, s2, 7")
    a(f"s_lshr_b32 s{sQ}, s2, 3")
    a(f"s_lshr_b32 s{sB}, s{sX}, 2")
    a(f"s_mul_i32 s3, s{sB}, 48")
    a("s_add_u32 s22, s0, s3")
    a("s_addc_u32 s23, s1, 0")
    a("s_load_dwordx2 s[10:11], s[22:23], 32")
    a("s_load_dwordx2 s[12:13], s[22:23], 40")
    a("s_load_dwordx2 s[14:15], s[0:1], 0")
    a("s_load_dwordx4 s[16:19], s[0:1], 96")
    a("s_load_dwordx2 s[20:21], s[0:1], 112")
    a("v_lshrrev_b32 v1, 6, v0")
    a(f"v_and_b32 v{vLANE}, 63, v0")
    a(f"v_readfirstlane_b32 s{sW}, v1")
    a(f"v_lshlrev_b32 v{vL16}, 4, v{vLANE}")
    a(f"v_lshlrev_b32 v{vL2}, 1, v{vLANE}")
    if SPLIT():
        a(f"s_and_b32 s{sCF}, s{sQ}, 3")
        a(f"s_bfe_u32 s{sRB}, s{sQ}, 0x20002")
        a(f"s_lshl_b32 s3, s{sX}, 2")
        a(f"s_add_u32 s{sRB}, s{sRB}, s3")
        a(f"s_lshl_b32 s{sFI}, s{sB0}, 7")
        a(f"s_lshl_b32 s3, s{sCF}, 5")
        a(f"s_add_u32 s{sFI}, s{sFI}, s3")
        a(f"s_add_u32 s{sFI}, s{sFI}, s{sRB}")
        a(f"s_lshr_b32 s{sT2}, s{sW}, 1")
    else:
        a(f"s_and_b32 s{sCF}, s{sQ}, 1")
        a(f"s_bfe_u32 s{sRB}, s{sQ}, 0x30001")
        a(f"s_lshl_b32 s3, s{sX}, 3")
        a(f"s_add_u32 s{sRB}, s{sRB}, s3")
        a(f"s_lshl_b32 s{sFI}, s{sB0}, 7")
        a(f"s_lshl_b32 s3, s{sCF}, 6")
        a(f"s_add_u32 s{sFI}, s{sFI}, s3")
        a(f"s_add_u32 s{sFI}, s{sFI}, s{sRB}")
    a(f"s_and_b32 s{sP}, s{sX}, 3")
    a(f"s_lshl_b32 s{sP}, s{sP}, 4")
    a(f"s_lshr_b32 s3, s{sQ}, 1")
    a(f"s_add_u32 s{sP}, s{sP}, s3")
    a(f"s_and_b32 s{sHF}, s{sQ}, 1")
    a(f"s_lshl_b32 s{sCH}, s{sP}, 3")
    a(f"s_lshl_b32 s3, s{sHF}, 2")
    a(f"s_add_u32 s{sCH}, s{sCH}, s3")
    a(f"s_add_u32 s{sCH}, s{sCH}, s{sW}")
    a(f"s_add_u32 s{sCE}, s{sP}, 512")
    a(f"s_cmp_eq_u32 s{sHF}, 0")
    a(f"s_cselect_b32 s{sJE}, 0x7520, 0x6431") if False else None
    a("s_mov_b32 s3, 0x6431")
    a(f"s_cselect_b32 s{sJE}, 0x7520, s3")
    a(f"s_lshl_b32 s3, s{sW}, 2")
    a(f"s_lshr_b32 s{sJE}, s{sJE}, s3")
    a(f"s_and_b32 s{sJE}, s{sJE}, 7")
    a(f"s_mul_i32 s{sHB}, s{sW}, {HB}")
    a(f"s_mul_i32 s{sUB}, s{sW}, {US}")
    a(f"s_add_u32 s{sUB}, s{sUB}, {U_BASE}")

def kraw(t): return 8 + 4 * t
def hraw(j): return 40 + 4 * j
def vraw(t): return 52 + 4 * t
vA1, vA2, vA3, vA4, vA7 = 242, 243, 244, 245, 246
def EXH(): return 0xf if SPLIT() else 0xffff
def p0_addr(a):
    cw = 72 if SPLIT() else 96
    a(f"v_lshrrev_b32 v247, 2, v{vLANE}")
    a(f"v_and_b32 v248, 3, v{vLANE}")
    if SPLIT():
        a(f"s_lshl_b32 s67, s{sT2}, 5")
        a(f"s_add_u32 s67, s67, s{sRB}")
        a(f"s_and_b32 s68, s{sW}, 1")
        a(f"s_lshl_b32 s66, s{sCF}, 1")
        a("s_add_u32 s68, s68, s66")
    else:
        a(f"s_mov_b32 s67, s{sRB}")
        a(f"s_mul_i32 s68, s{sCF}, 3")
        a(f"s_add_u32 s68, s68, s{sW}")
    a(f"s_mul_i32 s65, s67, {32*ROWB}")
    a(f"s_mul_i32 s66, s68, {2*cw}")
    a("s_add_u32 s65, s65, s66")
    a(f"v_mul_u32_u24 v{vA1}, {8*ROWB}, v248")
    a(f"v_lshlrev_b32 v{vA7}, 4, v247")
    a(f"v_add3_u32 v{vA1}, v{vA1}, v{vA7}, s65")
    a(f"v_add_u32 v{vA2}, {4*ROWB}, v{vA1}")
    a(f"v_subrev_u32 v{vA3}, {3*ROWB}, v{vA1}")
    a(f"s_mul_i32 s66, s68, {cw*8}")
    a(f"v_add_u32 v{vA7}, s66, v{vL16}")
    a(f"s_mul_i32 s65, s{sB0}, 576")
    a(f"s_mul_i32 s66, s68, {cw}")
    a("s_add_u32 s65, s65, s66")
    a("s_lshl_b32 s65, s65, 12")
    a("s_add_u32 s65, s65, 4080")
    a("s_lshl_b32 s66, s67, 6")
    a("s_sub_u32 s65, s65, s66")
    a(f"v_lshlrev_b32 v{vA4}, 15, v247")
    a("v_lshlrev_b32 v248, 4, v248")
    a(f"v_sub_u32 v{vA4}, v{vA4}, v248")
    a(f"v_add_u32 v{vA4}, s65, v{vA4}")

def p0_issue(a, fl):
    def row(t): return (f"v{vA1}", t * ROWB) if t < 4 else (f"v{vA2}", (t - 4) * ROWB)
    def ldk(t):
        b, o = row(t); a.vm(f"buffer_load_dwordx4 {vr(kraw(t))}, {b}, {sq(SK)}, 0 offen offset:{o} {fl}", f"K{t}")
    def ldv(t):
        b, o = row(t); a.vm(f"buffer_load_dwordx4 {vr(vraw(t))}, {b}, {sq(SV)}, 0 offen offset:{o} {fl}", f"V{t}")
    a(f"s_mov_b32 exec_hi, {EXH()}")
    a.vm(f"buffer_load_dwordx4 v[84:87], v{vA7}, {sq(SSH)}, 0 offen", "W")
    for t in (5, 6, 7): ldk(t)
    a("s_mov_b32 exec_lo, 0x11111111")
    a(f"s_mov_b32 exec_hi, {EXH() & 0x1111}")
    for j in range(3):
        a.vm(f"buffer_load_dwordx4 {vr(hraw(j))}, v{vA3}, {sq(SK)}, 0 offen offset:{j*ROWB} {fl}", f"H{j}")
    a("s_mov_b32 exec_lo, -1")
    a(f"s_mov_b32 exec_hi, {EXH()}")
    for t in range(5): ldk(t); ldv(t)
    for t in (5, 6, 7): ldv(t)
    a("s_mov_b64 exec, -1")

def unpack(a, dlo, dhi, src):
    a(f"v_lshlrev_b32 v{dlo}, 16, v{src}")
    a(f"v_and_b32 v{dhi}, 0xffff0000, v{src}")

def p0_compute(a, stflag, sfx=""):
    def W(p, j): return 88 + 8 * p + 2 * j
    def Kf(j, c): return 120 + 8 * (j & 7) + c
    def U(t, c): return 184 + 8 * (t & 3) + c
    OUTS = [hraw(0), hraw(1), hraw(2), kraw(0), kraw(1), vraw(0), vraw(1), 84]
    VT = 216
    a("s_mov_b32 vcc_lo, 0x11111111")
    a("s_mov_b32 vcc_hi, 0x11111111")
    a("v_mov_b32 v224, 0xffff0000")
    for c in range(1, 8):
        a(f"s_mov_b32 s{3+c}, {4096*c}")
    a.label("p0_body" + sfx)
    a.needv("W")
    for c in range(8):
        p, h = c >> 1, c & 1
        for half in range(2):
            i = 2 * c + half; s_ = i >> 2; qp = f"quad_perm:[{s_},{s_},{s_},{s_}] {DPP}"
            a(f"v_cvt_f32_bf16_dpp v{W(p,2*half)+h}, v{84+(i&3)} {qp}")
            a(f"v_and_b32_dpp v{W(p,2*half+1)+h}, v{84+(i&3)}, v224 {qp}")
    for j in range(3):
        a.needv(f"H{j}")
        for p in range(4):
            a(f"v_cndmask_b32_dpp v{hraw(j)+p}, v{kraw(5+j)+p}, v{hraw(j)+p}, vcc quad_perm:[0,0,1,2] {DPP}")
        for p in range(4): unpack(a, Kf(j, 2*p), Kf(j, 2*p+1), hraw(j) + p)
    def kun(t):
        for p in range(4): unpack(a, Kf(t+3, 2*p), Kf(t+3, 2*p+1), kraw(t) + p)
    def ksum(t):
        for p in range(4):
            a(f"v_pk_mul_f32 {pr(U(t,2*p))}, {pr(Kf(t,2*p))}, {pr(W(p,3))}")
        for jj in (2, 1, 0):
            for p in range(4):
                a(f"v_pk_fma_f32 {pr(U(t,2*p))}, {pr(Kf(t+3-jj,2*p))}, {pr(W(p,jj))}, {pr(U(t,2*p))}")
    def vmul(t):
        a.needv(f"V{t}")
        if t == 7: stamp(a, 17)
        for p in range(4): unpack(a, VT + 2*p, VT + 2*p + 1, vraw(t) + p)
        for p in range(4):
            a(f"v_pk_mul_f32 {pr(U(t,2*p))}, {pr(U(t,2*p))}, {pr(VT+2*p)}")
    def cvt(t):
        q = (7 - t) // 2
        if t == 7 and opt("dry0", "0") == "1": a("s_cbranch_execz p0_dry_back")
        if t == 7: a(f"s_mov_b32 exec_hi, {EXH()}")
        for c in range(8):
            a(f"v_cvt_pk_bf16_f32 v{OUTS[c]+q}, v{U(t, c)}, v{U(t-1, c)}")
            if t == 7:
                so = "0" if c == 0 else f"s{3+c}"
                a.vm(f"buffer_store_dwordx4 {vr(OUTS[c])}, v{vA4}, {sq(SU)}, {so} offen {stflag}", "UST")
        if t == 7: a("s_mov_b64 exec, -1")
    for t in range(5):
        a.needv(f"K{t}")
        kun(t)
        ksum(t)
        if t <= 2: kun(5 + t)
        if t == 4:
            for tt in (5, 6, 7): ksum(tt)
        vmul(t)
        if t & 1: cvt(t)
    for t in (5, 6, 7):
        vmul(t)
        if t & 1: cvt(t)

ACC, ACCE, FB, AE, FE0, PD, EV = 8, 40, 56, 120, 184, 216, 220
vTW, vTR, vFE, vEW, vER, vRW, vRR, vUD, vP1, vP2, vYM, vYE, vYG, vYR = range(224, 238)
vPB = 254
RED, UD, STG, ES, TRD, YP, XR = 120, 136, 138, 140, 144, 152, 240
TJ = ((0, 2, 5, 7), (1, 3, 4, 6))

def h_dma(a, ch, ldsbase_s, ldsconst, flag, tag):
    a(f"s_lshl_b32 s3, s{ch}, 12")
    if ldsbase_s is not None:
        a(f"s_add_u32 s92, s{ldsbase_s}, {ldsconst + 3*CS + 32}")
        a("s_mov_b32 m0, s92")
    else:
        a(f"s_mov_b32 m0, {ldsconst + 3*CS + 32}")
    a("s_nop 0")
    for q in range(4):
        a.vm(f"buffer_load_dwordx4 v{vL16}, {sq(SH)}, s3 offen offset:{1024*q} {flag} lds", tag)

hc_n = [0]
vC1, vC2, vC3, vC4, ZR = 176, 177, 178, 179, 180
def h_copy_ops(a, vR, qs, head=None):
    hc_n[0] += 1; u = hc_n[0]
    Dq = lambda i: 120 + 8 * i
    ops = []
    def L(c, s_, tag=None): ops.append((c, lambda: a.lds(s_, tag)))
    def V(s_, need=None): ops.append((4, lambda: ((a.need(need) if need else None), a(s_))))
    for i, q in enumerate(qs):
        L(6, f"ds_read_b128 {vr(Dq(i))}, v{vR} offset:{3*CS + 32 + 1024*q}")
        L(4, f"ds_read_b64 {pr(Dq(i)+4)}, v{vR} offset:{3*CS + 48 + 1024*q}", ("HC", u, i))
    if head is not None:
        L(4, f"ds_read_b64 v[138:139], v{head} offset:{3*CS + 32}", ("HH", u))
    for i, q in enumerate(qs):
        d = Dq(i); o = 16 * (i & 1); T0, T1, T2, O4 = 144 + o, 148 + o, 152 + o, 156 + o
        for k in range(4):
            V(f"v_alignbit_b32 v{T0+k}, v{d+k+1}, v{d+k}, 16", ("HC", u, i) if k == 0 else None)
        V(f"v_alignbit_b32 v{O4}, v{d+5}, v{d+4}, 16")
        V(f"v_pk_mov_b32 {pr(T1)}, {pr(d)}, {pr(d+2)} op_sel:[1,0]")
        V(f"v_pk_mov_b32 {pr(T1+2)}, {pr(d+2)}, {pr(d+4)} op_sel:[1,0]")
        V(f"v_pk_mov_b32 {pr(T2)}, {pr(T0)}, {pr(T0+2)} op_sel:[1,0]")
        V(f"v_pk_mov_b32 {pr(T2+2)}, {pr(T0+2)}, {pr(O4)} op_sel:[1,0]")
        L(8, f"ds_write_b128 v{vR}, {vr(T0)} offset:{32 + 1024*q}")
        L(8, f"ds_write_b128 v{vR}, {vr(T1)} offset:{CS + 32 + 1024*q}")
        L(8, f"ds_write_b128 v{vR}, {vr(T2)} offset:{2*CS + 32 + 1024*q}", ("HW", u))
    if head is not None:
        V(f"v_sub_u32 v137, 3, v{vLANE}")
        V("v_lshlrev_b32 v137, 4, v137")
        V("v_lshlrev_b64 v[138:139], v137, v[138:139]", ("HH", u))
        V(f"v_cmp_eq_u32 vcc, 3, v{vLANE}")
        V(f"v_mul_u32_u24 v137, {CS}, v{vLANE}")
        V(f"v_add_u32 v140, v137, v{head}")
        V("v_cndmask_b32 v138, v138, 0, vcc")
        V("v_cndmask_b32 v139, v139, 0, vcc")
        V("v_mov_b32 v136, 0")
        V("v_mov_b32 v137, 0")
        def hw():
            a("s_mov_b64 exec, 15")
            a.lds(f"ds_write_b128 v140, {vr(ZR)}")
            a.lds("ds_write_b128 v140, v[136:139] offset:16", ("HW", u))
            a("s_mov_b64 exec, -1")
        ops.append((8, hw))
    return ops, ("HW", u)
def h_copies(a, vR, qs, head=None):
    ops, tag = h_copy_ops(a, vR, qs, head)
    for c, f in ops: f()
    return tag

def p1_prep_a(a):
    a(f"v_and_b32 v1, 15, v{vLANE}")
    a(f"v_lshrrev_b32 v2, 4, v{vLANE}")
    a("v_and_b32 v3, 3, v1")
    a("v_cmp_eq_u32 vcc, 3, v3")
    a(f"v_mul_u32_u24 v3, {CS}, v3")
    a("v_and_b32 v4, 12, v1")
    a("v_lshlrev_b32 v4, 1, v4")
    a("v_add_u32 v3, v3, v4")
    a("v_cndmask_b32 v4, 0, 8, vcc")
    a("v_add_u32 v3, v3, v4")
    a("v_lshl_add_u32 v3, v2, 4, v3")
    a(f"v_add_u32 v5, s{sHB}, v3")
    a(f"s_lshl_b32 s93, s{sW}, 7")
    a(f"s_add_u32 s3, s93, {4*HB}")
    a("v_add_u32 v6, s3, v3")

def p1_prep_b(a):
    a(f"v_add_u32 v8, s{sUB}, v{vL16}")
    a(f"s_add_u32 s3, s93, {UE - 512}")
    a(f"v_add_u32 v9, s3, v{vL16}")
    a(f"v_cmp_gt_u32 vcc, 32, v{vLANE}")
    a("s_mov_b32 exec_hi, 0xff")
    a("s_nop 0")
    a("v_cndmask_b32 v8, v9, v8, vcc")
    a("ds_write_b128 v8, v[180:183] offset:4096")
    a("s_mov_b64 exec, -1")
    for ch, sv in ((sCH, sDM), (sCE, sDE)):
        a(f"s_and_b32 s3, s{ch}, 1")
        a("s_lshl_b32 s3, s3, 4")
        a(f"s_lshr_b32 s{sv}, s{sv}, s3")
        a(f"s_and_b32 s{sv}, s{sv}, 0xffff")
    a(f"s_lshl_b32 s{sDE}, s{sDE}, 16")
    a("v_lshlrev_b32 v3, 3, v2")
    a("v_add_u32 v3, v3, v1")
    a("v_sub_u32 v3, 15, v3")
    a("v_and_b32 v4, 1, v3")
    a("v_lshlrev_b32 v4, 4, v4")
    a("v_ashrrev_i32 v3, 1, v3")
    a(f"v_lshlrev_b32 v8, v4, s{sDM}")
    for q in range(4):
        a(f"v_cmp_eq_u32 vcc, {q}, v3")
        a("s_nop 1")
        a(f"v_cndmask_b32 v{PD+q}, 0, v8, vcc")
    a("v_lshlrev_b32 v3, 4, v2")
    a("v_lshlrev_b32 v4, 5, v1")
    a("v_sub_u32 v3, v3, v4")
    a("v_add_u32 v3, 480, v3")
    a(f"v_add_u32 v7, s{sUB}, v3")
    a(f"s_add_u32 s3, s93, {UE}")
    a(f"v_add_u32 v{vFE}, s3, v3")
    a("v_lshlrev_b32 v3, 3, v2")
    a("v_add_u32 v3, v3, v4")
    a(f"s_lshl_b32 s3, s{sJE}, 9")
    a(f"s_sub_u32 s3, {UE + 4088}, s3")
    a(f"v_sub_u32 v{vUD}, s3, v3")
    a(f"s_lshl_b32 s3, s{sW}, 9")
    a(f"s_add_u32 s3, s3, {E_LDS}")
    a(f"v_add_u32 v{vEW}, s3, v3")
    a(f"v_add_u32 v{vER}, s3, v{vL16}")
    a(f"s_lshl_b32 s3, s{sW}, 10")
    a(f"s_add_u32 s3, s3, {R_LDS}")
    a(f"v_add_u32 v{vRW}, s3, v{vL16}")
    a(f"s_lshl_b32 s3, s{sW}, 12")
    a(f"s_add_u32 s3, s3, {R_LDS}")
    a(f"v_add_u32 v{vRR}, s3, v{vL16}")
    a(f"v_mul_u32_u24 v{vTW}, {TR}, v1")
    a("v_lshrrev_b32 v3, 1, v2")
    a(f"v_lshl_add_u32 v{vTW}, v3, 6, v{vTW}")
    a("v_and_b32 v3, 1, v2")
    a(f"v_lshl_add_u32 v{vTW}, v3, 3, v{vTW}")
    a(f"s_lshl_b32 s3, s{sW}, 4")
    a(f"s_add_u32 s3, s3, {T_LDS}")
    a(f"v_add_u32 v{vTW}, s3, v{vTW}")
    a(f"v_lshrrev_b32 v3, 3, v{vLANE}")
    a(f"v_mul_u32_u24 v{vTR}, {TR}, v3")
    a(f"v_and_b32 v4, 7, v{vLANE}")
    a(f"v_lshl_add_u32 v{vTR}, v4, 4, v{vTR}")
    a(f"s_mul_i32 s3, s{sW}, {8*TR}")
    a(f"s_add_u32 s3, s3, {T_LDS}")
    a(f"v_add_u32 v{vTR}, s3, v{vTR}")
    a(f"v_mul_u32_u24 v{vYM}, {YR}, v4")
    a(f"v_lshl_add_u32 v{vYM}, v3, 4, v{vYM}")
    a(f"s_lshr_b32 s88, s{sW}, 1")
    a(f"s_mul_i32 s89, s88, {YBR}")
    a(f"s_and_b32 s3, s{sW}, 1")
    a("s_lshl_b32 s3, s3, 9")
    a("s_add_u32 s89, s89, s3")
    a(f"s_add_u32 s89, s89, {Y_LDS}")
    a(f"v_add_u32 v{vYM}, s89, v{vYM}")
    a(f"s_add_u32 s89, s89, {8*YR}")
    a(f"v_add_u32 v{vYE}, s89, v{vL16}")
    a(f"v_lshlrev_b32 v{vYG}, 6, v{vLANE}")
    a("s_lshl_b32 s88, s88, 3")
    a(f"s_add_u32 s88, s88, {Y_LDS}")
    a(f"v_add_u32 v{vYR}, s88, v{vL16}")
    a("s_lshl_b32 s88, s2, 14")
    a(f"s_lshl_b32 s3, s{sW}, 12")
    a("s_add_u32 s88, s88, s3")
    a("s_lshr_b32 s89, s2, 2")
    a("s_lshl_b32 s89, s89, 13")
    a(f"s_lshl_b32 s3, s{sW}, 11")
    a("s_add_u32 s89, s89, s3")
    a("s_and_b32 s3, s2, 3")
    a("s_lshl_b32 s3, s3, 4")
    a("s_add_u32 s89, s89, s3")
    a(f"s_add_u32 s89, s89, {YE_OFF}")
    a(f"v_lshrrev_b32 v4, 2, v{vLANE}")
    a(f"v_and_b32 v8, 3, v{vLANE}")
    a("v_lshlrev_b32 v8, 4, v8")
    a("v_lshl_add_u32 v3, v4, 14, v8")
    a("v_lshl_add_u32 v4, v4, 13, v8")
    a(f"s_lshl_b32 s{sYM}, s{sW}, 18")
    a(f"s_lshl_b32 s3, s{sB}, 13")
    a(f"s_add_u32 s{sYM}, s{sYM}, s3")
    a(f"s_sub_u32 s3, s{sCH}, s{sW}")
    a("s_lshl_b32 s3, s3, 4")
    a(f"s_add_u32 s{sYM}, s{sYM}, s3")
    a(f"s_lshl_b32 s{sYE}, s{sJE}, 16")
    a(f"s_lshl_b32 s3, s{sB}, 12")
    a(f"s_add_u32 s{sYE}, s{sYE}, s3")
    a(f"s_lshl_b32 s3, s{sP}, 6")
    a(f"s_add_u32 s{sYE}, s{sYE}, s3")
    a(f"s_add_u32 s{sYE}, s{sYE}, {YE_OFF}")
    srd(a, SX, 14, 15, TENS)
    a(f"s_lshl_b32 s{sXO}, s2, 3")
    a(f"s_lshl_b32 s3, s{sW}, 1")
    a(f"s_add_u32 s{sXO}, s{sXO}, s3")
    a(f"s_mul_i32 s{sXO}, s{sXO}, {ROWB}")
    a(f"s_mul_i32 s3, s{sB}, 576")
    a(f"s_add_u32 s90, s3, s{sCH}")
    a("s_lshl_b32 s90, s90, 12")
    a(f"s_add_u32 s91, s3, s{sCE}")
    a("s_lshl_b32 s91, s91, 12")
    a(f"s_lshl_b32 s85, s{sW}, 10")
    a("s_add_u32 s91, s91, s85")
    a(f"s_add_u32 s85, s85, {UE}")
    if SPLIT():
        a(f"s_mul_i32 s92, s{sCH}, 456")
        a("s_lshr_b32 s92, s92, 16")
        a("s_lshl_b32 s92, s92, 11")
        a(f"s_lshl_b32 s3, s{sB}, 13")
        a("s_add_u32 s92, s92, s3")
        a(f"v_and_b32 v8, 31, v{vLANE}")
        a("v_lshlrev_b32 v8, 6, v8")
        a(f"v_add_u32 v{vP1}, s92, v8")
        a(f"s_add_u32 s92, s92, {F1B}")
        a(f"s_add_u32 s3, s3, {96*64}")
        a(f"s_add_u32 s93, s3, {F1B}")
        a(f"s_cmp_eq_u32 s{sW}, 1")
        a("s_cselect_b32 s3, s3, s93")
        a(f"s_cmp_eq_u32 s{sW}, 0")
        a("s_cselect_b32 s3, s92, s3")
        a(f"v_add_u32 v{vPB}, s3, v8")
    elif opt("clr", "fill") == "w23":
        a(f"s_lshl_b32 s92, s{sB}, 1")
        a(f"s_add_u32 s92, s92, s{sW}")
        a("s_lshl_b32 s92, s92, 12")
        a(f"v_add_u32 v{vP1}, s92, v{vYG}")
    else:
        a(f"s_lshl_b32 s92, s{sB}, 2")
        a(f"s_add_u32 s92, s92, s{sW}")
        a("s_lshl_b32 s92, s92, 11")
        a(f"v_and_b32 v8, 31, v{vLANE}")
        a("v_lshlrev_b32 v8, 6, v8")
        a(f"v_add_u32 v{vP1}, s92, v8")
    a(f"s_lshl_b32 s92, s{sW}, 12")
    a(f"s_add_u32 s92, s92, {F2A}")
    a(f"v_add_u32 v{vP2}, s92, v{vYG}")
    a(f"v_add_u32 v{vC1}, s{sHB}, v{vL16}")
    a(f"v_mov_b32 v{vC2}, s{sHB}")
    a(f"s_lshl_b32 s3, s{sW}, 10")
    a(f"s_add_u32 s3, s3, {4*HB}")
    a(f"v_add_u32 v{vC3}, s3, v{vL16}")
    a(f"v_mov_b32 v{vC4}, {4*HB}")
    a("s_lshl_b32 s101, s2, 6")
    a(f"s_add_u32 s101, s101, {F2A}")
    a("s_lshl_b32 s3, s2, 2")
    a(f"s_add_u32 s3, s3, s{sW}")
    a("s_lshl_b32 s3, s3, 6")
    a(f"s_add_u32 s3, s3, {FD}")
    a(f"s_cmp_eq_u32 s{sW}, 0")
    a("s_cselect_b32 s101, s101, s3")
    a("s_lshl_b32 s99, s2, 11")
    if opt("clr", "fill") == "w23":
        a(f"s_and_b32 s3, s{sW}, 1")
        a("s_lshl_b32 s3, s3, 10")
    else:
        a(f"s_lshl_b32 s3, s{sW}, 9")
    a("s_add_u32 s99, s99, s3")
    a(f"s_add_u32 s99, s99, {YE_OFF}")
    a("s_mov_b32 s97, 4096")
    a("s_mov_b32 s86, 0x3ae38e39")
    a("s_mov_b32 s87, 0x3727c5ac")

def p1_aload(a, aas):
    for r in range(8):
        for aa in aas:
            ks = 8 * aa + r
            a.lds(f"ds_read_b64 a[{4*ks}:{4*ks+1}], v5 offset:{64*ks}")
            a.lds(f"ds_read_b64 a[{4*ks+2}:{4*ks+3}], v5 offset:{64*ks+8}", ("A", ks))

def F(bank, c): return FB + 32 * bank + 4 * c
MF = "v_mfma_f32_16x16x32_bf16"

def p1_mfma(a, stflag, tail):
    inited = set()
    def mfma(acc, A_, B_, needs):
        a.need(*needs)
        c = vr(acc) if acc in inited else "0"
        inited.add(acc)
        a(f"{MF} {vr(acc)}, {A_}, {vr(B_)}, {c}")
    def L(c, s_, tag=None): return (c, lambda: a.lds(s_, tag))
    def I(s_): return (4, lambda: a(s_))
    def V(s_, tag=None): return (8, lambda: a.vm(s_, tag))
    def aeread(rp, aa, half): return L(4, f"ds_read_b64 {pr(AE+32*rp+4*aa+2*half)}, v6 offset:{512*aa + 64*rp + 8*half}", ("AE", rp, aa))
    evc = [0]
    def conv(j):
        e = EV + 2 * (evc[0] & 1); evc[0] += 1
        return [I(f"v_cvt_pk_bf16_f32 v{e}, v{ACC+4*j}, v{ACC+4*j+1}"), I(f"v_cvt_pk_bf16_f32 v{e+1}, v{ACC+4*j+2}, v{ACC+4*j+3}"),
                I(f"v_min_u32 v{e}, -2, v{e}"), I(f"v_min_u32 v{e+1}, -2, v{e+1}"),
                L(6, f"ds_write_b64 v{vTW}, {pr(e)} offset:{16*TR*j}", ("TW", j))]
    def barrier(*tags): return (8, lambda: (a.need(*tags), a("s_barrier")))
    def tread(k, reg): return L(6, f"ds_read_b128 {vr(reg)}, v{vTR} offset:{32*TR*k}", ("TRD", k))
    def tstore(k, reg):
        def f():
            a(f"s_add_u32 s3, s{sYM}, {k*64*16384}")
            a.need(("TRD", k))
            a.vm(f"buffer_store_dwordx4 {vr(reg)}, v3, {sq(SY)}, s3 offen {stflag}")
        return (8, f)
    EXP = 8 if SPLIT() else int(opt("exp", "6"))
    blocks = []
    for r in range(8): blocks.append(("a", [(c, r) for c in range(4)], (0, 1, 2, 3)))
    for r in range(8): blocks.append(("b", [(c, r) for c in range(4)], (4, 5, 6, 7)))
    for r in range(0, 8, 2): blocks.append(("c", [(4, r), (5, r), (4, r + 1), (5, r + 1)], (4, 5)))
    for r in range(8): blocks.append(("d", [(c, r) for c in range(4, 8)], (6, 7)))
    def FG(k, i): return FB + 16 * (k & 3) + 4 * i
    def fread(k, i):
        c, r = blocks[k][1][i]
        return L(6, f"ds_read_b128 {vr(FG(k,i))}, v7 offset:{64*r + 512*(7-c)}", ("F", k, i))
    def items_of(k):
        name, fr, J = blocks[k]; it = []
        order = [(i, j) for i in range(4) for j in J if j >= fr[i][0]]
        if k == len(blocks) - 1: order = [(i, j) for j in J for i in range(4) if j >= fr[i][0]]
        for i, j in order:
            c, r = fr[i]; tg = [("F", k, i), ("A", 8 * (j - c) + r)]
            if r == 0 and j == c: it.append((ACC + 4*j, vr(PD), FG(k, i), tg))
            it.append((ACC + 4*j, ar(4 * (8 * (j - c) + r)), FG(k, i), tg))
        return it
    KE = 8 + EXP
    GE = (KE - 2) & 3
    def FEr(rp, c): return (FE0 + 4 * c) if rp == 0 else FB + 16 * GE + 4 * c
    def feread(rp, c): return L(6, f"ds_read_b128 {vr(FEr(rp,c))}, v{vFE} offset:{64*rp + 512*(7-c)}", ("FE", rp, c))
    start = []; n = 0
    for k in range(len(blocks)):
        if k == KE: E0 = n; n += 36
        start.append(n); n += len(items_of(k))
    NS = n; assert NS == 332
    plan = [[] for _ in range(NS)]; load = [0] * NS
    def pin(slot, ops):
        for i, (c, f) in enumerate(ops):
            plan[slot + i].append(f); load[slot + i] += c
    def spread(ops, lo_, hi_, cap=8):
        for cap_ in range(cap, 40, 2):
            sl = lo_; pos = []; ld = list(load)
            for c, f in ops:
                while sl <= hi_ and ld[sl] + c > cap_: sl += 1
                if sl > hi_: break
                pos.append(sl); ld[sl] += c
            if len(pos) == len(ops): break
        assert len(pos) == len(ops)
        for (c, f), p_ in zip(ops, pos): plan[p_].append(f); load[p_] += c
        return pos[-1]
    for k in range(len(blocks) - 2):
        if SPLIT() and k in (14, 15):
            pin(E0 + 8 + 4 * (k - 14), [fread(k + 2, i) for i in range(4)])
        else:
            pin(start[k], [fread(k + 2, i) for i in range(4)])
    pin(E0, [feread(1, c) for c in range(8)])
    xl = [V(f"buffer_load_dwordx4 {vr(XR)}, v{vL16}, {sq(SX)}, s{sXO} offen nt"),
          V(f"buffer_load_dwordx4 {vr(XR+4)}, v{vL16}, {sq(SX)}, s{sXO} offen offset:{ROWB} nt"),
          V(f"buffer_load_ushort v{XR+8}, v{vL2}, {sq(SX)}, s{sXO} offen offset:1024 nt"),
          V(f"buffer_load_ushort v{XR+9}, v{vL2}, {sq(SX)}, s{sXO} offen offset:{1024+ROWB} nt", "X")]
    if opt("clr", "fill") == "fill":
        clr = [V(f"buffer_store_dwordx4 {vr(FE0)}, v{vL16}, {sq(SY)}, s88 offen offset:{1024*q} sc1") for q in range(4)]
        def clre():
            a("s_mov_b32 exec_hi, 0")
            a.vm(f"buffer_store_dwordx4 {vr(FE0)}, v{vL16}, {sq(SY)}, s99 offen sc1")
            a("s_mov_b64 exec, -1")
        cs = int(opt("cs", "6")); cd = int(opt("cd", "2"))
        for i, op in enumerate(clr + [(8, clre)]): spread([op], cs + cd * i, cs + cd * i + 10)
    if opt("ein", "0") == "1":
        ops_e, hwe = h_copy_ops(a, vC3, [0], vC4)
        spread(ops_e[:3], 4, 8)
        spread(ops_e[3:], 18, 70, 6)
    else:
        hwe = ("none",)
        ao = []
        for r in range(8):
            for aa in range(4, 8):
                ks = 8 * aa + r
                ao += [L(4, f"ds_read_b64 a[{4*ks}:{4*ks+1}], v5 offset:{64*ks}"), L(4, f"ds_read_b64 a[{4*ks+2}:{4*ks+3}], v5 offset:{64*ks+8}", ("A", ks))]
        if opt("pre2", "0") != "1": spread(ao, 4, 110, int(opt("acap", "6")))
    XA = int(opt("xa", "140" if SPLIT() else "92"))
    def xa():
        a("s_waitcnt vmcnt(0)"); a.vd = a.vn
        a.need(hwe)
        a("s_barrier")
        signal(a, 101); a.vn += 1
    def xa_split():
        a("s_waitcnt vmcnt(0)"); a.vd = a.vn
        a(f"v_cmp_ne_u32 vcc, s{sTAG}, v253")
        a(f"s_mov_b32 m0, s{sUB}")
        a("s_cbranch_vccnz t2_slow")
        a.label("t2_back")
        a("s_barrier")
        for q in (1, 0):
            a.vm(f"buffer_load_dwordx4 v{vL16}, {sq(SU)}, s90 offen offset:{1024*q} sc1 lds", f"U{q}")
        a("s_mov_b32 m0, s85")
        a("s_nop 0")
        a.vm(f"buffer_load_dwordx4 v{vL16}, {sq(SU)}, s91 offen sc1 lds", "UE")
        signal(a, 101); a.vn += 1
    def slow2(t):
        t.label("t2_slow")
        t("s_mov_b32 s92, 0x20000")
        t.label("t2_spin")
        t("s_sleep 2")
        t(f"buffer_load_dword v253, v{vPB}, {sq(SF)}, 0 offen sc1")
        t("s_waitcnt vmcnt(0)")
        t(f"v_cmp_ne_u32 vcc, s{sTAG}, v253")
        t("s_sub_u32 s92, s92, 1")
        t("s_cbranch_scc1 t2_back")
        t("s_cbranch_vccnz t2_spin")
        t("s_branch t2_back")
    if SPLIT():
        tail.append(slow2)
        pin(XA - int(opt("pbd", "44")), [V(f"buffer_load_dword v253, v{vPB}, {sq(SF)}, 0 offen sc1")])
        pin(XA, [(40, xa_split)])
        X0 = E0 - 12
        pin(X0, [(8, lambda: (a.needv("UE"), a("s_barrier")))])
        XE = int(opt("xe", "30"))
        pin(XE, [(8, lambda: a("s_barrier"))])
        for i, op in enumerate(xl): spread([op], XA + 2 + 3 * i, XA + 12 + 3 * i)
        spread([aeread(rp, aa, h) for rp in range(2) for aa in range(8) for h in range(2)], 100, E0 - 12, 6)
        spread([feread(0, c) for c in range(8)], X0 + 1, E0 - 2)
    else:
        pin(XA, [(20, xa)])
        for i, op in enumerate(xl): spread([op], XA + 2 + 3 * i, XA + 12 + 3 * i)
        spread([aeread(rp, aa, h) for rp in range(2) for aa in range(8) for h in range(2)], XA + 1, E0 - 12, 6)
        spread([feread(0, c) for c in range(8)], E0 - 14, E0 - 2)
    B4 = E0 + 36
    if SPLIT(): spread(conv(0) + conv(1) + conv(2) + conv(3), 150, E0 - 14, 6)
    else: spread(conv(0) + conv(1) + conv(2) + conv(3), E0 + 9, B4 + 7, 6)
    e_ = spread([L(8, f"ds_write_b128 v{vRW}, {vr(ACCE+4*s_)} offset:{4096*s_}", ("RW", s_)) for s_ in range(4)], B4 + 8, B4 + 15)
    X1 = e_ + 6
    XD = X1 if SPLIT() else int(opt("xd", "262"))
    if XD != X1: pin(X1, [barrier(("RW", 3), ("TW", 3))])
    pin(XD - int(opt("pcd", "44")), [V(f"buffer_load_dword v253, v{vP2}, {sq(SF)}, 0 offen sc1", "PC")])
    def xd():
        a.needv("PC")
        a(f"v_cmp_ne_u32 vcc, s{sTAG}, v253")
        a.need(("RW", 3), ("TW", 3))
        a("s_cbranch_vccnz c_slow")
        a.label("c_back")
        a("s_barrier")
    pin(XD, [(16, xd)])
    def slow(t):
        t.label("c_slow")
        t("s_mov_b32 s92, 0x20000")
        t.label("c_spin")
        t("s_sleep 4")
        t(f"buffer_load_dword v253, v{vP2}, {sq(SF)}, 0 offen sc1")
        t("s_waitcnt vmcnt(0)")
        t(f"v_cmp_ne_u32 vcc, s{sTAG}, v253")
        t("s_sub_u32 s92, s92, 1")
        t("s_cbranch_scc1 c_back")
        t("s_cbranch_vccnz c_spin")
        t("s_branch c_back")
    tail.append(slow)
    e_ = spread([tread(0, TRD), tread(1, TRD + 4)] +
                [L(6, f"ds_read_b128 {vr(RED+4*i)}, v{vRR} offset:{1024*i}", ("RR", i)) for i in range(4)] +
                [L(4, f"ds_read_b64 {pr(UD)}, v{vUD}", "UD")], X1 + 1, X1 + 16)
    t0_ = XD + (9 if XD == X1 else 1)
    spread([tstore(0, TRD)], t0_, t0_ + 8); spread([tstore(1, TRD + 4)], t0_ + 2, t0_ + 12)
    red = [(4, lambda: (a.need("UD"), a(f"v_pk_add_f32 {pr(RED)}, {pr(RED)}, {pr(RED+4)}"))), I(f"v_pk_add_f32 {pr(RED+2)}, {pr(RED+2)}, {pr(RED+6)}"),
           I(f"v_pk_add_f32 {pr(RED+8)}, {pr(RED+8)}, {pr(RED+12)}"), I(f"v_pk_add_f32 {pr(RED+10)}, {pr(RED+10)}, {pr(RED+14)}"),
           I(f"v_pk_add_f32 {pr(RED)}, {pr(RED)}, {pr(RED+8)}"), I(f"v_pk_add_f32 {pr(RED+2)}, {pr(RED+2)}, {pr(RED+10)}"),
           I(f"v_and_b32 v{RED+4}, 0xffff0000, v{UD+1}"), I(f"v_lshlrev_b32 v{RED+5}, 16, v{UD+1}"),
           I(f"v_and_b32 v{RED+6}, 0xffff0000, v{UD}"), I(f"v_lshlrev_b32 v{RED+7}, 16, v{UD}")]
    red += [I(f"v_fmac_f32 v{RED+i}, s{sDE}, v{RED+4+i}") for i in range(4)]
    red += [I(f"v_cvt_pk_bf16_f32 v{STG}, v{RED}, v{RED+1}"), I(f"v_cvt_pk_bf16_f32 v{STG+1}, v{RED+2}, v{RED+3}"),
            I(f"v_min_u32 v{STG}, -2, v{STG}"), I(f"v_min_u32 v{STG+1}, -2, v{STG+1}")]
    red += [L(6, f"ds_write_b64 v{vEW}, {pr(STG)}"), L(6, f"ds_read_b128 {vr(ES)}, v{vER}", "ES")]
    e_ = spread(red, e_ + 8, e_ + 44)
    def estore():
        a.need("ES"); a("s_mov_b32 exec_hi, 0")
        a.vm(f"buffer_store_dwordx4 {vr(ES)}, v4, {sq(SY)}, s{sYE} offen {stflag}")
        a("s_mov_b64 exec, -1")
    spread([(8, estore)], max(e_ + 6, XD + 5), max(e_ + 6, XD + 5) + 10)
    D0 = start[20]
    e_ = spread(conv(4) + conv(5), D0 + 8, D0 + 22)
    pin(e_ + 5, [barrier(("TW", 5))])
    spread([tread(2, FE0)], e_ + 6, e_ + 10)
    e_ = spread([tstore(2, FE0)], max(e_ + 14, XD + 7), max(e_ + 14, XD + 7) + 6)
    if opt("ypre", "0") == "1":
        def ypre():
            a(f"s_cmp_ge_u32 s2, {opt('late', '192')}")
            a("s_cbranch_scc1 no_ypre")
            for f in y_issue_ops(a): f()
            a.vn -= 5
            a.label("no_ypre")
        pin(max(int(opt("yp", str(NS - 10))), e_ + 1), [(40, ypre)])
    if not SPLIT(): a.needv("U2")
    stamp(a, 9); stamp(a, 24, True)
    for k in range(2):
        for i in range(4): fread(k, i)[1]()
    qs = {7: 0, 9: 1, KE - 1: 2, 15: 4, 19: 5, 23: 6, 26: 7}
    for k in range(len(blocks)):
        if k == KE:
            a(f"s_cmp_eq_u32 s{sHF}, 1")
            a("s_cbranch_scc1 ex_h1")
            save = (a.ln, a.ld, dict(a.lt), set(inited), a.vn, a.vd)
            for h in range(2):
                if h == 1:
                    a("s_branch ex_join")
                    a.label("ex_h1")
                    end0 = (a.ln, a.ld)
                    a.ln, a.ld, a.lt, inited = save[0], save[1], dict(save[2]), set(save[3])
                    vend = (a.vn, a.vd); a.vn, a.vd = save[4:6]
                its = []
                for rp in range(2):
                    for c in range(8):
                        for s_, j in enumerate(TJ[h]):
                            if j >= c:
                                its.append((ACCE + 4*s_, vr(AE + 32*rp + 4*(j - c)), FEr(rp, c), [("AE", rp, j - c), ("FE", rp, c)]))
                for i, it in enumerate(its):
                    mfma(*it)
                    for f in plan[E0 + i]: f()
            a.label("ex_join")
            assert a.ln == end0[0] and a.vn == vend[0]
            a.vd = min(a.vd, vend[1])
            a.ld = min(a.ld, end0[1])
            qstamp(a, 3)
        for i, it in enumerate(items_of(k)):
            mfma(*it)
            for f in plan[start[k] + i]: f()
        if k in qs: qstamp(a, qs[k])
    stamp(a, 7); stamp(a, 25, True)
    a("s_nop 3")
    for j in (6, 7):
        for c, f in conv(j): f()
    barrier(("TW", 7))[1]()
    tread(3, TRD + 4)[1]()
    tstore(3, TRD + 4)[1]()
    stamp(a, 8); stamp(a, 26, True)
    qflush(a)
    if "--plan" in sys.argv: print(load, XA, X1, E0, D0)

Z, YA, YB, G = 8, 26, 44, 62
SS, QQ, RS, ND, C0 = 80, 82, 84, 86, 88
YW = 96

def p2_sums(a):
    a(f"v_pk_add_f32 {pr(SS)}, {pr(Z)}, {pr(Z+2)}")
    a(f"v_pk_mul_f32 {pr(QQ)}, {pr(Z)}, {pr(Z)}")
    a(f"v_pk_fma_f32 {pr(QQ)}, {pr(Z+2)}, {pr(Z+2)}, {pr(QQ)}")
    for e in range(2, 9):
        a(f"v_pk_add_f32 {pr(SS)}, {pr(SS)}, {pr(Z+2*e)}")
        a(f"v_pk_fma_f32 {pr(QQ)}, {pr(Z+2*e)}, {pr(Z+2*e)}, {pr(QQ)}")

def p2_chain(a, fill):
    fill = list(fill)
    def gap(n):
        for _ in range(n):
            if fill: a(fill.pop(0))
            else: a("s_nop 0")
    T, Uq = 90, 91
    gap(2)
    a(f"v_permlane32_swap_b32 v{SS}, v{SS+1}")
    a(f"v_permlane32_swap_b32 v{QQ}, v{QQ+1}")
    a(f"v_add_f32 v{SS}, v{SS}, v{SS+1}")
    a(f"v_add_f32 v{QQ}, v{QQ}, v{QQ+1}")
    gap(2)
    a(f"v_permlane16_swap_b32 v{SS}, v{QQ}")
    a(f"v_add_f32 v{T}, v{SS}, v{QQ}")
    for m in ("quad_perm:[1,0,3,2]", "quad_perm:[2,3,0,1]", "row_half_mirror", "row_mirror"):
        gap(2)
        a(f"v_add_f32_dpp v{T}, v{T}, v{T} {m} {DPP}")
    a(f"v_mov_b32 v{Uq}, v{T}")
    gap(2)
    a(f"v_permlane16_swap_b32 v{T}, v{Uq}")
    a(f"v_mul_f32 v{T}, s86, v{T}")
    a(f"v_mul_f32 v{Uq}, s86, v{Uq}")
    a(f"v_fma_f32 v{Uq}, -v{T}, v{T}, v{Uq}")
    a(f"v_max_f32 v{Uq}, 0, v{Uq}")
    a(f"v_add_f32 v{Uq}, s87, v{Uq}")
    a(f"v_rsq_f32 v{RS}, v{Uq}")
    gap(1)
    a(f"v_mul_f32 v{ND}, v{RS}, v{T}")
    a(f"v_mov_b32 v{RS+1}, v{RS}")
    a(f"v_mov_b32 v{ND+1}, v{ND}")
    gap(2)
    a(f"v_permlane32_swap_b32 v{RS}, v{RS+1}")
    a(f"v_permlane32_swap_b32 v{ND}, v{ND+1}")
    while fill: a(fill.pop(0))

def p2_first(a):
    a.needv("X")
    for q in range(4):
        for row in range(2):
            a(f"v_lshlrev_b32 v{Z+4*q+row}, 16, v{XR+4*row+q}")
            a(f"v_and_b32 v{Z+4*q+2+row}, 0xffff0000, v{XR+4*row+q}")
    a(f"v_lshlrev_b32 v{Z+16}, 16, v{XR+8}")
    a(f"v_lshlrev_b32 v{Z+17}, 16, v{XR+9}")
    a(f"v_readfirstlane_b32 s92, v{Z}")
    a(f"v_readfirstlane_b32 s93, v{Z+1}")
    a("s_nop 1")
    a(f"v_mov_b32 v{C0}, s92")
    a(f"v_mov_b32 v{C0+1}, s93")
    for e in range(9):
        a(f"v_pk_add_f32 {pr(Z+2*e)}, {pr(Z+2*e)}, {pr(C0)} neg_lo:[0,1] neg_hi:[0,1]")
    p2_sums(a)
    p2_chain(a, [])

def y_ld(i):
    if i == 4: return f"buffer_load_dwordx4 {vr(YP+16)}, v{vYG}, {sq(SY)}, s89 offen sc1"
    return f"buffer_load_dwordx4 {vr(YP+4*i)}, v{vL16}, {sq(SY)}, s88 offen offset:{1024*i} sc1"
def y_issue_ops(a):
    def e():
        a("s_mov_b32 exec_hi, 0"); a.vm(y_ld(4)); a("s_mov_b64 exec, -1")
    return [e] + [(lambda i: lambda: a.vm(y_ld(i)))(i) for i in range(4)]

def y_write(a):
    for q in range(4):
        a(f"ds_write_b128 v{vYM}, {vr(YP+4*q)} offset:{128*q}")
    a("s_mov_b32 exec_hi, 0")
    a(f"ds_write_b128 v{vYE}, {vr(YP+16)}")
    a("s_mov_b64 exec, -1")
    a("s_waitcnt lgkmcnt(0)")

def y_check(a):
    M = [4, 6, 8, 10, 12]
    for i in range(4):
        a(f"s_mov_b64 s[{M[i]}:{M[i]+1}], -1")
    a("s_mov_b32 s12, -1")
    a("s_mov_b32 s13, 0")
    a("s_mov_b32 s92, 0x20000")
    if opt("ypre", "0") == "1":
        a(f"s_cmp_ge_u32 s2, {opt('late', '192')}")
        a("s_cbranch_scc1 yc_late")
        a("s_waitcnt vmcnt(1)")
        a("s_branch yc_chk")
        a.label("yc_late")
    a("s_waitcnt vmcnt(0)")
    a("s_branch yc_load")
    a.label("yc_loop")
    a("s_waitcnt vmcnt(0)")
    a.label("yc_chk")
    for i in range(5):
        r = YP + 4 * i
        a(f"s_mov_b64 exec, s[{M[i]}:{M[i]+1}]")
        a(f"v_max3_u32 v238, v{r}, v{r+1}, v{r+2}")
        a(f"v_max_u32 v238, v238, v{r+3}")
        a(f"v_cmp_eq_u32 s[{M[i]}:{M[i]+1}], -1, v238")
    a("s_or_b64 s[14:15], s[4:5], s[6:7]")
    a("s_or_b64 s[14:15], s[14:15], s[8:9]")
    a("s_or_b64 s[14:15], s[14:15], s[10:11]")
    a("s_or_b64 s[14:15], s[14:15], s[12:13]")
    a("s_cbranch_scc0 yc_done")
    a("s_sub_u32 s92, s92, 1")
    a("s_cbranch_scc1 yc_done")
    if int(opt("ysleep", "2")): a(f"s_sleep {opt('ysleep','2')}")
    a.label("yc_load")
    for i in range(5):
        a(f"s_mov_b64 exec, s[{M[i]}:{M[i]+1}]")
        a(f"s_cbranch_execz yc_skip{i}")
        a(y_ld(i))
        a.label(f"yc_skip{i}")
    a("s_branch yc_loop")
    a.label("yc_done")
    a("s_mov_b64 exec, -1")

def p2_rest(a, stflag):
    for b in range(2):
        for e in range(9):
            a(f"ds_read_b64 {pr(YW + 2*(9*b+e))}, v{vYR} offset:{YBR*b + YR*e}")
    a.label("p2_body")
    a(f"s_and_b32 s90, s{sW}, 1")
    a("s_mul_i32 s90, s90, 0x04040000")
    a("s_add_u32 s91, s90, 0x03020c0c")
    a("s_add_u32 s90, s90, 0x01000c0c")
    def unp(b, e):
        r = YW + 2 * (9 * b + e); y = (YA if b == 0 else YB) + 2 * e
        return [f"v_perm_b32 v{y}, v{r+1}, v{r}, s90", f"v_perm_b32 v{y+1}, v{r+1}, v{r}, s91"]
    for e in range(9):
        a(f"s_waitcnt lgkmcnt({min(15, 17 - e)})")
        for s_ in unp(0, e): a(s_)
        a(f"v_pk_mul_f32 {pr(G+2*e)}, {pr(Z+2*e)}, {pr(YA+2*e)}")
    def post(Y):
        for e in range(9):
            a(f"v_pk_fma_f32 {pr(Z+2*e)}, {pr(G+2*e)}, {pr(RS)}, {pr(Z+2*e)}")
        for e in range(9):
            a(f"v_pk_fma_f32 {pr(Z+2*e)}, {pr(Y+2*e)}, {pr(ND)}, {pr(Z+2*e)} neg_lo:[0,1,0] neg_hi:[0,1,0]")
    qstamp(a, 0, "2")
    post(YA)
    qstamp(a, 1, "2")
    a("s_waitcnt lgkmcnt(0)")
    for layer, Y in ((2, YB), (3, YA), (4, YB)):
        p2_sums(a)
        if layer == 3: qstamp(a, 3, "2")
        fill = []
        for e in range(9):
            if layer == 2: fill += unp(1, e)
            fill.append(f"v_pk_mul_f32 {pr(G+2*e)}, {pr(Z+2*e)}, {pr(Y+2*e)}")
        if layer == 4:
            fill += [f"v_pk_add_f32 {pr(Z+2*e)}, {pr(Z+2*e)}, {pr(C0)}" for e in range(9)]
        p2_chain(a, fill)
        a("s_nop 0")
        if layer == 3: qstamp(a, 4, "2")
        post(Y)
        qstamp(a, {2: 2, 3: 5, 4: 6}[layer], "2")
    for row in range(2):
        for q in range(4):
            a(f"v_cvt_pk_bf16_f32 v{XR+4*row+q}, v{Z+4*q+row}, v{Z+4*q+2+row}")
    a(f"v_cvt_pk_bf16_f32 v{XR+8}, v{Z+16}, v{Z+17}")
    if opt("dry2", "0") == "1": a("s_cbranch_execz p2_dry_back")
    a(f"buffer_store_dwordx4 {vr(XR)}, v{vL16}, {sq(SO)}, s{sXO} offen {stflag}")
    a(f"buffer_store_dwordx4 {vr(XR+4)}, v{vL16}, {sq(SO)}, s{sXO} offen offset:{ROWB} {stflag}")
    a(f"buffer_store_short v{XR+8}, v{vL2}, {sq(SO)}, s{sXO} offen offset:1024 {opt('ost2', stflag)}")
    a(f"buffer_store_short_d16_hi v{XR+8}, v{vL2}, {sq(SO)}, s{sXO} offen offset:{1024+ROWB} {opt('ost2', stflag)}")

def signal(a, off_s):
    a(f"v_mov_b32 v238, s{off_s}")
    a(f"v_mov_b32 v239, s{sTAG}")
    a("s_mov_b64 exec, 1")
    a(f"buffer_store_dword v239, v238, {sq(SF)}, 0 offen sc1")
    a("s_mov_b64 exec, -1")

def poll(a, tag, vaddr, all64):
    a("s_mov_b32 s92, 0x20000")
    if not all64: a("s_mov_b32 exec_hi, 0")
    a.label(f"{tag}_poll")
    a(f"buffer_load_dword v238, v{vaddr}, {sq(SF)}, 0 offen sc1")
    a("s_waitcnt vmcnt(0)")
    a(f"v_cmp_ne_u32 vcc, s{sTAG}, v238")
    a("s_and_b64 exec, exec, vcc")
    a(f"s_cbranch_execz {tag}_ok")
    if int(opt("sleep", "2")): a(f"s_sleep {opt('sleep', '2')}")
    a("s_sub_u32 s92, s92, 1")
    a("s_cmp_lg_u32 s92, 0")
    a(f"s_cbranch_scc1 {tag}_poll")
    a.label(f"{tag}_ok")
    a("s_mov_b64 exec, -1")

def epoch_issue(a):
    a(f"v_mov_b32 v253, {EP}")
    a.vm(f"buffer_load_dword v254, v253, {sq(SF)}, 0 offen sc1", "EP")
def epoch_use(a):
    a.needv("EP")
    a(f"v_readfirstlane_b32 s{sTAG}, v254")
    a(f"s_mul_i32 s{sTAG}, s{sTAG}, 0x9E3779B1")
    a(f"s_add_u32 s{sTAG}, s{sTAG}, 0x7F4A7C15")

def elect_and_signal(a, n, skip):
    a(f"v_mov_b32 v238, {LDS_CTR}")
    a("v_mov_b32 v239, 1")
    a(f"s_lshl_b32 s90, s{sFI}, 6")
    a("s_waitcnt vmcnt(0)")
    a("s_mov_b64 exec, 1")
    a("ds_add_rtn_u32 v253, v238, v239")
    a("s_waitcnt lgkmcnt(0)")
    a("v_readfirstlane_b32 s3, v253")
    a("s_mov_b64 exec, -1")
    a(f"s_cmp_eq_u32 s3, {n-1}")
    a(f"s_cbranch_scc0 {skip}")
    signal(a, 90)
    stamp(a, 4)
    a.label(skip)

def kernel(name, body, vgpr, accum):
    return f""".text
.globl {name}
.p2align 8
.type {name},@function
{name}:
{body}{name}_end:
    s_endpgm
.section .rodata,"a"
.p2align 6
.amdhsa_kernel {name}
  .amdhsa_next_free_vgpr {vgpr}
  .amdhsa_next_free_sgpr 102
  .amdhsa_accum_offset {accum}
  .amdhsa_group_segment_fixed_size 0
  .amdhsa_kernarg_size 120
  .amdhsa_user_sgpr_count 2
  .amdhsa_user_sgpr_kernarg_segment_ptr 1
  .amdhsa_system_sgpr_workgroup_id_x 1
.end_amdhsa_kernel
"""
def header(launches):
    hdr = [l for l in open(REF).read().split("\n") if l.startswith(";") and "@launch" not in l]
    return "\n".join(hdr) + "\n" + "\n".join(launches) + '\n.amdgcn_target "amdgcn-amd-amdhsa--gfx950"\n'

def flow_split(a, hdma5, srds0, common_srds, caddr, elect, hl):
    p0_addr(a)
    a(f"s_cmp_eq_u32 s{sT2}, 0")
    a("s_cbranch_scc0 t2_path")
    a("s_waitcnt lgkmcnt(0)")
    stamp(a, 1)
    srds0(a)
    p0_issue(a, opt("p0ld", "nt"))
    srd(a, SH, 10, 11, TENS)
    common_srds(a)
    epoch_issue(a)
    stamp(a, 2)
    p1_prep_a(a)
    p0_compute(a, opt("ust", "sc1"))
    a("s_barrier")
    hdma5(a)
    stamp(a, 3)
    caddr(a)
    epoch_use(a)
    a("s_waitcnt lgkmcnt(0)")
    p1_prep_b(a)
    elect(a, 5, "t1_nosig", 1, 0, 0)
    a("s_waitcnt vmcnt(1)")
    a("s_branch t1_h")
    a.label("t1_nosig")
    a("s_waitcnt vmcnt(0)")
    a.label("t1_h")
    a.reset()
    stamp(a, 18)
    h_copies(a, vC1, [0, 1], vC2)
    p1_aload(a, range(4))
    stamp(a, 5)
    poll(a, "e1", vP1, True)
    stamp(a, 6)
    a(f"s_mov_b32 m0, s{sUB}")
    a(f"s_add_u32 s3, s90, {2*4096}")
    for q in (3, 2):
        a(f"buffer_load_dwordx4 v{vL16}, {sq(SU)}, s90 offen offset:{1024*q} sc1 lds")
    a(f"s_add_u32 s92, s{sUB}, {2*US}")
    a("s_mov_b32 m0, s92")
    a("s_nop 0")
    for q in (3, 2):
        a(f"buffer_load_dwordx4 v{vL16}, {sq(SU)}, s3 offen offset:{1024*q} sc1 lds")
    a.reset()
    h_copies(a, vC1, [2, 3])
    a("s_waitcnt vmcnt(0)")
    a("s_branch join")
    a.label("t2_path")
    a.reset()
    a(f"v_mov_b32 v56, {LDS_CTR}")
    a("v_mov_b32 v58, 0")
    a("v_mov_b32 v59, 0")
    a("ds_write_b64 v56, v[58:59]")
    p1_prep_a(a)
    a("s_waitcnt lgkmcnt(0)")
    srds0(a)
    srd(a, SH, 10, 11, TENS)
    common_srds(a)
    epoch_issue(a)
    a("s_waitcnt lgkmcnt(0)")
    epoch_use(a)
    a("s_barrier")
    hfirst = opt("hfirst", "0") == "1"
    if hfirst: hdma5(a)
    p0_issue(a, opt("p0ld", "nt"))
    if not hfirst: hdma5(a)
    stamp(a, 2)
    if hfirst:
        caddr(a)
        a.needv("h")
        stamp(a, 18)
        sv = (a.vn, a.vd, a.vt); a.reset()
        h_copies(a, vC1, [0, 1], vC2); p1_aload(a, range(4)); h_copies(a, vC1, [2, 3])
        a.vn, a.vd, a.vt = sv
    p0_compute(a, opt("ust", "sc1"), "2")
    stamp(a, 3)
    caddr(a)
    p1_prep_b(a)
    if not hfirst:
        a.needv("h")
        stamp(a, 18)
        a("s_waitcnt lgkmcnt(0)")
        a.reset()
        h_copies(a, vC1, [0, 1], vC2); p1_aload(a, range(4)); h_copies(a, vC1, [2, 3])
    elect(a, 0, "join", 1, 4, F1B)
    a.label("join")
    a("s_waitcnt lgkmcnt(0)")
    a("s_barrier")
    a.reset()
    for r in range(FE0, FE0 + 4): a(f"v_mov_b32 v{r}, -1")
    h_copies(a, vC3, [0], vC4)

def flow_unsplit(a, hdma5, srds0, common_srds, caddr, elect, hl):
    a(f"s_cmp_eq_u32 s{sW}, 3")
    a("s_cbranch_scc1 w3_path")
    p0_addr(a)
    a("s_waitcnt lgkmcnt(0)")
    stamp(a, 1)
    srds0(a)
    p0_issue(a, opt("p0ld", "nt"))
    srd(a, SH, 10, 11, TENS)
    common_srds(a)
    epoch_issue(a)
    hpos = opt("hpos", "late")
    if hpos == "early":
        a("s_barrier")
        hdma5(a)
    stamp(a, 2)
    if opt("arr", "0") == "1":
        a("s_waitcnt vmcnt(14)"); stamp(a, 19); a("s_waitcnt vmcnt(1)"); stamp(a, 15)
    p1_prep_a(a)
    p0_compute(a, opt("ust", "sc1"))
    stamp(a, 16)
    if hpos == "late":
        hdma5(a)
        a("s_barrier")
    stamp(a, 3)
    caddr(a)
    epoch_use(a)
    a("s_waitcnt lgkmcnt(0)")
    p1_prep_b(a)
    if hpos == "late":
        elect(a, 5, "nosig", 2)
        a("s_waitcnt vmcnt(1)")
        a("s_branch have_h")
        a.label("nosig")
        a("s_waitcnt vmcnt(0)")
        a("s_branch have_h")
    else:
        a.reset()
        h_copies(a, vC1, [0, 1], vC2)
        p1_aload(a, range(4))
        elect(a, 0, "part2", 2)
        a("s_branch part2")
    a.reset()
    a.label("w3_path")
    if opt("dry0", "0") == "1":
        a("s_mov_b64 exec, 0")
        a("s_branch p0_body")
        a.label("p0_dry_back")
        a("s_mov_b64 exec, -1")
    caddr(a)
    a(f"v_mov_b32 v56, {LDS_CTR}")
    a(f"ds_write_b32 v56, v{ZR}")
    p1_prep_a(a)
    a("s_waitcnt lgkmcnt(0)")
    srd(a, SH, 10, 11, TENS)
    common_srds(a)
    ntw = int(opt("tw", "0"))
    if ntw:
        a(f"s_cmp_ge_u32 s2, {ntw}")
        a("s_cbranch_scc1 no_tw")
        srd(a, SX, 14, 15, TENS)
        a(f"v_mul_u32_u24 v57, 0x12000, v{vLANE}")
        for sr in (SU, SY):
            a(f"buffer_load_dword v58, v57, {sq(sr)}, 0 offen nt")
        a(f"v_mul_u32_u24 v57, 0x9000, v{vLANE}")
        for sr in (SX, SO, SH):
            a(f"buffer_load_dword v58, v57, {sq(sr)}, 0 offen nt")
        a.label("no_tw")
    epoch_issue(a)
    a("s_waitcnt lgkmcnt(0)")
    p1_prep_b(a)
    epoch_use(a)
    a("s_waitcnt lgkmcnt(0)")
    a("s_barrier")
    hdma5(a)
    a("s_waitcnt vmcnt(0)")
    a.label("have_h")
    a.reset()
    stamp(a, 18)
    h_copies(a, vC1, [0, 1], vC2)
    p1_aload(a, range(4))
    a.label("part2")
    a.reset()
    pre = opt("pre", "0") == "1"
    if pre:
        h_copies(a, vC1, [2, 3])
        if opt("ein", "0") == "1" or opt("pre2", "0") == "1": p1_aload(a, range(4, 8))
    stamp(a, 5)
    if opt("clr", "fill") == "w23":
        a(f"s_cmp_lt_u32 s{sW}, 2")
        a("s_cbranch_scc1 do_poll")
        for r in range(FE0, FE0 + 4): a(f"v_mov_b32 v{r}, -1")
        a("s_sub_u32 s92, s88, 8192")
        for so in ("s92", "s88"):
            for q in range(4):
                a(f"buffer_store_dwordx4 {vr(FE0)}, v{vL16}, {sq(SY)}, {so} offen offset:{1024*q} sc1")
        a(f"buffer_store_dwordx4 {vr(FE0)}, v{vL16}, {sq(SY)}, s99 offen sc1")
        a("s_branch e1_ok")
        a.label("do_poll")
    poll(a, "e1", vP1, True)
    a("s_barrier")
    a.reset()
    stamp(a, 6)
    a(f"s_mov_b32 m0, s{sUB}")
    a("s_nop 0")
    for q in (3, 2, 1, 0):
        a.vm(f"buffer_load_dwordx4 v{vL16}, {sq(SU)}, s90 offen offset:{1024*q} sc1 lds", f"U{q}")
    a("s_mov_b32 m0, s85")
    a("s_nop 0")
    a.vm(f"buffer_load_dwordx4 v{vL16}, {sq(SU)}, s91 offen sc1 lds", "UE")
    for r in range(FE0, FE0 + 4): a(f"v_mov_b32 v{r}, -1")
    if opt("clr", "fill") == "pre":
        for q in range(4):
            a.vm(f"buffer_store_dwordx4 {vr(FE0)}, v{vL16}, {sq(SY)}, s88 offen offset:{1024*q} sc1")
        a("s_mov_b32 exec_hi, 0")
        a.vm(f"buffer_store_dwordx4 {vr(FE0)}, v{vL16}, {sq(SY)}, s99 offen sc1")
        a("s_mov_b64 exec, -1")
    if not pre:
        h_copies(a, vC1, [2, 3])
        if opt("ein", "0") == "1": p1_aload(a, range(4, 8))
    if opt("ein", "0") != "1": h_copies(a, vC3, [0], vC4)

def gen_fused():
    K = NAME + "_kernel"
    sent = opt("x2", "flag") == "sent"
    NEL = 4 if sent else 3
    out = header([f"; @launch grid=(256,1,1) block=(256,1,1) lds={LDS_TOT + int(opt('ldsx', '0'))}"])
    a = A()
    hl = opt("hld", "nt")
    stamp(a, 0)
    if int(opt("pad", "0")):
        a("s_memrealtime s[94:95]"); a("s_waitcnt lgkmcnt(0)"); a("v_mov_b32 v255, s94")
    prologue(a, K + "_end")
    def common_srds(a):
        srd(a, SF, 20, 21, F_BYTES, F_OFF)
        srd(a, SU, 20, 21, U_BYTES, U_OFF)
        srd(a, SY, 20, 21, Y_BYTES, YM_OFF)
        srd(a, SO, 16, 17, TENS)
        a(f"s_lshr_b32 s90, s{sCH}, 1")
        a("s_lshl_b32 s90, s90, 2")
        a(f"s_lshr_b32 s91, s{sCE}, 1")
        a("s_lshl_b32 s91, s91, 2")
        a(f"s_load_dword s{sDM}, s[12:13], s90")
        a(f"s_load_dword s{sDE}, s[12:13], s91")
    tail = []
    def caddr(a):
        for r in range(ZR, ZR + 4): a(f"v_mov_b32 v{r}, 0")
        a(f"v_add_u32 v{vC1}, s{sHB}, v{vL16}")
        a(f"v_mov_b32 v{vC2}, s{sHB}")
        a(f"v_mov_b32 v{vC4}, {4*HB}")
    def hsec(a):
        a.reset()
        h_copies(a, vC1, [0, 1], vC2)
        p1_aload(a, range(4))
        h_copies(a, vC1, [2, 3])
        p1_aload(a, range(4, 8))
    def elect(a, wait, nxt, last, coff=0, foff=0):
        a(f"v_mov_b32 v238, {LDS_CTR + coff}")
        a("v_mov_b32 v239, 1")
        a(f"s_lshl_b32 s92, s{sFI}, 6")
        if foff: a(f"s_add_u32 s92, s92, {foff}")
        a(f"s_waitcnt vmcnt({wait})")
        a("s_mov_b64 exec, 1")
        a("ds_add_rtn_u32 v253, v238, v239")
        a("s_waitcnt lgkmcnt(0)")
        a("v_readfirstlane_b32 s3, v253")
        a("s_mov_b64 exec, -1")
        a(f"s_cmp_eq_u32 s3, {last}")
        a(f"s_cbranch_scc0 {nxt}")
        signal(a, 92)
        stamp(a, 4)
    def hdma5(a):
        h_dma(a, sCH, sHB, 0, hl, None)
        a(f"s_lshl_b32 s3, s{sCE}, 12")
        a(f"s_lshl_b32 s92, s{sW}, 10")
        a("s_add_u32 s3, s3, s92")
        a(f"s_add_u32 s92, s92, {4*HB + 3*CS + 32}")
        a("s_mov_b32 m0, s92")
        a("s_nop 0")
        a.vm(f"buffer_load_dwordx4 v{vL16}, {sq(SH)}, s3 offen {hl} lds", "h")
    def srds0(a):
        srd(a, SK, 4, 5, TENS); srd(a, SV, 6, 7, TENS); srd(a, SSH, 8, 9, D * 8)
    (flow_split if SPLIT() else flow_unsplit)(a, hdma5, srds0, common_srds, caddr, elect, hl)
    p1_mfma(a, opt("yst", "sc1"), tail)
    p2_first(a)
    if opt("dry2", "0") == "1":
        a("s_mov_b64 exec, 0")
        a("s_branch p2_body")
        a.label("p2_dry_back")
        a("s_mov_b64 exec, -1")
    a(f"s_or_b32 s3, s2, s{sW}")
    a("s_cmp_eq_u32 s3, 0")
    a("s_cbranch_scc0 no_epoch")
    a(f"s_mov_b32 s3, {EP}")
    signal(a, 3)
    a.label("no_epoch")
    stamp(a, 10)
    y_check(a)
    stamp(a, 11)
    y_write(a)
    a("s_barrier")
    stamp(a, 12)
    if opt("q", "0") == "2": stamp(a, 24, True)
    p2_rest(a, opt("ost", "sc1"))
    qstamp(a, 7, "2"); qflush(a, "2")
    if opt("q2", "0") == "1": stamp(a, 27, True)
    stamp(a, 13)
    if STAMPS: a("s_waitcnt vmcnt(0)")
    stamp(a, 14)
    if int(opt("pad", "0")):
        if opt("gpad", "0") == "1":
            srd(a, 96, 18, 19, 256)
            a("v_mov_b32 v13, 0")
            a("buffer_load_dword v12, v13, s[96:99], 0 offen sc1")
            a("s_waitcnt vmcnt(0)")
            a("v_readfirstlane_b32 s100, v12")
            a("s_not_b32 s100, s100")
        a("v_readfirstlane_b32 s100, v255")
        a.label("padl")
        a("s_memrealtime s[98:99]")
        a("s_waitcnt lgkmcnt(0)")
        a("s_sub_u32 s98, s98, s100")
        a(f"s_cmp_lt_u32 s98, {opt('pad', '0')}")
        a("s_cbranch_scc1 padl")
    stamp_flush(a)
    a("s_endpgm")
    for f in tail: f(a)
    out += kernel(K, a.text(), 512, 256)
    return out

if __name__ == "__main__":
    path = sys.argv[1]
    STAMPS = "--stamps" in sys.argv
    for x in sys.argv[2:]:
        if "=" in x:
            k_, v_ = x.split("=", 1); OPT[k_] = v_
    open(path, "w").write(gen_fused())
```

```python
import sys
NAME = "interleave_layers__ssm_conv_h3__ssm_conv_h3__prompt"
REF = f"cdna_kernels/{NAME}.s.ref"
OPT = {}
STAMPS = False
def opt(k, d): return OPT.get(k, d)
def SPLIT(): return opt("split", "0") == "1"

S, D = 2048, 576
ROWB = D * 2
TENS = S * ROWB
U_OFF = 0;            U_BYTES = 2 * D * 4096
YM_OFF = U_BYTES;     YM_BYTES = 256 * 16384
YE_OFF = YM_BYTES;    YE_BYTES = 64 * 8192
Y_BYTES = YM_BYTES + YE_BYTES
F_OFF = YM_OFF + Y_BYTES
F2 = 16384; F2A = 32768; EP = 49152; FD = 65536; F1B = 131072; F_BYTES = F1B + 16384
ST_OFF = 0xA00000
CS = 4160; HB = 4 * CS
US = 4608; U_BASE = 5 * HB; UE = U_BASE + 4 * US
LDS_CTR = U_BASE + 5 * US
Y_LDS = 0; YR = 1028; YBR = 9 * YR + 12
T_LDS = LDS_CTR + 64; TR = 144
E_LDS = T_LDS + 128 * TR
R_LDS = E_LDS + 2560
LDS_TOT = R_LDS + 16384

class A:
    def __init__(self):
        self.l = []; self.reset()
    def reset(self):
        self.ln = 0; self.ld = 0; self.lt = {}
        self.vn = 0; self.vd = 0; self.vt = {}
    def __call__(self, s): self.l.append("    " + s)
    def label(self, s): self.l.append(s + ":")
    def text(self): return "\n".join(self.l) + "\n"
    def lds(self, s, tag=None):
        self(s); self.ln += 1
        if tag is not None: self.lt[tag] = self.ln
    def vm(self, s, tag=None):
        self(s); self.vn += 1
        if tag is not None: self.vt[tag] = self.vn
    def need(self, *tags):
        k = max([self.lt[t] for t in tags if t in self.lt] + [0])
        if k > self.ld:
            n = min(15, self.ln - k); self(f"s_waitcnt lgkmcnt({n})"); self.ld = self.ln - n
    def needv(self, *tags):
        k = max([self.vt[t] for t in tags] + [0])
        if k > self.vd:
            n = min(63, self.vn - k); self(f"s_waitcnt vmcnt({n})"); self.vd = self.vn - n

def srd(a, d, lo, hi, size, add=None):
    if add:
        a(f"s_add_u32 s{d}, s{lo}, {add}")
        a(f"s_addc_u32 s{d+1}, s{hi}, 0")
    else:
        a(f"s_mov_b32 s{d}, s{lo}")
        a(f"s_mov_b32 s{d+1}, s{hi}")
    a(f"s_mov_b32 s{d+2}, {size}")
    a(f"s_mov_b32 s{d+3}, 0x00020000")

SK, SV, SSH, SH, SU, SY, SX, SO, SF = 24, 28, 32, 36, 40, 44, 48, 52, 56
sX, sQ, sB, sP, sW = 60, 61, 62, 63, 64
sB0, sCF, sRB = 69, 70, 71
sCH, sCE, sJE, sHB, sUB, sDM, sDE, sFI, sHF, sTAG = 72, 73, 74, 75, 76, 77, 78, 79, 82, 83
sYM, sYE, sXO, sT2 = 80, 81, 84, 100
vLANE, vL16, vL2 = 250, 251, 252

def stamp(a, idx, cyc=False):
    if opt("padat", "x") == str(idx) and not cyc:
        a("s_memrealtime s[94:95]"); a("s_waitcnt lgkmcnt(0)"); a("v_mov_b32 v255, s94")
    if not STAMPS: return
    a(("s_memtime" if cyc else "s_memrealtime") + " s[94:95]")
    a("s_waitcnt lgkmcnt(0)")
    a(f"v_writelane_b32 v255, s94, {idx}")
def qstamp(a, i, mode="1"):
    if STAMPS and opt("q", "0") == mode: a(f"s_memtime s[{4+2*i}:{5+2*i}]")
def qflush(a, mode="1"):
    if STAMPS and opt("q", "0") == mode:
        a("s_waitcnt lgkmcnt(0)")
        for i in range(8): a(f"v_writelane_b32 v255, s{4+2*i}, {20+i if i < 4 else 24+i}")
def stamp_flush(a):
    if not STAMPS: return
    srd(a, 96, 20, 21, 0x100000, ST_OFF)
    a("s_lshl_b32 s94, s2, 2")
    a(f"s_add_u32 s94, s94, s{sW}")
    a("s_lshl_b32 s94, s94, 7")
    a(f"v_lshlrev_b32 v254, 2, v{vLANE}")
    a("s_mov_b32 exec_hi, 0")
    a("buffer_store_dword v255, v254, s[96:99], s94 offen sc1")

def vr(r, n=4): return f"v[{r}:{r+n-1}]"
def ar(r, n=4): return f"a[{r}:{r+n-1}]"
def pr(r): return f"v[{r}:{r+1}]"
def sq(r): return f"s[{r}:{r+3}]"
DPP = "row_mask:0xf bank_mask:0xf"

def prologue(a, end):
    a("s_cmp_ge_u32 s2, 256")
    a(f"s_cbranch_scc1 {end}")
    a(f"s_lshr_b32 s{sB0}, s2, 7")
    a(f"s_mul_i32 s3, s{sB0}, 48")
    a("s_add_u32 s22, s0, s3")
    a("s_addc_u32 s23, s1, 0")
    a("s_load_dwordx4 s[4:7], s[22:23], 8")
    a("s_load_dwordx2 s[8:9], s[22:23], 24")
    a(f"s_and_b32 s{sX}, s2, 7")
    a(f"s_lshr_b32 s{sQ}, s2, 3")
    a(f"s_lshr_b32 s{sB}, s{sX}, 2")
    a(f"s_mul_i32 s3, s{sB}, 48")
    a("s_add_u32 s22, s0, s3")
    a("s_addc_u32 s23, s1, 0")
    a("s_load_dwordx2 s[10:11], s[22:23], 32")
    a("s_load_dwordx2 s[12:13], s[22:23], 40")
    a("s_load_dwordx2 s[14:15], s[0:1], 0")
    a("s_load_dwordx4 s[16:19], s[0:1], 96")
    a("s_load_dwordx2 s[20:21], s[0:1], 112")
    npf = int(opt("cpf", "32"))
    if npf:
        K = NAME + "_kernel"
        spread_ = opt("cpfs", "1") == "1"
        if not spread_:
            a(f"s_cmp_ge_u32 s2, {npf}")
            a("s_cbranch_scc1 no_cpf")
        a("s_getpc_b64 s[96:97]")
        a.label("cpf_base")
        if spread_:
            a("s_lshr_b32 s3, s2, 3")
            a("s_lshl_b32 s3, s3, 10")
            a("v_and_b32 v12, 7, v0")
            a("v_lshl_add_u32 v12, v12, 7, s3")
        else:
            a("v_lshlrev_b32 v12, 7, v0")
        a(f"v_min_u32 v12, {K}_end - cpf_base, v12")
        a("v_mov_b32 v13, s97")
        a("v_add_co_u32 v12, vcc, s96, v12")
        a("v_cmp_gt_u32 s[24:25], 8, v0" if spread_ else "s_nop 0")
        a("s_nop 0")
        a("v_addc_co_u32 v13, vcc, 0, v13, vcc")
        if spread_:
            a("s_and_saveexec_b64 s[26:27], s[24:25]")
            a("s_cbranch_execz cpf_skip")
        a("global_load_dword v254, v[12:13], off")
        if spread_:
            a.label("cpf_skip")
            a("s_mov_b64 exec, s[26:27]")
        a.label("no_cpf")
    a("v_lshrrev_b32 v1, 6, v0")
    a(f"v_and_b32 v{vLANE}, 63, v0")
    a(f"v_readfirstlane_b32 s{sW}, v1")
    a(f"v_lshlrev_b32 v{vL16}, 4, v{vLANE}")
    a(f"v_lshlrev_b32 v{vL2}, 1, v{vLANE}")
    if SPLIT():
        a(f"s_and_b32 s{sCF}, s{sQ}, 3")
        a(f"s_bfe_u32 s{sRB}, s{sQ}, 0x20002")
        a(f"s_lshl_b32 s3, s{sX}, 2")
        a(f"s_add_u32 s{sRB}, s{sRB}, s3")
        a(f"s_lshl_b32 s{sFI}, s{sB0}, 7")
        a(f"s_lshl_b32 s3, s{sCF}, 5")
        a(f"s_add_u32 s{sFI}, s{sFI}, s3")
        a(f"s_add_u32 s{sFI}, s{sFI}, s{sRB}")
        a(f"s_lshr_b32 s{sT2}, s{sW}, 1")
    else:
        a(f"s_and_b32 s{sCF}, s{sQ}, 1")
        a(f"s_bfe_u32 s{sRB}, s{sQ}, 0x30001")
        a(f"s_lshl_b32 s3, s{sX}, 3")
        a(f"s_add_u32 s{sRB}, s{sRB}, s3")
        a(f"s_lshl_b32 s{sFI}, s{sB0}, 7")
        a(f"s_lshl_b32 s3, s{sCF}, 6")
        a(f"s_add_u32 s{sFI}, s{sFI}, s3")
        a(f"s_add_u32 s{sFI}, s{sFI}, s{sRB}")
    a(f"s_and_b32 s{sP}, s{sX}, 3")
    a(f"s_lshl_b32 s{sP}, s{sP}, 4")
    a(f"s_lshr_b32 s3, s{sQ}, 1")
    a(f"s_add_u32 s{sP}, s{sP}, s3")
    a(f"s_and_b32 s{sHF}, s{sQ}, 1")
    a(f"s_lshl_b32 s{sCH}, s{sP}, 3")
    a(f"s_lshl_b32 s3, s{sHF}, 2")
    a(f"s_add_u32 s{sCH}, s{sCH}, s3")
    a(f"s_add_u32 s{sCH}, s{sCH}, s{sW}")
    a(f"s_add_u32 s{sCE}, s{sP}, 512")
    a(f"s_cmp_eq_u32 s{sHF}, 0")
    a(f"s_cselect_b32 s{sJE}, 0x7520, 0x6431") if False else None
    a("s_mov_b32 s3, 0x6431")
    a(f"s_cselect_b32 s{sJE}, 0x7520, s3")
    a(f"s_lshl_b32 s3, s{sW}, 2")
    a(f"s_lshr_b32 s{sJE}, s{sJE}, s3")
    a(f"s_and_b32 s{sJE}, s{sJE}, 7")
    a(f"s_mul_i32 s{sHB}, s{sW}, {HB}")
    a(f"s_mul_i32 s{sUB}, s{sW}, {US}")
    a(f"s_add_u32 s{sUB}, s{sUB}, {U_BASE}")

def kraw(t): return 8 + 4 * t
def hraw(j): return 40 + 4 * j
def vraw(t): return 52 + 4 * t
vA1, vA2, vA3, vA4, vA7 = 242, 243, 244, 245, 246
def EXH(): return 0xf if SPLIT() else 0xffff
def p0_addr(a):
    cw = 72 if SPLIT() else 96
    a(f"v_lshrrev_b32 v247, 2, v{vLANE}")
    a(f"v_and_b32 v248, 3, v{vLANE}")
    if SPLIT():
        a(f"s_lshl_b32 s67, s{sT2}, 5")
        a(f"s_add_u32 s67, s67, s{sRB}")
        a(f"s_and_b32 s68, s{sW}, 1")
        a(f"s_lshl_b32 s66, s{sCF}, 1")
        a("s_add_u32 s68, s68, s66")
    else:
        a(f"s_mov_b32 s67, s{sRB}")
        a(f"s_mul_i32 s68, s{sCF}, 3")
        a(f"s_add_u32 s68, s68, s{sW}")
    a(f"s_mul_i32 s65, s67, {32*ROWB}")
    a(f"s_mul_i32 s66, s68, {2*cw}")
    a("s_add_u32 s65, s65, s66")
    a(f"v_mul_u32_u24 v{vA1}, {8*ROWB}, v248")
    a(f"v_lshlrev_b32 v{vA7}, 4, v247")
    a(f"v_add3_u32 v{vA1}, v{vA1}, v{vA7}, s65")
    a(f"v_add_u32 v{vA2}, {4*ROWB}, v{vA1}")
    a(f"v_subrev_u32 v{vA3}, {3*ROWB}, v{vA1}")
    a(f"s_mul_i32 s66, s68, {cw*8}")
    a(f"v_add_u32 v{vA7}, s66, v{vL16}")
    a(f"s_mul_i32 s65, s{sB0}, 576")
    a(f"s_mul_i32 s66, s68, {cw}")
    a("s_add_u32 s65, s65, s66")
    a("s_lshl_b32 s65, s65, 12")
    a("s_add_u32 s65, s65, 4080")
    a("s_lshl_b32 s66, s67, 6")
    a("s_sub_u32 s65, s65, s66")
    a(f"v_lshlrev_b32 v{vA4}, 15, v247")
    a("v_lshlrev_b32 v248, 4, v248")
    a(f"v_sub_u32 v{vA4}, v{vA4}, v248")
    a(f"v_add_u32 v{vA4}, s65, v{vA4}")

def p0_issue(a, fl):
    def row(t): return (f"v{vA1}", t * ROWB) if t < 4 else (f"v{vA2}", (t - 4) * ROWB)
    def ldk(t):
        b, o = row(t); a.vm(f"buffer_load_dwordx4 {vr(kraw(t))}, {b}, {sq(SK)}, 0 offen offset:{o} {fl}", f"K{t}")
    def ldv(t):
        b, o = row(t); a.vm(f"buffer_load_dwordx4 {vr(vraw(t))}, {b}, {sq(SV)}, 0 offen offset:{o} {fl}", f"V{t}")
    if opt("il", "bar1") == "prio": a("s_setprio 3")
    a(f"s_mov_b32 exec_hi, {EXH()}")
    a.vm(f"buffer_load_dwordx4 v[84:87], v{vA7}, {sq(SSH)}, 0 offen", "W")
    for t in (5, 6, 7): ldk(t)
    a("s_mov_b32 exec_lo, 0x11111111")
    a(f"s_mov_b32 exec_hi, {EXH() & 0x1111}")
    for j in range(3):
        a.vm(f"buffer_load_dwordx4 {vr(hraw(j))}, v{vA3}, {sq(SK)}, 0 offen offset:{j*ROWB} {fl}", f"H{j}")
    a("s_mov_b32 exec_lo, -1")
    a(f"s_mov_b32 exec_hi, {EXH()}")
    il = opt("il", "bar1")
    def step(k):
        if il == "prio": a(f"s_setprio {3 - k}")
        if il.startswith("bar") and k <= int(il[3:]): a("s_barrier")
    step(1)
    for t in range(5):
        ldk(t); ldv(t)
        if t == 1: step(2)
        if t == 3: step(3)
    for t in (5, 6, 7): ldv(t)
    a("s_mov_b64 exec, -1")

def unpack(a, dlo, dhi, src):
    a(f"v_lshlrev_b32 v{dlo}, 16, v{src}")
    a(f"v_and_b32 v{dhi}, 0xffff0000, v{src}")

def p0_compute(a, stflag, sfx=""):
    def W(p, j): return 88 + 8 * p + 2 * j
    def Kf(j, c): return 120 + 8 * (j & 7) + c
    def U(t, c): return 184 + 8 * (t & 3) + c
    OUTS = [hraw(0), hraw(1), hraw(2), kraw(0), kraw(1), vraw(0), vraw(1), 84]
    VT = 216
    a("s_mov_b32 vcc_lo, 0x11111111")
    a("s_mov_b32 vcc_hi, 0x11111111")
    a("v_mov_b32 v224, 0xffff0000")
    for c in range(1, 8):
        a(f"s_mov_b32 s{3+c}, {4096*c}")
    a.label("p0_body" + sfx)
    a.needv("W")
    for c in range(8):
        p, h = c >> 1, c & 1
        for half in range(2):
            i = 2 * c + half; s_ = i >> 2; qp = f"quad_perm:[{s_},{s_},{s_},{s_}] {DPP}"
            a(f"v_cvt_f32_bf16_dpp v{W(p,2*half)+h}, v{84+(i&3)} {qp}")
            a(f"v_and_b32_dpp v{W(p,2*half+1)+h}, v{84+(i&3)}, v224 {qp}")
    for j in range(3):
        a.needv(f"H{j}")
        for p in range(4):
            a(f"v_cndmask_b32_dpp v{hraw(j)+p}, v{kraw(5+j)+p}, v{hraw(j)+p}, vcc quad_perm:[0,0,1,2] {DPP}")
        for p in range(4): unpack(a, Kf(j, 2*p), Kf(j, 2*p+1), hraw(j) + p)
    def kun(t):
        for p in range(4): unpack(a, Kf(t+3, 2*p), Kf(t+3, 2*p+1), kraw(t) + p)
    def ksum(t):
        for p in range(4):
            a(f"v_pk_mul_f32 {pr(U(t,2*p))}, {pr(Kf(t,2*p))}, {pr(W(p,3))}")
        for jj in (2, 1, 0):
            for p in range(4):
                a(f"v_pk_fma_f32 {pr(U(t,2*p))}, {pr(Kf(t+3-jj,2*p))}, {pr(W(p,jj))}, {pr(U(t,2*p))}")
    def vmul(t):
        a.needv(f"V{t}")
        if t == 7: stamp(a, 17)
        for p in range(4): unpack(a, VT + 2*p, VT + 2*p + 1, vraw(t) + p)
        for p in range(4):
            a(f"v_pk_mul_f32 {pr(U(t,2*p))}, {pr(U(t,2*p))}, {pr(VT+2*p)}")
    def cvt(t):
        q = (7 - t) // 2
        if t == 7 and opt("dry0", "0") == "1": a("s_cbranch_execz p0_dry_back")
        if t == 7: a(f"s_mov_b32 exec_hi, {EXH()}")
        for c in range(8):
            a(f"v_cvt_pk_bf16_f32 v{OUTS[c]+q}, v{U(t, c)}, v{U(t-1, c)}")
            if t == 7:
                so = "0" if c == 0 else f"s{3+c}"
                a.vm(f"buffer_store_dwordx4 {vr(OUTS[c])}, v{vA4}, {sq(SU)}, {so} offen {stflag}", "UST")
        if t == 7: a("s_mov_b64 exec, -1")
    for t in range(5):
        a.needv(f"K{t}")
        kun(t)
        ksum(t)
        if t <= 2: kun(5 + t)
        if t == 4:
            for tt in (5, 6, 7): ksum(tt)
        vmul(t)
        if t & 1: cvt(t)
    for t in (5, 6, 7):
        vmul(t)
        if t & 1: cvt(t)

ACC, ACCE, FB, AE, FE0, PD, EV = 8, 40, 56, 120, 184, 216, 220
vTW, vTR, vFE, vEW, vER, vRW, vRR, vUD, vP1, vP2, vYM, vYE, vYG, vYR = range(224, 238)
vPB = 254
RED, UD, STG, ES, TRD, YP, XR = 120, 136, 138, 140, 144, 152, 240
TJ = ((0, 2, 5, 7), (1, 3, 4, 6))

def h_dma(a, ch, ldsbase_s, ldsconst, flag, tag):
    a(f"s_lshl_b32 s3, s{ch}, 12")
    if ldsbase_s is not None:
        a(f"s_add_u32 s92, s{ldsbase_s}, {ldsconst + 3*CS + 32}")
        a("s_mov_b32 m0, s92")
    else:
        a(f"s_mov_b32 m0, {ldsconst + 3*CS + 32}")
    a("s_nop 0")
    for q in range(4):
        a.vm(f"buffer_load_dwordx4 v{vL16}, {sq(SH)}, s3 offen offset:{1024*q} {flag} lds", tag)

hc_n = [0]
vC1, vC2, vC3, vC4, ZR = 176, 177, 178, 179, 180
def h_copy_ops(a, vR, qs, head=None):
    hc_n[0] += 1; u = hc_n[0]
    Dq = lambda i: 120 + 8 * i
    ops = []
    def L(c, s_, tag=None): ops.append((c, lambda: a.lds(s_, tag)))
    def V(s_, need=None): ops.append((4, lambda: ((a.need(need) if need else None), a(s_))))
    for i, q in enumerate(qs):
        L(6, f"ds_read_b128 {vr(Dq(i))}, v{vR} offset:{3*CS + 32 + 1024*q}")
        L(4, f"ds_read_b64 {pr(Dq(i)+4)}, v{vR} offset:{3*CS + 48 + 1024*q}", ("HC", u, i))
    if head is not None:
        L(4, f"ds_read_b64 v[138:139], v{head} offset:{3*CS + 32}", ("HH", u))
    for i, q in enumerate(qs):
        d = Dq(i); o = 16 * (i & 1); T0, T1, T2, O4 = 144 + o, 148 + o, 152 + o, 156 + o
        for k in range(4):
            V(f"v_alignbit_b32 v{T0+k}, v{d+k+1}, v{d+k}, 16", ("HC", u, i) if k == 0 else None)
        V(f"v_alignbit_b32 v{O4}, v{d+5}, v{d+4}, 16")
        V(f"v_pk_mov_b32 {pr(T1)}, {pr(d)}, {pr(d+2)} op_sel:[1,0]")
        V(f"v_pk_mov_b32 {pr(T1+2)}, {pr(d+2)}, {pr(d+4)} op_sel:[1,0]")
        V(f"v_pk_mov_b32 {pr(T2)}, {pr(T0)}, {pr(T0+2)} op_sel:[1,0]")
        V(f"v_pk_mov_b32 {pr(T2+2)}, {pr(T0+2)}, {pr(O4)} op_sel:[1,0]")
        L(8, f"ds_write_b128 v{vR}, {vr(T0)} offset:{32 + 1024*q}")
        L(8, f"ds_write_b128 v{vR}, {vr(T1)} offset:{CS + 32 + 1024*q}")
        L(8, f"ds_write_b128 v{vR}, {vr(T2)} offset:{2*CS + 32 + 1024*q}", ("HW", u))
    if head is not None:
        V(f"v_sub_u32 v137, 3, v{vLANE}")
        V("v_lshlrev_b32 v137, 4, v137")
        V("v_lshlrev_b64 v[138:139], v137, v[138:139]", ("HH", u))
        V(f"v_cmp_eq_u32 vcc, 3, v{vLANE}")
        V(f"v_mul_u32_u24 v137, {CS}, v{vLANE}")
        V(f"v_add_u32 v140, v137, v{head}")
        V("v_cndmask_b32 v138, v138, 0, vcc")
        V("v_cndmask_b32 v139, v139, 0, vcc")
        V("v_mov_b32 v136, 0")
        V("v_mov_b32 v137, 0")
        def hw():
            a("s_mov_b64 exec, 15")
            a.lds(f"ds_write_b128 v140, {vr(ZR)}")
            a.lds("ds_write_b128 v140, v[136:139] offset:16", ("HW", u))
            a("s_mov_b64 exec, -1")
        ops.append((8, hw))
    return ops, ("HW", u)
def h_copies(a, vR, qs, head=None):
    ops, tag = h_copy_ops(a, vR, qs, head)
    for c, f in ops: f()
    return tag

def p1_prep_a(a):
    a(f"v_and_b32 v1, 15, v{vLANE}")
    a(f"v_lshrrev_b32 v2, 4, v{vLANE}")
    a("v_and_b32 v3, 3, v1")
    a("v_cmp_eq_u32 vcc, 3, v3")
    a(f"v_mul_u32_u24 v3, {CS}, v3")
    a("v_and_b32 v4, 12, v1")
    a("v_lshlrev_b32 v4, 1, v4")
    a("v_add_u32 v3, v3, v4")
    a("v_cndmask_b32 v4, 0, 8, vcc")
    a("v_add_u32 v3, v3, v4")
    a("v_lshl_add_u32 v3, v2, 4, v3")
    a(f"v_add_u32 v5, s{sHB}, v3")
    a(f"s_lshl_b32 s93, s{sW}, 7")
    a(f"s_add_u32 s3, s93, {4*HB}")
    a("v_add_u32 v6, s3, v3")

def p1_prep_b(a):
    a(f"v_add_u32 v8, s{sUB}, v{vL16}")
    a(f"s_add_u32 s3, s93, {UE - 512}")
    a(f"v_add_u32 v9, s3, v{vL16}")
    a(f"v_cmp_gt_u32 vcc, 32, v{vLANE}")
    a("s_mov_b32 exec_hi, 0xff")
    a("s_nop 0")
    a("v_cndmask_b32 v8, v9, v8, vcc")
    a("ds_write_b128 v8, v[180:183] offset:4096")
    a("s_mov_b64 exec, -1")
    for ch, sv in ((sCH, sDM), (sCE, sDE)):
        a(f"s_and_b32 s3, s{ch}, 1")
        a("s_lshl_b32 s3, s3, 4")
        a(f"s_lshr_b32 s{sv}, s{sv}, s3")
        a(f"s_and_b32 s{sv}, s{sv}, 0xffff")
    a(f"s_lshl_b32 s{sDE}, s{sDE}, 16")
    a("v_lshlrev_b32 v3, 3, v2")
    a("v_add_u32 v3, v3, v1")
    a("v_sub_u32 v3, 15, v3")
    a("v_and_b32 v4, 1, v3")
    a("v_lshlrev_b32 v4, 4, v4")
    a("v_ashrrev_i32 v3, 1, v3")
    a(f"v_lshlrev_b32 v8, v4, s{sDM}")
    for q in range(4):
        a(f"v_cmp_eq_u32 vcc, {q}, v3")
        a("s_nop 1")
        a(f"v_cndmask_b32 v{PD+q}, 0, v8, vcc")
    a("v_lshlrev_b32 v3, 4, v2")
    a("v_lshlrev_b32 v4, 5, v1")
    a("v_sub_u32 v3, v3, v4")
    a("v_add_u32 v3, 480, v3")
    a(f"v_add_u32 v7, s{sUB}, v3")
    a(f"s_add_u32 s3, s93, {UE}")
    a(f"v_add_u32 v{vFE}, s3, v3")
    a("v_lshlrev_b32 v3, 3, v2")
    a("v_add_u32 v3, v3, v4")
    a(f"s_lshl_b32 s3, s{sJE}, 9")
    a(f"s_sub_u32 s3, {UE + 4088}, s3")
    a(f"v_sub_u32 v{vUD}, s3, v3")
    a(f"s_lshl_b32 s3, s{sW}, 9")
    a(f"s_add_u32 s3, s3, {E_LDS}")
    a(f"v_add_u32 v{vEW}, s3, v3")
    a(f"v_add_u32 v{vER}, s3, v{vL16}")
    a(f"s_lshl_b32 s3, s{sW}, 10")
    a(f"s_add_u32 s3, s3, {R_LDS}")
    a(f"v_add_u32 v{vRW}, s3, v{vL16}")
    a(f"s_lshl_b32 s3, s{sW}, 12")
    a(f"s_add_u32 s3, s3, {R_LDS}")
    a(f"v_add_u32 v{vRR}, s3, v{vL16}")
    a(f"v_mul_u32_u24 v{vTW}, {TR}, v1")
    a("v_lshrrev_b32 v3, 1, v2")
    a(f"v_lshl_add_u32 v{vTW}, v3, 6, v{vTW}")
    a("v_and_b32 v3, 1, v2")
    a(f"v_lshl_add_u32 v{vTW}, v3, 3, v{vTW}")
    a(f"s_lshl_b32 s3, s{sW}, 4")
    a(f"s_add_u32 s3, s3, {T_LDS}")
    a(f"v_add_u32 v{vTW}, s3, v{vTW}")
    a(f"v_lshrrev_b32 v3, 3, v{vLANE}")
    a(f"v_mul_u32_u24 v{vTR}, {TR}, v3")
    a(f"v_and_b32 v4, 7, v{vLANE}")
    a(f"v_lshl_add_u32 v{vTR}, v4, 4, v{vTR}")
    a(f"s_mul_i32 s3, s{sW}, {8*TR}")
    a(f"s_add_u32 s3, s3, {T_LDS}")
    a(f"v_add_u32 v{vTR}, s3, v{vTR}")
    a(f"v_mul_u32_u24 v{vYM}, {YR}, v4")
    a(f"v_lshl_add_u32 v{vYM}, v3, 4, v{vYM}")
    a(f"s_lshr_b32 s88, s{sW}, 1")
    a(f"s_mul_i32 s89, s88, {YBR}")
    a(f"s_and_b32 s3, s{sW}, 1")
    a("s_lshl_b32 s3, s3, 9")
    a("s_add_u32 s89, s89, s3")
    a(f"s_add_u32 s89, s89, {Y_LDS}")
    a(f"v_add_u32 v{vYM}, s89, v{vYM}")
    a(f"s_add_u32 s89, s89, {8*YR}")
    a("v_and_b32 v8, 3, v3")
    a(f"v_lshl_add_u32 v{vYE}, v8, 2, v{vL16}")
    a(f"v_xor_b32 v8, s{sW}, v8")
    a(f"v_lshl_add_u32 v{vYR}, v8, 2, v{vL16}")
    a("s_mov_b32 s98, s89")
    a(f"v_lshlrev_b32 v{vYG}, 6, v{vLANE}")
    a("s_lshl_b32 s88, s2, 14")
    a(f"s_lshl_b32 s3, s{sW}, 12")
    a("s_add_u32 s88, s88, s3")
    a("s_lshr_b32 s89, s2, 2")
    a("s_lshl_b32 s89, s89, 13")
    a(f"s_lshl_b32 s3, s{sW}, 11")
    a("s_add_u32 s89, s89, s3")
    a("s_and_b32 s3, s2, 3")
    a("s_lshl_b32 s3, s3, 4")
    a("s_add_u32 s89, s89, s3")
    a(f"s_add_u32 s89, s89, {YE_OFF}")
    a(f"v_lshrrev_b32 v4, 2, v{vLANE}")
    a(f"v_and_b32 v8, 3, v{vLANE}")
    a("v_lshlrev_b32 v8, 4, v8")
    a("v_lshl_add_u32 v3, v4, 14, v8")
    a("v_lshl_add_u32 v4, v4, 13, v8")
    a(f"s_lshl_b32 s{sYM}, s{sW}, 18")
    a(f"s_lshl_b32 s3, s{sB}, 13")
    a(f"s_add_u32 s{sYM}, s{sYM}, s3")
    a(f"s_sub_u32 s3, s{sCH}, s{sW}")
    a("s_lshl_b32 s3, s3, 4")
    a(f"s_add_u32 s{sYM}, s{sYM}, s3")
    a(f"s_lshl_b32 s{sYE}, s{sJE}, 16")
    a(f"s_lshl_b32 s3, s{sB}, 12")
    a(f"s_add_u32 s{sYE}, s{sYE}, s3")
    a(f"s_lshl_b32 s3, s{sP}, 6")
    a(f"s_add_u32 s{sYE}, s{sYE}, s3")
    a(f"s_add_u32 s{sYE}, s{sYE}, {YE_OFF}")
    srd(a, SX, 14, 15, TENS)
    a(f"s_lshl_b32 s{sXO}, s2, 3")
    a(f"s_lshl_b32 s3, s{sW}, 1")
    a(f"s_add_u32 s{sXO}, s{sXO}, s3")
    a(f"s_mul_i32 s{sXO}, s{sXO}, {ROWB}")
    a(f"s_mul_i32 s3, s{sB}, 576")
    a(f"s_add_u32 s90, s3, s{sCH}")
    a("s_lshl_b32 s90, s90, 12")
    a(f"s_add_u32 s91, s3, s{sCE}")
    a("s_lshl_b32 s91, s91, 12")
    a(f"s_lshl_b32 s85, s{sW}, 10")
    a("s_add_u32 s91, s91, s85")
    a(f"s_add_u32 s85, s85, {UE}")
    if SPLIT():
        a(f"s_mul_i32 s92, s{sCH}, 456")
        a("s_lshr_b32 s92, s92, 16")
        a("s_lshl_b32 s92, s92, 11")
        a(f"s_lshl_b32 s3, s{sB}, 13")
        a("s_add_u32 s92, s92, s3")
        a(f"v_and_b32 v8, 31, v{vLANE}")
        a("v_lshlrev_b32 v8, 6, v8")
        a(f"v_add_u32 v{vP1}, s92, v8")
        a(f"s_add_u32 s92, s92, {F1B}")
        a(f"s_add_u32 s3, s3, {96*64}")
        a(f"s_add_u32 s93, s3, {F1B}")
        a(f"s_cmp_eq_u32 s{sW}, 1")
        a("s_cselect_b32 s3, s3, s93")
        a(f"s_cmp_eq_u32 s{sW}, 0")
        a("s_cselect_b32 s3, s92, s3")
        a(f"v_add_u32 v{vPB}, s3, v8")
    elif opt("clr", "fill") == "w23":
        a(f"s_lshl_b32 s92, s{sB}, 1")
        a(f"s_add_u32 s92, s92, s{sW}")
        a("s_lshl_b32 s92, s92, 12")
        a(f"v_add_u32 v{vP1}, s92, v{vYG}")
    else:
        a(f"s_lshl_b32 s92, s{sB}, 2")
        a(f"s_add_u32 s92, s92, s{sW}")
        a("s_lshl_b32 s92, s92, 11")
        a(f"v_and_b32 v8, 31, v{vLANE}")
        a("v_lshlrev_b32 v8, 6, v8")
        a(f"v_add_u32 v{vP1}, s92, v8")
    a(f"s_lshl_b32 s92, s{sW}, 12")
    a(f"s_add_u32 s92, s92, {F2A}")
    a(f"v_add_u32 v{vP2}, s92, v{vYG}")
    a(f"v_add_u32 v{vC1}, s{sHB}, v{vL16}")
    a(f"v_mov_b32 v{vC2}, s{sHB}")
    a(f"s_lshl_b32 s3, s{sW}, 10")
    a(f"s_add_u32 s3, s3, {4*HB}")
    a(f"v_add_u32 v{vC3}, s3, v{vL16}")
    a(f"v_mov_b32 v{vC4}, {4*HB}")
    a("s_lshl_b32 s101, s2, 6")
    a(f"s_add_u32 s101, s101, {F2A}")
    a("s_lshl_b32 s3, s2, 2")
    a(f"s_add_u32 s3, s3, s{sW}")
    a("s_lshl_b32 s3, s3, 6")
    a(f"s_add_u32 s3, s3, {FD}")
    a(f"s_cmp_eq_u32 s{sW}, 0")
    a("s_cselect_b32 s101, s101, s3")
    a("s_lshl_b32 s99, s2, 11")
    if opt("clr", "fill") == "w23":
        a(f"s_and_b32 s3, s{sW}, 1")
        a("s_lshl_b32 s3, s3, 10")
    else:
        a(f"s_lshl_b32 s3, s{sW}, 9")
    a("s_add_u32 s99, s99, s3")
    a(f"s_add_u32 s99, s99, {YE_OFF}")
    a("s_mov_b32 s97, 4096")
    a("s_mov_b32 s86, 0x3ae38e39")
    a("s_mov_b32 s87, 0x3727c5ac")

def p1_aload(a, aas):
    for r in range(8):
        for aa in aas:
            ks = 8 * aa + r
            a.lds(f"ds_read_b64 a[{4*ks}:{4*ks+1}], v5 offset:{64*ks}")
            a.lds(f"ds_read_b64 a[{4*ks+2}:{4*ks+3}], v5 offset:{64*ks+8}", ("A", ks))

def F(bank, c): return FB + 32 * bank + 4 * c
MF = "v_mfma_f32_16x16x32_bf16"

def p1_mfma(a, stflag, tail):
    inited = set()
    def mfma(acc, A_, B_, needs):
        a.need(*needs)
        c = vr(acc) if acc in inited else "0"
        inited.add(acc)
        a(f"{MF} {vr(acc)}, {A_}, {vr(B_)}, {c}")
    def L(c, s_, tag=None): return (c, lambda: a.lds(s_, tag))
    def I(s_): return (4, lambda: a(s_))
    def V(s_, tag=None): return (8, lambda: a.vm(s_, tag))
    def aeread(rp, aa, half): return L(4, f"ds_read_b64 {pr(AE+32*rp+4*aa+2*half)}, v6 offset:{512*aa + 64*rp + 8*half}", ("AE", rp, aa))
    evc = [0]
    def conv(j):
        e = EV + 2 * (evc[0] & 1); evc[0] += 1
        return [I(f"v_cvt_pk_bf16_f32 v{e}, v{ACC+4*j}, v{ACC+4*j+1}"), I(f"v_cvt_pk_bf16_f32 v{e+1}, v{ACC+4*j+2}, v{ACC+4*j+3}"),
                I(f"v_min_u32 v{e}, -2, v{e}"), I(f"v_min_u32 v{e+1}, -2, v{e+1}"),
                L(6, f"ds_write_b64 v{vTW}, {pr(e)} offset:{16*TR*j}", ("TW", j))]
    def barrier(*tags): return (8, lambda: (a.need(*tags), a("s_barrier")))
    def tread(k, reg): return L(6, f"ds_read_b128 {vr(reg)}, v{vTR} offset:{32*TR*k}", ("TRD", k))
    def tstore(k, reg):
        def f():
            a(f"s_add_u32 s3, s{sYM}, {k*64*16384}")
            a.need(("TRD", k))
            a.vm(f"buffer_store_dwordx4 {vr(reg)}, v3, {sq(SY)}, s3 offen {stflag}")
        return (8, f)
    EXP = 8 if SPLIT() else int(opt("exp", "6"))
    blocks = []
    for r in range(8): blocks.append(("a", [(c, r) for c in range(4)], (0, 1, 2, 3)))
    for r in range(8): blocks.append(("b", [(c, r) for c in range(4)], (4, 5, 6, 7)))
    for r in range(0, 8, 2): blocks.append(("c", [(4, r), (5, r), (4, r + 1), (5, r + 1)], (4, 5)))
    for r in range(8): blocks.append(("d", [(c, r) for c in range(4, 8)], (6, 7)))
    def FG(k, i): return FB + 16 * (k & 3) + 4 * i
    def fread(k, i):
        c, r = blocks[k][1][i]
        return L(6, f"ds_read_b128 {vr(FG(k,i))}, v7 offset:{64*r + 512*(7-c)}", ("F", k, i))
    def items_of(k):
        name, fr, J = blocks[k]; it = []
        order = [(i, j) for i in range(4) for j in J if j >= fr[i][0]]
        if k == len(blocks) - 1: order = [(i, j) for j in J for i in range(4) if j >= fr[i][0]]
        for i, j in order:
            c, r = fr[i]; tg = [("F", k, i), ("A", 8 * (j - c) + r)]
            if r == 0 and j == c: it.append((ACC + 4*j, vr(PD), FG(k, i), tg))
            it.append((ACC + 4*j, ar(4 * (8 * (j - c) + r)), FG(k, i), tg))
        return it
    KE = 8 + EXP
    GE = (KE - 2) & 3
    def FEr(rp, c): return (FE0 + 4 * c) if rp == 0 else FB + 16 * GE + 4 * c
    def feread(rp, c): return L(6, f"ds_read_b128 {vr(FEr(rp,c))}, v{vFE} offset:{64*rp + 512*(7-c)}", ("FE", rp, c))
    start = []; n = 0
    for k in range(len(blocks)):
        if k == KE: E0 = n; n += 36
        start.append(n); n += len(items_of(k))
    NS = n; assert NS == 332
    plan = [[] for _ in range(NS)]; load = [0] * NS
    def pin(slot, ops):
        for i, (c, f) in enumerate(ops):
            plan[slot + i].append(f); load[slot + i] += c
    def spread(ops, lo_, hi_, cap=8):
        for cap_ in range(cap, 40, 2):
            sl = lo_; pos = []; ld = list(load)
            for c, f in ops:
                while sl <= hi_ and ld[sl] + c > cap_: sl += 1
                if sl > hi_: break
                pos.append(sl); ld[sl] += c
            if len(pos) == len(ops): break
        assert len(pos) == len(ops)
        for (c, f), p_ in zip(ops, pos): plan[p_].append(f); load[p_] += c
        return pos[-1]
    for k in range(len(blocks) - 2):
        if SPLIT() and k in (14, 15):
            pin(E0 + 8 + 4 * (k - 14), [fread(k + 2, i) for i in range(4)])
        else:
            pin(start[k], [fread(k + 2, i) for i in range(4)])
    pin(E0, [feread(1, c) for c in range(8)])
    xl = [V(f"buffer_load_dwordx4 {vr(XR)}, v{vL16}, {sq(SX)}, s{sXO} offen nt"),
          V(f"buffer_load_dwordx4 {vr(XR+4)}, v{vL16}, {sq(SX)}, s{sXO} offen offset:{ROWB} nt"),
          V(f"buffer_load_ushort v{XR+8}, v{vL2}, {sq(SX)}, s{sXO} offen offset:1024 nt"),
          V(f"buffer_load_ushort v{XR+9}, v{vL2}, {sq(SX)}, s{sXO} offen offset:{1024+ROWB} nt", "X")]
    if opt("clr", "fill") == "fill":
        clr = [V(f"buffer_store_dwordx4 {vr(FE0)}, v{vL16}, {sq(SY)}, s88 offen offset:{1024*q} sc1") for q in range(4)]
        def clre():
            a("s_mov_b32 exec_hi, 0")
            a.vm(f"buffer_store_dwordx4 {vr(FE0)}, v{vL16}, {sq(SY)}, s99 offen sc1")
            a("s_mov_b64 exec, -1")
        cs = int(opt("cs", "6")); cd = int(opt("cd", "2"))
        ncs = int(opt("ncs", "0")); clr_all = clr + [(8, clre)]
        clr_pre = clr_all[:ncs]
        for i, op in enumerate(clr_all[ncs:]): spread([op], cs + cd * i, cs + cd * i + 10)
    if opt("ein", "0") == "1":
        ops_e, hwe = h_copy_ops(a, vC3, [0], vC4)
        spread(ops_e[:3], 4, 8)
        spread(ops_e[3:], 18, 70, 6)
    else:
        hwe = ("none",)
        ao = []
        for r in range(8):
            for aa in range(4, 8):
                ks = 8 * aa + r
                ao += [L(4, f"ds_read_b64 a[{4*ks}:{4*ks+1}], v5 offset:{64*ks}"), L(4, f"ds_read_b64 a[{4*ks+2}:{4*ks+3}], v5 offset:{64*ks+8}", ("A", ks))]
        if opt("hdef", "0") == "1":
            ops_o, hwo = h_copy_ops(a, vC1, [2, 3])
            c0, f0 = ops_o[0]
            ops_o[0] = (c0, lambda: (a.needv("h2"), f0()))
            hs = int(opt("hs", "20"))
            e_ = spread(ops_o[:4], hs, hs + 10)
            e_ = spread(ops_o[4:], e_ + 8, 66, 8)
            spread(ao[:16], e_ + 1, 82, 8)
            for r in range(2, 8): spread(ao[8*r: 8*r + 8], 84, start[8 + r] - 4, 6)
        elif opt("pre2", "0") != "1": spread(ao, 4, 110, int(opt("acap", "6")))
    XA = int(opt("xa", "140" if SPLIT() else "92"))
    def xa():
        a("s_waitcnt vmcnt(0)"); a.vd = a.vn
        a.need(hwe)
        a("s_barrier")
        signal(a, 101); a.vn += 1
    def xa_split():
        a("s_waitcnt vmcnt(0)"); a.vd = a.vn
        a(f"v_cmp_ne_u32 vcc, s{sTAG}, v253")
        a(f"s_mov_b32 m0, s{sUB}")
        a("s_cbranch_vccnz t2_slow")
        a.label("t2_back")
        a("s_barrier")
        for q in (1, 0):
            a.vm(f"buffer_load_dwordx4 v{vL16}, {sq(SU)}, s90 offen offset:{1024*q} sc1 lds", f"U{q}")
        a("s_mov_b32 m0, s85")
        a("s_nop 0")
        a.vm(f"buffer_load_dwordx4 v{vL16}, {sq(SU)}, s91 offen sc1 lds", "UE")
        signal(a, 101); a.vn += 1
    def slow2(t):
        t.label("t2_slow")
        t("s_mov_b32 s92, 0x20000")
        t.label("t2_spin")
        t("s_sleep 2")
        t(f"buffer_load_dword v253, v{vPB}, {sq(SF)}, 0 offen sc1")
        t("s_waitcnt vmcnt(0)")
        t(f"v_cmp_ne_u32 vcc, s{sTAG}, v253")
        t("s_sub_u32 s92, s92, 1")
        t("s_cbranch_scc1 t2_back")
        t("s_cbranch_vccnz t2_spin")
        t("s_branch t2_back")
    if SPLIT():
        tail.append(slow2)
        pin(XA - int(opt("pbd", "44")), [V(f"buffer_load_dword v253, v{vPB}, {sq(SF)}, 0 offen sc1")])
        pin(XA, [(40, xa_split)])
        X0 = E0 - 12
        pin(X0, [(8, lambda: (a.needv("UE"), a("s_barrier")))])
        XE = int(opt("xe", "30"))
        pin(XE, [(8, lambda: a("s_barrier"))])
        for i, op in enumerate(xl): spread([op], XA + 2 + 3 * i, XA + 12 + 3 * i)
        spread([aeread(rp, aa, h) for rp in range(2) for aa in range(8) for h in range(2)], 100, E0 - 12, 6)
        spread([feread(0, c) for c in range(8)], X0 + 1, E0 - 2)
    else:
        pin(XA, [(20, xa)])
        if opt("xpre", "0") != "1":
            for i, op in enumerate(xl): spread([op], XA + 2 + 3 * i, XA + 12 + 3 * i)
        spread([aeread(rp, aa, h) for rp in range(2) for aa in range(8) for h in range(2)], XA + 1, E0 - 12, 6)
        spread([feread(0, c) for c in range(8)], E0 - 14, E0 - 2)
    B4 = E0 + 36
    if SPLIT(): spread(conv(0) + conv(1) + conv(2) + conv(3), 150, E0 - 14, 6)
    else: spread(conv(0) + conv(1) + conv(2) + conv(3), E0 + 9, B4 + 7, 6)
    e_ = spread([L(8, f"ds_write_b128 v{vRW}, {vr(ACCE+4*s_)} offset:{4096*s_}", ("RW", s_)) for s_ in range(4)], B4 + 8, B4 + 15)
    X1 = e_ + 6
    D0 = start[20]
    mx = opt("xd", "262") == "x2"
    if mx:
        e45 = spread(conv(4) + conv(5), D0 + 8, D0 + 18, 10)
        XD = e45 + 4
    else:
        XD = X1 if SPLIT() else int(opt("xd", "262"))
    if XD != X1: pin(X1, [barrier(("RW", 3), ("TW", 3))])
    pin(XD - int(opt("pcd", "44")), [V(f"buffer_load_dword v253, v{vP2}, {sq(SF)}, 0 offen sc1", "PC")])
    def xd():
        a.needv("PC")
        a(f"v_cmp_ne_u32 vcc, s{sTAG}, v253")
        a.need(("RW", 3), ("TW", 3), ("TW", 5) if mx else ("TW", 3))
        a("s_cbranch_vccnz c_slow")
        a.label("c_back")
        a("s_barrier")
    pin(XD, [(16, xd)])
    def slow(t):
        t.label("c_slow")
        t("s_mov_b32 s92, 0x20000")
        t.label("c_spin")
        t("s_sleep 4")
        t(f"buffer_load_dword v253, v{vP2}, {sq(SF)}, 0 offen sc1")
        t("s_waitcnt vmcnt(0)")
        t(f"v_cmp_ne_u32 vcc, s{sTAG}, v253")
        t("s_sub_u32 s92, s92, 1")
        t("s_cbranch_scc1 c_back")
        t("s_cbranch_vccnz c_spin")
        t("s_branch c_back")
    tail.append(slow)
    e_ = spread([tread(0, TRD), tread(1, TRD + 4)] +
                [L(6, f"ds_read_b128 {vr(RED+4*i)}, v{vRR} offset:{1024*i}", ("RR", i)) for i in range(4)] +
                [L(4, f"ds_read_b64 {pr(UD)}, v{vUD}", "UD")], X1 + 1, X1 + 16)
    t0_ = XD + (9 if XD == X1 else 1)
    spread([tstore(0, TRD)], t0_, t0_ + 8); spread([tstore(1, TRD + 4)], t0_ + 2, t0_ + 12)
    red = [(4, lambda: (a.need("UD"), a(f"v_pk_add_f32 {pr(RED)}, {pr(RED)}, {pr(RED+4)}"))), I(f"v_pk_add_f32 {pr(RED+2)}, {pr(RED+2)}, {pr(RED+6)}"),
           I(f"v_pk_add_f32 {pr(RED+8)}, {pr(RED+8)}, {pr(RED+12)}"), I(f"v_pk_add_f32 {pr(RED+10)}, {pr(RED+10)}, {pr(RED+14)}"),
           I(f"v_pk_add_f32 {pr(RED)}, {pr(RED)}, {pr(RED+8)}"), I(f"v_pk_add_f32 {pr(RED+2)}, {pr(RED+2)}, {pr(RED+10)}"),
           I(f"v_and_b32 v{RED+4}, 0xffff0000, v{UD+1}"), I(f"v_lshlrev_b32 v{RED+5}, 16, v{UD+1}"),
           I(f"v_and_b32 v{RED+6}, 0xffff0000, v{UD}"), I(f"v_lshlrev_b32 v{RED+7}, 16, v{UD}")]
    red += [I(f"v_fmac_f32 v{RED+i}, s{sDE}, v{RED+4+i}") for i in range(4)]
    red += [I(f"v_cvt_pk_bf16_f32 v{STG}, v{RED}, v{RED+1}"), I(f"v_cvt_pk_bf16_f32 v{STG+1}, v{RED+2}, v{RED+3}"),
            I(f"v_min_u32 v{STG}, -2, v{STG}"), I(f"v_min_u32 v{STG+1}, -2, v{STG+1}")]
    red += [L(6, f"ds_write_b64 v{vEW}, {pr(STG)}"), L(6, f"ds_read_b128 {vr(ES)}, v{vER}", "ES")]
    e_ = spread(red, e_ + 8, e_ + 44)
    def estore():
        a.need("ES"); a("s_mov_b32 exec_hi, 0")
        a.vm(f"buffer_store_dwordx4 {vr(ES)}, v4, {sq(SY)}, s{sYE} offen {stflag}")
        a("s_mov_b64 exec, -1")
    spread([(8, estore)], max(e_ + 6, XD + 5), max(e_ + 6, XD + 5) + 10)
    if mx:
        spread([tread(2, FE0)], XD + 1, XD + 4)
        e_ = spread([tstore(2, FE0)], XD + 9, XD + 15)
    else:
        e_ = spread(conv(4) + conv(5), D0 + 8, D0 + 22)
        pin(e_ + 5, [barrier(("TW", 5))])
        spread([tread(2, FE0)], e_ + 6, e_ + 10)
        e_ = spread([tstore(2, FE0)], max(e_ + 14, XD + 7), max(e_ + 14, XD + 7) + 6)
    if opt("ypre", "0") == "1":
        def ypre():
            a(f"s_cmp_ge_u32 s2, {opt('late', '192')}")
            a("s_cbranch_scc1 no_ypre")
            for f in y_issue_ops(a): f()
            a.vn -= 5
            a.label("no_ypre")
        pin(max(int(opt("yp", str(NS - 10))), e_ + 1), [(40, ypre)])
    if not SPLIT(): a.needv("U2")
    stamp(a, 9); stamp(a, 24, True)
    for k in range(2):
        for i in range(4): fread(k, i)[1]()
    if opt("clr", "fill") == "fill":
        for c_, f_ in clr_pre: f_()
    qs = {7: 0, 9: 1, KE - 1: 2, 15: 4, 19: 5, 23: 6, 26: 7}
    for k in range(len(blocks)):
        if k == KE:
            a(f"s_cmp_eq_u32 s{sHF}, 1")
            a("s_cbranch_scc1 ex_h1")
            save = (a.ln, a.ld, dict(a.lt), set(inited), a.vn, a.vd)
            for h in range(2):
                if h == 1:
                    a("s_branch ex_join")
                    a.label("ex_h1")
                    end0 = (a.ln, a.ld)
                    a.ln, a.ld, a.lt, inited = save[0], save[1], dict(save[2]), set(save[3])
                    vend = (a.vn, a.vd); a.vn, a.vd = save[4:6]
                its = []
                for rp in range(2):
                    for c in range(8):
                        for s_, j in enumerate(TJ[h]):
                            if j >= c:
                                its.append((ACCE + 4*s_, vr(AE + 32*rp + 4*(j - c)), FEr(rp, c), [("AE", rp, j - c), ("FE", rp, c)]))
                for i, it in enumerate(its):
                    mfma(*it)
                    for f in plan[E0 + i]: f()
            a.label("ex_join")
            assert a.ln == end0[0] and a.vn == vend[0]
            a.vd = min(a.vd, vend[1])
            a.ld = min(a.ld, end0[1])
            qstamp(a, 3)
        for i, it in enumerate(items_of(k)):
            mfma(*it)
            for f in plan[start[k] + i]: f()
        if k in qs: qstamp(a, qs[k])
    stamp(a, 7); stamp(a, 25, True)
    a("s_nop 3")
    for j in (6, 7):
        for c, f in conv(j): f()
    barrier(("TW", 7))[1]()
    tread(3, TRD + 4)[1]()
    tstore(3, TRD + 4)[1]()
    stamp(a, 8); stamp(a, 26, True)
    qflush(a)
    if "--plan" in sys.argv: print(load, XA, X1, E0, D0)

Z, YA, YB, G = 8, 26, 44, 62
SS, QQ, RS, ND, C0 = 80, 82, 84, 86, 88
YW = 96

def p2_sums(a):
    a(f"v_pk_add_f32 {pr(SS)}, {pr(Z)}, {pr(Z+2)}")
    a(f"v_pk_mul_f32 {pr(QQ)}, {pr(Z)}, {pr(Z)}")
    a(f"v_pk_fma_f32 {pr(QQ)}, {pr(Z+2)}, {pr(Z+2)}, {pr(QQ)}")
    for e in range(2, 9):
        a(f"v_pk_add_f32 {pr(SS)}, {pr(SS)}, {pr(Z+2*e)}")
        a(f"v_pk_fma_f32 {pr(QQ)}, {pr(Z+2*e)}, {pr(Z+2*e)}, {pr(QQ)}")

def p2_chain(a, fill):
    fill = list(fill)
    def gap(n):
        for _ in range(n):
            if fill: a(fill.pop(0))
            else: a("s_nop 0")
    T, Uq = 90, 91
    gap(2)
    a(f"v_permlane32_swap_b32 v{SS}, v{SS+1}")
    a(f"v_permlane32_swap_b32 v{QQ}, v{QQ+1}")
    a(f"v_add_f32 v{SS}, v{SS}, v{SS+1}")
    a(f"v_add_f32 v{QQ}, v{QQ}, v{QQ+1}")
    gap(2)
    a(f"v_permlane16_swap_b32 v{SS}, v{QQ}")
    a(f"v_add_f32 v{T}, v{SS}, v{QQ}")
    for m in ("quad_perm:[1,0,3,2]", "quad_perm:[2,3,0,1]", "row_half_mirror", "row_mirror"):
        gap(2)
        a(f"v_add_f32_dpp v{T}, v{T}, v{T} {m} {DPP}")
    a(f"v_mov_b32 v{Uq}, v{T}")
    gap(2)
    a(f"v_permlane16_swap_b32 v{T}, v{Uq}")
    a(f"v_mul_f32 v{T}, s86, v{T}")
    a(f"v_mul_f32 v{Uq}, s86, v{Uq}")
    a(f"v_fma_f32 v{Uq}, -v{T}, v{T}, v{Uq}")
    a(f"v_max_f32 v{Uq}, 0, v{Uq}")
    a(f"v_add_f32 v{Uq}, s87, v{Uq}")
    a(f"v_rsq_f32 v{RS}, v{Uq}")
    gap(1)
    a(f"v_mul_f32 v{ND}, v{RS}, v{T}")
    a(f"v_mov_b32 v{RS+1}, v{RS}")
    a(f"v_mov_b32 v{ND+1}, v{ND}")
    gap(2)
    a(f"v_permlane32_swap_b32 v{RS}, v{RS+1}")
    a(f"v_permlane32_swap_b32 v{ND}, v{ND+1}")
    while fill: a(fill.pop(0))

def p2_first(a):
    a.needv("X")
    for q in range(4):
        for row in range(2):
            a(f"v_lshlrev_b32 v{Z+4*q+row}, 16, v{XR+4*row+q}")
            a(f"v_and_b32 v{Z+4*q+2+row}, 0xffff0000, v{XR+4*row+q}")
    a(f"v_lshlrev_b32 v{Z+16}, 16, v{XR+8}")
    a(f"v_lshlrev_b32 v{Z+17}, 16, v{XR+9}")
    a(f"v_readfirstlane_b32 s92, v{Z}")
    a(f"v_readfirstlane_b32 s93, v{Z+1}")
    a("s_nop 1")
    a(f"v_mov_b32 v{C0}, s92")
    a(f"v_mov_b32 v{C0+1}, s93")
    for e in range(9):
        a(f"v_pk_add_f32 {pr(Z+2*e)}, {pr(Z+2*e)}, {pr(C0)} neg_lo:[0,1] neg_hi:[0,1]")
    p2_sums(a)
    p2_chain(a, [])

def y_ld(i):
    if i == 4: return f"buffer_load_dwordx4 {vr(YP+16)}, v{vYG}, {sq(SY)}, s89 offen sc1"
    return f"buffer_load_dwordx4 {vr(YP+4*i)}, v{vL16}, {sq(SY)}, s88 offen offset:{1024*i} sc1"
def y_issue_ops(a):
    def e():
        a("s_mov_b32 exec_hi, 0"); a.vm(y_ld(4)); a("s_mov_b64 exec, -1")
    return [e] + [(lambda i: lambda: a.vm(y_ld(i)))(i) for i in range(4)]

def y_write(a):
    for q in range(4):
        r = YP + 4 * q
        a(f"ds_write2_b32 v{vYM}, v{r}, v{r+1} offset0:{32*q + (0 ^ q)} offset1:{32*q + (1 ^ q)}")
        a(f"ds_write2_b32 v{vYM}, v{r+2}, v{r+3} offset0:{32*q + (2 ^ q)} offset1:{32*q + (3 ^ q)}")
    a("s_mov_b32 exec_hi, 0")
    for i in range(4):
        a(f"ds_write_b32 v{120+i}, v{YP+16+i}")
    a("s_mov_b64 exec, -1")
    a("s_waitcnt lgkmcnt(0)")

def y_addr(a):
    for i in range(4):
        a(f"v_xor_b32 v{120+i}, {4*i}, v{vYE}")
        a(f"v_add_u32 v{120+i}, s98, v{120+i}")

def y_check(a):
    M = [4, 6, 8, 10, 12]
    for i in range(4):
        a(f"s_mov_b64 s[{M[i]}:{M[i]+1}], -1")
    a("s_mov_b32 s12, -1")
    a("s_mov_b32 s13, 0")
    a("s_mov_b32 s92, 0x20000")
    if opt("ypre", "0") == "1":
        a(f"s_cmp_ge_u32 s2, {opt('late', '192')}")
        a("s_cbranch_scc1 yc_late")
        a("s_waitcnt vmcnt(1)")
        a("s_branch yc_chk")
        a.label("yc_late")
    a("s_waitcnt vmcnt(0)")
    a("s_branch yc_load")
    a.label("yc_loop")
    a("s_waitcnt vmcnt(0)")
    a.label("yc_chk")
    for i in range(5):
        r = YP + 4 * i
        a(f"s_mov_b64 exec, s[{M[i]}:{M[i]+1}]")
        a(f"v_max3_u32 v238, v{r}, v{r+1}, v{r+2}")
        a(f"v_max_u32 v238, v238, v{r+3}")
        a(f"v_cmp_eq_u32 s[{M[i]}:{M[i]+1}], -1, v238")
    a("s_or_b64 s[14:15], s[4:5], s[6:7]")
    a("s_or_b64 s[14:15], s[14:15], s[8:9]")
    a("s_or_b64 s[14:15], s[14:15], s[10:11]")
    a("s_or_b64 s[14:15], s[14:15], s[12:13]")
    a("s_cbranch_scc0 yc_done")
    a("s_sub_u32 s92, s92, 1")
    a("s_cbranch_scc1 yc_done")
    if int(opt("ysleep", "2")): a(f"s_sleep {opt('ysleep','2')}")
    a.label("yc_load")
    for i in range(5):
        a(f"s_mov_b64 exec, s[{M[i]}:{M[i]+1}]")
        a(f"s_cbranch_execz yc_skip{i}")
        a(y_ld(i))
        a.label(f"yc_skip{i}")
    a("s_branch yc_loop")
    a.label("yc_done")
    a("s_mov_b64 exec, -1")

def p2_rest(a, stflag):
    for b in range(2):
        for e in range(9):
            a(f"ds_read_b32 v{YW + 9*b + e}, v{vYR} offset:{Y_LDS + YBR*b + YR*e}")
    a.label("p2_body")
    def unp(b, e):
        r = YW + 9 * b + e; y = (YA if b == 0 else YB) + 2 * e
        return [f"v_lshlrev_b32 v{y}, 16, v{r}", f"v_and_b32 v{y+1}, 0xffff0000, v{r}"]
    for e in range(9):
        a(f"s_waitcnt lgkmcnt({min(15, 17 - e)})")
        for s_ in unp(0, e): a(s_)
        a(f"v_pk_mul_f32 {pr(G+2*e)}, {pr(Z+2*e)}, {pr(YA+2*e)}")
    def post(Y):
        for e in range(9):
            a(f"v_pk_fma_f32 {pr(Z+2*e)}, {pr(G+2*e)}, {pr(RS)}, {pr(Z+2*e)}")
        for e in range(9):
            a(f"v_pk_fma_f32 {pr(Z+2*e)}, {pr(Y+2*e)}, {pr(ND)}, {pr(Z+2*e)} neg_lo:[0,1,0] neg_hi:[0,1,0]")
    qstamp(a, 0, "2")
    post(YA)
    qstamp(a, 1, "2")
    a("s_waitcnt lgkmcnt(0)")
    for layer, Y in ((2, YB), (3, YA), (4, YB)):
        p2_sums(a)
        if layer == 3: qstamp(a, 3, "2")
        fill = []
        for e in range(9):
            if layer == 2: fill += unp(1, e)
            fill.append(f"v_pk_mul_f32 {pr(G+2*e)}, {pr(Z+2*e)}, {pr(Y+2*e)}")
        if layer == 4:
            fill += [f"v_pk_add_f32 {pr(Z+2*e)}, {pr(Z+2*e)}, {pr(C0)}" for e in range(9)]
        p2_chain(a, fill)
        a("s_nop 0")
        if layer == 3: qstamp(a, 4, "2")
        post(Y)
        qstamp(a, {2: 2, 3: 5, 4: 6}[layer], "2")
    for row in range(2):
        for q in range(4):
            a(f"v_cvt_pk_bf16_f32 v{XR+4*row+q}, v{Z+4*q+row}, v{Z+4*q+2+row}")
    a(f"v_cvt_pk_bf16_f32 v{XR+8}, v{Z+16}, v{Z+17}")
    if opt("dry2", "0") == "1": a("s_cbranch_execz p2_dry_back")
    a(f"buffer_store_dwordx4 {vr(XR)}, v{vL16}, {sq(SO)}, s{sXO} offen {stflag}")
    a(f"buffer_store_dwordx4 {vr(XR+4)}, v{vL16}, {sq(SO)}, s{sXO} offen offset:{ROWB} {stflag}")
    a(f"buffer_store_short v{XR+8}, v{vL2}, {sq(SO)}, s{sXO} offen offset:1024 {opt('ost2', stflag)}")
    a(f"buffer_store_short_d16_hi v{XR+8}, v{vL2}, {sq(SO)}, s{sXO} offen offset:{1024+ROWB} {opt('ost2', stflag)}")

def signal(a, off_s):
    a(f"v_mov_b32 v238, s{off_s}")
    a(f"v_mov_b32 v239, s{sTAG}")
    a("s_mov_b64 exec, 1")
    a(f"buffer_store_dword v239, v238, {sq(SF)}, 0 offen sc1")
    a("s_mov_b64 exec, -1")

def poll(a, tag, vaddr, all64):
    a("s_mov_b32 s92, 0x20000")
    if not all64: a("s_mov_b32 exec_hi, 0")
    a.label(f"{tag}_poll")
    a(f"buffer_load_dword v238, v{vaddr}, {sq(SF)}, 0 offen sc1")
    a("s_waitcnt vmcnt(0)")
    a(f"v_cmp_ne_u32 vcc, s{sTAG}, v238")
    a("s_and_b64 exec, exec, vcc")
    a(f"s_cbranch_execz {tag}_ok")
    if int(opt("sleep", "2")): a(f"s_sleep {opt('sleep', '2')}")
    a("s_sub_u32 s92, s92, 1")
    a("s_cmp_lg_u32 s92, 0")
    a(f"s_cbranch_scc1 {tag}_poll")
    a.label(f"{tag}_ok")
    a("s_mov_b64 exec, -1")

def epoch_issue(a):
    a(f"v_mov_b32 v253, {EP}")
    a.vm(f"buffer_load_dword v254, v253, {sq(SF)}, 0 offen sc1", "EP")
def epoch_use(a):
    a.needv("EP")
    a(f"v_readfirstlane_b32 s{sTAG}, v254")
    a(f"s_mul_i32 s{sTAG}, s{sTAG}, 0x9E3779B1")
    a(f"s_add_u32 s{sTAG}, s{sTAG}, 0x7F4A7C15")

def elect_and_signal(a, n, skip):
    a(f"v_mov_b32 v238, {LDS_CTR}")
    a("v_mov_b32 v239, 1")
    a(f"s_lshl_b32 s90, s{sFI}, 6")
    a("s_waitcnt vmcnt(0)")
    a("s_mov_b64 exec, 1")
    a("ds_add_rtn_u32 v253, v238, v239")
    a("s_waitcnt lgkmcnt(0)")
    a("v_readfirstlane_b32 s3, v253")
    a("s_mov_b64 exec, -1")
    a(f"s_cmp_eq_u32 s3, {n-1}")
    a(f"s_cbranch_scc0 {skip}")
    signal(a, 90)
    stamp(a, 4)
    a.label(skip)

def kernel(name, body, vgpr, accum):
    return f""".text
.globl {name}
.p2align 8
.type {name},@function
{name}:
{body}{name}_end:
    s_endpgm
.section .rodata,"a"
.p2align 6
.amdhsa_kernel {name}
  .amdhsa_next_free_vgpr {vgpr}
  .amdhsa_next_free_sgpr 102
  .amdhsa_accum_offset {accum}
  .amdhsa_group_segment_fixed_size 0
  .amdhsa_kernarg_size 120
  .amdhsa_user_sgpr_count 2
  .amdhsa_user_sgpr_kernarg_segment_ptr 1
  .amdhsa_system_sgpr_workgroup_id_x 1
.end_amdhsa_kernel
"""
def header(launches):
    hdr = [l for l in open(REF).read().split("\n") if l.startswith(";") and "@launch" not in l]
    return "\n".join(hdr) + "\n" + "\n".join(launches) + '\n.amdgcn_target "amdgcn-amd-amdhsa--gfx950"\n'

def flow_split(a, hdma5, srds0, common_srds, caddr, elect, hl):
    p0_addr(a)
    a(f"s_cmp_eq_u32 s{sT2}, 0")
    a("s_cbranch_scc0 t2_path")
    a("s_waitcnt lgkmcnt(0)")
    stamp(a, 1)
    srds0(a)
    p0_issue(a, opt("p0ld", "nt"))
    srd(a, SH, 10, 11, TENS)
    common_srds(a)
    epoch_issue(a)
    stamp(a, 2)
    p1_prep_a(a)
    p0_compute(a, opt("ust", "sc1"))
    a("s_barrier")
    hdma5(a)
    stamp(a, 3)
    caddr(a)
    epoch_use(a)
    a("s_waitcnt lgkmcnt(0)")
    p1_prep_b(a)
    elect(a, 5, "t1_nosig", 1, 0, 0)
    a("s_waitcnt vmcnt(1)")
    a("s_branch t1_h")
    a.label("t1_nosig")
    a("s_waitcnt vmcnt(0)")
    a.label("t1_h")
    a.reset()
    stamp(a, 18)
    h_copies(a, vC1, [0, 1], vC2)
    p1_aload(a, range(4))
    stamp(a, 5)
    poll(a, "e1", vP1, True)
    stamp(a, 6)
    a(f"s_mov_b32 m0, s{sUB}")
    a(f"s_add_u32 s3, s90, {2*4096}")
    for q in (3, 2):
        a(f"buffer_load_dwordx4 v{vL16}, {sq(SU)}, s90 offen offset:{1024*q} sc1 lds")
    a(f"s_add_u32 s92, s{sUB}, {2*US}")
    a("s_mov_b32 m0, s92")
    a("s_nop 0")
    for q in (3, 2):
        a(f"buffer_load_dwordx4 v{vL16}, {sq(SU)}, s3 offen offset:{1024*q} sc1 lds")
    a.reset()
    h_copies(a, vC1, [2, 3])
    a("s_waitcnt vmcnt(0)")
    a("s_branch join")
    a.label("t2_path")
    a.reset()
    a(f"v_mov_b32 v56, {LDS_CTR}")
    a("v_mov_b32 v58, 0")
    a("v_mov_b32 v59, 0")
    a("ds_write_b64 v56, v[58:59]")
    p1_prep_a(a)
    a("s_waitcnt lgkmcnt(0)")
    srds0(a)
    srd(a, SH, 10, 11, TENS)
    common_srds(a)
    epoch_issue(a)
    a("s_waitcnt lgkmcnt(0)")
    epoch_use(a)
    a("s_barrier")
    hfirst = opt("hfirst", "0") == "1"
    if hfirst: hdma5(a)
    p0_issue(a, opt("p0ld", "nt"))
    if not hfirst: hdma5(a)
    stamp(a, 2)
    if hfirst:
        caddr(a)
        a.needv("h")
        stamp(a, 18)
        sv = (a.vn, a.vd, a.vt); a.reset()
        h_copies(a, vC1, [0, 1], vC2); p1_aload(a, range(4)); h_copies(a, vC1, [2, 3])
        a.vn, a.vd, a.vt = sv
    p0_compute(a, opt("ust", "sc1"), "2")
    stamp(a, 3)
    caddr(a)
    p1_prep_b(a)
    if not hfirst:
        a.needv("h")
        stamp(a, 18)
        a("s_waitcnt lgkmcnt(0)")
        a.reset()
        h_copies(a, vC1, [0, 1], vC2); p1_aload(a, range(4)); h_copies(a, vC1, [2, 3])
    elect(a, 0, "join", 1, 4, F1B)
    a.label("join")
    a("s_waitcnt lgkmcnt(0)")
    a("s_barrier")
    a.reset()
    for r in range(FE0, FE0 + 4): a(f"v_mov_b32 v{r}, -1")
    h_copies(a, vC3, [0], vC4)

def flow_unsplit(a, hdma5, srds0, common_srds, caddr, elect, hl):
    a(f"s_cmp_eq_u32 s{sW}, 3")
    a("s_cbranch_scc1 w3_path")
    p0_addr(a)
    a("s_waitcnt lgkmcnt(0)")
    stamp(a, 1)
    srds0(a)
    p0_issue(a, opt("p0ld", "nt"))
    srd(a, SH, 10, 11, TENS)
    common_srds(a)
    epoch_issue(a)
    hpos = opt("hpos", "late")
    if hpos == "early":
        a("s_barrier")
        hdma5(a)
    stamp(a, 2)
    if opt("arr", "0") == "1":
        a("s_waitcnt vmcnt(14)"); stamp(a, 19); a("s_waitcnt vmcnt(1)"); stamp(a, 15)
    p1_prep_a(a)
    p0_compute(a, opt("ust", "sc1"))
    stamp(a, 16)
    if hpos == "late":
        hdma5(a)
        a("s_barrier")
    stamp(a, 3)
    caddr(a)
    epoch_use(a)
    a("s_waitcnt lgkmcnt(0)")
    p1_prep_b(a)
    if hpos == "late":
        elect(a, 4 if opt("hdef", "0") == "1" else 5, "nosig", 2)
        a("s_waitcnt vmcnt(1)")
        a("s_branch have_h")
        a.label("nosig")
        a("s_waitcnt vmcnt(0)")
        a("s_branch have_h")
    else:
        a.reset()
        h_copies(a, vC1, [0, 1], vC2)
        p1_aload(a, range(4))
        elect(a, 0, "part2", 2)
        a("s_branch part2")
    a.reset()
    a.label("w3_path")
    if opt("il", "bar1").startswith("bar"):
        for k in range(int(opt("il", "bar1")[3:])): a("s_barrier")
    if opt("dry0", "0") == "1":
        a("s_mov_b64 exec, 0")
        a("s_branch p0_body")
        a.label("p0_dry_back")
        a("s_mov_b64 exec, -1")
    caddr(a)
    a(f"v_mov_b32 v56, {LDS_CTR}")
    a(f"ds_write_b32 v56, v{ZR}")
    p1_prep_a(a)
    a("s_waitcnt lgkmcnt(0)")
    srd(a, SH, 10, 11, TENS)
    common_srds(a)
    ntw = int(opt("tw", "0"))
    if ntw:
        a(f"s_cmp_ge_u32 s2, {ntw}")
        a("s_cbranch_scc1 no_tw")
        srd(a, SX, 14, 15, TENS)
        a(f"v_mul_u32_u24 v57, 0x12000, v{vLANE}")
        for sr in (SU, SY):
            a(f"buffer_load_dword v58, v57, {sq(sr)}, 0 offen nt")
        a(f"v_mul_u32_u24 v57, 0x9000, v{vLANE}")
        for sr in (SX, SO, SH):
            a(f"buffer_load_dword v58, v57, {sq(sr)}, 0 offen nt")
        a.label("no_tw")
    epoch_issue(a)
    a("s_waitcnt lgkmcnt(0)")
    p1_prep_b(a)
    epoch_use(a)
    a("s_waitcnt lgkmcnt(0)")
    a("s_barrier")
    hdma5(a)
    a("s_waitcnt vmcnt(0)")
    a.label("have_h")
    a.reset()
    stamp(a, 18)
    h_copies(a, vC1, [0, 1], vC2)
    p1_aload(a, range(4))
    a.label("part2")
    a.reset()
    pre = opt("pre", "0") == "1"
    if pre:
        h_copies(a, vC1, [2, 3])
        if opt("ein", "0") == "1" or opt("pre2", "0") == "1": p1_aload(a, range(4, 8))
    stamp(a, 5)
    if opt("clr", "fill") == "w23":
        a(f"s_cmp_lt_u32 s{sW}, 2")
        a("s_cbranch_scc1 do_poll")
        for r in range(FE0, FE0 + 4): a(f"v_mov_b32 v{r}, -1")
        a("s_sub_u32 s92, s88, 8192")
        for so in ("s92", "s88"):
            for q in range(4):
                a(f"buffer_store_dwordx4 {vr(FE0)}, v{vL16}, {sq(SY)}, {so} offen offset:{1024*q} sc1")
        a(f"buffer_store_dwordx4 {vr(FE0)}, v{vL16}, {sq(SY)}, s99 offen sc1")
        a("s_branch e1_ok")
        a.label("do_poll")
    poll(a, "e1", vP1, True)
    a("s_barrier")
    a.reset()
    stamp(a, 6)
    a(f"s_mov_b32 m0, s{sUB}")
    a("s_nop 0")
    hdef = opt("hdef", "0") == "1"
    for q in (3, 2):
        a.vm(f"buffer_load_dwordx4 v{vL16}, {sq(SU)}, s90 offen offset:{1024*q} sc1 lds", f"U{q}")
    if hdef:
        a(f"s_add_u32 s92, s{sHB}, {3*CS + 32}")
        a("s_mov_b32 m0, s92")
        a("s_nop 0")
        for q in (2, 3):
            a.vm(f"buffer_load_dwordx4 v{vL16}, {sq(SH)}, s98 offen offset:{1024*q} {hl} lds", "h2")
        a(f"s_mov_b32 m0, s{sUB}")
        a("s_nop 0")
    for q in (1, 0):
        a.vm(f"buffer_load_dwordx4 v{vL16}, {sq(SU)}, s90 offen offset:{1024*q} sc1 lds", f"U{q}")
    a("s_mov_b32 m0, s85")
    a("s_nop 0")
    a.vm(f"buffer_load_dwordx4 v{vL16}, {sq(SU)}, s91 offen sc1 lds", "UE")
    for r in range(FE0, FE0 + 4): a(f"v_mov_b32 v{r}, -1")
    if opt("clr", "fill") == "pre":
        for q in range(4):
            a.vm(f"buffer_store_dwordx4 {vr(FE0)}, v{vL16}, {sq(SY)}, s88 offen offset:{1024*q} sc1")
        a("s_mov_b32 exec_hi, 0")
        a.vm(f"buffer_store_dwordx4 {vr(FE0)}, v{vL16}, {sq(SY)}, s99 offen sc1")
        a("s_mov_b64 exec, -1")
    if opt("xpre", "0") == "1":
        a.vm(f"buffer_load_dwordx4 {vr(XR)}, v{vL16}, {sq(SX)}, s{sXO} offen nt")
        a.vm(f"buffer_load_dwordx4 {vr(XR+4)}, v{vL16}, {sq(SX)}, s{sXO} offen offset:{ROWB} nt")
        a.vm(f"buffer_load_ushort v{XR+8}, v{vL2}, {sq(SX)}, s{sXO} offen offset:1024 nt")
        a.vm(f"buffer_load_ushort v{XR+9}, v{vL2}, {sq(SX)}, s{sXO} offen offset:{1024+ROWB} nt", "X")
    if not pre and not hdef:
        h_copies(a, vC1, [2, 3])
        if opt("ein", "0") == "1": p1_aload(a, range(4, 8))
    if opt("ein", "0") != "1": h_copies(a, vC3, [0], vC4)

def gen_fused():
    K = NAME + "_kernel"
    sent = opt("x2", "flag") == "sent"
    NEL = 4 if sent else 3
    out = header([f"; @launch grid=(256,1,1) block=(256,1,1) lds={LDS_TOT + int(opt('ldsx', '0'))}"])
    a = A()
    hl = opt("hld", "nt")
    stamp(a, 0)
    if int(opt("pad", "0")):
        a("s_memrealtime s[94:95]"); a("s_waitcnt lgkmcnt(0)"); a("v_mov_b32 v255, s94")
    prologue(a, K + "_end")
    def common_srds(a):
        srd(a, SF, 20, 21, F_BYTES, F_OFF)
        srd(a, SU, 20, 21, U_BYTES, U_OFF)
        srd(a, SY, 20, 21, Y_BYTES, YM_OFF)
        srd(a, SO, 16, 17, TENS)
        a(f"s_lshr_b32 s90, s{sCH}, 1")
        a("s_lshl_b32 s90, s90, 2")
        a(f"s_lshr_b32 s91, s{sCE}, 1")
        a("s_lshl_b32 s91, s91, 2")
        a(f"s_load_dword s{sDM}, s[12:13], s90")
        a(f"s_load_dword s{sDE}, s[12:13], s91")
    tail = []
    def caddr(a):
        for r in range(ZR, ZR + 4): a(f"v_mov_b32 v{r}, 0")
        a(f"v_add_u32 v{vC1}, s{sHB}, v{vL16}")
        a(f"v_mov_b32 v{vC2}, s{sHB}")
        a(f"v_mov_b32 v{vC4}, {4*HB}")
    def hsec(a):
        a.reset()
        h_copies(a, vC1, [0, 1], vC2)
        p1_aload(a, range(4))
        h_copies(a, vC1, [2, 3])
        p1_aload(a, range(4, 8))
    def elect(a, wait, nxt, last, coff=0, foff=0):
        a(f"v_mov_b32 v238, {LDS_CTR + coff}")
        a("v_mov_b32 v239, 1")
        a(f"s_lshl_b32 s92, s{sFI}, 6")
        if foff: a(f"s_add_u32 s92, s92, {foff}")
        a(f"s_waitcnt vmcnt({wait})")
        a("s_mov_b64 exec, 1")
        a("ds_add_rtn_u32 v253, v238, v239")
        a("s_waitcnt lgkmcnt(0)")
        a("v_readfirstlane_b32 s3, v253")
        a("s_mov_b64 exec, -1")
        a(f"s_cmp_eq_u32 s3, {last}")
        a(f"s_cbranch_scc0 {nxt}")
        signal(a, 92)
        stamp(a, 4)
    def hdma5(a):
        if opt("hdef", "0") == "1":
            a(f"s_lshl_b32 s98, s{sCH}, 12")
            a(f"s_add_u32 s92, s{sHB}, {3*CS + 32}")
            a("s_mov_b32 m0, s92")
            a("s_nop 0")
            for q in range(2):
                a.vm(f"buffer_load_dwordx4 v{vL16}, {sq(SH)}, s98 offen offset:{1024*q} {hl} lds")
            a("s_mov_b64 exec, 1")
            a.vm(f"buffer_load_dwordx4 v{vL16}, {sq(SH)}, s98 offen offset:2048 {hl} lds")
            a("s_mov_b64 exec, -1")
        else:
            h_dma(a, sCH, sHB, 0, hl, None)
        a(f"s_lshl_b32 s3, s{sCE}, 12")
        a(f"s_lshl_b32 s92, s{sW}, 10")
        a("s_add_u32 s3, s3, s92")
        a(f"s_add_u32 s92, s92, {4*HB + 3*CS + 32}")
        a("s_mov_b32 m0, s92")
        a("s_nop 0")
        a.vm(f"buffer_load_dwordx4 v{vL16}, {sq(SH)}, s3 offen {hl} lds", "h")
    def srds0(a):
        srd(a, SK, 4, 5, TENS); srd(a, SV, 6, 7, TENS); srd(a, SSH, 8, 9, D * 8)
    (flow_split if SPLIT() else flow_unsplit)(a, hdma5, srds0, common_srds, caddr, elect, hl)
    p1_mfma(a, opt("yst", "sc1"), tail)
    p2_first(a)
    y_addr(a)
    if opt("dry2", "0") == "1":
        a("s_mov_b64 exec, 0")
        a("s_branch p2_body")
        a.label("p2_dry_back")
        a("s_mov_b64 exec, -1")
    a(f"s_or_b32 s3, s2, s{sW}")
    a("s_cmp_eq_u32 s3, 0")
    a("s_cbranch_scc0 no_epoch")
    a(f"s_mov_b32 s3, {EP}")
    signal(a, 3)
    a.label("no_epoch")
    stamp(a, 10)
    y_check(a)
    stamp(a, 11)
    y_write(a)
    a("s_barrier")
    stamp(a, 12)
    if opt("q", "0") == "2": stamp(a, 24, True)
    p2_rest(a, opt("ost", "sc1"))
    qstamp(a, 7, "2"); qflush(a, "2")
    if opt("q2", "0") == "1": stamp(a, 27, True)
    stamp(a, 13)
    if STAMPS: a("s_waitcnt vmcnt(0)")
    stamp(a, 14)
    if int(opt("pad", "0")):
        if opt("gpad", "0") == "1":
            srd(a, 96, 18, 19, 256)
            a("v_mov_b32 v13, 0")
            a("buffer_load_dword v12, v13, s[96:99], 0 offen sc1")
            a("s_waitcnt vmcnt(0)")
            a("v_readfirstlane_b32 s100, v12")
            a("s_not_b32 s100, s100")
        a("v_readfirstlane_b32 s100, v255")
        a.label("padl")
        a("s_memrealtime s[98:99]")
        a("s_waitcnt lgkmcnt(0)")
        a("s_sub_u32 s98, s98, s100")
        a(f"s_cmp_lt_u32 s98, {opt('pad', '0')}")
        a("s_cbranch_scc1 padl")
    stamp_flush(a)
    a("s_endpgm")
    for f in tail: f(a)
    out += kernel(K, a.text(), 512, 256)
    return out

if __name__ == "__main__":
    path = sys.argv[1]
    STAMPS = "--stamps" in sys.argv
    for x in sys.argv[2:]:
        if "=" in x:
            k_, v_ = x.split("=", 1); OPT[k_] = v_
    open(path, "w").write(gen_fused())
```

```python
import sys
NAME = "interleave_layers__ssm_conv_h3__ssm_conv_h3__prompt"
REF = f"cdna_kernels/{NAME}.s.ref"
OPT = {}
STAMPS = False
def opt(k, d): return OPT.get(k, d)
def SPLIT(): return opt("split", "0") == "1"

S, D = 2048, 576
ROWB = D * 2
TENS = S * ROWB
U_OFF = 0;            U_BYTES = 2 * D * 4096
YM_OFF = U_BYTES;     YM_BYTES = 256 * 16384
YE_OFF = YM_BYTES;    YE_BYTES = 64 * 8192
Y_BYTES = YM_BYTES + YE_BYTES
F_OFF = YM_OFF + Y_BYTES
F2 = 0; F2A = 131072; EP = 163840; FD = 196608; F1B = 0; F_BYTES = FD + 131072
ST_OFF = 0xA00000
CS = 4160; HB = 4 * CS
US = 4608; U_BASE = 5 * HB; UE = U_BASE + 4 * US
LDS_CTR = U_BASE + 5 * US
Y_LDS = 0; YR = 1028; YBR = 9 * YR + 12
T_LDS = LDS_CTR + 64; TR = 144
E_LDS = T_LDS + 128 * TR
R_LDS = E_LDS + 2560
LDS_TOT = R_LDS + 16384

class A:
    def __init__(self):
        self.l = []; self.reset()
    def reset(self):
        self.ln = 0; self.ld = 0; self.lt = {}
        self.vn = 0; self.vd = 0; self.vt = {}
    def __call__(self, s): self.l.append("    " + s)
    def label(self, s): self.l.append(s + ":")
    def text(self): return "\n".join(self.l) + "\n"
    def lds(self, s, tag=None):
        self(s); self.ln += 1
        if tag is not None: self.lt[tag] = self.ln
    def vm(self, s, tag=None):
        self(s); self.vn += 1
        if tag is not None: self.vt[tag] = self.vn
    def need(self, *tags):
        k = max([self.lt[t] for t in tags if t in self.lt] + [0])
        if k > self.ld:
            n = min(15, self.ln - k); self(f"s_waitcnt lgkmcnt({n})"); self.ld = self.ln - n
    def needv(self, *tags):
        k = max([self.vt[t] for t in tags] + [0])
        if k > self.vd:
            n = min(63, self.vn - k); self(f"s_waitcnt vmcnt({n})"); self.vd = self.vn - n

def srd(a, d, lo, hi, size, add=None):
    if add:
        a(f"s_add_u32 s{d}, s{lo}, {add}")
        a(f"s_addc_u32 s{d+1}, s{hi}, 0")
    else:
        a(f"s_mov_b32 s{d}, s{lo}")
        a(f"s_mov_b32 s{d+1}, s{hi}")
    a(f"s_mov_b32 s{d+2}, {size}")
    a(f"s_mov_b32 s{d+3}, 0x00020000")

SK, SV, SSH, SH, SU, SY, SX, SO, SF = 24, 28, 32, 36, 40, 44, 48, 52, 56
sX, sQ, sB, sP, sW = 60, 61, 62, 63, 64
sB0, sCF, sRB = 69, 70, 71
sCH, sCE, sJE, sHB, sUB, sDM, sDE, sFI, sHF, sTAG = 72, 73, 74, 75, 76, 77, 78, 79, 82, 83
sYM, sYE, sXO, sT2 = 80, 81, 84, 100
vLANE, vL16, vL2 = 250, 251, 252

def stamp(a, idx, cyc=False):
    if opt("padat", "x") == str(idx) and not cyc:
        a("s_memrealtime s[94:95]"); a("s_waitcnt lgkmcnt(0)"); a("v_mov_b32 v255, s94")
    if not STAMPS: return
    a(("s_memtime" if cyc else "s_memrealtime") + " s[94:95]")
    a("s_waitcnt lgkmcnt(0)")
    a(f"v_writelane_b32 v255, s94, {idx}")
def qstamp(a, i, mode="1"):
    if STAMPS and opt("q", "0") == mode: a(f"s_memtime s[{4+2*i}:{5+2*i}]")
def qflush(a, mode="1"):
    if STAMPS and opt("q", "0") == mode:
        a("s_waitcnt lgkmcnt(0)")
        for i in range(8): a(f"v_writelane_b32 v255, s{4+2*i}, {20+i if i < 4 else 24+i}")
def stamp_flush(a):
    if not STAMPS: return
    srd(a, 96, 20, 21, 0x100000, ST_OFF)
    a("s_lshl_b32 s94, s2, 2")
    a(f"s_add_u32 s94, s94, s{sW}")
    a("s_lshl_b32 s94, s94, 7")
    a(f"v_lshlrev_b32 v254, 2, v{vLANE}")
    a("s_mov_b32 exec_hi, 0")
    a("buffer_store_dword v255, v254, s[96:99], s94 offen sc1")

def vr(r, n=4): return f"v[{r}:{r+n-1}]"
def ar(r, n=4): return f"a[{r}:{r+n-1}]"
def pr(r): return f"v[{r}:{r+1}]"
def sq(r): return f"s[{r}:{r+3}]"
DPP = "row_mask:0xf bank_mask:0xf"

def prologue(a, end):
    a("s_cmp_ge_u32 s2, 256")
    a(f"s_cbranch_scc1 {end}")
    a(f"s_lshr_b32 s{sB0}, s2, 7")
    a(f"s_mul_i32 s3, s{sB0}, 48")
    a("s_add_u32 s22, s0, s3")
    a("s_addc_u32 s23, s1, 0")
    a("s_load_dwordx4 s[4:7], s[22:23], 8")
    a("s_load_dwordx2 s[8:9], s[22:23], 24")
    a(f"s_and_b32 s{sX}, s2, 7")
    a(f"s_lshr_b32 s{sQ}, s2, 3")
    a(f"s_lshr_b32 s{sB}, s{sX}, 2")
    a(f"s_mul_i32 s3, s{sB}, 48")
    a("s_add_u32 s22, s0, s3")
    a("s_addc_u32 s23, s1, 0")
    a("s_load_dwordx2 s[10:11], s[22:23], 32")
    a("s_load_dwordx2 s[12:13], s[22:23], 40")
    a("s_load_dwordx2 s[14:15], s[0:1], 0")
    a("s_load_dwordx4 s[16:19], s[0:1], 96")
    a("s_load_dwordx2 s[20:21], s[0:1], 112")
    npf = int(opt("cpf", "32"))
    if npf:
        K = NAME + "_kernel"
        spread_ = opt("cpfs", "1") == "1"
        if not spread_:
            a(f"s_cmp_ge_u32 s2, {npf}")
            a("s_cbranch_scc1 no_cpf")
        a("s_getpc_b64 s[96:97]")
        a.label("cpf_base")
        if spread_:
            a("s_lshr_b32 s3, s2, 3")
            a("s_lshl_b32 s3, s3, 10")
            a("v_and_b32 v12, 7, v0")
            a("v_lshl_add_u32 v12, v12, 7, s3")
        else:
            a("v_lshlrev_b32 v12, 7, v0")
        a(f"v_min_u32 v12, {K}_end - cpf_base, v12")
        a("v_mov_b32 v13, s97")
        a("v_add_co_u32 v12, vcc, s96, v12")
        a("v_cmp_gt_u32 s[24:25], 8, v0" if spread_ else "s_nop 0")
        a("s_nop 0")
        a("v_addc_co_u32 v13, vcc, 0, v13, vcc")
        if spread_:
            a("s_and_saveexec_b64 s[26:27], s[24:25]")
            a("s_cbranch_execz cpf_skip")
        a("global_load_dword v254, v[12:13], off")
        if spread_:
            a.label("cpf_skip")
            a("s_mov_b64 exec, s[26:27]")
        a.label("no_cpf")
    a("v_lshrrev_b32 v1, 6, v0")
    a(f"v_and_b32 v{vLANE}, 63, v0")
    a(f"v_readfirstlane_b32 s{sW}, v1")
    a(f"v_lshlrev_b32 v{vL16}, 4, v{vLANE}")
    a(f"v_lshlrev_b32 v{vL2}, 1, v{vLANE}")
    if SPLIT():
        a(f"s_and_b32 s{sCF}, s{sQ}, 3")
        a(f"s_bfe_u32 s{sRB}, s{sQ}, 0x20002")
        a(f"s_lshl_b32 s3, s{sX}, 2")
        a(f"s_add_u32 s{sRB}, s{sRB}, s3")
        a(f"s_lshl_b32 s{sFI}, s{sB0}, 7")
        a(f"s_lshl_b32 s3, s{sCF}, 5")
        a(f"s_add_u32 s{sFI}, s{sFI}, s3")
        a(f"s_add_u32 s{sFI}, s{sFI}, s{sRB}")
        a(f"s_lshr_b32 s{sT2}, s{sW}, 1")
    else:
        a(f"s_and_b32 s{sCF}, s{sQ}, 1")
        a(f"s_bfe_u32 s{sRB}, s{sQ}, 0x30001")
        a(f"s_lshl_b32 s3, s{sX}, 3")
        a(f"s_add_u32 s{sRB}, s{sRB}, s3")
        a(f"s_lshl_b32 s{sFI}, s{sB0}, 7")
        a(f"s_lshl_b32 s3, s{sCF}, 6")
        a(f"s_add_u32 s{sFI}, s{sFI}, s3")
        a(f"s_add_u32 s{sFI}, s{sFI}, s{sRB}")
    a(f"s_and_b32 s{sP}, s{sX}, 3")
    a(f"s_lshl_b32 s{sP}, s{sP}, 4")
    a(f"s_lshr_b32 s3, s{sQ}, 1")
    a(f"s_add_u32 s{sP}, s{sP}, s3")
    a(f"s_and_b32 s{sHF}, s{sQ}, 1")
    a(f"s_lshl_b32 s{sCH}, s{sP}, 3")
    a(f"s_lshl_b32 s3, s{sHF}, 2")
    a(f"s_add_u32 s{sCH}, s{sCH}, s3")
    a(f"s_add_u32 s{sCH}, s{sCH}, s{sW}")
    a(f"s_add_u32 s{sCE}, s{sP}, 512")
    a(f"s_cmp_eq_u32 s{sHF}, 0")
    a(f"s_cselect_b32 s{sJE}, 0x7520, 0x6431") if False else None
    a("s_mov_b32 s3, 0x6431")
    a(f"s_cselect_b32 s{sJE}, 0x7520, s3")
    a(f"s_lshl_b32 s3, s{sW}, 2")
    a(f"s_lshr_b32 s{sJE}, s{sJE}, s3")
    a(f"s_and_b32 s{sJE}, s{sJE}, 7")
    a(f"s_mul_i32 s{sHB}, s{sW}, {HB}")
    a(f"s_mul_i32 s{sUB}, s{sW}, {US}")
    a(f"s_add_u32 s{sUB}, s{sUB}, {U_BASE}")

def kraw(t): return 8 + 4 * t
def hraw(j): return 40 + 4 * j
def vraw(t): return 52 + 4 * t
vA1, vA2, vA3, vA4, vA7 = 242, 243, 244, 245, 246
def EXH(): return 0xf if SPLIT() else 0xffff
def p0_addr(a):
    cw = 72 if SPLIT() else 96
    a(f"v_lshrrev_b32 v247, 2, v{vLANE}")
    a(f"v_and_b32 v248, 3, v{vLANE}")
    if SPLIT():
        a(f"s_lshl_b32 s67, s{sT2}, 5")
        a(f"s_add_u32 s67, s67, s{sRB}")
        a(f"s_and_b32 s68, s{sW}, 1")
        a(f"s_lshl_b32 s66, s{sCF}, 1")
        a("s_add_u32 s68, s68, s66")
    else:
        a(f"s_mov_b32 s67, s{sRB}")
        a(f"s_mul_i32 s68, s{sCF}, 3")
        a(f"s_add_u32 s68, s68, s{sW}")
    a(f"s_mul_i32 s65, s67, {32*ROWB}")
    a(f"s_mul_i32 s66, s68, {2*cw}")
    a("s_add_u32 s65, s65, s66")
    a(f"v_mul_u32_u24 v{vA1}, {8*ROWB}, v248")
    a(f"v_lshlrev_b32 v{vA7}, 4, v247")
    a(f"v_add3_u32 v{vA1}, v{vA1}, v{vA7}, s65")
    a(f"v_add_u32 v{vA2}, {4*ROWB}, v{vA1}")
    a(f"v_subrev_u32 v{vA3}, {3*ROWB}, v{vA1}")
    a(f"s_mul_i32 s66, s68, {cw*8}")
    a(f"v_add_u32 v{vA7}, s66, v{vL16}")
    a(f"s_mul_i32 s65, s{sB0}, 576")
    a(f"s_mul_i32 s66, s68, {cw}")
    a("s_add_u32 s65, s65, s66")
    a("s_lshl_b32 s65, s65, 12")
    a("s_add_u32 s65, s65, 4080")
    a("s_lshl_b32 s66, s67, 6")
    a("s_sub_u32 s65, s65, s66")
    a(f"v_lshlrev_b32 v{vA4}, 15, v247")
    a("v_lshlrev_b32 v248, 4, v248")
    a(f"v_sub_u32 v{vA4}, v{vA4}, v248")
    a(f"v_add_u32 v{vA4}, s65, v{vA4}")

def p0_issue(a, fl):
    def row(t): return (f"v{vA1}", t * ROWB) if t < 4 else (f"v{vA2}", (t - 4) * ROWB)
    def ldk(t):
        b, o = row(t); a.vm(f"buffer_load_dwordx4 {vr(kraw(t))}, {b}, {sq(SK)}, 0 offen offset:{o} {fl}", f"K{t}")
    def ldv(t):
        b, o = row(t); a.vm(f"buffer_load_dwordx4 {vr(vraw(t))}, {b}, {sq(SV)}, 0 offen offset:{o} {fl}", f"V{t}")
    if opt("il", "bar1") == "prio": a("s_setprio 3")
    a(f"s_mov_b32 exec_hi, {EXH()}")
    a.vm(f"buffer_load_dwordx4 v[84:87], v{vA7}, {sq(SSH)}, 0 offen", "W")
    for t in (5, 6, 7): ldk(t)
    a("s_mov_b32 exec_lo, 0x11111111")
    a(f"s_mov_b32 exec_hi, {EXH() & 0x1111}")
    for j in range(3):
        a.vm(f"buffer_load_dwordx4 {vr(hraw(j))}, v{vA3}, {sq(SK)}, 0 offen offset:{j*ROWB} {fl}", f"H{j}")
    a("s_mov_b32 exec_lo, -1")
    a(f"s_mov_b32 exec_hi, {EXH()}")
    il = opt("il", "bar1")
    def step(k):
        if il == "prio": a(f"s_setprio {3 - k}")
        if il.startswith("bar") and k <= int(il[3:]): a("s_barrier")
    step(1)
    for t in range(5):
        ldk(t); ldv(t)
        if t == 1: step(2)
        if t == 3: step(3)
    for t in (5, 6, 7): ldv(t)
    a("s_mov_b64 exec, -1")

def unpack(a, dlo, dhi, src):
    a(f"v_lshlrev_b32 v{dlo}, 16, v{src}")
    a(f"v_and_b32 v{dhi}, 0xffff0000, v{src}")

def p0_compute(a, stflag, sfx=""):
    def W(p, j): return 88 + 8 * p + 2 * j
    def Kf(j, c): return 120 + 8 * (j & 7) + c
    def U(t, c): return 184 + 8 * (t & 3) + c
    OUTS = [hraw(0), hraw(1), hraw(2), kraw(0), kraw(1), vraw(0), vraw(1), 84]
    VT = 216
    a("s_mov_b32 vcc_lo, 0x11111111")
    a("s_mov_b32 vcc_hi, 0x11111111")
    a("v_mov_b32 v224, 0xffff0000")
    for c in range(1, 8):
        a(f"s_mov_b32 s{3+c}, {4096*c}")
    a.label("p0_body" + sfx)
    a.needv("W")
    for c in range(8):
        p, h = c >> 1, c & 1
        for half in range(2):
            i = 2 * c + half; s_ = i >> 2; qp = f"quad_perm:[{s_},{s_},{s_},{s_}] {DPP}"
            a(f"v_cvt_f32_bf16_dpp v{W(p,2*half)+h}, v{84+(i&3)} {qp}")
            a(f"v_and_b32_dpp v{W(p,2*half+1)+h}, v{84+(i&3)}, v224 {qp}")
    for j in range(3):
        a.needv(f"H{j}")
        for p in range(4):
            a(f"v_cndmask_b32_dpp v{hraw(j)+p}, v{kraw(5+j)+p}, v{hraw(j)+p}, vcc quad_perm:[0,0,1,2] {DPP}")
        for p in range(4): unpack(a, Kf(j, 2*p), Kf(j, 2*p+1), hraw(j) + p)
    def kun(t):
        for p in range(4): unpack(a, Kf(t+3, 2*p), Kf(t+3, 2*p+1), kraw(t) + p)
    def ksum(t):
        for p in range(4):
            a(f"v_pk_mul_f32 {pr(U(t,2*p))}, {pr(Kf(t,2*p))}, {pr(W(p,3))}")
        for jj in (2, 1, 0):
            for p in range(4):
                a(f"v_pk_fma_f32 {pr(U(t,2*p))}, {pr(Kf(t+3-jj,2*p))}, {pr(W(p,jj))}, {pr(U(t,2*p))}")
    def vmul(t):
        a.needv(f"V{t}")
        if t == 7: stamp(a, 17)
        for p in range(4): unpack(a, VT + 2*p, VT + 2*p + 1, vraw(t) + p)
        for p in range(4):
            a(f"v_pk_mul_f32 {pr(U(t,2*p))}, {pr(U(t,2*p))}, {pr(VT+2*p)}")
    def cvt(t):
        q = (7 - t) // 2
        if t == 7 and opt("dry0", "0") == "1": a("s_cbranch_execz p0_dry_back")
        if t == 7: a(f"s_mov_b32 exec_hi, {EXH()}")
        for c in range(8):
            a(f"v_cvt_pk_bf16_f32 v{OUTS[c]+q}, v{U(t, c)}, v{U(t-1, c)}")
            if t == 7:
                so = "0" if c == 0 else f"s{3+c}"
                a.vm(f"buffer_store_dwordx4 {vr(OUTS[c])}, v{vA4}, {sq(SU)}, {so} offen {stflag}", "UST")
        if t == 7: a("s_mov_b64 exec, -1")
    for t in range(5):
        a.needv(f"K{t}")
        kun(t)
        ksum(t)
        if t <= 2: kun(5 + t)
        if t == 4:
            for tt in (5, 6, 7): ksum(tt)
        vmul(t)
        if t & 1: cvt(t)
    for t in (5, 6, 7):
        vmul(t)
        if t & 1: cvt(t)

ACC, ACCE, FB, AE, FE0, PD, EV = 8, 40, 56, 120, 184, 216, 220
vTW, vTR, vFE, vEW, vER, vRW, vRR, vUD, vP1, vP2, vYM, vYE, vYG, vYR = range(224, 238)
vPB = 254
RED, UD, STG, ES, TRD, YP, XR = 120, 136, 138, 140, 144, 152, 240
TJ = ((0, 2, 5, 7), (1, 3, 4, 6))

def h_dma(a, ch, ldsbase_s, ldsconst, flag, tag):
    a(f"s_lshl_b32 s3, s{ch}, 12")
    if ldsbase_s is not None:
        a(f"s_add_u32 s92, s{ldsbase_s}, {ldsconst + 3*CS + 32}")
        a("s_mov_b32 m0, s92")
    else:
        a(f"s_mov_b32 m0, {ldsconst + 3*CS + 32}")
    a("s_nop 0")
    for q in range(4):
        a.vm(f"buffer_load_dwordx4 v{vL16}, {sq(SH)}, s3 offen offset:{1024*q} {flag} lds", tag)

hc_n = [0]
vC1, vC2, vC3, vC4, ZR = 176, 177, 178, 179, 180
def h_copy_ops(a, vR, qs, head=None):
    hc_n[0] += 1; u = hc_n[0]
    Dq = lambda i: 120 + 8 * i
    ops = []
    def L(c, s_, tag=None): ops.append((c, lambda: a.lds(s_, tag)))
    def V(s_, need=None): ops.append((4, lambda: ((a.need(need) if need else None), a(s_))))
    for i, q in enumerate(qs):
        L(6, f"ds_read_b128 {vr(Dq(i))}, v{vR} offset:{3*CS + 32 + 1024*q}")
        L(4, f"ds_read_b64 {pr(Dq(i)+4)}, v{vR} offset:{3*CS + 48 + 1024*q}", ("HC", u, i))
    if head is not None:
        L(4, f"ds_read_b64 v[138:139], v{head} offset:{3*CS + 32}", ("HH", u))
    for i, q in enumerate(qs):
        d = Dq(i); o = 16 * (i & 1); T0, T1, T2, O4 = 144 + o, 148 + o, 152 + o, 156 + o
        for k in range(4):
            V(f"v_alignbit_b32 v{T0+k}, v{d+k+1}, v{d+k}, 16", ("HC", u, i) if k == 0 else None)
        V(f"v_alignbit_b32 v{O4}, v{d+5}, v{d+4}, 16")
        V(f"v_pk_mov_b32 {pr(T1)}, {pr(d)}, {pr(d+2)} op_sel:[1,0]")
        V(f"v_pk_mov_b32 {pr(T1+2)}, {pr(d+2)}, {pr(d+4)} op_sel:[1,0]")
        V(f"v_pk_mov_b32 {pr(T2)}, {pr(T0)}, {pr(T0+2)} op_sel:[1,0]")
        V(f"v_pk_mov_b32 {pr(T2+2)}, {pr(T0+2)}, {pr(O4)} op_sel:[1,0]")
        L(8, f"ds_write_b128 v{vR}, {vr(T0)} offset:{32 + 1024*q}")
        L(8, f"ds_write_b128 v{vR}, {vr(T1)} offset:{CS + 32 + 1024*q}")
        L(8, f"ds_write_b128 v{vR}, {vr(T2)} offset:{2*CS + 32 + 1024*q}", ("HW", u))
    if head is not None:
        V(f"v_sub_u32 v137, 3, v{vLANE}")
        V("v_lshlrev_b32 v137, 4, v137")
        V("v_lshlrev_b64 v[138:139], v137, v[138:139]", ("HH", u))
        V(f"v_cmp_eq_u32 vcc, 3, v{vLANE}")
        V(f"v_mul_u32_u24 v137, {CS}, v{vLANE}")
        V(f"v_add_u32 v140, v137, v{head}")
        V("v_cndmask_b32 v138, v138, 0, vcc")
        V("v_cndmask_b32 v139, v139, 0, vcc")
        V("v_mov_b32 v136, 0")
        V("v_mov_b32 v137, 0")
        def hw():
            a("s_mov_b64 exec, 15")
            a.lds(f"ds_write_b128 v140, {vr(ZR)}")
            a.lds("ds_write_b128 v140, v[136:139] offset:16", ("HW", u))
            a("s_mov_b64 exec, -1")
        ops.append((8, hw))
    return ops, ("HW", u)
def h_copies(a, vR, qs, head=None):
    ops, tag = h_copy_ops(a, vR, qs, head)
    for c, f in ops: f()
    return tag

def p1_prep_a(a):
    a(f"v_and_b32 v1, 15, v{vLANE}")
    a(f"v_lshrrev_b32 v2, 4, v{vLANE}")
    a("v_and_b32 v3, 3, v1")
    a("v_cmp_eq_u32 vcc, 3, v3")
    a(f"v_mul_u32_u24 v3, {CS}, v3")
    a("v_and_b32 v4, 12, v1")
    a("v_lshlrev_b32 v4, 1, v4")
    a("v_add_u32 v3, v3, v4")
    a("v_cndmask_b32 v4, 0, 8, vcc")
    a("v_add_u32 v3, v3, v4")
    a("v_lshl_add_u32 v3, v2, 4, v3")
    a(f"v_add_u32 v5, s{sHB}, v3")
    a(f"s_lshl_b32 s93, s{sW}, 7")
    a(f"s_add_u32 s3, s93, {4*HB}")
    a("v_add_u32 v6, s3, v3")

def p1_prep_b(a):
    a(f"v_add_u32 v8, s{sUB}, v{vL16}")
    a(f"s_add_u32 s3, s93, {UE - 512}")
    a(f"v_add_u32 v9, s3, v{vL16}")
    a(f"v_cmp_gt_u32 vcc, 32, v{vLANE}")
    a("s_mov_b32 exec_hi, 0xff")
    a("s_nop 0")
    a("v_cndmask_b32 v8, v9, v8, vcc")
    a("ds_write_b128 v8, v[180:183] offset:4096")
    a("s_mov_b64 exec, -1")
    for ch, sv in ((sCH, sDM), (sCE, sDE)):
        a(f"s_and_b32 s3, s{ch}, 1")
        a("s_lshl_b32 s3, s3, 4")
        a(f"s_lshr_b32 s{sv}, s{sv}, s3")
        a(f"s_and_b32 s{sv}, s{sv}, 0xffff")
    a(f"s_lshl_b32 s{sDE}, s{sDE}, 16")
    a("v_lshlrev_b32 v3, 3, v2")
    a("v_add_u32 v3, v3, v1")
    a("v_sub_u32 v3, 15, v3")
    a("v_and_b32 v4, 1, v3")
    a("v_lshlrev_b32 v4, 4, v4")
    a("v_ashrrev_i32 v3, 1, v3")
    a(f"v_lshlrev_b32 v8, v4, s{sDM}")
    for q in range(4):
        a(f"v_cmp_eq_u32 vcc, {q}, v3")
        a("s_nop 1")
        a(f"v_cndmask_b32 v{PD+q}, 0, v8, vcc")
    a("v_lshlrev_b32 v3, 4, v2")
    a("v_lshlrev_b32 v4, 5, v1")
    a("v_sub_u32 v3, v3, v4")
    a("v_add_u32 v3, 480, v3")
    a(f"v_add_u32 v7, s{sUB}, v3")
    a(f"s_add_u32 s3, s93, {UE}")
    a(f"v_add_u32 v{vFE}, s3, v3")
    a("v_lshlrev_b32 v3, 3, v2")
    a("v_add_u32 v3, v3, v4")
    a(f"s_lshl_b32 s3, s{sJE}, 9")
    a(f"s_sub_u32 s3, {UE + 4088}, s3")
    a(f"v_sub_u32 v{vUD}, s3, v3")
    a(f"s_lshl_b32 s3, s{sW}, 9")
    a(f"s_add_u32 s3, s3, {E_LDS}")
    a(f"v_add_u32 v{vEW}, s3, v3")
    a(f"v_add_u32 v{vER}, s3, v{vL16}")
    a(f"s_lshl_b32 s3, s{sW}, 10")
    a(f"s_add_u32 s3, s3, {R_LDS}")
    a(f"v_add_u32 v{vRW}, s3, v{vL16}")
    a(f"s_lshl_b32 s3, s{sW}, 12")
    a(f"s_add_u32 s3, s3, {R_LDS}")
    a(f"v_add_u32 v{vRR}, s3, v{vL16}")
    a(f"v_mul_u32_u24 v{vTW}, {TR}, v1")
    a("v_lshrrev_b32 v3, 1, v2")
    a(f"v_lshl_add_u32 v{vTW}, v3, 6, v{vTW}")
    a("v_and_b32 v3, 1, v2")
    a(f"v_lshl_add_u32 v{vTW}, v3, 3, v{vTW}")
    a(f"s_lshl_b32 s3, s{sW}, 4")
    a(f"s_add_u32 s3, s3, {T_LDS}")
    a(f"v_add_u32 v{vTW}, s3, v{vTW}")
    a(f"v_lshrrev_b32 v3, 3, v{vLANE}")
    a(f"v_mul_u32_u24 v{vTR}, {TR}, v3")
    a(f"v_and_b32 v4, 7, v{vLANE}")
    a(f"v_lshl_add_u32 v{vTR}, v4, 4, v{vTR}")
    a(f"s_mul_i32 s3, s{sW}, {8*TR}")
    a(f"s_add_u32 s3, s3, {T_LDS}")
    a(f"v_add_u32 v{vTR}, s3, v{vTR}")
    a(f"v_mul_u32_u24 v{vYM}, {YR}, v4")
    a(f"v_lshl_add_u32 v{vYM}, v3, 4, v{vYM}")
    a(f"s_lshr_b32 s88, s{sW}, 1")
    a(f"s_mul_i32 s89, s88, {YBR}")
    a(f"s_and_b32 s3, s{sW}, 1")
    a("s_lshl_b32 s3, s3, 9")
    a("s_add_u32 s89, s89, s3")
    a(f"s_add_u32 s89, s89, {Y_LDS}")
    a(f"v_add_u32 v{vYM}, s89, v{vYM}")
    a(f"s_add_u32 s89, s89, {8*YR}")
    a("v_and_b32 v8, 3, v3")
    a(f"v_lshl_add_u32 v{vYE}, v8, 2, v{vL16}")
    a(f"v_xor_b32 v8, s{sW}, v8")
    a(f"v_lshl_add_u32 v{vYR}, v8, 2, v{vL16}")
    a("s_mov_b32 s98, s89")
    a(f"v_lshlrev_b32 v{vYG}, 6, v{vLANE}")
    a("s_lshl_b32 s88, s2, 14")
    a(f"s_lshl_b32 s3, s{sW}, 12")
    a("s_add_u32 s88, s88, s3")
    a("s_lshr_b32 s89, s2, 2")
    a("s_lshl_b32 s89, s89, 13")
    a(f"s_lshl_b32 s3, s{sW}, 11")
    a("s_add_u32 s89, s89, s3")
    a("s_and_b32 s3, s2, 3")
    a("s_lshl_b32 s3, s3, 4")
    a("s_add_u32 s89, s89, s3")
    a(f"s_add_u32 s89, s89, {YE_OFF}")
    a(f"v_lshrrev_b32 v4, 2, v{vLANE}")
    a(f"v_and_b32 v8, 3, v{vLANE}")
    a("v_lshlrev_b32 v8, 4, v8")
    a("v_lshl_add_u32 v3, v4, 14, v8")
    a("v_lshl_add_u32 v4, v4, 13, v8")
    a(f"s_lshl_b32 s{sYM}, s{sW}, 18")
    a(f"s_lshl_b32 s3, s{sB}, 13")
    a(f"s_add_u32 s{sYM}, s{sYM}, s3")
    a(f"s_sub_u32 s3, s{sCH}, s{sW}")
    a("s_lshl_b32 s3, s3, 4")
    a(f"s_add_u32 s{sYM}, s{sYM}, s3")
    a(f"s_lshl_b32 s{sYE}, s{sJE}, 16")
    a(f"s_lshl_b32 s3, s{sB}, 12")
    a(f"s_add_u32 s{sYE}, s{sYE}, s3")
    a(f"s_lshl_b32 s3, s{sP}, 6")
    a(f"s_add_u32 s{sYE}, s{sYE}, s3")
    a(f"s_add_u32 s{sYE}, s{sYE}, {YE_OFF}")
    srd(a, SX, 14, 15, TENS)
    a(f"s_lshl_b32 s{sXO}, s2, 3")
    a(f"s_lshl_b32 s3, s{sW}, 1")
    a(f"s_add_u32 s{sXO}, s{sXO}, s3")
    a(f"s_mul_i32 s{sXO}, s{sXO}, {ROWB}")
    a(f"s_mul_i32 s3, s{sB}, 576")
    a(f"s_add_u32 s90, s3, s{sCH}")
    a("s_lshl_b32 s90, s90, 12")
    a(f"s_add_u32 s91, s3, s{sCE}")
    a("s_lshl_b32 s91, s91, 12")
    a(f"s_lshl_b32 s85, s{sW}, 10")
    a("s_add_u32 s91, s91, s85")
    a(f"s_add_u32 s85, s85, {UE}")
    if SPLIT():
        a(f"s_mul_i32 s92, s{sCH}, 456")
        a("s_lshr_b32 s92, s92, 16")
        a("s_lshl_b32 s92, s92, 11")
        a(f"s_lshl_b32 s3, s{sB}, 13")
        a("s_add_u32 s92, s92, s3")
        a(f"v_and_b32 v8, 31, v{vLANE}")
        a("v_lshlrev_b32 v8, 6, v8")
        a(f"v_add_u32 v{vP1}, s92, v8")
        a(f"s_add_u32 s92, s92, {F1B}")
        a(f"s_add_u32 s3, s3, {96*64}")
        a(f"s_add_u32 s93, s3, {F1B}")
        a(f"s_cmp_eq_u32 s{sW}, 1")
        a("s_cselect_b32 s3, s3, s93")
        a(f"s_cmp_eq_u32 s{sW}, 0")
        a("s_cselect_b32 s3, s92, s3")
        a(f"v_add_u32 v{vPB}, s3, v8")
    elif opt("clr", "fill") == "w23":
        a(f"s_lshl_b32 s92, s{sB}, 1")
        a(f"s_add_u32 s92, s92, s{sW}")
        a("s_lshl_b32 s92, s92, 12")
        a(f"v_add_u32 v{vP1}, s92, v{vYG}")
    else:
        a(f"s_lshl_b32 s92, s{sB}, 2")
        a(f"s_add_u32 s92, s92, s{sW}")
        a("s_lshl_b32 s92, s92, 12")
        if int(opt("rep", "1")) > 1:
            a(f"s_and_b32 s3, s{sX}, 3")
            a("s_lshl_b32 s3, s3, 15")
            a("s_add_u32 s92, s92, s3")
        a(f"v_and_b32 v8, 31, v{vLANE}")
        a("v_lshlrev_b32 v8, 7, v8")
        a(f"v_add_u32 v{vP1}, s92, v8")
    a(f"s_lshl_b32 s92, s{sW}, 13")
    a(f"s_add_u32 s92, s92, {F2A}")
    a(f"v_lshl_add_u32 v{vP2}, v{vLANE}, 7, s92")
    a(f"v_add_u32 v{vC1}, s{sHB}, v{vL16}")
    a(f"v_mov_b32 v{vC2}, s{sHB}")
    a(f"s_lshl_b32 s3, s{sW}, 10")
    a(f"s_add_u32 s3, s3, {4*HB}")
    a(f"v_add_u32 v{vC3}, s3, v{vL16}")
    a(f"v_mov_b32 v{vC4}, {4*HB}")
    a("s_lshl_b32 s101, s2, 7")
    a(f"s_add_u32 s101, s101, {F2A}")
    a("s_lshl_b32 s3, s2, 2")
    a(f"s_add_u32 s3, s3, s{sW}")
    a("s_lshl_b32 s3, s3, 7")
    a(f"s_add_u32 s3, s3, {FD}")
    a(f"s_cmp_eq_u32 s{sW}, 0")
    a("s_cselect_b32 s101, s101, s3")
    a("s_lshl_b32 s99, s2, 11")
    if opt("clr", "fill") == "w23":
        a(f"s_and_b32 s3, s{sW}, 1")
        a("s_lshl_b32 s3, s3, 10")
    else:
        a(f"s_lshl_b32 s3, s{sW}, 9")
    a("s_add_u32 s99, s99, s3")
    a(f"s_add_u32 s99, s99, {YE_OFF}")
    a("s_mov_b32 s97, 4096")
    a("s_mov_b32 s86, 0x3ae38e39")
    a("s_mov_b32 s87, 0x3727c5ac")

def p1_aload(a, aas):
    for r in range(8):
        for aa in aas:
            ks = 8 * aa + r
            a.lds(f"ds_read_b64 a[{4*ks}:{4*ks+1}], v5 offset:{64*ks}")
            a.lds(f"ds_read_b64 a[{4*ks+2}:{4*ks+3}], v5 offset:{64*ks+8}", ("A", ks))

def F(bank, c): return FB + 32 * bank + 4 * c
MF = "v_mfma_f32_16x16x32_bf16"

def p1_mfma(a, stflag, tail):
    inited = set()
    def mfma(acc, A_, B_, needs):
        a.need(*needs)
        c = vr(acc) if acc in inited else "0"
        inited.add(acc)
        a(f"{MF} {vr(acc)}, {A_}, {vr(B_)}, {c}")
    def L(c, s_, tag=None): return (c, lambda: a.lds(s_, tag))
    def I(s_): return (4, lambda: a(s_))
    def V(s_, tag=None): return (8, lambda: a.vm(s_, tag))
    def aeread(rp, aa, half): return L(4, f"ds_read_b64 {pr(AE+32*rp+4*aa+2*half)}, v6 offset:{512*aa + 64*rp + 8*half}", ("AE", rp, aa))
    evc = [0]
    def conv(j):
        e = EV + 2 * (evc[0] & 1); evc[0] += 1
        return [I(f"v_cvt_pk_bf16_f32 v{e}, v{ACC+4*j}, v{ACC+4*j+1}"), I(f"v_cvt_pk_bf16_f32 v{e+1}, v{ACC+4*j+2}, v{ACC+4*j+3}"),
                I(f"v_min_u32 v{e}, -2, v{e}"), I(f"v_min_u32 v{e+1}, -2, v{e+1}"),
                L(6, f"ds_write_b64 v{vTW}, {pr(e)} offset:{16*TR*j}", ("TW", j))]
    def barrier(*tags): return (8, lambda: (a.need(*tags), a("s_barrier")))
    def tread(k, reg): return L(6, f"ds_read_b128 {vr(reg)}, v{vTR} offset:{32*TR*k}", ("TRD", k))
    def tstore(k, reg):
        def f():
            a(f"s_add_u32 s3, s{sYM}, {k*64*16384}")
            a.need(("TRD", k))
            a.vm(f"buffer_store_dwordx4 {vr(reg)}, v3, {sq(SY)}, s3 offen {stflag}")
        return (8, f)
    EXP = 8 if SPLIT() else int(opt("exp", "6"))
    blocks = []
    for r in range(8): blocks.append(("a", [(c, r) for c in range(4)], (0, 1, 2, 3)))
    for r in range(8): blocks.append(("b", [(c, r) for c in range(4)], (4, 5, 6, 7)))
    for r in range(0, 8, 2): blocks.append(("c", [(4, r), (5, r), (4, r + 1), (5, r + 1)], (4, 5)))
    for r in range(8): blocks.append(("d", [(c, r) for c in range(4, 8)], (6, 7)))
    def FG(k, i): return FB + 16 * (k & 3) + 4 * i
    def fread(k, i):
        c, r = blocks[k][1][i]
        return L(6, f"ds_read_b128 {vr(FG(k,i))}, v7 offset:{64*r + 512*(7-c)}", ("F", k, i))
    def items_of(k):
        name, fr, J = blocks[k]; it = []
        order = [(i, j) for i in range(4) for j in J if j >= fr[i][0]]
        if k == len(blocks) - 1: order = [(i, j) for j in J for i in range(4) if j >= fr[i][0]]
        for i, j in order:
            c, r = fr[i]; tg = [("F", k, i), ("A", 8 * (j - c) + r)]
            if r == 0 and j == c: it.append((ACC + 4*j, vr(PD), FG(k, i), tg))
            it.append((ACC + 4*j, ar(4 * (8 * (j - c) + r)), FG(k, i), tg))
        return it
    KE = 8 + EXP
    GE = (KE - 2) & 3
    def FEr(rp, c): return (FE0 + 4 * c) if rp == 0 else FB + 16 * GE + 4 * c
    def feread(rp, c): return L(6, f"ds_read_b128 {vr(FEr(rp,c))}, v{vFE} offset:{64*rp + 512*(7-c)}", ("FE", rp, c))
    start = []; n = 0
    for k in range(len(blocks)):
        if k == KE: E0 = n; n += 36
        start.append(n); n += len(items_of(k))
    NS = n; assert NS == 332
    plan = [[] for _ in range(NS)]; load = [0] * NS
    def pin(slot, ops):
        for i, (c, f) in enumerate(ops):
            plan[slot + i].append(f); load[slot + i] += c
    def spread(ops, lo_, hi_, cap=8):
        for cap_ in range(cap, 40, 2):
            sl = lo_; pos = []; ld = list(load)
            for c, f in ops:
                while sl <= hi_ and ld[sl] + c > cap_: sl += 1
                if sl > hi_: break
                pos.append(sl); ld[sl] += c
            if len(pos) == len(ops): break
        assert len(pos) == len(ops)
        for (c, f), p_ in zip(ops, pos): plan[p_].append(f); load[p_] += c
        return pos[-1]
    for k in range(len(blocks) - 2):
        if SPLIT() and k in (14, 15):
            pin(E0 + 8 + 4 * (k - 14), [fread(k + 2, i) for i in range(4)])
        else:
            pin(start[k], [fread(k + 2, i) for i in range(4)])
    pin(E0, [feread(1, c) for c in range(8)])
    xl = [V(f"buffer_load_dwordx4 {vr(XR)}, v{vL16}, {sq(SX)}, s{sXO} offen nt"),
          V(f"buffer_load_dwordx4 {vr(XR+4)}, v{vL16}, {sq(SX)}, s{sXO} offen offset:{ROWB} nt"),
          V(f"buffer_load_ushort v{XR+8}, v{vL2}, {sq(SX)}, s{sXO} offen offset:1024 nt"),
          V(f"buffer_load_ushort v{XR+9}, v{vL2}, {sq(SX)}, s{sXO} offen offset:{1024+ROWB} nt", "X")]
    if opt("clr", "fill") == "fill":
        clr = [V(f"buffer_store_dwordx4 {vr(FE0)}, v{vL16}, {sq(SY)}, s88 offen offset:{1024*q} sc1") for q in range(4)]
        def clre():
            a("s_mov_b32 exec_hi, 0")
            a.vm(f"buffer_store_dwordx4 {vr(FE0)}, v{vL16}, {sq(SY)}, s99 offen sc1")
            a("s_mov_b64 exec, -1")
        cs = int(opt("cs", "6")); cd = int(opt("cd", "2"))
        ncs = int(opt("ncs", "0")); clr_all = clr + [(8, clre)]
        clr_pre = clr_all[:ncs]
        for i, op in enumerate(clr_all[ncs:]): spread([op], cs + cd * i, cs + cd * i + 10)
    if opt("ein", "0") == "1":
        ops_e, hwe = h_copy_ops(a, vC3, [0], vC4)
        spread(ops_e[:3], 4, 8)
        spread(ops_e[3:], 18, 70, 6)
    else:
        hwe = ("none",)
        ao = []
        for r in range(8):
            for aa in range(4, 8):
                ks = 8 * aa + r
                ao += [L(4, f"ds_read_b64 a[{4*ks}:{4*ks+1}], v5 offset:{64*ks}"), L(4, f"ds_read_b64 a[{4*ks+2}:{4*ks+3}], v5 offset:{64*ks+8}", ("A", ks))]
        if opt("hdef", "0") == "1":
            ops_o, hwo = h_copy_ops(a, vC1, [2, 3])
            c0, f0 = ops_o[0]
            ops_o[0] = (c0, lambda: (a.needv("h2"), f0()))
            hs = int(opt("hs", "20"))
            e_ = spread(ops_o[:4], hs, hs + 10)
            e_ = spread(ops_o[4:], e_ + 8, 66, 8)
            spread(ao[:16], e_ + 1, 82, 8)
            for r in range(2, 8): spread(ao[8*r: 8*r + 8], 84, start[8 + r] - 4, 6)
        elif opt("pre2", "0") != "1": spread(ao, 4, 110, int(opt("acap", "6")))
    XA = int(opt("xa", "140" if SPLIT() else "92"))
    def xa():
        a("s_waitcnt vmcnt(0)"); a.vd = a.vn
        a.need(hwe)
        a("s_barrier")
        signal(a, 101); a.vn += 1
    def xa_split():
        a("s_waitcnt vmcnt(0)"); a.vd = a.vn
        a(f"v_cmp_ne_u32 vcc, s{sTAG}, v253")
        a(f"s_mov_b32 m0, s{sUB}")
        a("s_cbranch_vccnz t2_slow")
        a.label("t2_back")
        a("s_barrier")
        for q in (1, 0):
            a.vm(f"buffer_load_dwordx4 v{vL16}, {sq(SU)}, s90 offen offset:{1024*q} {opt('uld', 'sc1')} lds", f"U{q}")
        a("s_mov_b32 m0, s85")
        a("s_nop 0")
        a.vm(f"buffer_load_dwordx4 v{vL16}, {sq(SU)}, s91 offen {opt('uld', 'sc1')} lds", "UE")
        signal(a, 101); a.vn += 1
    def slow2(t):
        t.label("t2_slow")
        t("s_mov_b32 s92, 0x20000")
        t.label("t2_spin")
        t("s_sleep 2")
        t(f"buffer_load_dword v253, v{vPB}, {sq(SF)}, 0 offen sc1")
        t("s_waitcnt vmcnt(0)")
        t(f"v_cmp_ne_u32 vcc, s{sTAG}, v253")
        t("s_sub_u32 s92, s92, 1")
        t("s_cbranch_scc1 t2_back")
        t("s_cbranch_vccnz t2_spin")
        t("s_branch t2_back")
    if SPLIT():
        tail.append(slow2)
        pin(XA - int(opt("pbd", "44")), [V(f"buffer_load_dword v253, v{vPB}, {sq(SF)}, 0 offen sc1")])
        pin(XA, [(40, xa_split)])
        X0 = E0 - 12
        pin(X0, [(8, lambda: (a.needv("UE"), a("s_barrier")))])
        XE = int(opt("xe", "30"))
        pin(XE, [(8, lambda: a("s_barrier"))])
        for i, op in enumerate(xl): spread([op], XA + 2 + 3 * i, XA + 12 + 3 * i)
        spread([aeread(rp, aa, h) for rp in range(2) for aa in range(8) for h in range(2)], 100, E0 - 12, 6)
        spread([feread(0, c) for c in range(8)], X0 + 1, E0 - 2)
    else:
        pin(XA, [(20, xa)])
        if opt("xpre", "0") != "1":
            for i, op in enumerate(xl): spread([op], XA + 2 + 3 * i, XA + 12 + 3 * i)
        spread([aeread(rp, aa, h) for rp in range(2) for aa in range(8) for h in range(2)], XA + 1, E0 - 12, 6)
        spread([feread(0, c) for c in range(8)], E0 - 14, E0 - 2)
    B4 = E0 + 36
    if SPLIT(): spread(conv(0) + conv(1) + conv(2) + conv(3), 150, E0 - 14, 6)
    else: spread(conv(0) + conv(1) + conv(2) + conv(3), E0 + 9, B4 + 7, 6)
    e_ = spread([L(8, f"ds_write_b128 v{vRW}, {vr(ACCE+4*s_)} offset:{4096*s_}", ("RW", s_)) for s_ in range(4)], B4 + 8, B4 + 15)
    X1 = e_ + 6
    D0 = start[20]
    mx = opt("xd", "262") == "x2"
    if mx:
        e45 = spread(conv(4) + conv(5), D0 + 8, D0 + 18, 10)
        XD = e45 + 4
    else:
        XD = X1 if SPLIT() else int(opt("xd", "262"))
    if XD != X1: pin(X1, [barrier(("RW", 3), ("TW", 3))])
    pin(XD - int(opt("pcd", "44")), [V(f"buffer_load_dword v253, v{vP2}, {sq(SF)}, 0 offen sc1", "PC")])
    def xd():
        a.needv("PC")
        a(f"v_cmp_ne_u32 vcc, s{sTAG}, v253")
        a.need(("RW", 3), ("TW", 3), ("TW", 5) if mx else ("TW", 3))
        a("s_cbranch_vccnz c_slow")
        a.label("c_back")
        a("s_barrier")
    pin(XD, [(16, xd)])
    def slow(t):
        t.label("c_slow")
        t("s_mov_b32 s92, 0x20000")
        t.label("c_spin")
        t("s_sleep 4")
        t(f"buffer_load_dword v253, v{vP2}, {sq(SF)}, 0 offen sc1")
        t("s_waitcnt vmcnt(0)")
        t(f"v_cmp_ne_u32 vcc, s{sTAG}, v253")
        t("s_sub_u32 s92, s92, 1")
        t("s_cbranch_scc1 c_back")
        t("s_cbranch_vccnz c_spin")
        t("s_branch c_back")
    tail.append(slow)
    e_ = spread([tread(0, TRD), tread(1, TRD + 4)] +
                [L(6, f"ds_read_b128 {vr(RED+4*i)}, v{vRR} offset:{1024*i}", ("RR", i)) for i in range(4)] +
                [L(4, f"ds_read_b64 {pr(UD)}, v{vUD}", "UD")], X1 + 1, X1 + 16)
    t0_ = XD + (9 if XD == X1 else 1)
    spread([tstore(0, TRD)], t0_, t0_ + 8); spread([tstore(1, TRD + 4)], t0_ + 2, t0_ + 12)
    red = [(4, lambda: (a.need("UD"), a(f"v_pk_add_f32 {pr(RED)}, {pr(RED)}, {pr(RED+4)}"))), I(f"v_pk_add_f32 {pr(RED+2)}, {pr(RED+2)}, {pr(RED+6)}"),
           I(f"v_pk_add_f32 {pr(RED+8)}, {pr(RED+8)}, {pr(RED+12)}"), I(f"v_pk_add_f32 {pr(RED+10)}, {pr(RED+10)}, {pr(RED+14)}"),
           I(f"v_pk_add_f32 {pr(RED)}, {pr(RED)}, {pr(RED+8)}"), I(f"v_pk_add_f32 {pr(RED+2)}, {pr(RED+2)}, {pr(RED+10)}"),
           I(f"v_and_b32 v{RED+4}, 0xffff0000, v{UD+1}"), I(f"v_lshlrev_b32 v{RED+5}, 16, v{UD+1}"),
           I(f"v_and_b32 v{RED+6}, 0xffff0000, v{UD}"), I(f"v_lshlrev_b32 v{RED+7}, 16, v{UD}")]
    red += [I(f"v_fmac_f32 v{RED+i}, s{sDE}, v{RED+4+i}") for i in range(4)]
    red += [I(f"v_cvt_pk_bf16_f32 v{STG}, v{RED}, v{RED+1}"), I(f"v_cvt_pk_bf16_f32 v{STG+1}, v{RED+2}, v{RED+3}"),
            I(f"v_min_u32 v{STG}, -2, v{STG}"), I(f"v_min_u32 v{STG+1}, -2, v{STG+1}")]
    red += [L(6, f"ds_write_b64 v{vEW}, {pr(STG)}"), L(6, f"ds_read_b128 {vr(ES)}, v{vER}", "ES")]
    e_ = spread(red, e_ + 8, e_ + 44)
    def estore():
        a.need("ES"); a("s_mov_b32 exec_hi, 0")
        a.vm(f"buffer_store_dwordx4 {vr(ES)}, v4, {sq(SY)}, s{sYE} offen {stflag}")
        a("s_mov_b64 exec, -1")
    spread([(8, estore)], max(e_ + 6, XD + 5), max(e_ + 6, XD + 5) + 10)
    if mx:
        spread([tread(2, FE0)], XD + 1, XD + 4)
        e_ = spread([tstore(2, FE0)], XD + 9, XD + 15)
    else:
        e_ = spread(conv(4) + conv(5), D0 + 8, D0 + 22)
        pin(e_ + 5, [barrier(("TW", 5))])
        spread([tread(2, FE0)], e_ + 6, e_ + 10)
        e_ = spread([tstore(2, FE0)], max(e_ + 14, XD + 7), max(e_ + 14, XD + 7) + 6)
    if opt("ypre", "0") == "1":
        def ypre():
            a(f"s_cmp_ge_u32 s2, {opt('late', '192')}")
            a("s_cbranch_scc1 no_ypre")
            for f in y_issue_ops(a): f()
            a.vn -= 5
            a.label("no_ypre")
        pin(max(int(opt("yp", str(NS - 10))), e_ + 1), [(40, ypre)])
    if not SPLIT(): a.needv("U2")
    stamp(a, 9); stamp(a, 24, True)
    for k in range(2):
        for i in range(4): fread(k, i)[1]()
    if opt("clr", "fill") == "fill":
        for c_, f_ in clr_pre: f_()
    qs = {7: 0, 9: 1, KE - 1: 2, 15: 4, 19: 5, 23: 6, 26: 7}
    for k in range(len(blocks)):
        if k == KE:
            a(f"s_cmp_eq_u32 s{sHF}, 1")
            a("s_cbranch_scc1 ex_h1")
            save = (a.ln, a.ld, dict(a.lt), set(inited), a.vn, a.vd)
            for h in range(2):
                if h == 1:
                    a("s_branch ex_join")
                    a.label("ex_h1")
                    end0 = (a.ln, a.ld)
                    a.ln, a.ld, a.lt, inited = save[0], save[1], dict(save[2]), set(save[3])
                    vend = (a.vn, a.vd); a.vn, a.vd = save[4:6]
                its = []
                for rp in range(2):
                    for c in range(8):
                        for s_, j in enumerate(TJ[h]):
                            if j >= c:
                                its.append((ACCE + 4*s_, vr(AE + 32*rp + 4*(j - c)), FEr(rp, c), [("AE", rp, j - c), ("FE", rp, c)]))
                for i, it in enumerate(its):
                    mfma(*it)
                    for f in plan[E0 + i]: f()
            a.label("ex_join")
            assert a.ln == end0[0] and a.vn == vend[0]
            a.vd = min(a.vd, vend[1])
            a.ld = min(a.ld, end0[1])
            qstamp(a, 3)
        for i, it in enumerate(items_of(k)):
            mfma(*it)
            for f in plan[start[k] + i]: f()
        if k in qs: qstamp(a, qs[k])
    stamp(a, 7); stamp(a, 25, True)
    a("s_nop 3")
    for j in (6, 7):
        for c, f in conv(j): f()
    barrier(("TW", 7))[1]()
    tread(3, TRD + 4)[1]()
    tstore(3, TRD + 4)[1]()
    stamp(a, 8); stamp(a, 26, True)
    qflush(a)
    if "--plan" in sys.argv: print(load, XA, X1, E0, D0)

Z, YA, YB, G = 8, 26, 44, 62
SS, QQ, RS, ND, C0 = 80, 82, 84, 86, 88
YW = 96

def p2_sums(a):
    a(f"v_pk_add_f32 {pr(SS)}, {pr(Z)}, {pr(Z+2)}")
    a(f"v_pk_mul_f32 {pr(QQ)}, {pr(Z)}, {pr(Z)}")
    a(f"v_pk_fma_f32 {pr(QQ)}, {pr(Z+2)}, {pr(Z+2)}, {pr(QQ)}")
    for e in range(2, 9):
        a(f"v_pk_add_f32 {pr(SS)}, {pr(SS)}, {pr(Z+2*e)}")
        a(f"v_pk_fma_f32 {pr(QQ)}, {pr(Z+2*e)}, {pr(Z+2*e)}, {pr(QQ)}")

def p2_chain(a, fill):
    fill = list(fill)
    def gap(n):
        for _ in range(n):
            if fill: a(fill.pop(0))
            else: a("s_nop 0")
    T, Uq = 90, 91
    gap(2)
    a(f"v_permlane32_swap_b32 v{SS}, v{SS+1}")
    a(f"v_permlane32_swap_b32 v{QQ}, v{QQ+1}")
    a(f"v_add_f32 v{SS}, v{SS}, v{SS+1}")
    a(f"v_add_f32 v{QQ}, v{QQ}, v{QQ+1}")
    gap(2)
    a(f"v_permlane16_swap_b32 v{SS}, v{QQ}")
    a(f"v_add_f32 v{T}, v{SS}, v{QQ}")
    for m in ("quad_perm:[1,0,3,2]", "quad_perm:[2,3,0,1]", "row_half_mirror", "row_mirror"):
        gap(2)
        a(f"v_add_f32_dpp v{T}, v{T}, v{T} {m} {DPP}")
    a(f"v_mov_b32 v{Uq}, v{T}")
    gap(2)
    a(f"v_permlane16_swap_b32 v{T}, v{Uq}")
    a(f"v_mul_f32 v{T}, s86, v{T}")
    a(f"v_mul_f32 v{Uq}, s86, v{Uq}")
    a(f"v_fma_f32 v{Uq}, -v{T}, v{T}, v{Uq}")
    a(f"v_max_f32 v{Uq}, 0, v{Uq}")
    a(f"v_add_f32 v{Uq}, s87, v{Uq}")
    a(f"v_rsq_f32 v{RS}, v{Uq}")
    gap(1)
    a(f"v_mul_f32 v{ND}, v{RS}, v{T}")
    a(f"v_mov_b32 v{RS+1}, v{RS}")
    a(f"v_mov_b32 v{ND+1}, v{ND}")
    gap(2)
    a(f"v_permlane32_swap_b32 v{RS}, v{RS+1}")
    a(f"v_permlane32_swap_b32 v{ND}, v{ND+1}")
    while fill: a(fill.pop(0))

def p2_first(a):
    a.needv("X")
    for q in range(4):
        for row in range(2):
            a(f"v_lshlrev_b32 v{Z+4*q+row}, 16, v{XR+4*row+q}")
            a(f"v_and_b32 v{Z+4*q+2+row}, 0xffff0000, v{XR+4*row+q}")
    a(f"v_lshlrev_b32 v{Z+16}, 16, v{XR+8}")
    a(f"v_lshlrev_b32 v{Z+17}, 16, v{XR+9}")
    a(f"v_readfirstlane_b32 s92, v{Z}")
    a(f"v_readfirstlane_b32 s93, v{Z+1}")
    a("s_nop 1")
    a(f"v_mov_b32 v{C0}, s92")
    a(f"v_mov_b32 v{C0+1}, s93")
    for e in range(9):
        a(f"v_pk_add_f32 {pr(Z+2*e)}, {pr(Z+2*e)}, {pr(C0)} neg_lo:[0,1] neg_hi:[0,1]")
    p2_sums(a)
    p2_chain(a, [])

def y_ld(i):
    if i == 4: return f"buffer_load_dwordx4 {vr(YP+16)}, v{vYG}, {sq(SY)}, s89 offen {opt('yld', 'sc1')}"
    return f"buffer_load_dwordx4 {vr(YP+4*i)}, v{vL16}, {sq(SY)}, s88 offen offset:{1024*i} {opt('yld', 'sc1')}"
def y_issue_ops(a):
    def e():
        a("s_mov_b32 exec_hi, 0"); a.vm(y_ld(4)); a("s_mov_b64 exec, -1")
    return [e] + [(lambda i: lambda: a.vm(y_ld(i)))(i) for i in range(4)]

def y_write(a):
    for q in range(4):
        r = YP + 4 * q
        a(f"ds_write2_b32 v{vYM}, v{r}, v{r+1} offset0:{32*q + (0 ^ q)} offset1:{32*q + (1 ^ q)}")
        a(f"ds_write2_b32 v{vYM}, v{r+2}, v{r+3} offset0:{32*q + (2 ^ q)} offset1:{32*q + (3 ^ q)}")
    a("s_mov_b32 exec_hi, 0")
    for i in range(4):
        a(f"ds_write_b32 v{120+i}, v{YP+16+i}")
    a("s_mov_b64 exec, -1")
    a("s_waitcnt lgkmcnt(0)")

def y_addr(a):
    for i in range(4):
        a(f"v_xor_b32 v{120+i}, {4*i}, v{vYE}")
        a(f"v_add_u32 v{120+i}, s98, v{120+i}")

def y_check(a):
    M = [4, 6, 8, 10, 12]
    for i in range(4):
        a(f"s_mov_b64 s[{M[i]}:{M[i]+1}], -1")
    a("s_mov_b32 s12, -1")
    a("s_mov_b32 s13, 0")
    a("s_mov_b32 s92, 0x20000")
    if opt("ypre", "0") == "1":
        a(f"s_cmp_ge_u32 s2, {opt('late', '192')}")
        a("s_cbranch_scc1 yc_late")
        a("s_waitcnt vmcnt(1)")
        a("s_branch yc_chk")
        a.label("yc_late")
    a("s_waitcnt vmcnt(0)")
    a("s_branch yc_load")
    a.label("yc_loop")
    a("s_waitcnt vmcnt(0)")
    a.label("yc_chk")
    for i in range(5):
        r = YP + 4 * i
        a(f"s_mov_b64 exec, s[{M[i]}:{M[i]+1}]")
        a(f"v_max3_u32 v238, v{r}, v{r+1}, v{r+2}")
        a(f"v_max_u32 v238, v238, v{r+3}")
        a(f"v_cmp_eq_u32 s[{M[i]}:{M[i]+1}], -1, v238")
    a("s_or_b64 s[14:15], s[4:5], s[6:7]")
    a("s_or_b64 s[14:15], s[14:15], s[8:9]")
    a("s_or_b64 s[14:15], s[14:15], s[10:11]")
    a("s_or_b64 s[14:15], s[14:15], s[12:13]")
    a("s_cbranch_scc0 yc_done")
    a("s_sub_u32 s92, s92, 1")
    a("s_cbranch_scc1 yc_done")
    if int(opt("ysleep", "2")): a(f"s_sleep {opt('ysleep','2')}")
    a.label("yc_load")
    for i in range(5):
        a(f"s_mov_b64 exec, s[{M[i]}:{M[i]+1}]")
        a(f"s_cbranch_execz yc_skip{i}")
        a(y_ld(i))
        a.label(f"yc_skip{i}")
    a("s_branch yc_loop")
    a.label("yc_done")
    a("s_mov_b64 exec, -1")

def p2_rest(a, stflag):
    for b in range(2):
        for e in range(9):
            a(f"ds_read_b32 v{YW + 9*b + e}, v{vYR} offset:{Y_LDS + YBR*b + YR*e}")
    a.label("p2_body")
    def unp(b, e):
        r = YW + 9 * b + e; y = (YA if b == 0 else YB) + 2 * e
        return [f"v_lshlrev_b32 v{y}, 16, v{r}", f"v_and_b32 v{y+1}, 0xffff0000, v{r}"]
    for e in range(9):
        a(f"s_waitcnt lgkmcnt({min(15, 17 - e)})")
        for s_ in unp(0, e): a(s_)
        a(f"v_pk_mul_f32 {pr(G+2*e)}, {pr(Z+2*e)}, {pr(YA+2*e)}")
    def post(Y):
        for e in range(9):
            a(f"v_pk_fma_f32 {pr(Z+2*e)}, {pr(G+2*e)}, {pr(RS)}, {pr(Z+2*e)}")
        for e in range(9):
            a(f"v_pk_fma_f32 {pr(Z+2*e)}, {pr(Y+2*e)}, {pr(ND)}, {pr(Z+2*e)} neg_lo:[0,1,0] neg_hi:[0,1,0]")
    qstamp(a, 0, "2")
    post(YA)
    qstamp(a, 1, "2")
    a("s_waitcnt lgkmcnt(0)")
    for layer, Y in ((2, YB), (3, YA), (4, YB)):
        p2_sums(a)
        if layer == 3: qstamp(a, 3, "2")
        fill = []
        for e in range(9):
            if layer == 2: fill += unp(1, e)
            fill.append(f"v_pk_mul_f32 {pr(G+2*e)}, {pr(Z+2*e)}, {pr(Y+2*e)}")
        if layer == 4:
            fill += [f"v_pk_add_f32 {pr(Z+2*e)}, {pr(Z+2*e)}, {pr(C0)}" for e in range(9)]
        p2_chain(a, fill)
        a("s_nop 0")
        if layer == 3: qstamp(a, 4, "2")
        post(Y)
        qstamp(a, {2: 2, 3: 5, 4: 6}[layer], "2")
    for row in range(2):
        for q in range(4):
            a(f"v_cvt_pk_bf16_f32 v{XR+4*row+q}, v{Z+4*q+row}, v{Z+4*q+2+row}")
    a(f"v_cvt_pk_bf16_f32 v{XR+8}, v{Z+16}, v{Z+17}")
    if opt("dry2", "0") == "1": a("s_cbranch_execz p2_dry_back")
    a(f"buffer_store_dwordx4 {vr(XR)}, v{vL16}, {sq(SO)}, s{sXO} offen {stflag}")
    a(f"buffer_store_dwordx4 {vr(XR+4)}, v{vL16}, {sq(SO)}, s{sXO} offen offset:{ROWB} {stflag}")
    a(f"buffer_store_short v{XR+8}, v{vL2}, {sq(SO)}, s{sXO} offen offset:1024 {opt('ost2', stflag)}")
    a(f"buffer_store_short_d16_hi v{XR+8}, v{vL2}, {sq(SO)}, s{sXO} offen offset:{1024+ROWB} {opt('ost2', stflag)}")

def signal(a, off_s, rep=1):
    if rep > 1: a(f"v_lshl_add_u32 v238, v{vLANE}, 15, s{off_s}")
    else: a(f"v_mov_b32 v238, s{off_s}")
    a(f"v_mov_b32 v239, s{sTAG}")
    a(f"s_mov_b64 exec, {(1 << rep) - 1}")
    a(f"buffer_store_dword v239, v238, {sq(SF)}, 0 offen sc1")
    a("s_mov_b64 exec, -1")

def poll(a, tag, vaddr, all64):
    a("s_mov_b32 s92, 0x20000")
    if not all64: a("s_mov_b32 exec_hi, 0")
    if opt("pp", "0") == "1": a(f"s_branch {tag}_chk")
    a.label(f"{tag}_poll")
    a(f"buffer_load_dword v238, v{vaddr}, {sq(SF)}, 0 offen sc1")
    a.label(f"{tag}_chk")
    a("s_waitcnt vmcnt(0)")
    a(f"v_cmp_ne_u32 vcc, s{sTAG}, v238")
    a("s_and_b64 exec, exec, vcc")
    a(f"s_cbranch_execz {tag}_ok")
    if int(opt("sleep", "2")): a(f"s_sleep {opt('sleep', '2')}")
    a("s_sub_u32 s92, s92, 1")
    a("s_cmp_lg_u32 s92, 0")
    a(f"s_cbranch_scc1 {tag}_poll")
    a.label(f"{tag}_ok")
    a("s_mov_b64 exec, -1")

def epoch_issue(a):
    a(f"v_mov_b32 v253, {EP}")
    a.vm(f"buffer_load_dword v254, v253, {sq(SF)}, 0 offen sc1", "EP")
def epoch_use(a):
    a.needv("EP")
    a(f"v_readfirstlane_b32 s{sTAG}, v254")
    a(f"s_mul_i32 s{sTAG}, s{sTAG}, 0x9E3779B1")
    a(f"s_add_u32 s{sTAG}, s{sTAG}, 0x7F4A7C15")

def elect_and_signal(a, n, skip):
    a(f"v_mov_b32 v238, {LDS_CTR}")
    a("v_mov_b32 v239, 1")
    a(f"s_lshl_b32 s90, s{sFI}, 6")
    a("s_waitcnt vmcnt(0)")
    a("s_mov_b64 exec, 1")
    a("ds_add_rtn_u32 v253, v238, v239")
    a("s_waitcnt lgkmcnt(0)")
    a("v_readfirstlane_b32 s3, v253")
    a("s_mov_b64 exec, -1")
    a(f"s_cmp_eq_u32 s3, {n-1}")
    a(f"s_cbranch_scc0 {skip}")
    signal(a, 90)
    stamp(a, 4)
    a.label(skip)

def kernel(name, body, vgpr, accum):
    return f""".text
.globl {name}
.p2align 8
.type {name},@function
{name}:
{body}{name}_end:
    s_endpgm
.section .rodata,"a"
.p2align 6
.amdhsa_kernel {name}
  .amdhsa_next_free_vgpr {vgpr}
  .amdhsa_next_free_sgpr 102
  .amdhsa_accum_offset {accum}
  .amdhsa_group_segment_fixed_size 0
  .amdhsa_kernarg_size 120
  .amdhsa_user_sgpr_count 2
  .amdhsa_user_sgpr_kernarg_segment_ptr 1
  .amdhsa_system_sgpr_workgroup_id_x 1
.end_amdhsa_kernel
"""
def header(launches):
    hdr = [l for l in open(REF).read().split("\n") if l.startswith(";") and "@launch" not in l]
    return "\n".join(hdr) + "\n" + "\n".join(launches) + '\n.amdgcn_target "amdgcn-amd-amdhsa--gfx950"\n'

def flow_split(a, hdma5, srds0, common_srds, caddr, elect, hl):
    p0_addr(a)
    a(f"s_cmp_eq_u32 s{sT2}, 0")
    a("s_cbranch_scc0 t2_path")
    a("s_waitcnt lgkmcnt(0)")
    stamp(a, 1)
    srds0(a)
    p0_issue(a, opt("p0ld", "nt"))
    srd(a, SH, 10, 11, TENS)
    common_srds(a)
    epoch_issue(a)
    stamp(a, 2)
    p1_prep_a(a)
    p0_compute(a, opt("ust", "sc1"))
    a("s_barrier")
    hdma5(a)
    stamp(a, 3)
    caddr(a)
    epoch_use(a)
    a("s_waitcnt lgkmcnt(0)")
    p1_prep_b(a)
    elect(a, 5, "t1_nosig", 1, 0, 0)
    a("s_waitcnt vmcnt(1)")
    a("s_branch t1_h")
    a.label("t1_nosig")
    a("s_waitcnt vmcnt(0)")
    a.label("t1_h")
    a.reset()
    stamp(a, 18)
    h_copies(a, vC1, [0, 1], vC2)
    p1_aload(a, range(4))
    stamp(a, 5)
    poll(a, "e1", vP1, True)
    stamp(a, 6)
    a(f"s_mov_b32 m0, s{sUB}")
    a(f"s_add_u32 s3, s90, {2*4096}")
    for q in (3, 2):
        a(f"buffer_load_dwordx4 v{vL16}, {sq(SU)}, s90 offen offset:{1024*q} sc1 lds")
    a(f"s_add_u32 s92, s{sUB}, {2*US}")
    a("s_mov_b32 m0, s92")
    a("s_nop 0")
    for q in (3, 2):
        a(f"buffer_load_dwordx4 v{vL16}, {sq(SU)}, s3 offen offset:{1024*q} sc1 lds")
    a.reset()
    h_copies(a, vC1, [2, 3])
    a("s_waitcnt vmcnt(0)")
    a("s_branch join")
    a.label("t2_path")
    a.reset()
    a(f"v_mov_b32 v56, {LDS_CTR}")
    a("v_mov_b32 v58, 0")
    a("v_mov_b32 v59, 0")
    a("ds_write_b64 v56, v[58:59]")
    p1_prep_a(a)
    a("s_waitcnt lgkmcnt(0)")
    srds0(a)
    srd(a, SH, 10, 11, TENS)
    common_srds(a)
    epoch_issue(a)
    a("s_waitcnt lgkmcnt(0)")
    epoch_use(a)
    a("s_barrier")
    hfirst = opt("hfirst", "0") == "1"
    if hfirst: hdma5(a)
    p0_issue(a, opt("p0ld", "nt"))
    if not hfirst: hdma5(a)
    stamp(a, 2)
    if hfirst:
        caddr(a)
        a.needv("h")
        stamp(a, 18)
        sv = (a.vn, a.vd, a.vt); a.reset()
        h_copies(a, vC1, [0, 1], vC2); p1_aload(a, range(4)); h_copies(a, vC1, [2, 3])
        a.vn, a.vd, a.vt = sv
    p0_compute(a, opt("ust", "sc1"), "2")
    stamp(a, 3)
    caddr(a)
    p1_prep_b(a)
    if not hfirst:
        a.needv("h")
        stamp(a, 18)
        a("s_waitcnt lgkmcnt(0)")
        a.reset()
        h_copies(a, vC1, [0, 1], vC2); p1_aload(a, range(4)); h_copies(a, vC1, [2, 3])
    elect(a, 0, "join", 1, 4, F1B)
    a.label("join")
    a("s_waitcnt lgkmcnt(0)")
    a("s_barrier")
    a.reset()
    for r in range(FE0, FE0 + 4): a(f"v_mov_b32 v{r}, -1")
    h_copies(a, vC3, [0], vC4)

def flow_unsplit(a, hdma5, srds0, common_srds, caddr, elect, hl):
    a(f"s_cmp_eq_u32 s{sW}, 3")
    a("s_cbranch_scc1 w3_path")
    p0_addr(a)
    a("s_waitcnt lgkmcnt(0)")
    stamp(a, 1)
    srds0(a)
    p0_issue(a, opt("p0ld", "nt"))
    srd(a, SH, 10, 11, TENS)
    common_srds(a)
    epoch_issue(a)
    hpos = opt("hpos", "late")
    if hpos == "early":
        a("s_barrier")
        hdma5(a)
    stamp(a, 2)
    if opt("arr", "0") == "1":
        a("s_waitcnt vmcnt(14)"); stamp(a, 19); a("s_waitcnt vmcnt(1)"); stamp(a, 15)
    p1_prep_a(a)
    p0_compute(a, opt("ust", "sc1"))
    stamp(a, 16)
    if hpos == "late":
        hdma5(a)
        a("s_barrier")
    stamp(a, 3)
    caddr(a)
    epoch_use(a)
    a("s_waitcnt lgkmcnt(0)")
    p1_prep_b(a)
    if hpos == "late":
        elect(a, 4 if opt("hdef", "0") == "1" else 5, "nosig", 2)
        a("s_waitcnt vmcnt(1)")
        a("s_branch have_h")
        a.label("nosig")
        a("s_waitcnt vmcnt(0)")
        a("s_branch have_h")
    else:
        a.reset()
        h_copies(a, vC1, [0, 1], vC2)
        p1_aload(a, range(4))
        elect(a, 0, "part2", 2)
        a("s_branch part2")
    a.reset()
    a.label("w3_path")
    if opt("il", "bar1").startswith("bar"):
        for k in range(int(opt("il", "bar1")[3:])): a("s_barrier")
    if opt("dry0", "0") == "1":
        a("s_mov_b64 exec, 0")
        a("s_branch p0_body")
        a.label("p0_dry_back")
        a("s_mov_b64 exec, -1")
    caddr(a)
    a(f"v_mov_b32 v56, {LDS_CTR}")
    a(f"ds_write_b32 v56, v{ZR}")
    p1_prep_a(a)
    a("s_waitcnt lgkmcnt(0)")
    srd(a, SH, 10, 11, TENS)
    common_srds(a)
    ntw = int(opt("tw", "0"))
    if ntw:
        a(f"s_cmp_ge_u32 s2, {ntw}")
        a("s_cbranch_scc1 no_tw")
        srd(a, SX, 14, 15, TENS)
        a(f"v_mul_u32_u24 v57, 0x12000, v{vLANE}")
        for sr in (SU, SY):
            a(f"buffer_load_dword v58, v57, {sq(sr)}, 0 offen nt")
        a(f"v_mul_u32_u24 v57, 0x9000, v{vLANE}")
        for sr in (SX, SO, SH):
            a(f"buffer_load_dword v58, v57, {sq(sr)}, 0 offen nt")
        a.label("no_tw")
    epoch_issue(a)
    a("s_waitcnt lgkmcnt(0)")
    p1_prep_b(a)
    epoch_use(a)
    a("s_waitcnt lgkmcnt(0)")
    a("s_barrier")
    hdma5(a)
    a("s_waitcnt vmcnt(0)")
    a.label("have_h")
    a.reset()
    stamp(a, 18)
    if opt("pp", "0") == "1":
        a(f"buffer_load_dword v238, v{vP1}, {sq(SF)}, 0 offen sc1")
    h_copies(a, vC1, [0, 1], vC2)
    p1_aload(a, range(4))
    a.label("part2")
    a.reset()
    pre = opt("pre", "0") == "1"
    if pre:
        h_copies(a, vC1, [2, 3])
        if opt("ein", "0") == "1" or opt("pre2", "0") == "1": p1_aload(a, range(4, 8))
    stamp(a, 5)
    if opt("clr", "fill") == "w23":
        a(f"s_cmp_lt_u32 s{sW}, 2")
        a("s_cbranch_scc1 do_poll")
        for r in range(FE0, FE0 + 4): a(f"v_mov_b32 v{r}, -1")
        a("s_sub_u32 s92, s88, 8192")
        for so in ("s92", "s88"):
            for q in range(4):
                a(f"buffer_store_dwordx4 {vr(FE0)}, v{vL16}, {sq(SY)}, {so} offen offset:{1024*q} sc1")
        a(f"buffer_store_dwordx4 {vr(FE0)}, v{vL16}, {sq(SY)}, s99 offen sc1")
        a("s_branch e1_ok")
        a.label("do_poll")
    poll(a, "e1", vP1, True)
    a("s_barrier")
    a.reset()
    stamp(a, 6)
    a(f"s_mov_b32 m0, s{sUB}")
    a("s_nop 0")
    hdef = opt("hdef", "0") == "1"
    for q in (3, 2):
        a.vm(f"buffer_load_dwordx4 v{vL16}, {sq(SU)}, s90 offen offset:{1024*q} {opt('uld', 'sc1')} lds", f"U{q}")
    if hdef:
        a(f"s_add_u32 s92, s{sHB}, {3*CS + 32}")
        a("s_mov_b32 m0, s92")
        a("s_nop 0")
        for q in (2, 3):
            a.vm(f"buffer_load_dwordx4 v{vL16}, {sq(SH)}, s98 offen offset:{1024*q} {hl} lds", "h2")
        a(f"s_mov_b32 m0, s{sUB}")
        a("s_nop 0")
    for q in (1, 0):
        a.vm(f"buffer_load_dwordx4 v{vL16}, {sq(SU)}, s90 offen offset:{1024*q} {opt('uld', 'sc1')} lds", f"U{q}")
    a("s_mov_b32 m0, s85")
    a("s_nop 0")
    a.vm(f"buffer_load_dwordx4 v{vL16}, {sq(SU)}, s91 offen {opt('uld', 'sc1')} lds", "UE")
    for r in range(FE0, FE0 + 4): a(f"v_mov_b32 v{r}, -1")
    if opt("clr", "fill") == "pre":
        for q in range(4):
            a.vm(f"buffer_store_dwordx4 {vr(FE0)}, v{vL16}, {sq(SY)}, s88 offen offset:{1024*q} sc1")
        a("s_mov_b32 exec_hi, 0")
        a.vm(f"buffer_store_dwordx4 {vr(FE0)}, v{vL16}, {sq(SY)}, s99 offen sc1")
        a("s_mov_b64 exec, -1")
    if opt("xpre", "0") == "1":
        a.vm(f"buffer_load_dwordx4 {vr(XR)}, v{vL16}, {sq(SX)}, s{sXO} offen nt")
        a.vm(f"buffer_load_dwordx4 {vr(XR+4)}, v{vL16}, {sq(SX)}, s{sXO} offen offset:{ROWB} nt")
        a.vm(f"buffer_load_ushort v{XR+8}, v{vL2}, {sq(SX)}, s{sXO} offen offset:1024 nt")
        a.vm(f"buffer_load_ushort v{XR+9}, v{vL2}, {sq(SX)}, s{sXO} offen offset:{1024+ROWB} nt", "X")
    if not pre and not hdef:
        h_copies(a, vC1, [2, 3])
        if opt("ein", "0") == "1": p1_aload(a, range(4, 8))
    if opt("ein", "0") != "1": h_copies(a, vC3, [0], vC4)

def gen_fused():
    K = NAME + "_kernel"
    sent = opt("x2", "flag") == "sent"
    NEL = 4 if sent else 3
    out = header([f"; @launch grid=(256,1,1) block=(256,1,1) lds={LDS_TOT + int(opt('ldsx', '0'))}"])
    a = A()
    hl = opt("hld", "")
    stamp(a, 0)
    if int(opt("pad", "0")):
        a("s_memrealtime s[94:95]"); a("s_waitcnt lgkmcnt(0)"); a("v_mov_b32 v255, s94")
    prologue(a, K + "_end")
    def common_srds(a):
        srd(a, SF, 20, 21, F_BYTES, F_OFF)
        srd(a, SU, 20, 21, U_BYTES, U_OFF)
        srd(a, SY, 20, 21, Y_BYTES, YM_OFF)
        srd(a, SO, 16, 17, TENS)
        a(f"s_lshr_b32 s90, s{sCH}, 1")
        a("s_lshl_b32 s90, s90, 2")
        a(f"s_lshr_b32 s91, s{sCE}, 1")
        a("s_lshl_b32 s91, s91, 2")
        a(f"s_load_dword s{sDM}, s[12:13], s90")
        a(f"s_load_dword s{sDE}, s[12:13], s91")
    tail = []
    def caddr(a):
        for r in range(ZR, ZR + 4): a(f"v_mov_b32 v{r}, 0")
        a(f"v_add_u32 v{vC1}, s{sHB}, v{vL16}")
        a(f"v_mov_b32 v{vC2}, s{sHB}")
        a(f"v_mov_b32 v{vC4}, {4*HB}")
    def hsec(a):
        a.reset()
        h_copies(a, vC1, [0, 1], vC2)
        p1_aload(a, range(4))
        h_copies(a, vC1, [2, 3])
        p1_aload(a, range(4, 8))
    def elect(a, wait, nxt, last, coff=0, foff=0):
        a(f"v_mov_b32 v238, {LDS_CTR + coff}")
        a("v_mov_b32 v239, 1")
        a(f"s_lshl_b32 s92, s{sFI}, 7")
        if foff: a(f"s_add_u32 s92, s92, {foff}")
        a(f"s_waitcnt vmcnt({wait})")
        a("s_mov_b64 exec, 1")
        a("ds_add_rtn_u32 v253, v238, v239")
        a("s_waitcnt lgkmcnt(0)")
        a("v_readfirstlane_b32 s3, v253")
        a("s_mov_b64 exec, -1")
        a(f"s_cmp_eq_u32 s3, {last}")
        a(f"s_cbranch_scc0 {nxt}")
        signal(a, 92, int(opt("rep", "1")))
        stamp(a, 4)
    def hdma5(a):
        if opt("hdef", "0") == "1":
            a(f"s_lshl_b32 s98, s{sCH}, 12")
            a(f"s_add_u32 s92, s{sHB}, {3*CS + 32}")
            a("s_mov_b32 m0, s92")
            a("s_nop 0")
            for q in range(2):
                a.vm(f"buffer_load_dwordx4 v{vL16}, {sq(SH)}, s98 offen offset:{1024*q} {hl} lds")
            a("s_mov_b64 exec, 1")
            a.vm(f"buffer_load_dwordx4 v{vL16}, {sq(SH)}, s98 offen offset:2048 {hl} lds")
            a("s_mov_b64 exec, -1")
        else:
            h_dma(a, sCH, sHB, 0, hl, None)
        a(f"s_lshl_b32 s3, s{sCE}, 12")
        a(f"s_lshl_b32 s92, s{sW}, 10")
        a("s_add_u32 s3, s3, s92")
        a(f"s_add_u32 s92, s92, {4*HB + 3*CS + 32}")
        a("s_mov_b32 m0, s92")
        a("s_nop 0")
        a.vm(f"buffer_load_dwordx4 v{vL16}, {sq(SH)}, s3 offen {hl} lds", "h")
    def srds0(a):
        srd(a, SK, 4, 5, TENS); srd(a, SV, 6, 7, TENS); srd(a, SSH, 8, 9, D * 8)
    (flow_split if SPLIT() else flow_unsplit)(a, hdma5, srds0, common_srds, caddr, elect, hl)
    p1_mfma(a, opt("yst", "sc1"), tail)
    p2_first(a)
    y_addr(a)
    if opt("dry2", "0") == "1":
        a("s_mov_b64 exec, 0")
        a("s_branch p2_body")
        a.label("p2_dry_back")
        a("s_mov_b64 exec, -1")
    a(f"s_or_b32 s3, s2, s{sW}")
    a("s_cmp_eq_u32 s3, 0")
    a("s_cbranch_scc0 no_epoch")
    a(f"s_mov_b32 s3, {EP}")
    signal(a, 3)
    a.label("no_epoch")
    stamp(a, 10)
    y_check(a)
    stamp(a, 11)
    y_write(a)
    a("s_barrier")
    stamp(a, 12)
    if opt("q", "0") == "2": stamp(a, 24, True)
    p2_rest(a, opt("ost", "sc1"))
    qstamp(a, 7, "2"); qflush(a, "2")
    if opt("q2", "0") == "1": stamp(a, 27, True)
    stamp(a, 13)
    if STAMPS: a("s_waitcnt vmcnt(0)")
    stamp(a, 14)
    if int(opt("pad", "0")):
        if opt("gpad", "0") == "1":
            srd(a, 96, 18, 19, 256)
            a("v_mov_b32 v13, 0")
            a("buffer_load_dword v12, v13, s[96:99], 0 offen sc1")
            a("s_waitcnt vmcnt(0)")
            a("v_readfirstlane_b32 s100, v12")
            a("s_not_b32 s100, s100")
        a("v_readfirstlane_b32 s100, v255")
        a.label("padl")
        a("s_memrealtime s[98:99]")
        a("s_waitcnt lgkmcnt(0)")
        a("s_sub_u32 s98, s98, s100")
        a(f"s_cmp_lt_u32 s98, {opt('pad', '0')}")
        a("s_cbranch_scc1 padl")
    stamp_flush(a)
    a("s_endpgm")
    for f in tail: f(a)
    out += kernel(K, a.text(), 512, 256)
    return out

if __name__ == "__main__":
    path = sys.argv[1]
    STAMPS = "--stamps" in sys.argv
    for x in sys.argv[2:]:
        if "=" in x:
            k_, v_ = x.split("=", 1); OPT[k_] = v_
    open(path, "w").write(gen_fused())
```

```python
import sys
NAME = "interleave_layers__ssm_conv_h3__ssm_conv_h3__prompt"
REF = f"cdna_kernels/{NAME}.s.ref"
OPT = {}
STAMPS = False
def opt(k, d): return OPT.get(k, d)
def SPLIT(): return opt("split", "0") == "1"

S, D = 2048, 576
ROWB = D * 2
TENS = S * ROWB
import os
PADS = [int(x) for x in os.environ.get("PADS", "128,384,128").split(",")]
UG, YG, YEG = 4096 + PADS[0], 16384 + PADS[1], 8192 + PADS[2]
U_OFF = 0;            U_BYTES = 2 * D * UG
YM_OFF = U_BYTES;     YM_BYTES = 256 * YG
YE_OFF = YM_BYTES;    YE_BYTES = 64 * YEG
Y_BYTES = YM_BYTES + YE_BYTES
F_OFF = YM_OFF + Y_BYTES
F2 = 0; F2A = 131072; EP = 163840; FD = 196608; F1B = 0; F_BYTES = FD + 131072
ST_OFF = 0xA00000
assert YM_OFF + YM_BYTES + YE_BYTES + 400000 < ST_OFF
CS = 4160; HB = 4 * CS
US = 4608; U_BASE = 5 * HB; UE = U_BASE + 4 * US
LDS_CTR = U_BASE + 5 * US
Y_LDS = 0; YR = 1028; YBR = 9 * YR + 12
T_LDS = LDS_CTR + 64; TR = 144
E_LDS = T_LDS + 128 * TR
R_LDS = E_LDS + 2560
LDS_TOT = R_LDS + 16384

class A:
    def __init__(self):
        self.l = []; self.reset()
    def reset(self):
        self.ln = 0; self.ld = 0; self.lt = {}
        self.vn = 0; self.vd = 0; self.vt = {}
    def __call__(self, s): self.l.append("    " + s)
    def label(self, s): self.l.append(s + ":")
    def text(self): return "\n".join(self.l) + "\n"
    def lds(self, s, tag=None):
        self(s); self.ln += 1
        if tag is not None: self.lt[tag] = self.ln
    def vm(self, s, tag=None):
        self(s); self.vn += 1
        if tag is not None: self.vt[tag] = self.vn
    def need(self, *tags):
        k = max([self.lt[t] for t in tags if t in self.lt] + [0])
        if k > self.ld:
            n = min(15, self.ln - k); self(f"s_waitcnt lgkmcnt({n})"); self.ld = self.ln - n
    def needv(self, *tags):
        k = max([self.vt[t] for t in tags] + [0])
        if k > self.vd:
            n = min(63, self.vn - k); self(f"s_waitcnt vmcnt({n})"); self.vd = self.vn - n

def srd(a, d, lo, hi, size, add=None):
    if add:
        a(f"s_add_u32 s{d}, s{lo}, {add}")
        a(f"s_addc_u32 s{d+1}, s{hi}, 0")
    else:
        a(f"s_mov_b32 s{d}, s{lo}")
        a(f"s_mov_b32 s{d+1}, s{hi}")
    a(f"s_mov_b32 s{d+2}, {size}")
    a(f"s_mov_b32 s{d+3}, 0x00020000")

SK, SV, SSH, SH, SU, SY, SX, SO, SF = 24, 28, 32, 36, 40, 44, 48, 52, 56
sX, sQ, sB, sP, sW = 60, 61, 62, 63, 64
sB0, sCF, sRB = 69, 70, 71
sCH, sCE, sJE, sHB, sUB, sDM, sDE, sFI, sHF, sTAG = 72, 73, 74, 75, 76, 77, 78, 79, 82, 83
sYM, sYE, sXO, sT2 = 80, 81, 84, 100
vLANE, vL16, vL2 = 250, 251, 252

def stamp(a, idx, cyc=False):
    if opt("padat", "x") == str(idx) and not cyc:
        a("s_memrealtime s[94:95]"); a("s_waitcnt lgkmcnt(0)"); a("v_mov_b32 v255, s94")
    if not STAMPS: return
    a(("s_memtime" if cyc else "s_memrealtime") + " s[94:95]")
    a("s_waitcnt lgkmcnt(0)")
    a(f"v_writelane_b32 v255, s94, {idx}")
def qstamp(a, i, mode="1"):
    if STAMPS and opt("q", "0") == mode: a(f"s_memtime s[{4+2*i}:{5+2*i}]")
def qflush(a, mode="1"):
    if STAMPS and opt("q", "0") == mode:
        a("s_waitcnt lgkmcnt(0)")
        for i in range(8): a(f"v_writelane_b32 v255, s{4+2*i}, {20+i if i < 4 else 24+i}")
def stamp_flush(a):
    if not STAMPS: return
    srd(a, 96, 20, 21, 0x100000, ST_OFF)
    a("s_lshl_b32 s94, s2, 2")
    a(f"s_add_u32 s94, s94, s{sW}")
    a("s_lshl_b32 s94, s94, 7")
    a(f"v_lshlrev_b32 v254, 2, v{vLANE}")
    a("s_mov_b32 exec_hi, 0")
    a("buffer_store_dword v255, v254, s[96:99], s94 offen sc1")

def vr(r, n=4): return f"v[{r}:{r+n-1}]"
def ar(r, n=4): return f"a[{r}:{r+n-1}]"
def pr(r): return f"v[{r}:{r+1}]"
def sq(r): return f"s[{r}:{r+3}]"
DPP = "row_mask:0xf bank_mask:0xf"

def prologue(a, end):
    a("s_cmp_ge_u32 s2, 256")
    a(f"s_cbranch_scc1 {end}")
    a(f"s_lshr_b32 s{sB0}, s2, 7")
    a(f"s_mul_i32 s3, s{sB0}, 48")
    a("s_add_u32 s22, s0, s3")
    a("s_addc_u32 s23, s1, 0")
    a("s_load_dwordx4 s[4:7], s[22:23], 8")
    a("s_load_dwordx2 s[8:9], s[22:23], 24")
    a(f"s_and_b32 s{sX}, s2, 7")
    a(f"s_lshr_b32 s{sQ}, s2, 3")
    a(f"s_lshr_b32 s{sB}, s{sX}, 2")
    a(f"s_mul_i32 s3, s{sB}, 48")
    a("s_add_u32 s22, s0, s3")
    a("s_addc_u32 s23, s1, 0")
    a("s_load_dwordx2 s[10:11], s[22:23], 32")
    a("s_load_dwordx2 s[12:13], s[22:23], 40")
    a("s_load_dwordx2 s[14:15], s[0:1], 0")
    a("s_load_dwordx4 s[16:19], s[0:1], 96")
    a("s_load_dwordx2 s[20:21], s[0:1], 112")
    npf = int(opt("cpf", "32"))
    if npf:
        K = NAME + "_kernel"
        spread_ = opt("cpfs", "1") == "1"
        if not spread_:
            a(f"s_cmp_ge_u32 s2, {npf}")
            a("s_cbranch_scc1 no_cpf")
        a("s_getpc_b64 s[96:97]")
        a.label("cpf_base")
        if spread_:
            a("s_lshr_b32 s3, s2, 3")
            a("s_lshl_b32 s3, s3, 10")
            a("v_and_b32 v12, 7, v0")
            a("v_lshl_add_u32 v12, v12, 7, s3")
        else:
            a("v_lshlrev_b32 v12, 7, v0")
        a(f"v_min_u32 v12, {K}_end - cpf_base, v12")
        a("v_mov_b32 v13, s97")
        a("v_add_co_u32 v12, vcc, s96, v12")
        a("v_cmp_gt_u32 s[24:25], 8, v0" if spread_ else "s_nop 0")
        a("s_nop 0")
        a("v_addc_co_u32 v13, vcc, 0, v13, vcc")
        if spread_:
            a("s_and_saveexec_b64 s[26:27], s[24:25]")
            a("s_cbranch_execz cpf_skip")
        a("global_load_dword v254, v[12:13], off")
        if spread_:
            a.label("cpf_skip")
            a("s_mov_b64 exec, s[26:27]")
        a.label("no_cpf")
    a("v_lshrrev_b32 v1, 6, v0")
    a(f"v_and_b32 v{vLANE}, 63, v0")
    a(f"v_readfirstlane_b32 s{sW}, v1")
    a(f"v_lshlrev_b32 v{vL16}, 4, v{vLANE}")
    a(f"v_lshlrev_b32 v{vL2}, 1, v{vLANE}")
    if SPLIT():
        a(f"s_and_b32 s{sCF}, s{sQ}, 3")
        a(f"s_bfe_u32 s{sRB}, s{sQ}, 0x20002")
        a(f"s_lshl_b32 s3, s{sX}, 2")
        a(f"s_add_u32 s{sRB}, s{sRB}, s3")
        a(f"s_lshl_b32 s{sFI}, s{sB0}, 7")
        a(f"s_lshl_b32 s3, s{sCF}, 5")
        a(f"s_add_u32 s{sFI}, s{sFI}, s3")
        a(f"s_add_u32 s{sFI}, s{sFI}, s{sRB}")
        a(f"s_lshr_b32 s{sT2}, s{sW}, 1")
    else:
        a(f"s_and_b32 s{sCF}, s{sQ}, 1")
        a(f"s_bfe_u32 s{sRB}, s{sQ}, 0x30001")
        a(f"s_lshl_b32 s3, s{sX}, 3")
        a(f"s_add_u32 s{sRB}, s{sRB}, s3")
        a(f"s_lshl_b32 s{sFI}, s{sB0}, 7")
        a(f"s_lshl_b32 s3, s{sCF}, 6")
        a(f"s_add_u32 s{sFI}, s{sFI}, s3")
        a(f"s_add_u32 s{sFI}, s{sFI}, s{sRB}")
    a(f"s_and_b32 s{sP}, s{sX}, 3")
    a(f"s_lshl_b32 s{sP}, s{sP}, 4")
    a(f"s_lshr_b32 s3, s{sQ}, 1")
    a(f"s_add_u32 s{sP}, s{sP}, s3")
    a(f"s_and_b32 s{sHF}, s{sQ}, 1")
    a(f"s_lshl_b32 s{sCH}, s{sP}, 3")
    a(f"s_lshl_b32 s3, s{sHF}, 2")
    a(f"s_add_u32 s{sCH}, s{sCH}, s3")
    a(f"s_add_u32 s{sCH}, s{sCH}, s{sW}")
    a(f"s_add_u32 s{sCE}, s{sP}, 512")
    a(f"s_cmp_eq_u32 s{sHF}, 0")
    a(f"s_cselect_b32 s{sJE}, 0x7520, 0x6431") if False else None
    a("s_mov_b32 s3, 0x6431")
    a(f"s_cselect_b32 s{sJE}, 0x7520, s3")
    a(f"s_lshl_b32 s3, s{sW}, 2")
    a(f"s_lshr_b32 s{sJE}, s{sJE}, s3")
    a(f"s_and_b32 s{sJE}, s{sJE}, 7")
    a(f"s_mul_i32 s{sHB}, s{sW}, {HB}")
    a(f"s_mul_i32 s{sUB}, s{sW}, {US}")
    a(f"s_add_u32 s{sUB}, s{sUB}, {U_BASE}")

def kraw(t): return 8 + 4 * t
def hraw(j): return 40 + 4 * j
def vraw(t): return 52 + 4 * t
vA1, vA2, vA3, vA4, vA7 = 242, 243, 244, 245, 246
def EXH(): return 0xf if SPLIT() else 0xffff
def p0_addr(a):
    cw = 72 if SPLIT() else 96
    a(f"v_lshrrev_b32 v247, 2, v{vLANE}")
    a(f"v_and_b32 v248, 3, v{vLANE}")
    if SPLIT():
        a(f"s_lshl_b32 s67, s{sT2}, 5")
        a(f"s_add_u32 s67, s67, s{sRB}")
        a(f"s_and_b32 s68, s{sW}, 1")
        a(f"s_lshl_b32 s66, s{sCF}, 1")
        a("s_add_u32 s68, s68, s66")
    else:
        a(f"s_mov_b32 s67, s{sRB}")
        a(f"s_mul_i32 s68, s{sCF}, 3")
        a(f"s_add_u32 s68, s68, s{sW}")
    a(f"s_mul_i32 s65, s67, {32*ROWB}")
    a(f"s_mul_i32 s66, s68, {2*cw}")
    a("s_add_u32 s65, s65, s66")
    a(f"v_mul_u32_u24 v{vA1}, {8*ROWB}, v248")
    a(f"v_lshlrev_b32 v{vA7}, 4, v247")
    a(f"v_add3_u32 v{vA1}, v{vA1}, v{vA7}, s65")
    a(f"v_add_u32 v{vA2}, {4*ROWB}, v{vA1}")
    a(f"v_subrev_u32 v{vA3}, {3*ROWB}, v{vA1}")
    a(f"s_mul_i32 s66, s68, {cw*8}")
    a(f"v_add_u32 v{vA7}, s66, v{vL16}")
    a(f"s_mul_i32 s65, s{sB0}, 576")
    a(f"s_mul_i32 s66, s68, {cw}")
    a("s_add_u32 s65, s65, s66")
    a(f"s_mul_i32 s65, s65, {UG}")
    a("s_add_u32 s65, s65, 4080")
    a("s_lshl_b32 s66, s67, 6")
    a("s_sub_u32 s65, s65, s66")
    a(f"v_mul_u32_u24 v{vA4}, {8*UG}, v247")
    a("v_lshlrev_b32 v248, 4, v248")
    a(f"v_sub_u32 v{vA4}, v{vA4}, v248")
    a(f"v_add_u32 v{vA4}, s65, v{vA4}")

def p0_issue(a, fl):
    def row(t): return (f"v{vA1}", t * ROWB) if t < 4 else (f"v{vA2}", (t - 4) * ROWB)
    def ldk(t):
        b, o = row(t); a.vm(f"buffer_load_dwordx4 {vr(kraw(t))}, {b}, {sq(SK)}, 0 offen offset:{o} {fl}", f"K{t}")
    def ldv(t):
        b, o = row(t); a.vm(f"buffer_load_dwordx4 {vr(vraw(t))}, {b}, {sq(SV)}, 0 offen offset:{o} {fl}", f"V{t}")
    if opt("il", "bar1") == "prio": a("s_setprio 3")
    a(f"s_mov_b32 exec_hi, {EXH()}")
    a.vm(f"buffer_load_dwordx4 v[84:87], v{vA7}, {sq(SSH)}, 0 offen", "W")
    for t in (5, 6, 7): ldk(t)
    a("s_mov_b32 exec_lo, 0x11111111")
    a(f"s_mov_b32 exec_hi, {EXH() & 0x1111}")
    for j in range(3):
        a.vm(f"buffer_load_dwordx4 {vr(hraw(j))}, v{vA3}, {sq(SK)}, 0 offen offset:{j*ROWB} {fl}", f"H{j}")
    a("s_mov_b32 exec_lo, -1")
    a(f"s_mov_b32 exec_hi, {EXH()}")
    il = opt("il", "bar1")
    def step(k):
        if il == "prio": a(f"s_setprio {3 - k}")
        if il.startswith("bar") and k <= int(il[3:]): a("s_barrier")
    step(1)
    for t in range(5):
        ldk(t); ldv(t)
        if t == 1: step(2)
        if t == 3: step(3)
    for t in (5, 6, 7): ldv(t)
    a("s_mov_b64 exec, -1")

def unpack(a, dlo, dhi, src):
    a(f"v_lshlrev_b32 v{dlo}, 16, v{src}")
    a(f"v_and_b32 v{dhi}, 0xffff0000, v{src}")

def p0_compute(a, stflag, sfx=""):
    def W(p, j): return 88 + 8 * p + 2 * j
    def Kf(j, c): return 120 + 8 * (j & 7) + c
    def U(t, c): return 184 + 8 * (t & 3) + c
    OUTS = [hraw(0), hraw(1), hraw(2), kraw(0), kraw(1), vraw(0), vraw(1), 84]
    VT = 216
    a("s_mov_b32 vcc_lo, 0x11111111")
    a("s_mov_b32 vcc_hi, 0x11111111")
    a("v_mov_b32 v224, 0xffff0000")
    for c in range(1, 8):
        a(f"s_mov_b32 s{3+c}, {UG*c}")
    a.label("p0_body" + sfx)
    a.needv("W")
    for c in range(8):
        p, h = c >> 1, c & 1
        for half in range(2):
            i = 2 * c + half; s_ = i >> 2; qp = f"quad_perm:[{s_},{s_},{s_},{s_}] {DPP}"
            a(f"v_cvt_f32_bf16_dpp v{W(p,2*half)+h}, v{84+(i&3)} {qp}")
            a(f"v_and_b32_dpp v{W(p,2*half+1)+h}, v{84+(i&3)}, v224 {qp}")
    for j in range(3):
        a.needv(f"H{j}")
        for p in range(4):
            a(f"v_cndmask_b32_dpp v{hraw(j)+p}, v{kraw(5+j)+p}, v{hraw(j)+p}, vcc quad_perm:[0,0,1,2] {DPP}")
        for p in range(4): unpack(a, Kf(j, 2*p), Kf(j, 2*p+1), hraw(j) + p)
    def kun(t):
        for p in range(4): unpack(a, Kf(t+3, 2*p), Kf(t+3, 2*p+1), kraw(t) + p)
    def ksum(t):
        for p in range(4):
            a(f"v_pk_mul_f32 {pr(U(t,2*p))}, {pr(Kf(t,2*p))}, {pr(W(p,3))}")
        for jj in (2, 1, 0):
            for p in range(4):
                a(f"v_pk_fma_f32 {pr(U(t,2*p))}, {pr(Kf(t+3-jj,2*p))}, {pr(W(p,jj))}, {pr(U(t,2*p))}")
    def vmul(t):
        a.needv(f"V{t}")
        if t == 7: stamp(a, 17)
        for p in range(4): unpack(a, VT + 2*p, VT + 2*p + 1, vraw(t) + p)
        for p in range(4):
            a(f"v_pk_mul_f32 {pr(U(t,2*p))}, {pr(U(t,2*p))}, {pr(VT+2*p)}")
    def cvt(t):
        q = (7 - t) // 2
        if t == 7 and opt("dry0", "0") == "1": a("s_cbranch_execz p0_dry_back")
        if t == 7: a(f"s_mov_b32 exec_hi, {EXH()}")
        for c in range(8):
            a(f"v_cvt_pk_bf16_f32 v{OUTS[c]+q}, v{U(t, c)}, v{U(t-1, c)}")
            if t == 7:
                so = "0" if c == 0 else f"s{3+c}"
                a.vm(f"buffer_store_dwordx4 {vr(OUTS[c])}, v{vA4}, {sq(SU)}, {so} offen {stflag}", "UST")
        if t == 7: a("s_mov_b64 exec, -1")
    for t in range(5):
        a.needv(f"K{t}")
        kun(t)
        ksum(t)
        if t <= 2: kun(5 + t)
        if t == 4:
            for tt in (5, 6, 7): ksum(tt)
        vmul(t)
        if t & 1: cvt(t)
    for t in (5, 6, 7):
        vmul(t)
        if t & 1: cvt(t)

ACC, ACCE, FB, AE, FE0, PD, EV = 8, 40, 56, 120, 184, 216, 220
vTW, vTR, vFE, vEW, vER, vRW, vRR, vUD, vP1, vP2, vYM, vYE, vYG, vYR = range(224, 238)
vPB = 254
RED, UD, STG, ES, TRD, YP, XR = 120, 136, 138, 140, 144, 152, 240
TJ = ((0, 2, 5, 7), (1, 3, 4, 6))

def h_dma(a, ch, ldsbase_s, ldsconst, flag, tag):
    a(f"s_lshl_b32 s3, s{ch}, 12")
    if ldsbase_s is not None:
        a(f"s_add_u32 s92, s{ldsbase_s}, {ldsconst + 3*CS + 32}")
        a("s_mov_b32 m0, s92")
    else:
        a(f"s_mov_b32 m0, {ldsconst + 3*CS + 32}")
    a("s_nop 0")
    for q in range(4):
        a.vm(f"buffer_load_dwordx4 v{vL16}, {sq(SH)}, s3 offen offset:{1024*q} {flag} lds", tag)

hc_n = [0]
vC1, vC2, vC3, vC4, ZR = 176, 177, 178, 179, 180
def h_copy_ops(a, vR, qs, head=None):
    hc_n[0] += 1; u = hc_n[0]
    Dq = lambda i: 120 + 8 * i
    ops = []
    def L(c, s_, tag=None): ops.append((c, lambda: a.lds(s_, tag)))
    def V(s_, need=None): ops.append((4, lambda: ((a.need(need) if need else None), a(s_))))
    for i, q in enumerate(qs):
        L(6, f"ds_read_b128 {vr(Dq(i))}, v{vR} offset:{3*CS + 32 + 1024*q}")
        L(4, f"ds_read_b64 {pr(Dq(i)+4)}, v{vR} offset:{3*CS + 48 + 1024*q}", ("HC", u, i))
    if head is not None:
        L(4, f"ds_read_b64 v[138:139], v{head} offset:{3*CS + 32}", ("HH", u))
    for i, q in enumerate(qs):
        d = Dq(i); o = 16 * (i & 1); T0, T1, T2, O4 = 144 + o, 148 + o, 152 + o, 156 + o
        for k in range(4):
            V(f"v_alignbit_b32 v{T0+k}, v{d+k+1}, v{d+k}, 16", ("HC", u, i) if k == 0 else None)
        V(f"v_alignbit_b32 v{O4}, v{d+5}, v{d+4}, 16")
        V(f"v_pk_mov_b32 {pr(T1)}, {pr(d)}, {pr(d+2)} op_sel:[1,0]")
        V(f"v_pk_mov_b32 {pr(T1+2)}, {pr(d+2)}, {pr(d+4)} op_sel:[1,0]")
        V(f"v_pk_mov_b32 {pr(T2)}, {pr(T0)}, {pr(T0+2)} op_sel:[1,0]")
        V(f"v_pk_mov_b32 {pr(T2+2)}, {pr(T0+2)}, {pr(O4)} op_sel:[1,0]")
        L(8, f"ds_write_b128 v{vR}, {vr(T0)} offset:{32 + 1024*q}")
        L(8, f"ds_write_b128 v{vR}, {vr(T1)} offset:{CS + 32 + 1024*q}")
        L(8, f"ds_write_b128 v{vR}, {vr(T2)} offset:{2*CS + 32 + 1024*q}", ("HW", u))
    if head is not None:
        V(f"v_sub_u32 v137, 3, v{vLANE}")
        V("v_lshlrev_b32 v137, 4, v137")
        V("v_lshlrev_b64 v[138:139], v137, v[138:139]", ("HH", u))
        V(f"v_cmp_eq_u32 vcc, 3, v{vLANE}")
        V(f"v_mul_u32_u24 v137, {CS}, v{vLANE}")
        V(f"v_add_u32 v140, v137, v{head}")
        V("v_cndmask_b32 v138, v138, 0, vcc")
        V("v_cndmask_b32 v139, v139, 0, vcc")
        V("v_mov_b32 v136, 0")
        V("v_mov_b32 v137, 0")
        def hw():
            a("s_mov_b64 exec, 15")
            a.lds(f"ds_write_b128 v140, {vr(ZR)}")
            a.lds("ds_write_b128 v140, v[136:139] offset:16", ("HW", u))
            a("s_mov_b64 exec, -1")
        ops.append((8, hw))
    return ops, ("HW", u)
def h_copies(a, vR, qs, head=None):
    ops, tag = h_copy_ops(a, vR, qs, head)
    for c, f in ops: f()
    return tag

def p1_prep_a(a):
    a(f"v_and_b32 v1, 15, v{vLANE}")
    a(f"v_lshrrev_b32 v2, 4, v{vLANE}")
    a("v_and_b32 v3, 3, v1")
    a("v_cmp_eq_u32 vcc, 3, v3")
    a(f"v_mul_u32_u24 v3, {CS}, v3")
    a("v_and_b32 v4, 12, v1")
    a("v_lshlrev_b32 v4, 1, v4")
    a("v_add_u32 v3, v3, v4")
    a("v_cndmask_b32 v4, 0, 8, vcc")
    a("v_add_u32 v3, v3, v4")
    a("v_lshl_add_u32 v3, v2, 4, v3")
    a(f"v_add_u32 v5, s{sHB}, v3")
    a(f"s_lshl_b32 s93, s{sW}, 7")
    a(f"s_add_u32 s3, s93, {4*HB}")
    a("v_add_u32 v6, s3, v3")

def p1_prep_b(a):
    a(f"v_add_u32 v8, s{sUB}, v{vL16}")
    a(f"s_add_u32 s3, s93, {UE - 512}")
    a(f"v_add_u32 v9, s3, v{vL16}")
    a(f"v_cmp_gt_u32 vcc, 32, v{vLANE}")
    a("s_mov_b32 exec_hi, 0xff")
    a("s_nop 0")
    a("v_cndmask_b32 v8, v9, v8, vcc")
    a("ds_write_b128 v8, v[180:183] offset:4096")
    a("s_mov_b64 exec, -1")
    for ch, sv in ((sCH, sDM), (sCE, sDE)):
        a(f"s_and_b32 s3, s{ch}, 1")
        a("s_lshl_b32 s3, s3, 4")
        a(f"s_lshr_b32 s{sv}, s{sv}, s3")
        a(f"s_and_b32 s{sv}, s{sv}, 0xffff")
    a(f"s_lshl_b32 s{sDE}, s{sDE}, 16")
    a("v_lshlrev_b32 v3, 3, v2")
    a("v_add_u32 v3, v3, v1")
    a("v_sub_u32 v3, 15, v3")
    a("v_and_b32 v4, 1, v3")
    a("v_lshlrev_b32 v4, 4, v4")
    a("v_ashrrev_i32 v3, 1, v3")
    a(f"v_lshlrev_b32 v8, v4, s{sDM}")
    for q in range(4):
        a(f"v_cmp_eq_u32 vcc, {q}, v3")
        a("s_nop 1")
        a(f"v_cndmask_b32 v{PD+q}, 0, v8, vcc")
    a("v_lshlrev_b32 v3, 4, v2")
    a("v_lshlrev_b32 v4, 5, v1")
    a("v_sub_u32 v3, v3, v4")
    a("v_add_u32 v3, 480, v3")
    a(f"v_add_u32 v7, s{sUB}, v3")
    a(f"s_add_u32 s3, s93, {UE}")
    a(f"v_add_u32 v{vFE}, s3, v3")
    a("v_lshlrev_b32 v3, 3, v2")
    a("v_add_u32 v3, v3, v4")
    a(f"s_lshl_b32 s3, s{sJE}, 9")
    a(f"s_sub_u32 s3, {UE + 4088}, s3")
    a(f"v_sub_u32 v{vUD}, s3, v3")
    a(f"s_lshl_b32 s3, s{sW}, 9")
    a(f"s_add_u32 s3, s3, {E_LDS}")
    a(f"v_add_u32 v{vEW}, s3, v3")
    a(f"v_add_u32 v{vER}, s3, v{vL16}")
    a(f"s_lshl_b32 s3, s{sW}, 10")
    a(f"s_add_u32 s3, s3, {R_LDS}")
    a(f"v_add_u32 v{vRW}, s3, v{vL16}")
    a(f"s_lshl_b32 s3, s{sW}, 12")
    a(f"s_add_u32 s3, s3, {R_LDS}")
    a(f"v_add_u32 v{vRR}, s3, v{vL16}")
    a(f"v_mul_u32_u24 v{vTW}, {TR}, v1")
    a("v_lshrrev_b32 v3, 1, v2")
    a(f"v_lshl_add_u32 v{vTW}, v3, 6, v{vTW}")
    a("v_and_b32 v3, 1, v2")
    a(f"v_lshl_add_u32 v{vTW}, v3, 3, v{vTW}")
    a(f"s_lshl_b32 s3, s{sW}, 4")
    a(f"s_add_u32 s3, s3, {T_LDS}")
    a(f"v_add_u32 v{vTW}, s3, v{vTW}")
    a(f"v_lshrrev_b32 v3, 3, v{vLANE}")
    a(f"v_mul_u32_u24 v{vTR}, {TR}, v3")
    a(f"v_and_b32 v4, 7, v{vLANE}")
    a(f"v_lshl_add_u32 v{vTR}, v4, 4, v{vTR}")
    a(f"s_mul_i32 s3, s{sW}, {8*TR}")
    a(f"s_add_u32 s3, s3, {T_LDS}")
    a(f"v_add_u32 v{vTR}, s3, v{vTR}")
    a(f"v_mul_u32_u24 v{vYM}, {YR}, v4")
    a(f"v_lshl_add_u32 v{vYM}, v3, 4, v{vYM}")
    a(f"s_lshr_b32 s88, s{sW}, 1")
    a(f"s_mul_i32 s89, s88, {YBR}")
    a(f"s_and_b32 s3, s{sW}, 1")
    a("s_lshl_b32 s3, s3, 9")
    a("s_add_u32 s89, s89, s3")
    a(f"s_add_u32 s89, s89, {Y_LDS}")
    a(f"v_add_u32 v{vYM}, s89, v{vYM}")
    a(f"s_add_u32 s89, s89, {8*YR}")
    a("v_and_b32 v8, 3, v3")
    a(f"v_lshl_add_u32 v{vYE}, v8, 2, v{vL16}")
    a(f"v_xor_b32 v8, s{sW}, v8")
    a(f"v_lshl_add_u32 v{vYR}, v8, 2, v{vL16}")
    a("s_mov_b32 s98, s89")
    a(f"v_lshlrev_b32 v{vYG}, 6, v{vLANE}")
    a(f"s_mul_i32 s88, s2, {YG}")
    a(f"s_lshl_b32 s3, s{sW}, 12")
    a("s_add_u32 s88, s88, s3")
    a("s_lshr_b32 s89, s2, 2")
    a(f"s_mul_i32 s89, s89, {YEG}")
    a("s_mov_b32 s99, s89")
    a(f"s_lshl_b32 s3, s{sW}, 11")
    a("s_add_u32 s89, s89, s3")
    a("s_and_b32 s3, s2, 3")
    a("s_lshl_b32 s3, s3, 4")
    a("s_add_u32 s89, s89, s3")
    a(f"s_add_u32 s89, s89, {YE_OFF}")
    a(f"v_lshrrev_b32 v4, 2, v{vLANE}")
    a(f"v_and_b32 v8, 3, v{vLANE}")
    a("v_lshlrev_b32 v8, 4, v8")
    a(f"v_mul_u32_u24 v3, {YG}, v4")
    a("v_add_u32 v3, v3, v8")
    a(f"v_mul_u32_u24 v4, {YEG}, v4")
    a("v_add_u32 v4, v4, v8")
    a(f"s_mul_i32 s{sYM}, s{sW}, {16*YG}")
    a(f"s_lshl_b32 s3, s{sB}, 13")
    a(f"s_add_u32 s{sYM}, s{sYM}, s3")
    a(f"s_sub_u32 s3, s{sCH}, s{sW}")
    a("s_lshl_b32 s3, s3, 4")
    a(f"s_add_u32 s{sYM}, s{sYM}, s3")
    a(f"s_mul_i32 s{sYE}, s{sJE}, {8*YEG}")
    a(f"s_lshl_b32 s3, s{sB}, 12")
    a(f"s_add_u32 s{sYE}, s{sYE}, s3")
    a(f"s_lshl_b32 s3, s{sP}, 6")
    a(f"s_add_u32 s{sYE}, s{sYE}, s3")
    a(f"s_add_u32 s{sYE}, s{sYE}, {YE_OFF}")
    srd(a, SX, 14, 15, TENS)
    a(f"s_lshl_b32 s{sXO}, s2, 3")
    a(f"s_lshl_b32 s3, s{sW}, 1")
    a(f"s_add_u32 s{sXO}, s{sXO}, s3")
    a(f"s_mul_i32 s{sXO}, s{sXO}, {ROWB}")
    a(f"s_mul_i32 s3, s{sB}, 576")
    a(f"s_add_u32 s90, s3, s{sCH}")
    a(f"s_mul_i32 s90, s90, {UG}")
    a(f"s_add_u32 s91, s3, s{sCE}")
    a(f"s_mul_i32 s91, s91, {UG}")
    a(f"s_lshl_b32 s85, s{sW}, 10")
    a("s_add_u32 s91, s91, s85")
    a(f"s_add_u32 s85, s85, {UE}")
    if SPLIT():
        a(f"s_mul_i32 s92, s{sCH}, 456")
        a("s_lshr_b32 s92, s92, 16")
        a("s_lshl_b32 s92, s92, 11")
        a(f"s_lshl_b32 s3, s{sB}, 13")
        a("s_add_u32 s92, s92, s3")
        a(f"v_and_b32 v8, 31, v{vLANE}")
        a("v_lshlrev_b32 v8, 6, v8")
        a(f"v_add_u32 v{vP1}, s92, v8")
        a(f"s_add_u32 s92, s92, {F1B}")
        a(f"s_add_u32 s3, s3, {96*64}")
        a(f"s_add_u32 s93, s3, {F1B}")
        a(f"s_cmp_eq_u32 s{sW}, 1")
        a("s_cselect_b32 s3, s3, s93")
        a(f"s_cmp_eq_u32 s{sW}, 0")
        a("s_cselect_b32 s3, s92, s3")
        a(f"v_add_u32 v{vPB}, s3, v8")
    elif opt("clr", "fill") == "w23":
        a(f"s_lshl_b32 s92, s{sB}, 1")
        a(f"s_add_u32 s92, s92, s{sW}")
        a("s_lshl_b32 s92, s92, 12")
        a(f"v_add_u32 v{vP1}, s92, v{vYG}")
    else:
        a(f"s_lshl_b32 s92, s{sB}, 2")
        a(f"s_add_u32 s92, s92, s{sW}")
        a("s_lshl_b32 s92, s92, 12")
        if int(opt("rep", "1")) > 1:
            a(f"s_and_b32 s3, s{sX}, 3")
            a("s_lshl_b32 s3, s3, 15")
            a("s_add_u32 s92, s92, s3")
        a(f"v_and_b32 v8, 31, v{vLANE}")
        a("v_lshlrev_b32 v8, 7, v8")
        a(f"v_add_u32 v{vP1}, s92, v8")
    a(f"s_lshl_b32 s92, s{sW}, 13")
    a(f"s_add_u32 s92, s92, {F2A}")
    a(f"v_lshl_add_u32 v{vP2}, v{vLANE}, 7, s92")
    a(f"v_add_u32 v{vC1}, s{sHB}, v{vL16}")
    a(f"v_mov_b32 v{vC2}, s{sHB}")
    a(f"s_lshl_b32 s3, s{sW}, 10")
    a(f"s_add_u32 s3, s3, {4*HB}")
    a(f"v_add_u32 v{vC3}, s3, v{vL16}")
    a(f"v_mov_b32 v{vC4}, {4*HB}")
    a("s_lshl_b32 s101, s2, 7")
    a(f"s_add_u32 s101, s101, {F2A}")
    a("s_lshl_b32 s3, s2, 2")
    a(f"s_add_u32 s3, s3, s{sW}")
    a("s_lshl_b32 s3, s3, 7")
    a(f"s_add_u32 s3, s3, {FD}")
    a(f"s_cmp_eq_u32 s{sW}, 0")
    a("s_cselect_b32 s101, s101, s3")
    a("s_and_b32 s3, s2, 3")
    a("s_lshl_b32 s3, s3, 11")
    a("s_add_u32 s99, s99, s3")
    if opt("clr", "fill") == "w23":
        a(f"s_and_b32 s3, s{sW}, 1")
        a("s_lshl_b32 s3, s3, 10")
    else:
        a(f"s_lshl_b32 s3, s{sW}, 9")
    a("s_add_u32 s99, s99, s3")
    a(f"s_add_u32 s99, s99, {YE_OFF}")
    a("s_mov_b32 s97, 4096")
    a("s_mov_b32 s86, 0x3ae38e39")
    a("s_mov_b32 s87, 0x3727c5ac")

def p1_aload(a, aas):
    for r in range(8):
        for aa in aas:
            ks = 8 * aa + r
            a.lds(f"ds_read_b64 a[{4*ks}:{4*ks+1}], v5 offset:{64*ks}")
            a.lds(f"ds_read_b64 a[{4*ks+2}:{4*ks+3}], v5 offset:{64*ks+8}", ("A", ks))

def F(bank, c): return FB + 32 * bank + 4 * c
MF = "v_mfma_f32_16x16x32_bf16"

def p1_mfma(a, stflag, tail):
    inited = set()
    def mfma(acc, A_, B_, needs):
        a.need(*needs)
        c = vr(acc) if acc in inited else "0"
        inited.add(acc)
        a(f"{MF} {vr(acc)}, {A_}, {vr(B_)}, {c}")
    def L(c, s_, tag=None): return (c, lambda: a.lds(s_, tag))
    def I(s_): return (4, lambda: a(s_))
    def V(s_, tag=None): return (8, lambda: a.vm(s_, tag))
    def aeread(rp, aa, half): return L(4, f"ds_read_b64 {pr(AE+32*rp+4*aa+2*half)}, v6 offset:{512*aa + 64*rp + 8*half}", ("AE", rp, aa))
    evc = [0]
    def conv(j):
        e = EV + 2 * (evc[0] & 1); evc[0] += 1
        return [I(f"v_cvt_pk_bf16_f32 v{e}, v{ACC+4*j}, v{ACC+4*j+1}"), I(f"v_cvt_pk_bf16_f32 v{e+1}, v{ACC+4*j+2}, v{ACC+4*j+3}"),
                I(f"v_min_u32 v{e}, -2, v{e}"), I(f"v_min_u32 v{e+1}, -2, v{e+1}"),
                L(6, f"ds_write_b64 v{vTW}, {pr(e)} offset:{16*TR*j}", ("TW", j))]
    def barrier(*tags): return (8, lambda: (a.need(*tags), a("s_barrier")))
    def tread(k, reg): return L(6, f"ds_read_b128 {vr(reg)}, v{vTR} offset:{32*TR*k}", ("TRD", k))
    def tstore(k, reg):
        def f():
            a(f"s_add_u32 s3, s{sYM}, {k*64*YG}")
            a.need(("TRD", k))
            a.vm(f"buffer_store_dwordx4 {vr(reg)}, v3, {sq(SY)}, s3 offen {stflag}")
        return (8, f)
    EXP = 8 if SPLIT() else int(opt("exp", "6"))
    blocks = []
    for r in range(8): blocks.append(("a", [(c, r) for c in range(4)], (0, 1, 2, 3)))
    for r in range(8): blocks.append(("b", [(c, r) for c in range(4)], (4, 5, 6, 7)))
    for r in range(0, 8, 2): blocks.append(("c", [(4, r), (5, r), (4, r + 1), (5, r + 1)], (4, 5)))
    for r in range(8): blocks.append(("d", [(c, r) for c in range(4, 8)], (6, 7)))
    def FG(k, i): return FB + 16 * (k & 3) + 4 * i
    def fread(k, i):
        c, r = blocks[k][1][i]
        return L(6, f"ds_read_b128 {vr(FG(k,i))}, v7 offset:{64*r + 512*(7-c)}", ("F", k, i))
    def items_of(k):
        name, fr, J = blocks[k]; it = []
        order = [(i, j) for i in range(4) for j in J if j >= fr[i][0]]
        if k == len(blocks) - 1: order = [(i, j) for j in J for i in range(4) if j >= fr[i][0]]
        for i, j in order:
            c, r = fr[i]; tg = [("F", k, i), ("A", 8 * (j - c) + r)]
            if r == 0 and j == c: it.append((ACC + 4*j, vr(PD), FG(k, i), tg))
            it.append((ACC + 4*j, ar(4 * (8 * (j - c) + r)), FG(k, i), tg))
        return it
    KE = 8 + EXP
    GE = (KE - 2) & 3
    def FEr(rp, c): return (FE0 + 4 * c) if rp == 0 else FB + 16 * GE + 4 * c
    def feread(rp, c): return L(6, f"ds_read_b128 {vr(FEr(rp,c))}, v{vFE} offset:{64*rp + 512*(7-c)}", ("FE", rp, c))
    start = []; n = 0
    for k in range(len(blocks)):
        if k == KE: E0 = n; n += 36
        start.append(n); n += len(items_of(k))
    NS = n; assert NS == 332
    plan = [[] for _ in range(NS)]; load = [0] * NS
    def pin(slot, ops):
        for i, (c, f) in enumerate(ops):
            plan[slot + i].append(f); load[slot + i] += c
    def spread(ops, lo_, hi_, cap=8):
        for cap_ in range(cap, 40, 2):
            sl = lo_; pos = []; ld = list(load)
            for c, f in ops:
                while sl <= hi_ and ld[sl] + c > cap_: sl += 1
                if sl > hi_: break
                pos.append(sl); ld[sl] += c
            if len(pos) == len(ops): break
        assert len(pos) == len(ops)
        for (c, f), p_ in zip(ops, pos): plan[p_].append(f); load[p_] += c
        return pos[-1]
    for k in range(len(blocks) - 2):
        if SPLIT() and k in (14, 15):
            pin(E0 + 8 + 4 * (k - 14), [fread(k + 2, i) for i in range(4)])
        else:
            pin(start[k], [fread(k + 2, i) for i in range(4)])
    pin(E0, [feread(1, c) for c in range(8)])
    xl = [V(f"buffer_load_dwordx4 {vr(XR)}, v{vL16}, {sq(SX)}, s{sXO} offen nt"),
          V(f"buffer_load_dwordx4 {vr(XR+4)}, v{vL16}, {sq(SX)}, s{sXO} offen offset:{ROWB} nt"),
          V(f"buffer_load_ushort v{XR+8}, v{vL2}, {sq(SX)}, s{sXO} offen offset:1024 nt"),
          V(f"buffer_load_ushort v{XR+9}, v{vL2}, {sq(SX)}, s{sXO} offen offset:{1024+ROWB} nt", "X")]
    if opt("clr", "fill") == "fill":
        clr = [V(f"buffer_store_dwordx4 {vr(FE0)}, v{vL16}, {sq(SY)}, s88 offen offset:{1024*q} sc1") for q in range(4)]
        def clre():
            a("s_mov_b32 exec_hi, 0")
            a.vm(f"buffer_store_dwordx4 {vr(FE0)}, v{vL16}, {sq(SY)}, s99 offen sc1")
            a("s_mov_b64 exec, -1")
        cs = int(opt("cs", "6")); cd = int(opt("cd", "2"))
        ncs = int(opt("ncs", "0")); clr_all = clr + [(8, clre)]
        clr_pre = clr_all[:ncs]
        for i, op in enumerate(clr_all[ncs:]): spread([op], cs + cd * i, cs + cd * i + 10)
    if opt("ein", "0") == "1":
        ops_e, hwe = h_copy_ops(a, vC3, [0], vC4)
        spread(ops_e[:3], 4, 8)
        spread(ops_e[3:], 18, 70, 6)
    else:
        hwe = ("none",)
        ao = []
        for r in range(8):
            for aa in range(4, 8):
                ks = 8 * aa + r
                ao += [L(4, f"ds_read_b64 a[{4*ks}:{4*ks+1}], v5 offset:{64*ks}"), L(4, f"ds_read_b64 a[{4*ks+2}:{4*ks+3}], v5 offset:{64*ks+8}", ("A", ks))]
        if opt("hdef", "0") == "1":
            ops_o, hwo = h_copy_ops(a, vC1, [2, 3])
            c0, f0 = ops_o[0]
            ops_o[0] = (c0, lambda: (a.needv("h2"), f0()))
            hs = int(opt("hs", "20"))
            e_ = spread(ops_o[:4], hs, hs + 10)
            e_ = spread(ops_o[4:], e_ + 8, 66, 8)
            spread(ao[:16], e_ + 1, 82, 8)
            for r in range(2, 8): spread(ao[8*r: 8*r + 8], 84, start[8 + r] - 4, 6)
        elif opt("pre2", "0") != "1": spread(ao, 4, 110, int(opt("acap", "6")))
    XA = int(opt("xa", "140" if SPLIT() else "92"))
    def xa():
        a("s_waitcnt vmcnt(0)"); a.vd = a.vn
        a.need(hwe)
        a("s_barrier")
        signal(a, 101); a.vn += 1
    def xa_split():
        a("s_waitcnt vmcnt(0)"); a.vd = a.vn
        a(f"v_cmp_ne_u32 vcc, s{sTAG}, v253")
        a(f"s_mov_b32 m0, s{sUB}")
        a("s_cbranch_vccnz t2_slow")
        a.label("t2_back")
        a("s_barrier")
        for q in (1, 0):
            a.vm(f"buffer_load_dwordx4 v{vL16}, {sq(SU)}, s90 offen offset:{1024*q} {opt('uld', 'sc1')} lds", f"U{q}")
        a("s_mov_b32 m0, s85")
        a("s_nop 0")
        a.vm(f"buffer_load_dwordx4 v{vL16}, {sq(SU)}, s91 offen {opt('uld', 'sc1')} lds", "UE")
        signal(a, 101); a.vn += 1
    def slow2(t):
        t.label("t2_slow")
        t("s_mov_b32 s92, 0x20000")
        t.label("t2_spin")
        t("s_sleep 2")
        t(f"buffer_load_dword v253, v{vPB}, {sq(SF)}, 0 offen sc1")
        t("s_waitcnt vmcnt(0)")
        t(f"v_cmp_ne_u32 vcc, s{sTAG}, v253")
        t("s_sub_u32 s92, s92, 1")
        t("s_cbranch_scc1 t2_back")
        t("s_cbranch_vccnz t2_spin")
        t("s_branch t2_back")
    if SPLIT():
        tail.append(slow2)
        pin(XA - int(opt("pbd", "44")), [V(f"buffer_load_dword v253, v{vPB}, {sq(SF)}, 0 offen sc1")])
        pin(XA, [(40, xa_split)])
        X0 = E0 - 12
        pin(X0, [(8, lambda: (a.needv("UE"), a("s_barrier")))])
        XE = int(opt("xe", "30"))
        pin(XE, [(8, lambda: a("s_barrier"))])
        for i, op in enumerate(xl): spread([op], XA + 2 + 3 * i, XA + 12 + 3 * i)
        spread([aeread(rp, aa, h) for rp in range(2) for aa in range(8) for h in range(2)], 100, E0 - 12, 6)
        spread([feread(0, c) for c in range(8)], X0 + 1, E0 - 2)
    else:
        pin(XA, [(20, xa)])
        if opt("xpre", "0") != "1":
            for i, op in enumerate(xl): spread([op], XA + 2 + 3 * i, XA + 12 + 3 * i)
        spread([aeread(rp, aa, h) for rp in range(2) for aa in range(8) for h in range(2)], XA + 1, E0 - 12, 6)
        spread([feread(0, c) for c in range(8)], E0 - 14, E0 - 2)
    B4 = E0 + 36
    if SPLIT(): spread(conv(0) + conv(1) + conv(2) + conv(3), 150, E0 - 14, 6)
    else: spread(conv(0) + conv(1) + conv(2) + conv(3), E0 + 9, B4 + 7, 6)
    e_ = spread([L(8, f"ds_write_b128 v{vRW}, {vr(ACCE+4*s_)} offset:{4096*s_}", ("RW", s_)) for s_ in range(4)], B4 + 8, B4 + 15)
    X1 = e_ + 6
    D0 = start[20]
    mx = opt("xd", "262") == "x2"
    if mx:
        e45 = spread(conv(4) + conv(5), D0 + 8, D0 + 18, 10)
        XD = e45 + 4
    else:
        XD = X1 if SPLIT() else int(opt("xd", "262"))
    if XD != X1: pin(X1, [barrier(("RW", 3), ("TW", 3))])
    pin(XD - int(opt("pcd", "44")), [V(f"buffer_load_dword v253, v{vP2}, {sq(SF)}, 0 offen sc1", "PC")])
    def xd():
        a.needv("PC")
        a(f"v_cmp_ne_u32 vcc, s{sTAG}, v253")
        a.need(("RW", 3), ("TW", 3), ("TW", 5) if mx else ("TW", 3))
        a("s_cbranch_vccnz c_slow")
        a.label("c_back")
        a("s_barrier")
    pin(XD, [(16, xd)])
    def slow(t):
        t.label("c_slow")
        t("s_mov_b32 s92, 0x20000")
        t.label("c_spin")
        t("s_sleep 4")
        t(f"buffer_load_dword v253, v{vP2}, {sq(SF)}, 0 offen sc1")
        t("s_waitcnt vmcnt(0)")
        t(f"v_cmp_ne_u32 vcc, s{sTAG}, v253")
        t("s_sub_u32 s92, s92, 1")
        t("s_cbranch_scc1 c_back")
        t("s_cbranch_vccnz c_spin")
        t("s_branch c_back")
    tail.append(slow)
    e_ = spread([tread(0, TRD), tread(1, TRD + 4)] +
                [L(6, f"ds_read_b128 {vr(RED+4*i)}, v{vRR} offset:{1024*i}", ("RR", i)) for i in range(4)] +
                [L(4, f"ds_read_b64 {pr(UD)}, v{vUD}", "UD")], X1 + 1, X1 + 16)
    t0_ = XD + (9 if XD == X1 else 1)
    spread([tstore(0, TRD)], t0_, t0_ + 8); spread([tstore(1, TRD + 4)], t0_ + 2, t0_ + 12)
    red = [(4, lambda: (a.need("UD"), a(f"v_pk_add_f32 {pr(RED)}, {pr(RED)}, {pr(RED+4)}"))), I(f"v_pk_add_f32 {pr(RED+2)}, {pr(RED+2)}, {pr(RED+6)}"),
           I(f"v_pk_add_f32 {pr(RED+8)}, {pr(RED+8)}, {pr(RED+12)}"), I(f"v_pk_add_f32 {pr(RED+10)}, {pr(RED+10)}, {pr(RED+14)}"),
           I(f"v_pk_add_f32 {pr(RED)}, {pr(RED)}, {pr(RED+8)}"), I(f"v_pk_add_f32 {pr(RED+2)}, {pr(RED+2)}, {pr(RED+10)}"),
           I(f"v_and_b32 v{RED+4}, 0xffff0000, v{UD+1}"), I(f"v_lshlrev_b32 v{RED+5}, 16, v{UD+1}"),
           I(f"v_and_b32 v{RED+6}, 0xffff0000, v{UD}"), I(f"v_lshlrev_b32 v{RED+7}, 16, v{UD}")]
    red += [I(f"v_fmac_f32 v{RED+i}, s{sDE}, v{RED+4+i}") for i in range(4)]
    red += [I(f"v_cvt_pk_bf16_f32 v{STG}, v{RED}, v{RED+1}"), I(f"v_cvt_pk_bf16_f32 v{STG+1}, v{RED+2}, v{RED+3}"),
            I(f"v_min_u32 v{STG}, -2, v{STG}"), I(f"v_min_u32 v{STG+1}, -2, v{STG+1}")]
    red += [L(6, f"ds_write_b64 v{vEW}, {pr(STG)}"), L(6, f"ds_read_b128 {vr(ES)}, v{vER}", "ES")]
    e_ = spread(red, e_ + 8, e_ + 44)
    def estore():
        a.need("ES"); a("s_mov_b32 exec_hi, 0")
        a.vm(f"buffer_store_dwordx4 {vr(ES)}, v4, {sq(SY)}, s{sYE} offen {stflag}")
        a("s_mov_b64 exec, -1")
    spread([(8, estore)], max(e_ + 6, XD + 5), max(e_ + 6, XD + 5) + 10)
    if mx:
        spread([tread(2, FE0)], XD + 1, XD + 4)
        e_ = spread([tstore(2, FE0)], XD + 9, XD + 15)
    else:
        e_ = spread(conv(4) + conv(5), D0 + 8, D0 + 22)
        pin(e_ + 5, [barrier(("TW", 5))])
        spread([tread(2, FE0)], e_ + 6, e_ + 10)
        e_ = spread([tstore(2, FE0)], max(e_ + 14, XD + 7), max(e_ + 14, XD + 7) + 6)
    if opt("ypre", "0") == "1":
        def ypre():
            a(f"s_cmp_ge_u32 s2, {opt('late', '192')}")
            a("s_cbranch_scc1 no_ypre")
            for f in y_issue_ops(a): f()
            a.vn -= 5
            a.label("no_ypre")
        pin(max(int(opt("yp", str(NS - 10))), e_ + 1), [(40, ypre)])
    if not SPLIT(): a.needv("U2")
    stamp(a, 9); stamp(a, 24, True)
    for k in range(2):
        for i in range(4): fread(k, i)[1]()
    if opt("clr", "fill") == "fill":
        for c_, f_ in clr_pre: f_()
    qs = {7: 0, 9: 1, KE - 1: 2, 15: 4, 19: 5, 23: 6, 26: 7}
    for k in range(len(blocks)):
        if k == KE:
            a(f"s_cmp_eq_u32 s{sHF}, 1")
            a("s_cbranch_scc1 ex_h1")
            save = (a.ln, a.ld, dict(a.lt), set(inited), a.vn, a.vd)
            for h in range(2):
                if h == 1:
                    a("s_branch ex_join")
                    a.label("ex_h1")
                    end0 = (a.ln, a.ld)
                    a.ln, a.ld, a.lt, inited = save[0], save[1], dict(save[2]), set(save[3])
                    vend = (a.vn, a.vd); a.vn, a.vd = save[4:6]
                its = []
                for rp in range(2):
                    for c in range(8):
                        for s_, j in enumerate(TJ[h]):
                            if j >= c:
                                its.append((ACCE + 4*s_, vr(AE + 32*rp + 4*(j - c)), FEr(rp, c), [("AE", rp, j - c), ("FE", rp, c)]))
                for i, it in enumerate(its):
                    mfma(*it)
                    for f in plan[E0 + i]: f()
            a.label("ex_join")
            assert a.ln == end0[0] and a.vn == vend[0]
            a.vd = min(a.vd, vend[1])
            a.ld = min(a.ld, end0[1])
            qstamp(a, 3)
        for i, it in enumerate(items_of(k)):
            mfma(*it)
            for f in plan[start[k] + i]: f()
        if k in qs: qstamp(a, qs[k])
    stamp(a, 7); stamp(a, 25, True)
    a("s_nop 3")
    for j in (6, 7):
        for c, f in conv(j): f()
    barrier(("TW", 7))[1]()
    tread(3, TRD + 4)[1]()
    tstore(3, TRD + 4)[1]()
    stamp(a, 8); stamp(a, 26, True)
    qflush(a)
    if "--plan" in sys.argv: print(load, XA, X1, E0, D0)

Z, YA, YB, G = 8, 26, 44, 62
SS, QQ, RS, ND, C0 = 80, 82, 84, 86, 88
YW = 96

def p2_sums(a):
    a(f"v_pk_add_f32 {pr(SS)}, {pr(Z)}, {pr(Z+2)}")
    a(f"v_pk_mul_f32 {pr(QQ)}, {pr(Z)}, {pr(Z)}")
    a(f"v_pk_fma_f32 {pr(QQ)}, {pr(Z+2)}, {pr(Z+2)}, {pr(QQ)}")
    for e in range(2, 9):
        a(f"v_pk_add_f32 {pr(SS)}, {pr(SS)}, {pr(Z+2*e)}")
        a(f"v_pk_fma_f32 {pr(QQ)}, {pr(Z+2*e)}, {pr(Z+2*e)}, {pr(QQ)}")

def p2_chain(a, fill):
    fill = list(fill)
    def gap(n):
        for _ in range(n):
            if fill: a(fill.pop(0))
            else: a("s_nop 0")
    T, Uq = 90, 91
    gap(2)
    a(f"v_permlane32_swap_b32 v{SS}, v{SS+1}")
    a(f"v_permlane32_swap_b32 v{QQ}, v{QQ+1}")
    a(f"v_add_f32 v{SS}, v{SS}, v{SS+1}")
    a(f"v_add_f32 v{QQ}, v{QQ}, v{QQ+1}")
    gap(2)
    a(f"v_permlane16_swap_b32 v{SS}, v{QQ}")
    a(f"v_add_f32 v{T}, v{SS}, v{QQ}")
    for m in ("quad_perm:[1,0,3,2]", "quad_perm:[2,3,0,1]", "row_half_mirror", "row_mirror"):
        gap(2)
        a(f"v_add_f32_dpp v{T}, v{T}, v{T} {m} {DPP}")
    a(f"v_mov_b32 v{Uq}, v{T}")
    gap(2)
    a(f"v_permlane16_swap_b32 v{T}, v{Uq}")
    a(f"v_mul_f32 v{T}, s86, v{T}")
    a(f"v_mul_f32 v{Uq}, s86, v{Uq}")
    a(f"v_fma_f32 v{Uq}, -v{T}, v{T}, v{Uq}")
    a(f"v_max_f32 v{Uq}, 0, v{Uq}")
    a(f"v_add_f32 v{Uq}, s87, v{Uq}")
    a(f"v_rsq_f32 v{RS}, v{Uq}")
    gap(1)
    a(f"v_mul_f32 v{ND}, v{RS}, v{T}")
    a(f"v_mov_b32 v{RS+1}, v{RS}")
    a(f"v_mov_b32 v{ND+1}, v{ND}")
    gap(2)
    a(f"v_permlane32_swap_b32 v{RS}, v{RS+1}")
    a(f"v_permlane32_swap_b32 v{ND}, v{ND+1}")
    while fill: a(fill.pop(0))

def p2_first(a):
    a.needv("X")
    for q in range(4):
        for row in range(2):
            a(f"v_lshlrev_b32 v{Z+4*q+row}, 16, v{XR+4*row+q}")
            a(f"v_and_b32 v{Z+4*q+2+row}, 0xffff0000, v{XR+4*row+q}")
    a(f"v_lshlrev_b32 v{Z+16}, 16, v{XR+8}")
    a(f"v_lshlrev_b32 v{Z+17}, 16, v{XR+9}")
    a(f"v_readfirstlane_b32 s92, v{Z}")
    a(f"v_readfirstlane_b32 s93, v{Z+1}")
    a("s_nop 1")
    a(f"v_mov_b32 v{C0}, s92")
    a(f"v_mov_b32 v{C0+1}, s93")
    for e in range(9):
        a(f"v_pk_add_f32 {pr(Z+2*e)}, {pr(Z+2*e)}, {pr(C0)} neg_lo:[0,1] neg_hi:[0,1]")
    p2_sums(a)
    p2_chain(a, [])

def y_ld(i):
    if i == 4: return f"buffer_load_dwordx4 {vr(YP+16)}, v{vYG}, {sq(SY)}, s89 offen {opt('yld', 'sc1')}"
    return f"buffer_load_dwordx4 {vr(YP+4*i)}, v{vL16}, {sq(SY)}, s88 offen offset:{1024*i} {opt('yld', 'sc1')}"
def y_issue_ops(a):
    def e():
        a("s_mov_b32 exec_hi, 0"); a.vm(y_ld(4)); a("s_mov_b64 exec, -1")
    return [e] + [(lambda i: lambda: a.vm(y_ld(i)))(i) for i in range(4)]

def y_write(a):
    for q in range(4):
        r = YP + 4 * q
        a(f"ds_write2_b32 v{vYM}, v{r}, v{r+1} offset0:{32*q + (0 ^ q)} offset1:{32*q + (1 ^ q)}")
        a(f"ds_write2_b32 v{vYM}, v{r+2}, v{r+3} offset0:{32*q + (2 ^ q)} offset1:{32*q + (3 ^ q)}")
    a("s_mov_b32 exec_hi, 0")
    for i in range(4):
        a(f"ds_write_b32 v{120+i}, v{YP+16+i}")
    a("s_mov_b64 exec, -1")
    a("s_waitcnt lgkmcnt(0)")

def y_addr(a):
    for i in range(4):
        a(f"v_xor_b32 v{120+i}, {4*i}, v{vYE}")
        a(f"v_add_u32 v{120+i}, s98, v{120+i}")

def y_check(a):
    M = [4, 6, 8, 10, 12]
    for i in range(4):
        a(f"s_mov_b64 s[{M[i]}:{M[i]+1}], -1")
    a("s_mov_b32 s12, -1")
    a("s_mov_b32 s13, 0")
    a("s_mov_b32 s92, 0x20000")
    if opt("ypre", "0") == "1":
        a(f"s_cmp_ge_u32 s2, {opt('late', '192')}")
        a("s_cbranch_scc1 yc_late")
        a("s_waitcnt vmcnt(1)")
        a("s_branch yc_chk")
        a.label("yc_late")
    a("s_waitcnt vmcnt(0)")
    a("s_branch yc_load")
    a.label("yc_loop")
    a("s_waitcnt vmcnt(0)")
    a.label("yc_chk")
    for i in range(5):
        r = YP + 4 * i
        a(f"s_mov_b64 exec, s[{M[i]}:{M[i]+1}]")
        a(f"v_max3_u32 v238, v{r}, v{r+1}, v{r+2}")
        a(f"v_max_u32 v238, v238, v{r+3}")
        a(f"v_cmp_eq_u32 s[{M[i]}:{M[i]+1}], -1, v238")
    a("s_or_b64 s[14:15], s[4:5], s[6:7]")
    a("s_or_b64 s[14:15], s[14:15], s[8:9]")
    a("s_or_b64 s[14:15], s[14:15], s[10:11]")
    a("s_or_b64 s[14:15], s[14:15], s[12:13]")
    a("s_cbranch_scc0 yc_done")
    a("s_sub_u32 s92, s92, 1")
    a("s_cbranch_scc1 yc_done")
    if int(opt("ysleep", "2")): a(f"s_sleep {opt('ysleep','2')}")
    a.label("yc_load")
    for i in range(5):
        a(f"s_mov_b64 exec, s[{M[i]}:{M[i]+1}]")
        a(f"s_cbranch_execz yc_skip{i}")
        a(y_ld(i))
        a.label(f"yc_skip{i}")
    a("s_branch yc_loop")
    a.label("yc_done")
    a("s_mov_b64 exec, -1")

def p2_rest(a, stflag):
    for b in range(2):
        for e in range(9):
            a(f"ds_read_b32 v{YW + 9*b + e}, v{vYR} offset:{Y_LDS + YBR*b + YR*e}")
    a.label("p2_body")
    def unp(b, e):
        r = YW + 9 * b + e; y = (YA if b == 0 else YB) + 2 * e
        return [f"v_lshlrev_b32 v{y}, 16, v{r}", f"v_and_b32 v{y+1}, 0xffff0000, v{r}"]
    for e in range(9):
        a(f"s_waitcnt lgkmcnt({min(15, 17 - e)})")
        for s_ in unp(0, e): a(s_)
        a(f"v_pk_mul_f32 {pr(G+2*e)}, {pr(Z+2*e)}, {pr(YA+2*e)}")
    def post(Y):
        for e in range(9):
            a(f"v_pk_fma_f32 {pr(Z+2*e)}, {pr(G+2*e)}, {pr(RS)}, {pr(Z+2*e)}")
        for e in range(9):
            a(f"v_pk_fma_f32 {pr(Z+2*e)}, {pr(Y+2*e)}, {pr(ND)}, {pr(Z+2*e)} neg_lo:[0,1,0] neg_hi:[0,1,0]")
    qstamp(a, 0, "2")
    post(YA)
    qstamp(a, 1, "2")
    a("s_waitcnt lgkmcnt(0)")
    for layer, Y in ((2, YB), (3, YA), (4, YB)):
        p2_sums(a)
        if layer == 3: qstamp(a, 3, "2")
        fill = []
        for e in range(9):
            if layer == 2: fill += unp(1, e)
            fill.append(f"v_pk_mul_f32 {pr(G+2*e)}, {pr(Z+2*e)}, {pr(Y+2*e)}")
        if layer == 4:
            fill += [f"v_pk_add_f32 {pr(Z+2*e)}, {pr(Z+2*e)}, {pr(C0)}" for e in range(9)]
        p2_chain(a, fill)
        a("s_nop 0")
        if layer == 3: qstamp(a, 4, "2")
        post(Y)
        qstamp(a, {2: 2, 3: 5, 4: 6}[layer], "2")
    for row in range(2):
        for q in range(4):
            a(f"v_cvt_pk_bf16_f32 v{XR+4*row+q}, v{Z+4*q+row}, v{Z+4*q+2+row}")
    a(f"v_cvt_pk_bf16_f32 v{XR+8}, v{Z+16}, v{Z+17}")
    if opt("dry2", "0") == "1": a("s_cbranch_execz p2_dry_back")
    a(f"buffer_store_dwordx4 {vr(XR)}, v{vL16}, {sq(SO)}, s{sXO} offen {stflag}")
    a(f"buffer_store_dwordx4 {vr(XR+4)}, v{vL16}, {sq(SO)}, s{sXO} offen offset:{ROWB} {stflag}")
    a(f"buffer_store_short v{XR+8}, v{vL2}, {sq(SO)}, s{sXO} offen offset:1024 {opt('ost2', stflag)}")
    a(f"buffer_store_short_d16_hi v{XR+8}, v{vL2}, {sq(SO)}, s{sXO} offen offset:{1024+ROWB} {opt('ost2', stflag)}")

def signal(a, off_s, rep=1):
    if rep > 1: a(f"v_lshl_add_u32 v238, v{vLANE}, 15, s{off_s}")
    else: a(f"v_mov_b32 v238, s{off_s}")
    a(f"v_mov_b32 v239, s{sTAG}")
    a(f"s_mov_b64 exec, {(1 << rep) - 1}")
    a(f"buffer_store_dword v239, v238, {sq(SF)}, 0 offen sc1")
    a("s_mov_b64 exec, -1")

def poll(a, tag, vaddr, all64):
    a("s_mov_b32 s92, 0x20000")
    if not all64: a("s_mov_b32 exec_hi, 0")
    if opt("pp", "0") == "1": a(f"s_branch {tag}_chk")
    a.label(f"{tag}_poll")
    a(f"buffer_load_dword v238, v{vaddr}, {sq(SF)}, 0 offen sc1")
    a.label(f"{tag}_chk")
    a("s_waitcnt vmcnt(0)")
    a(f"v_cmp_ne_u32 vcc, s{sTAG}, v238")
    a("s_and_b64 exec, exec, vcc")
    a(f"s_cbranch_execz {tag}_ok")
    if int(opt("sleep", "2")): a(f"s_sleep {opt('sleep', '2')}")
    a("s_sub_u32 s92, s92, 1")
    a("s_cmp_lg_u32 s92, 0")
    a(f"s_cbranch_scc1 {tag}_poll")
    a.label(f"{tag}_ok")
    a("s_mov_b64 exec, -1")

def epoch_issue(a):
    a(f"v_mov_b32 v253, {EP}")
    a.vm(f"buffer_load_dword v254, v253, {sq(SF)}, 0 offen sc1", "EP")
def epoch_use(a):
    a.needv("EP")
    a(f"v_readfirstlane_b32 s{sTAG}, v254")
    a(f"s_mul_i32 s{sTAG}, s{sTAG}, 0x9E3779B1")
    a(f"s_add_u32 s{sTAG}, s{sTAG}, 0x7F4A7C15")

def elect_and_signal(a, n, skip):
    a(f"v_mov_b32 v238, {LDS_CTR}")
    a("v_mov_b32 v239, 1")
    a(f"s_lshl_b32 s90, s{sFI}, 6")
    a("s_waitcnt vmcnt(0)")
    a("s_mov_b64 exec, 1")
    a("ds_add_rtn_u32 v253, v238, v239")
    a("s_waitcnt lgkmcnt(0)")
    a("v_readfirstlane_b32 s3, v253")
    a("s_mov_b64 exec, -1")
    a(f"s_cmp_eq_u32 s3, {n-1}")
    a(f"s_cbranch_scc0 {skip}")
    signal(a, 90)
    stamp(a, 4)
    a.label(skip)

def kernel(name, body, vgpr, accum):
    return f""".text
.globl {name}
.p2align 8
.type {name},@function
{name}:
{body}{name}_end:
    s_endpgm
.section .rodata,"a"
.p2align 6
.amdhsa_kernel {name}
  .amdhsa_next_free_vgpr {vgpr}
  .amdhsa_next_free_sgpr 102
  .amdhsa_accum_offset {accum}
  .amdhsa_group_segment_fixed_size 0
  .amdhsa_kernarg_size 120
  .amdhsa_user_sgpr_count 2
  .amdhsa_user_sgpr_kernarg_segment_ptr 1
  .amdhsa_system_sgpr_workgroup_id_x 1
.end_amdhsa_kernel
"""
def header(launches):
    hdr = [l for l in open(REF).read().split("\n") if l.startswith(";") and "@launch" not in l]
    return "\n".join(hdr) + "\n" + "\n".join(launches) + '\n.amdgcn_target "amdgcn-amd-amdhsa--gfx950"\n'

def flow_split(a, hdma5, srds0, common_srds, caddr, elect, hl):
    p0_addr(a)
    a(f"s_cmp_eq_u32 s{sT2}, 0")
    a("s_cbranch_scc0 t2_path")
    a("s_waitcnt lgkmcnt(0)")
    stamp(a, 1)
    srds0(a)
    p0_issue(a, opt("p0ld", "nt"))
    srd(a, SH, 10, 11, TENS)
    common_srds(a)
    epoch_issue(a)
    stamp(a, 2)
    p1_prep_a(a)
    p0_compute(a, opt("ust", "sc1"))
    a("s_barrier")
    hdma5(a)
    stamp(a, 3)
    caddr(a)
    epoch_use(a)
    a("s_waitcnt lgkmcnt(0)")
    p1_prep_b(a)
    elect(a, 5, "t1_nosig", 1, 0, 0)
    a("s_waitcnt vmcnt(1)")
    a("s_branch t1_h")
    a.label("t1_nosig")
    a("s_waitcnt vmcnt(0)")
    a.label("t1_h")
    a.reset()
    stamp(a, 18)
    h_copies(a, vC1, [0, 1], vC2)
    p1_aload(a, range(4))
    stamp(a, 5)
    poll(a, "e1", vP1, True)
    stamp(a, 6)
    a(f"s_mov_b32 m0, s{sUB}")
    a(f"s_add_u32 s3, s90, {2*4096}")
    for q in (3, 2):
        a(f"buffer_load_dwordx4 v{vL16}, {sq(SU)}, s90 offen offset:{1024*q} sc1 lds")
    a(f"s_add_u32 s92, s{sUB}, {2*US}")
    a("s_mov_b32 m0, s92")
    a("s_nop 0")
    for q in (3, 2):
        a(f"buffer_load_dwordx4 v{vL16}, {sq(SU)}, s3 offen offset:{1024*q} sc1 lds")
    a.reset()
    h_copies(a, vC1, [2, 3])
    a("s_waitcnt vmcnt(0)")
    a("s_branch join")
    a.label("t2_path")
    a.reset()
    a(f"v_mov_b32 v56, {LDS_CTR}")
    a("v_mov_b32 v58, 0")
    a("v_mov_b32 v59, 0")
    a("ds_write_b64 v56, v[58:59]")
    p1_prep_a(a)
    a("s_waitcnt lgkmcnt(0)")
    srds0(a)
    srd(a, SH, 10, 11, TENS)
    common_srds(a)
    epoch_issue(a)
    a("s_waitcnt lgkmcnt(0)")
    epoch_use(a)
    a("s_barrier")
    hfirst = opt("hfirst", "0") == "1"
    if hfirst: hdma5(a)
    p0_issue(a, opt("p0ld", "nt"))
    if not hfirst: hdma5(a)
    stamp(a, 2)
    if hfirst:
        caddr(a)
        a.needv("h")
        stamp(a, 18)
        sv = (a.vn, a.vd, a.vt); a.reset()
        h_copies(a, vC1, [0, 1], vC2); p1_aload(a, range(4)); h_copies(a, vC1, [2, 3])
        a.vn, a.vd, a.vt = sv
    p0_compute(a, opt("ust", "sc1"), "2")
    stamp(a, 3)
    caddr(a)
    p1_prep_b(a)
    if not hfirst:
        a.needv("h")
        stamp(a, 18)
        a("s_waitcnt lgkmcnt(0)")
        a.reset()
        h_copies(a, vC1, [0, 1], vC2); p1_aload(a, range(4)); h_copies(a, vC1, [2, 3])
    elect(a, 0, "join", 1, 4, F1B)
    a.label("join")
    a("s_waitcnt lgkmcnt(0)")
    a("s_barrier")
    a.reset()
    for r in range(FE0, FE0 + 4): a(f"v_mov_b32 v{r}, -1")
    h_copies(a, vC3, [0], vC4)

def flow_unsplit(a, hdma5, srds0, common_srds, caddr, elect, hl):
    a(f"s_cmp_eq_u32 s{sW}, 3")
    a("s_cbranch_scc1 w3_path")
    p0_addr(a)
    a("s_waitcnt lgkmcnt(0)")
    stamp(a, 1)
    srds0(a)
    p0_issue(a, opt("p0ld", "nt"))
    srd(a, SH, 10, 11, TENS)
    common_srds(a)
    epoch_issue(a)
    hpos = opt("hpos", "late")
    if hpos == "early":
        a("s_barrier")
        hdma5(a)
    stamp(a, 2)
    if opt("arr", "0") == "1":
        a("s_waitcnt vmcnt(14)"); stamp(a, 19); a("s_waitcnt vmcnt(1)"); stamp(a, 15)
    p1_prep_a(a)
    p0_compute(a, opt("ust", "sc1"))
    stamp(a, 16)
    if hpos == "late":
        hdma5(a)
        a("s_barrier")
    stamp(a, 3)
    caddr(a)
    epoch_use(a)
    a("s_waitcnt lgkmcnt(0)")
    p1_prep_b(a)
    if hpos == "late":
        elect(a, 4 if opt("hdef", "0") == "1" else 5, "nosig", 2)
        a("s_waitcnt vmcnt(1)")
        a("s_branch have_h")
        a.label("nosig")
        a("s_waitcnt vmcnt(0)")
        a("s_branch have_h")
    else:
        a.reset()
        h_copies(a, vC1, [0, 1], vC2)
        p1_aload(a, range(4))
        elect(a, 0, "part2", 2)
        a("s_branch part2")
    a.reset()
    a.label("w3_path")
    if opt("il", "bar1").startswith("bar"):
        for k in range(int(opt("il", "bar1")[3:])): a("s_barrier")
    if opt("dry0", "0") == "1":
        a("s_mov_b64 exec, 0")
        a("s_branch p0_body")
        a.label("p0_dry_back")
        a("s_mov_b64 exec, -1")
    caddr(a)
    a(f"v_mov_b32 v56, {LDS_CTR}")
    a(f"ds_write_b32 v56, v{ZR}")
    p1_prep_a(a)
    a("s_waitcnt lgkmcnt(0)")
    srd(a, SH, 10, 11, TENS)
    common_srds(a)
    ntw = int(opt("tw", "0"))
    if ntw:
        a(f"s_cmp_ge_u32 s2, {ntw}")
        a("s_cbranch_scc1 no_tw")
        srd(a, SX, 14, 15, TENS)
        a(f"v_mul_u32_u24 v57, 0x12000, v{vLANE}")
        for sr in (SU, SY):
            a(f"buffer_load_dword v58, v57, {sq(sr)}, 0 offen nt")
        a(f"v_mul_u32_u24 v57, 0x9000, v{vLANE}")
        for sr in (SX, SO, SH):
            a(f"buffer_load_dword v58, v57, {sq(sr)}, 0 offen nt")
        a.label("no_tw")
    epoch_issue(a)
    a("s_waitcnt lgkmcnt(0)")
    p1_prep_b(a)
    epoch_use(a)
    a("s_waitcnt lgkmcnt(0)")
    a("s_barrier")
    hdma5(a)
    a("s_waitcnt vmcnt(0)")
    a.label("have_h")
    a.reset()
    stamp(a, 18)
    if opt("pp", "0") == "1":
        a(f"buffer_load_dword v238, v{vP1}, {sq(SF)}, 0 offen sc1")
    h_copies(a, vC1, [0, 1], vC2)
    p1_aload(a, range(4))
    a.label("part2")
    a.reset()
    pre = opt("pre", "0") == "1"
    if pre:
        h_copies(a, vC1, [2, 3])
        if opt("ein", "0") == "1" or opt("pre2", "0") == "1": p1_aload(a, range(4, 8))
    stamp(a, 5)
    if opt("clr", "fill") == "w23":
        a(f"s_cmp_lt_u32 s{sW}, 2")
        a("s_cbranch_scc1 do_poll")
        for r in range(FE0, FE0 + 4): a(f"v_mov_b32 v{r}, -1")
        a("s_sub_u32 s92, s88, 8192")
        for so in ("s92", "s88"):
            for q in range(4):
                a(f"buffer_store_dwordx4 {vr(FE0)}, v{vL16}, {sq(SY)}, {so} offen offset:{1024*q} sc1")
        a(f"buffer_store_dwordx4 {vr(FE0)}, v{vL16}, {sq(SY)}, s99 offen sc1")
        a("s_branch e1_ok")
        a.label("do_poll")
    poll(a, "e1", vP1, True)
    a("s_barrier")
    a.reset()
    stamp(a, 6)
    a(f"s_mov_b32 m0, s{sUB}")
    a("s_nop 0")
    hdef = opt("hdef", "0") == "1"
    for q in (3, 2):
        a.vm(f"buffer_load_dwordx4 v{vL16}, {sq(SU)}, s90 offen offset:{1024*q} {opt('uld', 'sc1')} lds", f"U{q}")
    if hdef:
        a(f"s_add_u32 s92, s{sHB}, {3*CS + 32}")
        a("s_mov_b32 m0, s92")
        a("s_nop 0")
        for q in (2, 3):
            a.vm(f"buffer_load_dwordx4 v{vL16}, {sq(SH)}, s98 offen offset:{1024*q} {hl} lds", "h2")
        a(f"s_mov_b32 m0, s{sUB}")
        a("s_nop 0")
    for q in (1, 0):
        a.vm(f"buffer_load_dwordx4 v{vL16}, {sq(SU)}, s90 offen offset:{1024*q} {opt('uld', 'sc1')} lds", f"U{q}")
    a("s_mov_b32 m0, s85")
    a("s_nop 0")
    a.vm(f"buffer_load_dwordx4 v{vL16}, {sq(SU)}, s91 offen {opt('uld', 'sc1')} lds", "UE")
    for r in range(FE0, FE0 + 4): a(f"v_mov_b32 v{r}, -1")
    if opt("clr", "fill") == "pre":
        for q in range(4):
            a.vm(f"buffer_store_dwordx4 {vr(FE0)}, v{vL16}, {sq(SY)}, s88 offen offset:{1024*q} sc1")
        a("s_mov_b32 exec_hi, 0")
        a.vm(f"buffer_store_dwordx4 {vr(FE0)}, v{vL16}, {sq(SY)}, s99 offen sc1")
        a("s_mov_b64 exec, -1")
    if opt("xpre", "0") == "1":
        a.vm(f"buffer_load_dwordx4 {vr(XR)}, v{vL16}, {sq(SX)}, s{sXO} offen nt")
        a.vm(f"buffer_load_dwordx4 {vr(XR+4)}, v{vL16}, {sq(SX)}, s{sXO} offen offset:{ROWB} nt")
        a.vm(f"buffer_load_ushort v{XR+8}, v{vL2}, {sq(SX)}, s{sXO} offen offset:1024 nt")
        a.vm(f"buffer_load_ushort v{XR+9}, v{vL2}, {sq(SX)}, s{sXO} offen offset:{1024+ROWB} nt", "X")
    if not pre and not hdef:
        h_copies(a, vC1, [2, 3])
        if opt("ein", "0") == "1": p1_aload(a, range(4, 8))
    if opt("ein", "0") != "1": h_copies(a, vC3, [0], vC4)

def gen_fused():
    K = NAME + "_kernel"
    sent = opt("x2", "flag") == "sent"
    NEL = 4 if sent else 3
    out = header([f"; @launch grid=(256,1,1) block=(256,1,1) lds={LDS_TOT + int(opt('ldsx', '0'))}"])
    a = A()
    hl = opt("hld", "")
    stamp(a, 0)
    if int(opt("pad", "0")):
        a("s_memrealtime s[94:95]"); a("s_waitcnt lgkmcnt(0)"); a("v_mov_b32 v255, s94")
    prologue(a, K + "_end")
    def common_srds(a):
        srd(a, SF, 20, 21, F_BYTES, F_OFF)
        srd(a, SU, 20, 21, U_BYTES, U_OFF)
        srd(a, SY, 20, 21, Y_BYTES, YM_OFF)
        srd(a, SO, 16, 17, TENS)
        a(f"s_lshr_b32 s90, s{sCH}, 1")
        a("s_lshl_b32 s90, s90, 2")
        a(f"s_lshr_b32 s91, s{sCE}, 1")
        a("s_lshl_b32 s91, s91, 2")
        a(f"s_load_dword s{sDM}, s[12:13], s90")
        a(f"s_load_dword s{sDE}, s[12:13], s91")
    tail = []
    def caddr(a):
        for r in range(ZR, ZR + 4): a(f"v_mov_b32 v{r}, 0")
        a(f"v_add_u32 v{vC1}, s{sHB}, v{vL16}")
        a(f"v_mov_b32 v{vC2}, s{sHB}")
        a(f"v_mov_b32 v{vC4}, {4*HB}")
    def hsec(a):
        a.reset()
        h_copies(a, vC1, [0, 1], vC2)
        p1_aload(a, range(4))
        h_copies(a, vC1, [2, 3])
        p1_aload(a, range(4, 8))
    def elect(a, wait, nxt, last, coff=0, foff=0):
        a(f"v_mov_b32 v238, {LDS_CTR + coff}")
        a("v_mov_b32 v239, 1")
        a(f"s_lshl_b32 s92, s{sFI}, 7")
        if foff: a(f"s_add_u32 s92, s92, {foff}")
        a(f"s_waitcnt vmcnt({wait})")
        a("s_mov_b64 exec, 1")
        a("ds_add_rtn_u32 v253, v238, v239")
        a("s_waitcnt lgkmcnt(0)")
        a("v_readfirstlane_b32 s3, v253")
        a("s_mov_b64 exec, -1")
        a(f"s_cmp_eq_u32 s3, {last}")
        a(f"s_cbranch_scc0 {nxt}")
        signal(a, 92, int(opt("rep", "1")))
        stamp(a, 4)
    def hdma5(a):
        if opt("hdef", "0") == "1":
            a(f"s_lshl_b32 s98, s{sCH}, 12")
            a(f"s_add_u32 s92, s{sHB}, {3*CS + 32}")
            a("s_mov_b32 m0, s92")
            a("s_nop 0")
            for q in range(2):
                a.vm(f"buffer_load_dwordx4 v{vL16}, {sq(SH)}, s98 offen offset:{1024*q} {hl} lds")
            a("s_mov_b64 exec, 1")
            a.vm(f"buffer_load_dwordx4 v{vL16}, {sq(SH)}, s98 offen offset:2048 {hl} lds")
            a("s_mov_b64 exec, -1")
        else:
            h_dma(a, sCH, sHB, 0, hl, None)
        a(f"s_lshl_b32 s3, s{sCE}, 12")
        a(f"s_lshl_b32 s92, s{sW}, 10")
        a("s_add_u32 s3, s3, s92")
        a(f"s_add_u32 s92, s92, {4*HB + 3*CS + 32}")
        a("s_mov_b32 m0, s92")
        a("s_nop 0")
        a.vm(f"buffer_load_dwordx4 v{vL16}, {sq(SH)}, s3 offen {hl} lds", "h")
    def srds0(a):
        srd(a, SK, 4, 5, TENS); srd(a, SV, 6, 7, TENS); srd(a, SSH, 8, 9, D * 8)
    (flow_split if SPLIT() else flow_unsplit)(a, hdma5, srds0, common_srds, caddr, elect, hl)
    p1_mfma(a, opt("yst", "sc1"), tail)
    p2_first(a)
    y_addr(a)
    if opt("dry2", "0") == "1":
        a("s_mov_b64 exec, 0")
        a("s_branch p2_body")
        a.label("p2_dry_back")
        a("s_mov_b64 exec, -1")
    a(f"s_or_b32 s3, s2, s{sW}")
    a("s_cmp_eq_u32 s3, 0")
    a("s_cbranch_scc0 no_epoch")
    a(f"s_mov_b32 s3, {EP}")
    signal(a, 3)
    a.label("no_epoch")
    stamp(a, 10)
    y_check(a)
    stamp(a, 11)
    y_write(a)
    a("s_barrier")
    stamp(a, 12)
    if opt("q", "0") == "2": stamp(a, 24, True)
    p2_rest(a, opt("ost", "sc1"))
    qstamp(a, 7, "2"); qflush(a, "2")
    if opt("q2", "0") == "1": stamp(a, 27, True)
    stamp(a, 13)
    if STAMPS: a("s_waitcnt vmcnt(0)")
    stamp(a, 14)
    if int(opt("pad", "0")):
        if opt("gpad", "0") == "1":
            srd(a, 96, 18, 19, 256)
            a("v_mov_b32 v13, 0")
            a("buffer_load_dword v12, v13, s[96:99], 0 offen sc1")
            a("s_waitcnt vmcnt(0)")
            a("v_readfirstlane_b32 s100, v12")
            a("s_not_b32 s100, s100")
        a("v_readfirstlane_b32 s100, v255")
        a.label("padl")
        a("s_memrealtime s[98:99]")
        a("s_waitcnt lgkmcnt(0)")
        a("s_sub_u32 s98, s98, s100")
        a(f"s_cmp_lt_u32 s98, {opt('pad', '0')}")
        a("s_cbranch_scc1 padl")
    stamp_flush(a)
    a("s_endpgm")
    for f in tail: f(a)
    out += kernel(K, a.text(), 512, 256)
    return out

if __name__ == "__main__":
    path = sys.argv[1]
    STAMPS = "--stamps" in sys.argv
    for x in sys.argv[2:]:
        if "=" in x:
            k_, v_ = x.split("=", 1); OPT[k_] = v_
    open(path, "w").write(gen_fused())
```

```python
import sys
NAME = "interleave_layers__ssm_conv_h3__ssm_conv_h3__prompt"
REF = f"cdna_kernels/{NAME}.s.ref"
OPT = {}
STAMPS = False
def opt(k, d): return OPT.get(k, d)
def T64(): return opt("tile", "32") == "64"
def SPLIT(): return opt("split", "0") == "1"

S, D = 2048, 576
ROWB = D * 2
TENS = S * ROWB
import os
PADS = [int(x) for x in os.environ.get("PADS", "128,384,128").split(",")]
UG, YG, YEG = 4096 + PADS[0], 16384 + PADS[1], 8192 + PADS[2]
U_OFF = 0;            U_BYTES = 2 * D * UG
YM_OFF = U_BYTES;     YM_BYTES = 256 * YG
YE_OFF = YM_BYTES;    YE_BYTES = 64 * YEG
Y_BYTES = YM_BYTES + YE_BYTES
F_OFF = YM_OFF + Y_BYTES
F2 = 0; F2A = 131072; EP = 163840; FD = 196608; F1B = 0; F_BYTES = FD + 131072
ST_OFF = 0xA00000
assert YM_OFF + YM_BYTES + YE_BYTES + 400000 < ST_OFF
CS = 4160; HB = 4 * CS
US = 4608; U_BASE = 5 * HB; UE = U_BASE + 4 * US
LDS_CTR = U_BASE + 5 * US
Y_LDS = 0; YR = 1028; YBR = 9 * YR + 12
T_LDS = LDS_CTR + 64; TR = 144
E_LDS = T_LDS + 128 * TR
R_LDS = E_LDS + 2560
LDS_TOT = R_LDS + 16384

class A:
    def __init__(self):
        self.l = []; self.reset()
    def reset(self):
        self.ln = 0; self.ld = 0; self.lt = {}
        self.vn = 0; self.vd = 0; self.vt = {}
    def __call__(self, s): self.l.append("    " + s)
    def label(self, s): self.l.append(s + ":")
    def text(self): return "\n".join(self.l) + "\n"
    def lds(self, s, tag=None):
        self(s); self.ln += 1
        if tag is not None: self.lt[tag] = self.ln
    def vm(self, s, tag=None):
        self(s); self.vn += 1
        if tag is not None: self.vt[tag] = self.vn
    def need(self, *tags):
        k = max([self.lt[t] for t in tags if t in self.lt] + [0])
        if k > self.ld:
            n = min(15, self.ln - k); self(f"s_waitcnt lgkmcnt({n})"); self.ld = self.ln - n
    def needv(self, *tags):
        k = max([self.vt[t] for t in tags] + [0])
        if k > self.vd:
            n = min(63, self.vn - k); self(f"s_waitcnt vmcnt({n})"); self.vd = self.vn - n

def srd(a, d, lo, hi, size, add=None):
    if add:
        a(f"s_add_u32 s{d}, s{lo}, {add}")
        a(f"s_addc_u32 s{d+1}, s{hi}, 0")
    else:
        a(f"s_mov_b32 s{d}, s{lo}")
        a(f"s_mov_b32 s{d+1}, s{hi}")
    a(f"s_mov_b32 s{d+2}, {size}")
    a(f"s_mov_b32 s{d+3}, 0x00020000")

SK, SV, SSH, SH, SU, SY, SX, SO, SF = 24, 28, 32, 36, 40, 44, 48, 52, 56
sX, sQ, sB, sP, sW = 60, 61, 62, 63, 64
sB0, sCF, sRB = 69, 70, 71
sCH, sCE, sJE, sHB, sUB, sDM, sDE, sFI, sHF, sTAG = 72, 73, 74, 75, 76, 77, 78, 79, 82, 83
sYM, sYE, sXO, sT2 = 80, 81, 84, 100
vLANE, vL16, vL2 = 250, 251, 252

def stamp(a, idx, cyc=False):
    if opt("padat", "x") == str(idx) and not cyc:
        a("s_memrealtime s[94:95]"); a("s_waitcnt lgkmcnt(0)"); a("v_mov_b32 v255, s94")
    if not STAMPS: return
    a(("s_memtime" if cyc else "s_memrealtime") + " s[94:95]")
    a("s_waitcnt lgkmcnt(0)")
    a(f"v_writelane_b32 v255, s94, {idx}")
def qstamp(a, i, mode="1"):
    if STAMPS and opt("q", "0") == mode: a(f"s_memtime s[{4+2*i}:{5+2*i}]")
def qflush(a, mode="1"):
    if STAMPS and opt("q", "0") == mode:
        a("s_waitcnt lgkmcnt(0)")
        for i in range(8): a(f"v_writelane_b32 v255, s{4+2*i}, {20+i if i < 4 else 24+i}")
def stamp_flush(a):
    if not STAMPS: return
    srd(a, 96, 20, 21, 0x100000, ST_OFF)
    a("s_lshl_b32 s94, s2, 2")
    a(f"s_add_u32 s94, s94, s{sW}")
    a("s_lshl_b32 s94, s94, 7")
    a(f"v_lshlrev_b32 v254, 2, v{vLANE}")
    a("s_mov_b32 exec_hi, 0")
    a("buffer_store_dword v255, v254, s[96:99], s94 offen sc1")

def vr(r, n=4): return f"v[{r}:{r+n-1}]"
def ar(r, n=4): return f"a[{r}:{r+n-1}]"
def pr(r): return f"v[{r}:{r+1}]"
def sq(r): return f"s[{r}:{r+3}]"
DPP = "row_mask:0xf bank_mask:0xf"

def prologue(a, end):
    a("s_cmp_ge_u32 s2, 256")
    a(f"s_cbranch_scc1 {end}")
    a(f"s_lshr_b32 s{sB0}, s2, 7")
    a(f"s_mul_i32 s3, s{sB0}, 48")
    a("s_add_u32 s22, s0, s3")
    a("s_addc_u32 s23, s1, 0")
    a("s_load_dwordx4 s[4:7], s[22:23], 8")
    a("s_load_dwordx2 s[8:9], s[22:23], 24")
    a(f"s_and_b32 s{sX}, s2, 7")
    a(f"s_lshr_b32 s{sQ}, s2, 3")
    a(f"s_lshr_b32 s{sB}, s{sX}, 2")
    a(f"s_mul_i32 s3, s{sB}, 48")
    a("s_add_u32 s22, s0, s3")
    a("s_addc_u32 s23, s1, 0")
    a("s_load_dwordx2 s[10:11], s[22:23], 32")
    a("s_load_dwordx2 s[12:13], s[22:23], 40")
    a("s_load_dwordx2 s[14:15], s[0:1], 0")
    a("s_load_dwordx4 s[16:19], s[0:1], 96")
    a("s_load_dwordx2 s[20:21], s[0:1], 112")
    npf = int(opt("cpf", "32"))
    if npf:
        K = NAME + "_kernel"
        spread_ = opt("cpfs", "1") == "1"
        if not spread_:
            a(f"s_cmp_ge_u32 s2, {npf}")
            a("s_cbranch_scc1 no_cpf")
        a("s_getpc_b64 s[96:97]")
        a.label("cpf_base")
        if spread_:
            a("s_lshr_b32 s3, s2, 3")
            a("s_lshl_b32 s3, s3, 10")
            a("v_and_b32 v12, 7, v0")
            a("v_lshl_add_u32 v12, v12, 7, s3")
        else:
            a("v_lshlrev_b32 v12, 7, v0")
        a(f"v_min_u32 v12, {K}_end - cpf_base, v12")
        a("v_mov_b32 v13, s97")
        a("v_add_co_u32 v12, vcc, s96, v12")
        a("v_cmp_gt_u32 s[24:25], 8, v0" if spread_ else "s_nop 0")
        a("s_nop 0")
        a("v_addc_co_u32 v13, vcc, 0, v13, vcc")
        if spread_:
            a("s_and_saveexec_b64 s[26:27], s[24:25]")
            a("s_cbranch_execz cpf_skip")
        a("global_load_dword v254, v[12:13], off")
        if spread_:
            a.label("cpf_skip")
            a("s_mov_b64 exec, s[26:27]")
        a.label("no_cpf")
    a("v_lshrrev_b32 v1, 6, v0")
    a(f"v_and_b32 v{vLANE}, 63, v0")
    a(f"v_readfirstlane_b32 s{sW}, v1")
    a(f"v_lshlrev_b32 v{vL16}, 4, v{vLANE}")
    a(f"v_lshlrev_b32 v{vL2}, 1, v{vLANE}")
    if SPLIT() or T64():
        a(f"s_and_b32 s{sCF}, s{sQ}, 3")
        a(f"s_bfe_u32 s{sRB}, s{sQ}, 0x20002")
        a(f"s_lshl_b32 s3, s{sX}, 2")
        a(f"s_add_u32 s{sRB}, s{sRB}, s3")
        a(f"s_lshl_b32 s{sFI}, s{sB0}, 7")
        a(f"s_lshl_b32 s3, s{sCF}, 5")
        a(f"s_add_u32 s{sFI}, s{sFI}, s3")
        a(f"s_add_u32 s{sFI}, s{sFI}, s{sRB}")
        a(f"s_lshr_b32 s{sT2}, s{sW}, 1")
    else:
        a(f"s_and_b32 s{sCF}, s{sQ}, 1")
        a(f"s_bfe_u32 s{sRB}, s{sQ}, 0x30001")
        a(f"s_lshl_b32 s3, s{sX}, 3")
        a(f"s_add_u32 s{sRB}, s{sRB}, s3")
        a(f"s_lshl_b32 s{sFI}, s{sB0}, 7")
        a(f"s_lshl_b32 s3, s{sCF}, 6")
        a(f"s_add_u32 s{sFI}, s{sFI}, s3")
        a(f"s_add_u32 s{sFI}, s{sFI}, s{sRB}")
    a(f"s_and_b32 s{sP}, s{sX}, 3")
    a(f"s_lshl_b32 s{sP}, s{sP}, 4")
    a(f"s_lshr_b32 s3, s{sQ}, 1")
    a(f"s_add_u32 s{sP}, s{sP}, s3")
    a(f"s_and_b32 s{sHF}, s{sQ}, 1")
    a(f"s_lshl_b32 s{sCH}, s{sP}, 3")
    a(f"s_lshl_b32 s3, s{sHF}, 2")
    a(f"s_add_u32 s{sCH}, s{sCH}, s3")
    a(f"s_add_u32 s{sCH}, s{sCH}, s{sW}")
    a(f"s_add_u32 s{sCE}, s{sP}, 512")
    a(f"s_cmp_eq_u32 s{sHF}, 0")
    a(f"s_cselect_b32 s{sJE}, 0x7520, 0x6431") if False else None
    a("s_mov_b32 s3, 0x6431")
    a(f"s_cselect_b32 s{sJE}, 0x7520, s3")
    a(f"s_lshl_b32 s3, s{sW}, 2")
    a(f"s_lshr_b32 s{sJE}, s{sJE}, s3")
    a(f"s_and_b32 s{sJE}, s{sJE}, 7")
    a(f"s_mul_i32 s{sHB}, s{sW}, {HB}")
    a(f"s_mul_i32 s{sUB}, s{sW}, {US}")
    a(f"s_add_u32 s{sUB}, s{sUB}, {U_BASE}")

def kraw(t): return 8 + 4 * t
def hraw(j): return 40 + 4 * j
def vraw(t): return 52 + 4 * t
vA1, vA2, vA3, vA4, vA7 = 242, 243, 244, 245, 246
def EXH(): return 0xf if SPLIT() else 0xffff
def p0_addr(a):
    sh, nm, rows = (3, 16, 64) if T64() else (2, 32, 32)
    a(f"v_lshrrev_b32 v247, {sh}, v{vLANE}")
    a(f"s_mul_i32 s68, s{sW}, {48 >> sh}")
    a("v_add_u32 v247, s68, v247")
    a(f"v_and_b32 v248, {(1 << sh) - 1}, v{vLANE}")
    a(f"s_mul_i32 s66, s{sCF}, {nm}")
    a(f"s_mul_i32 s67, s{sCF}, {nm // 8}")
    a(f"s_add_u32 s67, s67, {64 - nm}")
    a(f"v_cmp_gt_u32 vcc, {nm}, v247")
    a("v_add_u32 v249, s67, v247")
    a("v_add_u32 v247, s66, v247")
    a("v_cndmask_b32 v247, v249, v247, vcc")
    a(f"s_mul_i32 s65, s{sRB}, {rows*ROWB}")
    a(f"v_mul_u32_u24 v{vA1}, {8*ROWB}, v248")
    a(f"v_lshlrev_b32 v{vA7}, 4, v247")
    a(f"v_add3_u32 v{vA1}, v{vA1}, v{vA7}, s65")
    a(f"v_add_u32 v{vA2}, {4*ROWB}, v{vA1}")
    a(f"v_subrev_u32 v{vA3}, {3*ROWB}, v{vA1}")
    a("v_lshlrev_b32 v248, 4, v248")
    a("v_and_b32 v249, 48, v248")
    a(f"v_lshl_add_u32 v{vA7}, v247, 6, v249")
    a(f"s_mul_i32 s65, s{sB0}, {576*UG}")
    a("s_add_u32 s65, s65, 4080")
    a(f"s_mul_i32 s66, s{sRB}, {2*rows}")
    a("s_sub_u32 s65, s65, s66")
    a(f"v_mul_u32_u24 v{vA4}, {8*UG}, v247")
    a(f"v_sub_u32 v{vA4}, v{vA4}, v248")
    a(f"v_add_u32 v{vA4}, s65, v{vA4}")

def p0_issue(a, fl):
    def row(t): return (f"v{vA1}", t * ROWB) if t < 4 else (f"v{vA2}", (t - 4) * ROWB)
    def ldk(t):
        b, o = row(t); a.vm(f"buffer_load_dwordx4 {vr(kraw(t))}, {b}, {sq(SK)}, 0 offen offset:{o} {fl}", f"K{t}")
    def ldv(t):
        b, o = row(t); a.vm(f"buffer_load_dwordx4 {vr(vraw(t))}, {b}, {sq(SV)}, 0 offen offset:{o} {fl}", f"V{t}")
    if opt("il", "0") == "prio": a("s_setprio 3")
    a(f"s_mov_b32 exec_hi, {EXH()}")
    a.vm(f"buffer_load_dwordx4 v[84:87], v{vA7}, {sq(SSH)}, 0 offen", "W")
    for t in (5, 6, 7): ldk(t)
    HM = 0x01010101 if T64() else 0x11111111
    a(f"s_mov_b32 exec_lo, {HM}")
    a(f"s_mov_b32 exec_hi, {EXH() & HM}")
    for j in range(3):
        a.vm(f"buffer_load_dwordx4 {vr(hraw(j))}, v{vA3}, {sq(SK)}, 0 offen offset:{j*ROWB} {fl}", f"H{j}")
    a("s_mov_b32 exec_lo, -1")
    a(f"s_mov_b32 exec_hi, {EXH()}")
    il = opt("il", "0")
    def step(k):
        if il == "prio": a(f"s_setprio {3 - k}")
        if il.startswith("bar") and k <= int(il[3:]): a("s_barrier")
    step(1)
    for t in range(5):
        ldk(t); ldv(t)
        if t == 1: step(2)
        if t == 3: step(3)
    for t in (5, 6, 7): ldv(t)
    a("s_mov_b64 exec, -1")

def unpack(a, dlo, dhi, src):
    a(f"v_lshlrev_b32 v{dlo}, 16, v{src}")
    a(f"v_and_b32 v{dhi}, 0xffff0000, v{src}")

def p0_compute(a, stflag, sfx=""):
    def W(p, j): return 88 + 8 * p + 2 * j
    def Kf(j, c): return 120 + 8 * (j & 7) + c
    def U(t, c): return 184 + 8 * (t & 3) + c
    OUTS = [hraw(0), hraw(1), hraw(2), kraw(0), kraw(1), vraw(0), vraw(1), 84]
    VT = 216
    HM = 0x01010101 if T64() else 0x11111111
    HD = "row_shr:1" if T64() else "quad_perm:[0,0,1,2]"
    a(f"s_mov_b32 vcc_lo, {HM}")
    a(f"s_mov_b32 vcc_hi, {HM}")
    a("v_mov_b32 v224, 0xffff0000")
    for c in range(1, 8):
        a(f"s_mov_b32 s{3+c}, {UG*c}")
    a.label("p0_body" + sfx)
    a.needv("W")
    for c in range(8):
        p, h = c >> 1, c & 1
        for half in range(2):
            i = 2 * c + half; s_ = i >> 2; qp = f"quad_perm:[{s_},{s_},{s_},{s_}] {DPP}"
            a(f"v_cvt_f32_bf16_dpp v{W(p,2*half)+h}, v{84+(i&3)} {qp}")
            a(f"v_and_b32_dpp v{W(p,2*half+1)+h}, v{84+(i&3)}, v224 {qp}")
    for j in range(3):
        a.needv(f"H{j}")
        for p in range(4):
            a(f"v_cndmask_b32_dpp v{hraw(j)+p}, v{kraw(5+j)+p}, v{hraw(j)+p}, vcc {HD} {DPP}")
        for p in range(4): unpack(a, Kf(j, 2*p), Kf(j, 2*p+1), hraw(j) + p)
    def kun(t):
        for p in range(4): unpack(a, Kf(t+3, 2*p), Kf(t+3, 2*p+1), kraw(t) + p)
    def ksum(t):
        for p in range(4):
            a(f"v_pk_mul_f32 {pr(U(t,2*p))}, {pr(Kf(t,2*p))}, {pr(W(p,3))}")
        for jj in (2, 1, 0):
            for p in range(4):
                a(f"v_pk_fma_f32 {pr(U(t,2*p))}, {pr(Kf(t+3-jj,2*p))}, {pr(W(p,jj))}, {pr(U(t,2*p))}")
    def vmul(t):
        a.needv(f"V{t}")
        if t == 7: stamp(a, 17)
        for p in range(4): unpack(a, VT + 2*p, VT + 2*p + 1, vraw(t) + p)
        for p in range(4):
            a(f"v_pk_mul_f32 {pr(U(t,2*p))}, {pr(U(t,2*p))}, {pr(VT+2*p)}")
    def cvt(t):
        q = (7 - t) // 2
        if t == 7 and opt("dry0", "0") == "1": a("s_cbranch_execz p0_dry_back")
        if t == 7: a(f"s_mov_b32 exec_hi, {EXH()}")
        for c in range(8):
            a(f"v_cvt_pk_bf16_f32 v{OUTS[c]+q}, v{U(t, c)}, v{U(t-1, c)}")
            if t == 7:
                so = "0" if c == 0 else f"s{3+c}"
                a.vm(f"buffer_store_dwordx4 {vr(OUTS[c])}, v{vA4}, {sq(SU)}, {so} offen {stflag}", "UST")
        if t == 7: a("s_mov_b64 exec, -1")
    for t in range(5):
        a.needv(f"K{t}")
        kun(t)
        ksum(t)
        if t <= 2: kun(5 + t)
        if t == 4:
            for tt in (5, 6, 7): ksum(tt)
        vmul(t)
        if t & 1: cvt(t)
    for t in (5, 6, 7):
        vmul(t)
        if t & 1: cvt(t)

ACC, ACCE, FB, AE, FE0, PD, EV = 8, 40, 56, 120, 184, 216, 220
vTW, vTR, vFE, vEW, vER, vRW, vRR, vUD, vP1, vP2, vYM, vYE, vYG, vYR = range(224, 238)
vPB = 254
RED, UD, STG, ES, TRD, YP, XR = 120, 136, 138, 140, 144, 152, 240
TJ = ((0, 2, 5, 7), (1, 3, 4, 6))

def h_dma(a, ch, ldsbase_s, ldsconst, flag, tag):
    a(f"s_lshl_b32 s3, s{ch}, 12")
    if ldsbase_s is not None:
        a(f"s_add_u32 s92, s{ldsbase_s}, {ldsconst + 3*CS + 32}")
        a("s_mov_b32 m0, s92")
    else:
        a(f"s_mov_b32 m0, {ldsconst + 3*CS + 32}")
    a("s_nop 0")
    for q in range(4):
        a.vm(f"buffer_load_dwordx4 v{vL16}, {sq(SH)}, s3 offen offset:{1024*q} {flag} lds", tag)

hc_n = [0]
vC1, vC2, vC3, vC4, ZR = 176, 177, 178, 179, 180
def h_copy_ops(a, vR, qs, head=None):
    hc_n[0] += 1; u = hc_n[0]
    Dq = lambda i: 120 + 8 * i
    ops = []
    def L(c, s_, tag=None): ops.append((c, lambda: a.lds(s_, tag)))
    def V(s_, need=None): ops.append((4, lambda: ((a.need(need) if need else None), a(s_))))
    for i, q in enumerate(qs):
        L(6, f"ds_read_b128 {vr(Dq(i))}, v{vR} offset:{3*CS + 32 + 1024*q}")
        L(4, f"ds_read_b64 {pr(Dq(i)+4)}, v{vR} offset:{3*CS + 48 + 1024*q}", ("HC", u, i))
    if head is not None:
        L(4, f"ds_read_b64 v[138:139], v{head} offset:{3*CS + 32}", ("HH", u))
    for i, q in enumerate(qs):
        d = Dq(i); o = 16 * (i & 1); T0, T1, T2, O4 = 144 + o, 148 + o, 152 + o, 156 + o
        for k in range(4):
            V(f"v_alignbit_b32 v{T0+k}, v{d+k+1}, v{d+k}, 16", ("HC", u, i) if k == 0 else None)
        V(f"v_alignbit_b32 v{O4}, v{d+5}, v{d+4}, 16")
        V(f"v_pk_mov_b32 {pr(T1)}, {pr(d)}, {pr(d+2)} op_sel:[1,0]")
        V(f"v_pk_mov_b32 {pr(T1+2)}, {pr(d+2)}, {pr(d+4)} op_sel:[1,0]")
        V(f"v_pk_mov_b32 {pr(T2)}, {pr(T0)}, {pr(T0+2)} op_sel:[1,0]")
        V(f"v_pk_mov_b32 {pr(T2+2)}, {pr(T0+2)}, {pr(O4)} op_sel:[1,0]")
        L(8, f"ds_write_b128 v{vR}, {vr(T0)} offset:{32 + 1024*q}")
        L(8, f"ds_write_b128 v{vR}, {vr(T1)} offset:{CS + 32 + 1024*q}")
        L(8, f"ds_write_b128 v{vR}, {vr(T2)} offset:{2*CS + 32 + 1024*q}", ("HW", u))
    if head is not None:
        V(f"v_sub_u32 v137, 3, v{vLANE}")
        V("v_lshlrev_b32 v137, 4, v137")
        V("v_lshlrev_b64 v[138:139], v137, v[138:139]", ("HH", u))
        V(f"v_cmp_eq_u32 vcc, 3, v{vLANE}")
        V(f"v_mul_u32_u24 v137, {CS}, v{vLANE}")
        V(f"v_add_u32 v140, v137, v{head}")
        V("v_cndmask_b32 v138, v138, 0, vcc")
        V("v_cndmask_b32 v139, v139, 0, vcc")
        V("v_mov_b32 v136, 0")
        V("v_mov_b32 v137, 0")
        def hw():
            a("s_mov_b64 exec, 15")
            a.lds(f"ds_write_b128 v140, {vr(ZR)}")
            a.lds("ds_write_b128 v140, v[136:139] offset:16", ("HW", u))
            a("s_mov_b64 exec, -1")
        ops.append((8, hw))
    return ops, ("HW", u)
def h_copies(a, vR, qs, head=None):
    ops, tag = h_copy_ops(a, vR, qs, head)
    for c, f in ops: f()
    return tag

def p1_prep_a(a):
    a(f"v_and_b32 v1, 15, v{vLANE}")
    a(f"v_lshrrev_b32 v2, 4, v{vLANE}")
    a("v_and_b32 v3, 3, v1")
    a("v_cmp_eq_u32 vcc, 3, v3")
    a(f"v_mul_u32_u24 v3, {CS}, v3")
    a("v_and_b32 v4, 12, v1")
    a("v_lshlrev_b32 v4, 1, v4")
    a("v_add_u32 v3, v3, v4")
    a("v_cndmask_b32 v4, 0, 8, vcc")
    a("v_add_u32 v3, v3, v4")
    a("v_lshl_add_u32 v3, v2, 4, v3")
    a(f"v_add_u32 v5, s{sHB}, v3")
    a(f"s_lshl_b32 s93, s{sW}, 7")
    a(f"s_add_u32 s3, s93, {4*HB}")
    a("v_add_u32 v6, s3, v3")

def p1_prep_b(a):
    a(f"v_add_u32 v8, s{sUB}, v{vL16}")
    a(f"s_add_u32 s3, s93, {UE - 512}")
    a(f"v_add_u32 v9, s3, v{vL16}")
    a(f"v_cmp_gt_u32 vcc, 32, v{vLANE}")
    a("s_mov_b32 exec_hi, 0xff")
    a("s_nop 0")
    a("v_cndmask_b32 v8, v9, v8, vcc")
    a("ds_write_b128 v8, v[180:183] offset:4096")
    a("s_mov_b64 exec, -1")
    for ch, sv in ((sCH, sDM), (sCE, sDE)):
        a(f"s_and_b32 s3, s{ch}, 1")
        a("s_lshl_b32 s3, s3, 4")
        a(f"s_lshr_b32 s{sv}, s{sv}, s3")
        a(f"s_and_b32 s{sv}, s{sv}, 0xffff")
    a(f"s_lshl_b32 s{sDE}, s{sDE}, 16")
    a("v_lshlrev_b32 v3, 3, v2")
    a("v_add_u32 v3, v3, v1")
    a("v_sub_u32 v3, 15, v3")
    a("v_and_b32 v4, 1, v3")
    a("v_lshlrev_b32 v4, 4, v4")
    a("v_ashrrev_i32 v3, 1, v3")
    a(f"v_lshlrev_b32 v8, v4, s{sDM}")
    for q in range(4):
        a(f"v_cmp_eq_u32 vcc, {q}, v3")
        a("s_nop 1")
        a(f"v_cndmask_b32 v{PD+q}, 0, v8, vcc")
    a("v_lshlrev_b32 v3, 4, v2")
    a("v_lshlrev_b32 v4, 5, v1")
    a("v_sub_u32 v3, v3, v4")
    a("v_add_u32 v3, 480, v3")
    a(f"v_add_u32 v7, s{sUB}, v3")
    a(f"s_add_u32 s3, s93, {UE}")
    a(f"v_add_u32 v{vFE}, s3, v3")
    a("v_lshlrev_b32 v3, 3, v2")
    a("v_add_u32 v3, v3, v4")
    a(f"s_lshl_b32 s3, s{sJE}, 9")
    a(f"s_sub_u32 s3, {UE + 4088}, s3")
    a(f"v_sub_u32 v{vUD}, s3, v3")
    a(f"s_lshl_b32 s3, s{sW}, 9")
    a(f"s_add_u32 s3, s3, {E_LDS}")
    a(f"v_add_u32 v{vEW}, s3, v3")
    a(f"v_add_u32 v{vER}, s3, v{vL16}")
    a(f"s_lshl_b32 s3, s{sW}, 10")
    a(f"s_add_u32 s3, s3, {R_LDS}")
    a(f"v_add_u32 v{vRW}, s3, v{vL16}")
    a(f"s_lshl_b32 s3, s{sW}, 12")
    a(f"s_add_u32 s3, s3, {R_LDS}")
    a(f"v_add_u32 v{vRR}, s3, v{vL16}")
    a(f"v_mul_u32_u24 v{vTW}, {TR}, v1")
    a("v_lshrrev_b32 v3, 1, v2")
    a(f"v_lshl_add_u32 v{vTW}, v3, 6, v{vTW}")
    a("v_and_b32 v3, 1, v2")
    a(f"v_lshl_add_u32 v{vTW}, v3, 3, v{vTW}")
    a(f"s_lshl_b32 s3, s{sW}, 4")
    a(f"s_add_u32 s3, s3, {T_LDS}")
    a(f"v_add_u32 v{vTW}, s3, v{vTW}")
    a(f"v_lshrrev_b32 v3, 3, v{vLANE}")
    a(f"v_mul_u32_u24 v{vTR}, {TR}, v3")
    a(f"v_and_b32 v4, 7, v{vLANE}")
    a(f"v_lshl_add_u32 v{vTR}, v4, 4, v{vTR}")
    a(f"s_mul_i32 s3, s{sW}, {8*TR}")
    a(f"s_add_u32 s3, s3, {T_LDS}")
    a(f"v_add_u32 v{vTR}, s3, v{vTR}")
    a(f"v_mul_u32_u24 v{vYM}, {YR}, v4")
    a(f"v_lshl_add_u32 v{vYM}, v3, 4, v{vYM}")
    a(f"s_lshr_b32 s88, s{sW}, 1")
    a(f"s_mul_i32 s89, s88, {YBR}")
    a(f"s_and_b32 s3, s{sW}, 1")
    a("s_lshl_b32 s3, s3, 9")
    a("s_add_u32 s89, s89, s3")
    a(f"s_add_u32 s89, s89, {Y_LDS}")
    a(f"v_add_u32 v{vYM}, s89, v{vYM}")
    a(f"s_add_u32 s89, s89, {8*YR}")
    a("v_and_b32 v8, 3, v3")
    a(f"v_lshl_add_u32 v{vYE}, v8, 2, v{vL16}")
    a(f"v_xor_b32 v8, s{sW}, v8")
    a(f"v_lshl_add_u32 v{vYR}, v8, 2, v{vL16}")
    a("s_mov_b32 s98, s89")
    a(f"v_lshlrev_b32 v{vYG}, 6, v{vLANE}")
    a(f"s_mul_i32 s88, s2, {YG}")
    a(f"s_lshl_b32 s3, s{sW}, 12")
    a("s_add_u32 s88, s88, s3")
    a("s_lshr_b32 s89, s2, 2")
    a(f"s_mul_i32 s89, s89, {YEG}")
    a("s_mov_b32 s99, s89")
    a(f"s_lshl_b32 s3, s{sW}, 11")
    a("s_add_u32 s89, s89, s3")
    a("s_and_b32 s3, s2, 3")
    a("s_lshl_b32 s3, s3, 4")
    a("s_add_u32 s89, s89, s3")
    a(f"s_add_u32 s89, s89, {YE_OFF}")
    a(f"v_lshrrev_b32 v4, 2, v{vLANE}")
    a(f"v_and_b32 v8, 3, v{vLANE}")
    a("v_lshlrev_b32 v8, 4, v8")
    a(f"v_mul_u32_u24 v3, {YG}, v4")
    a("v_add_u32 v3, v3, v8")
    a(f"v_mul_u32_u24 v4, {YEG}, v4")
    a("v_add_u32 v4, v4, v8")
    a(f"s_mul_i32 s{sYM}, s{sW}, {16*YG}")
    a(f"s_lshl_b32 s3, s{sB}, 13")
    a(f"s_add_u32 s{sYM}, s{sYM}, s3")
    a(f"s_sub_u32 s3, s{sCH}, s{sW}")
    a("s_lshl_b32 s3, s3, 4")
    a(f"s_add_u32 s{sYM}, s{sYM}, s3")
    a(f"s_mul_i32 s{sYE}, s{sJE}, {8*YEG}")
    a(f"s_lshl_b32 s3, s{sB}, 12")
    a(f"s_add_u32 s{sYE}, s{sYE}, s3")
    a(f"s_lshl_b32 s3, s{sP}, 6")
    a(f"s_add_u32 s{sYE}, s{sYE}, s3")
    a(f"s_add_u32 s{sYE}, s{sYE}, {YE_OFF}")
    srd(a, SX, 14, 15, TENS)
    a(f"s_lshl_b32 s{sXO}, s2, 3")
    a(f"s_lshl_b32 s3, s{sW}, 1")
    a(f"s_add_u32 s{sXO}, s{sXO}, s3")
    a(f"s_mul_i32 s{sXO}, s{sXO}, {ROWB}")
    a(f"s_mul_i32 s3, s{sB}, 576")
    a(f"s_add_u32 s90, s3, s{sCH}")
    a(f"s_mul_i32 s90, s90, {UG}")
    a(f"s_add_u32 s91, s3, s{sCE}")
    a(f"s_mul_i32 s91, s91, {UG}")
    a(f"s_lshl_b32 s85, s{sW}, 10")
    a("s_add_u32 s91, s91, s85")
    a(f"s_add_u32 s85, s85, {UE}")
    if SPLIT():
        a(f"s_mul_i32 s92, s{sCH}, 456")
        a("s_lshr_b32 s92, s92, 16")
        a("s_lshl_b32 s92, s92, 11")
        a(f"s_lshl_b32 s3, s{sB}, 13")
        a("s_add_u32 s92, s92, s3")
        a(f"v_and_b32 v8, 31, v{vLANE}")
        a("v_lshlrev_b32 v8, 6, v8")
        a(f"v_add_u32 v{vP1}, s92, v8")
        a(f"s_add_u32 s92, s92, {F1B}")
        a(f"s_add_u32 s3, s3, {96*64}")
        a(f"s_add_u32 s93, s3, {F1B}")
        a(f"s_cmp_eq_u32 s{sW}, 1")
        a("s_cselect_b32 s3, s3, s93")
        a(f"s_cmp_eq_u32 s{sW}, 0")
        a("s_cselect_b32 s3, s92, s3")
        a(f"v_add_u32 v{vPB}, s3, v8")
    elif opt("clr", "fill") == "w23":
        a(f"s_lshl_b32 s92, s{sB}, 1")
        a(f"s_add_u32 s92, s92, s{sW}")
        a("s_lshl_b32 s92, s92, 12")
        a(f"v_add_u32 v{vP1}, s92, v{vYG}")
    else:
        a(f"s_lshl_b32 s92, s{sB}, {2 if T64() else 1}")
        a(f"s_lshr_b32 s3, s{sP}, {4 if T64() else 5}")
        a("s_add_u32 s92, s92, s3")
        if T64() and opt("p1all", "0") == "1":
            a("s_lshl_b32 s92, s92, 12")
            a(f"v_and_b32 v8, 31, v{vLANE}")
            a(f"v_lshl_add_u32 v{vP1}, v8, 7, s92")
        else:
            a("s_lshl_b32 s92, s92, 2")
            a(f"s_add_u32 s92, s92, s{sW}")
            a(f"s_lshl_b32 s92, s92, {10 if T64() else 11}")
            a(f"v_and_b32 v8, {7 if T64() else 15}, v1")
            a(f"v_lshl_add_u32 v{vP1}, v8, 7, s92")
    a(f"s_lshl_b32 s92, s{sW}, 13")
    a(f"s_add_u32 s92, s92, {F2A}")
    a(f"v_lshl_add_u32 v{vP2}, v{vLANE}, 7, s92")
    a(f"v_add_u32 v{vC1}, s{sHB}, v{vL16}")
    a(f"v_mov_b32 v{vC2}, s{sHB}")
    a(f"s_lshl_b32 s3, s{sW}, 10")
    a(f"s_add_u32 s3, s3, {4*HB}")
    a(f"v_add_u32 v{vC3}, s3, v{vL16}")
    a(f"v_mov_b32 v{vC4}, {4*HB}")
    a("s_lshl_b32 s101, s2, 7")
    a(f"s_add_u32 s101, s101, {F2A}")
    a("s_lshl_b32 s3, s2, 2")
    a(f"s_add_u32 s3, s3, s{sW}")
    a("s_lshl_b32 s3, s3, 7")
    a(f"s_add_u32 s3, s3, {FD}")
    a(f"s_cmp_eq_u32 s{sW}, 0")
    a("s_cselect_b32 s101, s101, s3")
    a("s_and_b32 s3, s2, 3")
    a("s_lshl_b32 s3, s3, 11")
    a("s_add_u32 s99, s99, s3")
    if opt("clr", "fill") == "w23":
        a(f"s_and_b32 s3, s{sW}, 1")
        a("s_lshl_b32 s3, s3, 10")
    else:
        a(f"s_lshl_b32 s3, s{sW}, 9")
    a("s_add_u32 s99, s99, s3")
    a(f"s_add_u32 s99, s99, {YE_OFF}")
    a("s_mov_b32 s97, 4096")
    a("s_mov_b32 s86, 0x3ae38e39")
    a("s_mov_b32 s87, 0x3727c5ac")

def p1_aload(a, aas):
    for r in range(8):
        for aa in aas:
            ks = 8 * aa + r
            a.lds(f"ds_read_b64 a[{4*ks}:{4*ks+1}], v5 offset:{64*ks}")
            a.lds(f"ds_read_b64 a[{4*ks+2}:{4*ks+3}], v5 offset:{64*ks+8}", ("A", ks))

def F(bank, c): return FB + 32 * bank + 4 * c
MF = "v_mfma_f32_16x16x32_bf16"

def p1_mfma(a, stflag, tail):
    inited = set()
    def mfma(acc, A_, B_, needs):
        a.need(*needs)
        c = vr(acc) if acc in inited else "0"
        inited.add(acc)
        a(f"{MF} {vr(acc)}, {A_}, {vr(B_)}, {c}")
    def L(c, s_, tag=None): return (c, lambda: a.lds(s_, tag))
    def I(s_): return (4, lambda: a(s_))
    def V(s_, tag=None): return (8, lambda: a.vm(s_, tag))
    def aeread(rp, aa, half): return L(4, f"ds_read_b64 {pr(AE+32*rp+4*aa+2*half)}, v6 offset:{512*aa + 64*rp + 8*half}", ("AE", rp, aa))
    evc = [0]
    def conv(j):
        e = EV + 2 * (evc[0] & 1); evc[0] += 1
        return [I(f"v_cvt_pk_bf16_f32 v{e}, v{ACC+4*j}, v{ACC+4*j+1}"), I(f"v_cvt_pk_bf16_f32 v{e+1}, v{ACC+4*j+2}, v{ACC+4*j+3}"),
                I(f"v_min_u32 v{e}, -2, v{e}"), I(f"v_min_u32 v{e+1}, -2, v{e+1}"),
                L(6, f"ds_write_b64 v{vTW}, {pr(e)} offset:{16*TR*j}", ("TW", j))]
    def barrier(*tags): return (8, lambda: (a.need(*tags), a("s_barrier")))
    def tread(k, reg): return L(6, f"ds_read_b128 {vr(reg)}, v{vTR} offset:{32*TR*k}", ("TRD", k))
    def tstore(k, reg):
        def f():
            a(f"s_add_u32 s3, s{sYM}, {k*64*YG}")
            a.need(("TRD", k))
            a.vm(f"buffer_store_dwordx4 {vr(reg)}, v3, {sq(SY)}, s3 offen {stflag}")
        return (8, f)
    EXP = 8 if SPLIT() else int(opt("exp", "6"))
    blocks = []
    for r in range(8): blocks.append(("a", [(c, r) for c in range(4)], (0, 1, 2, 3)))
    for r in range(8): blocks.append(("b", [(c, r) for c in range(4)], (4, 5, 6, 7)))
    for r in range(0, 8, 2): blocks.append(("c", [(4, r), (5, r), (4, r + 1), (5, r + 1)], (4, 5)))
    for r in range(8): blocks.append(("d", [(c, r) for c in range(4, 8)], (6, 7)))
    def FG(k, i): return FB + 16 * (k & 3) + 4 * i
    def fread(k, i):
        c, r = blocks[k][1][i]
        return L(6, f"ds_read_b128 {vr(FG(k,i))}, v7 offset:{64*r + 512*(7-c)}", ("F", k, i))
    def items_of(k):
        name, fr, J = blocks[k]; it = []
        order = [(i, j) for i in range(4) for j in J if j >= fr[i][0]]
        if k == len(blocks) - 1: order = [(i, j) for j in J for i in range(4) if j >= fr[i][0]]
        for i, j in order:
            c, r = fr[i]; tg = [("F", k, i), ("A", 8 * (j - c) + r)]
            if r == 0 and j == c: it.append((ACC + 4*j, vr(PD), FG(k, i), tg))
            it.append((ACC + 4*j, ar(4 * (8 * (j - c) + r)), FG(k, i), tg))
        return it
    KE = 8 + EXP
    GE = (KE - 2) & 3
    def FEr(rp, c): return (FE0 + 4 * c) if rp == 0 else FB + 16 * GE + 4 * c
    def feread(rp, c): return L(6, f"ds_read_b128 {vr(FEr(rp,c))}, v{vFE} offset:{64*rp + 512*(7-c)}", ("FE", rp, c))
    start = []; n = 0
    for k in range(len(blocks)):
        if k == KE: E0 = n; n += 36
        start.append(n); n += len(items_of(k))
    NS = n; assert NS == 332
    plan = [[] for _ in range(NS)]; load = [0] * NS
    def pin(slot, ops):
        for i, (c, f) in enumerate(ops):
            plan[slot + i].append(f); load[slot + i] += c
    def spread(ops, lo_, hi_, cap=8):
        for cap_ in range(cap, 40, 2):
            sl = lo_; pos = []; ld = list(load)
            for c, f in ops:
                while sl <= hi_ and ld[sl] + c > cap_: sl += 1
                if sl > hi_: break
                pos.append(sl); ld[sl] += c
            if len(pos) == len(ops): break
        assert len(pos) == len(ops)
        for (c, f), p_ in zip(ops, pos): plan[p_].append(f); load[p_] += c
        return pos[-1]
    for k in range(len(blocks) - 2):
        if SPLIT() and k in (14, 15):
            pin(E0 + 8 + 4 * (k - 14), [fread(k + 2, i) for i in range(4)])
        else:
            pin(start[k], [fread(k + 2, i) for i in range(4)])
    pin(E0, [feread(1, c) for c in range(8)])
    xl = [V(f"buffer_load_dwordx4 {vr(XR)}, v{vL16}, {sq(SX)}, s{sXO} offen nt"),
          V(f"buffer_load_dwordx4 {vr(XR+4)}, v{vL16}, {sq(SX)}, s{sXO} offen offset:{ROWB} nt"),
          V(f"buffer_load_ushort v{XR+8}, v{vL2}, {sq(SX)}, s{sXO} offen offset:1024 nt"),
          V(f"buffer_load_ushort v{XR+9}, v{vL2}, {sq(SX)}, s{sXO} offen offset:{1024+ROWB} nt", "X")]
    if opt("clr", "fill") == "fill":
        clr = [V(f"buffer_store_dwordx4 {vr(FE0)}, v{vL16}, {sq(SY)}, s88 offen offset:{1024*q} sc1") for q in range(4)]
        def clre():
            a("s_mov_b32 exec_hi, 0")
            a.vm(f"buffer_store_dwordx4 {vr(FE0)}, v{vL16}, {sq(SY)}, s99 offen sc1")
            a("s_mov_b64 exec, -1")
        cs = int(opt("cs", "6")); cd = int(opt("cd", "2"))
        ncs = int(opt("ncs", "0")); clr_all = clr + [(8, clre)]
        clr_pre = clr_all[:ncs]
        for i, op in enumerate(clr_all[ncs:]): spread([op], cs + cd * i, cs + cd * i + 10)
    if opt("ein", "0") == "1":
        ops_e, hwe = h_copy_ops(a, vC3, [0], vC4)
        spread(ops_e[:3], 4, 8)
        spread(ops_e[3:], 18, 70, 6)
    else:
        hwe = ("none",)
        ao = []
        for r in range(8):
            for aa in range(4, 8):
                ks = 8 * aa + r
                ao += [L(4, f"ds_read_b64 a[{4*ks}:{4*ks+1}], v5 offset:{64*ks}"), L(4, f"ds_read_b64 a[{4*ks+2}:{4*ks+3}], v5 offset:{64*ks+8}", ("A", ks))]
        if opt("hdef", "0") == "1":
            ops_o, hwo = h_copy_ops(a, vC1, [2, 3])
            c0, f0 = ops_o[0]
            ops_o[0] = (c0, lambda: (a.needv("h2"), f0()))
            hs = int(opt("hs", "20"))
            e_ = spread(ops_o[:4], hs, hs + 10)
            e_ = spread(ops_o[4:], e_ + 8, 66, 8)
            spread(ao[:16], e_ + 1, 82, 8)
            for r in range(2, 8): spread(ao[8*r: 8*r + 8], 84, start[8 + r] - 4, 6)
        elif opt("pre2", "0") != "1": spread(ao, 4, 110, int(opt("acap", "6")))
    XA = int(opt("xa", "140" if SPLIT() else "92"))
    def xa():
        a("s_waitcnt vmcnt(0)"); a.vd = a.vn
        a.need(hwe)
        a("s_barrier")
        signal(a, 101); a.vn += 1
    def xa_split():
        a("s_waitcnt vmcnt(0)"); a.vd = a.vn
        a(f"v_cmp_ne_u32 vcc, s{sTAG}, v253")
        a(f"s_mov_b32 m0, s{sUB}")
        a("s_cbranch_vccnz t2_slow")
        a.label("t2_back")
        a("s_barrier")
        for q in (1, 0):
            a.vm(f"buffer_load_dwordx4 v{vL16}, {sq(SU)}, s90 offen offset:{1024*q} {opt('uld', 'sc1')} lds", f"U{q}")
        a("s_mov_b32 m0, s85")
        a("s_nop 0")
        a.vm(f"buffer_load_dwordx4 v{vL16}, {sq(SU)}, s91 offen {opt('uld', 'sc1')} lds", "UE")
        signal(a, 101); a.vn += 1
    def slow2(t):
        t.label("t2_slow")
        t("s_mov_b32 s92, 0x20000")
        t.label("t2_spin")
        t("s_sleep 2")
        t(f"buffer_load_dword v253, v{vPB}, {sq(SF)}, 0 offen sc1")
        t("s_waitcnt vmcnt(0)")
        t(f"v_cmp_ne_u32 vcc, s{sTAG}, v253")
        t("s_sub_u32 s92, s92, 1")
        t("s_cbranch_scc1 t2_back")
        t("s_cbranch_vccnz t2_spin")
        t("s_branch t2_back")
    if SPLIT():
        tail.append(slow2)
        pin(XA - int(opt("pbd", "44")), [V(f"buffer_load_dword v253, v{vPB}, {sq(SF)}, 0 offen sc1")])
        pin(XA, [(40, xa_split)])
        X0 = E0 - 12
        pin(X0, [(8, lambda: (a.needv("UE"), a("s_barrier")))])
        XE = int(opt("xe", "30"))
        pin(XE, [(8, lambda: a("s_barrier"))])
        for i, op in enumerate(xl): spread([op], XA + 2 + 3 * i, XA + 12 + 3 * i)
        spread([aeread(rp, aa, h) for rp in range(2) for aa in range(8) for h in range(2)], 100, E0 - 12, 6)
        spread([feread(0, c) for c in range(8)], X0 + 1, E0 - 2)
    else:
        pin(XA, [(20, xa)])
        if opt("xpre", "0") != "1":
            for i, op in enumerate(xl): spread([op], XA + 2 + 3 * i, XA + 12 + 3 * i)
        spread([aeread(rp, aa, h) for rp in range(2) for aa in range(8) for h in range(2)], XA + 1, E0 - 12, 6)
        spread([feread(0, c) for c in range(8)], E0 - 14, E0 - 2)
    B4 = E0 + 36
    if SPLIT(): spread(conv(0) + conv(1) + conv(2) + conv(3), 150, E0 - 14, 6)
    else: spread(conv(0) + conv(1) + conv(2) + conv(3), E0 + 9, B4 + 7, 6)
    e_ = spread([L(8, f"ds_write_b128 v{vRW}, {vr(ACCE+4*s_)} offset:{4096*s_}", ("RW", s_)) for s_ in range(4)], B4 + 8, B4 + 15)
    X1 = e_ + 6
    D0 = start[20]
    mx = opt("xd", "262") == "x2"
    if mx:
        e45 = spread(conv(4) + conv(5), D0 + 8, D0 + 18, 10)
        XD = e45 + 4
    else:
        XD = X1 if SPLIT() else int(opt("xd", "262"))
    if XD != X1: pin(X1, [barrier(("RW", 3), ("TW", 3))])
    pin(XD - int(opt("pcd", "44")), [V(f"buffer_load_dword v253, v{vP2}, {sq(SF)}, 0 offen sc1", "PC")])
    def xd():
        a.needv("PC")
        a(f"v_cmp_ne_u32 vcc, s{sTAG}, v253")
        a.need(("RW", 3), ("TW", 3), ("TW", 5) if mx else ("TW", 3))
        a("s_cbranch_vccnz c_slow")
        a.label("c_back")
        a("s_barrier")
    pin(XD, [(16, xd)])
    def slow(t):
        t.label("c_slow")
        t("s_mov_b32 s92, 0x20000")
        t.label("c_spin")
        t("s_sleep 4")
        t(f"buffer_load_dword v253, v{vP2}, {sq(SF)}, 0 offen sc1")
        t("s_waitcnt vmcnt(0)")
        t(f"v_cmp_ne_u32 vcc, s{sTAG}, v253")
        t("s_sub_u32 s92, s92, 1")
        t("s_cbranch_scc1 c_back")
        t("s_cbranch_vccnz c_spin")
        t("s_branch c_back")
    tail.append(slow)
    e_ = spread([tread(0, TRD), tread(1, TRD + 4)] +
                [L(6, f"ds_read_b128 {vr(RED+4*i)}, v{vRR} offset:{1024*i}", ("RR", i)) for i in range(4)] +
                [L(4, f"ds_read_b64 {pr(UD)}, v{vUD}", "UD")], X1 + 1, X1 + 16)
    t0_ = XD + (9 if XD == X1 else 1)
    spread([tstore(0, TRD)], t0_, t0_ + 8); spread([tstore(1, TRD + 4)], t0_ + 2, t0_ + 12)
    red = [(4, lambda: (a.need("UD"), a(f"v_pk_add_f32 {pr(RED)}, {pr(RED)}, {pr(RED+4)}"))), I(f"v_pk_add_f32 {pr(RED+2)}, {pr(RED+2)}, {pr(RED+6)}"),
           I(f"v_pk_add_f32 {pr(RED+8)}, {pr(RED+8)}, {pr(RED+12)}"), I(f"v_pk_add_f32 {pr(RED+10)}, {pr(RED+10)}, {pr(RED+14)}"),
           I(f"v_pk_add_f32 {pr(RED)}, {pr(RED)}, {pr(RED+8)}"), I(f"v_pk_add_f32 {pr(RED+2)}, {pr(RED+2)}, {pr(RED+10)}"),
           I(f"v_and_b32 v{RED+4}, 0xffff0000, v{UD+1}"), I(f"v_lshlrev_b32 v{RED+5}, 16, v{UD+1}"),
           I(f"v_and_b32 v{RED+6}, 0xffff0000, v{UD}"), I(f"v_lshlrev_b32 v{RED+7}, 16, v{UD}")]
    red += [I(f"v_fmac_f32 v{RED+i}, s{sDE}, v{RED+4+i}") for i in range(4)]
    red += [I(f"v_cvt_pk_bf16_f32 v{STG}, v{RED}, v{RED+1}"), I(f"v_cvt_pk_bf16_f32 v{STG+1}, v{RED+2}, v{RED+3}"),
            I(f"v_min_u32 v{STG}, -2, v{STG}"), I(f"v_min_u32 v{STG+1}, -2, v{STG+1}")]
    red += [L(6, f"ds_write_b64 v{vEW}, {pr(STG)}"), L(6, f"ds_read_b128 {vr(ES)}, v{vER}", "ES")]
    e_ = spread(red, e_ + 8, e_ + 44)
    def estore():
        a.need("ES"); a("s_mov_b32 exec_hi, 0")
        a.vm(f"buffer_store_dwordx4 {vr(ES)}, v4, {sq(SY)}, s{sYE} offen {stflag}")
        a("s_mov_b64 exec, -1")
    spread([(8, estore)], max(e_ + 6, XD + 5), max(e_ + 6, XD + 5) + 10)
    if mx:
        spread([tread(2, FE0)], XD + 1, XD + 4)
        e_ = spread([tstore(2, FE0)], XD + 9, XD + 15)
    else:
        e_ = spread(conv(4) + conv(5), D0 + 8, D0 + 22)
        pin(e_ + 5, [barrier(("TW", 5))])
        spread([tread(2, FE0)], e_ + 6, e_ + 10)
        e_ = spread([tstore(2, FE0)], max(e_ + 14, XD + 7), max(e_ + 14, XD + 7) + 6)
    if opt("ypre", "0") == "1":
        def ypre():
            a(f"s_cmp_ge_u32 s2, {opt('late', '192')}")
            a("s_cbranch_scc1 no_ypre")
            for f in y_issue_ops(a): f()
            a.vn -= 5
            a.label("no_ypre")
        pin(max(int(opt("yp", str(NS - 10))), e_ + 1), [(40, ypre)])
    if not SPLIT(): a.needv("U2")
    stamp(a, 9); stamp(a, 24, True)
    for k in range(2):
        for i in range(4): fread(k, i)[1]()
    if opt("clr", "fill") == "fill":
        for c_, f_ in clr_pre: f_()
    qs = {7: 0, 9: 1, KE - 1: 2, 15: 4, 19: 5, 23: 6, 26: 7}
    for k in range(len(blocks)):
        if k == KE:
            a(f"s_cmp_eq_u32 s{sHF}, 1")
            a("s_cbranch_scc1 ex_h1")
            save = (a.ln, a.ld, dict(a.lt), set(inited), a.vn, a.vd)
            for h in range(2):
                if h == 1:
                    a("s_branch ex_join")
                    a.label("ex_h1")
                    end0 = (a.ln, a.ld)
                    a.ln, a.ld, a.lt, inited = save[0], save[1], dict(save[2]), set(save[3])
                    vend = (a.vn, a.vd); a.vn, a.vd = save[4:6]
                its = []
                for rp in range(2):
                    for c in range(8):
                        for s_, j in enumerate(TJ[h]):
                            if j >= c:
                                its.append((ACCE + 4*s_, vr(AE + 32*rp + 4*(j - c)), FEr(rp, c), [("AE", rp, j - c), ("FE", rp, c)]))
                for i, it in enumerate(its):
                    mfma(*it)
                    for f in plan[E0 + i]: f()
            a.label("ex_join")
            assert a.ln == end0[0] and a.vn == vend[0]
            a.vd = min(a.vd, vend[1])
            a.ld = min(a.ld, end0[1])
            qstamp(a, 3)
        for i, it in enumerate(items_of(k)):
            mfma(*it)
            for f in plan[start[k] + i]: f()
        if k in qs: qstamp(a, qs[k])
    stamp(a, 7); stamp(a, 25, True)
    a("s_nop 3")
    for j in (6, 7):
        for c, f in conv(j): f()
    barrier(("TW", 7))[1]()
    tread(3, TRD + 4)[1]()
    tstore(3, TRD + 4)[1]()
    stamp(a, 8); stamp(a, 26, True)
    qflush(a)
    if "--plan" in sys.argv: print(load, XA, X1, E0, D0)

Z, YA, YB, G = 8, 26, 44, 62
SS, QQ, RS, ND, C0 = 80, 82, 84, 86, 88
YW = 96

def p2_sums(a):
    a(f"v_pk_add_f32 {pr(SS)}, {pr(Z)}, {pr(Z+2)}")
    a(f"v_pk_mul_f32 {pr(QQ)}, {pr(Z)}, {pr(Z)}")
    a(f"v_pk_fma_f32 {pr(QQ)}, {pr(Z+2)}, {pr(Z+2)}, {pr(QQ)}")
    for e in range(2, 9):
        a(f"v_pk_add_f32 {pr(SS)}, {pr(SS)}, {pr(Z+2*e)}")
        a(f"v_pk_fma_f32 {pr(QQ)}, {pr(Z+2*e)}, {pr(Z+2*e)}, {pr(QQ)}")

def p2_chain(a, fill):
    fill = list(fill)
    def gap(n):
        for _ in range(n):
            if fill: a(fill.pop(0))
            else: a("s_nop 0")
    T, Uq = 90, 91
    gap(2)
    a(f"v_permlane32_swap_b32 v{SS}, v{SS+1}")
    a(f"v_permlane32_swap_b32 v{QQ}, v{QQ+1}")
    a(f"v_add_f32 v{SS}, v{SS}, v{SS+1}")
    a(f"v_add_f32 v{QQ}, v{QQ}, v{QQ+1}")
    gap(2)
    a(f"v_permlane16_swap_b32 v{SS}, v{QQ}")
    a(f"v_add_f32 v{T}, v{SS}, v{QQ}")
    for m in ("quad_perm:[1,0,3,2]", "quad_perm:[2,3,0,1]", "row_half_mirror", "row_mirror"):
        gap(2)
        a(f"v_add_f32_dpp v{T}, v{T}, v{T} {m} {DPP}")
    a(f"v_mov_b32 v{Uq}, v{T}")
    gap(2)
    a(f"v_permlane16_swap_b32 v{T}, v{Uq}")
    a(f"v_mul_f32 v{T}, s86, v{T}")
    a(f"v_mul_f32 v{Uq}, s86, v{Uq}")
    a(f"v_fma_f32 v{Uq}, -v{T}, v{T}, v{Uq}")
    a(f"v_max_f32 v{Uq}, 0, v{Uq}")
    a(f"v_add_f32 v{Uq}, s87, v{Uq}")
    a(f"v_rsq_f32 v{RS}, v{Uq}")
    gap(1)
    a(f"v_mul_f32 v{ND}, v{RS}, v{T}")
    a(f"v_mov_b32 v{RS+1}, v{RS}")
    a(f"v_mov_b32 v{ND+1}, v{ND}")
    gap(2)
    a(f"v_permlane32_swap_b32 v{RS}, v{RS+1}")
    a(f"v_permlane32_swap_b32 v{ND}, v{ND+1}")
    while fill: a(fill.pop(0))

def p2_first(a):
    a.needv("X")
    for q in range(4):
        for row in range(2):
            a(f"v_lshlrev_b32 v{Z+4*q+row}, 16, v{XR+4*row+q}")
            a(f"v_and_b32 v{Z+4*q+2+row}, 0xffff0000, v{XR+4*row+q}")
    a(f"v_lshlrev_b32 v{Z+16}, 16, v{XR+8}")
    a(f"v_lshlrev_b32 v{Z+17}, 16, v{XR+9}")
    a(f"v_readfirstlane_b32 s92, v{Z}")
    a(f"v_readfirstlane_b32 s93, v{Z+1}")
    a("s_nop 1")
    a(f"v_mov_b32 v{C0}, s92")
    a(f"v_mov_b32 v{C0+1}, s93")
    for e in range(9):
        a(f"v_pk_add_f32 {pr(Z+2*e)}, {pr(Z+2*e)}, {pr(C0)} neg_lo:[0,1] neg_hi:[0,1]")
    p2_sums(a)
    p2_chain(a, [])

def y_ld(i):
    if i == 4: return f"buffer_load_dwordx4 {vr(YP+16)}, v{vYG}, {sq(SY)}, s89 offen {opt('yld', 'sc1')}"
    return f"buffer_load_dwordx4 {vr(YP+4*i)}, v{vL16}, {sq(SY)}, s88 offen offset:{1024*i} {opt('yld', 'sc1')}"
def y_issue_ops(a):
    def e():
        a("s_mov_b32 exec_hi, 0"); a.vm(y_ld(4)); a("s_mov_b64 exec, -1")
    return [e] + [(lambda i: lambda: a.vm(y_ld(i)))(i) for i in range(4)]

def y_write(a):
    for q in range(4):
        r = YP + 4 * q
        a(f"ds_write2_b32 v{vYM}, v{r}, v{r+1} offset0:{32*q + (0 ^ q)} offset1:{32*q + (1 ^ q)}")
        a(f"ds_write2_b32 v{vYM}, v{r+2}, v{r+3} offset0:{32*q + (2 ^ q)} offset1:{32*q + (3 ^ q)}")
    a("s_mov_b32 exec_hi, 0")
    for i in range(4):
        a(f"ds_write_b32 v{120+i}, v{YP+16+i}")
    a("s_mov_b64 exec, -1")
    a("s_waitcnt lgkmcnt(0)")

def y_addr(a):
    for i in range(4):
        a(f"v_xor_b32 v{120+i}, {4*i}, v{vYE}")
        a(f"v_add_u32 v{120+i}, s98, v{120+i}")

def y_check(a):
    M = [4, 6, 8, 10, 12]
    for i in range(4):
        a(f"s_mov_b64 s[{M[i]}:{M[i]+1}], -1")
    a("s_mov_b32 s12, -1")
    a("s_mov_b32 s13, 0")
    a("s_mov_b32 s92, 0x20000")
    if opt("ypre", "0") == "1":
        a(f"s_cmp_ge_u32 s2, {opt('late', '192')}")
        a("s_cbranch_scc1 yc_late")
        a("s_waitcnt vmcnt(1)")
        a("s_branch yc_chk")
        a.label("yc_late")
    a("s_waitcnt vmcnt(0)")
    a("s_branch yc_load")
    a.label("yc_loop")
    a("s_waitcnt vmcnt(0)")
    a.label("yc_chk")
    for i in range(5):
        r = YP + 4 * i
        a(f"s_mov_b64 exec, s[{M[i]}:{M[i]+1}]")
        a(f"v_max3_u32 v238, v{r}, v{r+1}, v{r+2}")
        a(f"v_max_u32 v238, v238, v{r+3}")
        a(f"v_cmp_eq_u32 s[{M[i]}:{M[i]+1}], -1, v238")
    a("s_or_b64 s[14:15], s[4:5], s[6:7]")
    a("s_or_b64 s[14:15], s[14:15], s[8:9]")
    a("s_or_b64 s[14:15], s[14:15], s[10:11]")
    a("s_or_b64 s[14:15], s[14:15], s[12:13]")
    a("s_cbranch_scc0 yc_done")
    a("s_sub_u32 s92, s92, 1")
    a("s_cbranch_scc1 yc_done")
    if int(opt("ysleep", "2")): a(f"s_sleep {opt('ysleep','2')}")
    a.label("yc_load")
    for i in range(5):
        a(f"s_mov_b64 exec, s[{M[i]}:{M[i]+1}]")
        a(f"s_cbranch_execz yc_skip{i}")
        a(y_ld(i))
        a.label(f"yc_skip{i}")
    a("s_branch yc_loop")
    a.label("yc_done")
    a("s_mov_b64 exec, -1")

def p2_rest(a, stflag):
    for b in range(2):
        for e in range(9):
            a(f"ds_read_b32 v{YW + 9*b + e}, v{vYR} offset:{Y_LDS + YBR*b + YR*e}")
    a.label("p2_body")
    def unp(b, e):
        r = YW + 9 * b + e; y = (YA if b == 0 else YB) + 2 * e
        return [f"v_lshlrev_b32 v{y}, 16, v{r}", f"v_and_b32 v{y+1}, 0xffff0000, v{r}"]
    for e in range(9):
        a(f"s_waitcnt lgkmcnt({min(15, 17 - e)})")
        for s_ in unp(0, e): a(s_)
        a(f"v_pk_mul_f32 {pr(G+2*e)}, {pr(Z+2*e)}, {pr(YA+2*e)}")
    def post(Y):
        for e in range(9):
            a(f"v_pk_fma_f32 {pr(Z+2*e)}, {pr(G+2*e)}, {pr(RS)}, {pr(Z+2*e)}")
        for e in range(9):
            a(f"v_pk_fma_f32 {pr(Z+2*e)}, {pr(Y+2*e)}, {pr(ND)}, {pr(Z+2*e)} neg_lo:[0,1,0] neg_hi:[0,1,0]")
    qstamp(a, 0, "2")
    post(YA)
    qstamp(a, 1, "2")
    a("s_waitcnt lgkmcnt(0)")
    for layer, Y in ((2, YB), (3, YA), (4, YB)):
        p2_sums(a)
        if layer == 3: qstamp(a, 3, "2")
        fill = []
        for e in range(9):
            if layer == 2: fill += unp(1, e)
            fill.append(f"v_pk_mul_f32 {pr(G+2*e)}, {pr(Z+2*e)}, {pr(Y+2*e)}")
        if layer == 4:
            fill += [f"v_pk_add_f32 {pr(Z+2*e)}, {pr(Z+2*e)}, {pr(C0)}" for e in range(9)]
        p2_chain(a, fill)
        a("s_nop 0")
        if layer == 3: qstamp(a, 4, "2")
        post(Y)
        qstamp(a, {2: 2, 3: 5, 4: 6}[layer], "2")
    for row in range(2):
        for q in range(4):
            a(f"v_cvt_pk_bf16_f32 v{XR+4*row+q}, v{Z+4*q+row}, v{Z+4*q+2+row}")
    a(f"v_cvt_pk_bf16_f32 v{XR+8}, v{Z+16}, v{Z+17}")
    if opt("dry2", "0") == "1": a("s_cbranch_execz p2_dry_back")
    a(f"buffer_store_dwordx4 {vr(XR)}, v{vL16}, {sq(SO)}, s{sXO} offen {stflag}")
    a(f"buffer_store_dwordx4 {vr(XR+4)}, v{vL16}, {sq(SO)}, s{sXO} offen offset:{ROWB} {stflag}")
    a(f"buffer_store_short v{XR+8}, v{vL2}, {sq(SO)}, s{sXO} offen offset:1024 {opt('ost2', stflag)}")
    a(f"buffer_store_short_d16_hi v{XR+8}, v{vL2}, {sq(SO)}, s{sXO} offen offset:{1024+ROWB} {opt('ost2', stflag)}")

def signal(a, off_s, rep=1):
    if rep > 1: a(f"v_lshl_add_u32 v238, v{vLANE}, 15, s{off_s}")
    else: a(f"v_mov_b32 v238, s{off_s}")
    a(f"v_mov_b32 v239, s{sTAG}")
    a(f"s_mov_b64 exec, {(1 << rep) - 1}")
    a(f"buffer_store_dword v239, v238, {sq(SF)}, 0 offen sc1")
    a("s_mov_b64 exec, -1")

def poll(a, tag, vaddr, all64):
    a("s_mov_b32 s92, 0x20000")
    if not all64: a("s_mov_b32 exec_hi, 0")
    if opt("pp", "0") == "1": a(f"s_branch {tag}_chk")
    a.label(f"{tag}_poll")
    a(f"buffer_load_dword v238, v{vaddr}, {sq(SF)}, 0 offen sc1")
    a.label(f"{tag}_chk")
    a("s_waitcnt vmcnt(0)")
    a(f"v_cmp_ne_u32 vcc, s{sTAG}, v238")
    a("s_and_b64 exec, exec, vcc")
    a(f"s_cbranch_execz {tag}_ok")
    if int(opt("sleep", "2")): a(f"s_sleep {opt('sleep', '2')}")
    a("s_sub_u32 s92, s92, 1")
    a("s_cmp_lg_u32 s92, 0")
    a(f"s_cbranch_scc1 {tag}_poll")
    a.label(f"{tag}_ok")
    a("s_mov_b64 exec, -1")

def epoch_issue(a):
    a(f"v_mov_b32 v253, {EP}")
    a.vm(f"buffer_load_dword v254, v253, {sq(SF)}, 0 offen sc1", "EP")
def epoch_use(a):
    a.needv("EP")
    a(f"v_readfirstlane_b32 s{sTAG}, v254")
    a(f"s_mul_i32 s{sTAG}, s{sTAG}, 0x9E3779B1")
    a(f"s_add_u32 s{sTAG}, s{sTAG}, 0x7F4A7C15")

def elect_and_signal(a, n, skip):
    a(f"v_mov_b32 v238, {LDS_CTR}")
    a("v_mov_b32 v239, 1")
    a(f"s_lshl_b32 s90, s{sFI}, 6")
    a("s_waitcnt vmcnt(0)")
    a("s_mov_b64 exec, 1")
    a("ds_add_rtn_u32 v253, v238, v239")
    a("s_waitcnt lgkmcnt(0)")
    a("v_readfirstlane_b32 s3, v253")
    a("s_mov_b64 exec, -1")
    a(f"s_cmp_eq_u32 s3, {n-1}")
    a(f"s_cbranch_scc0 {skip}")
    signal(a, 90)
    stamp(a, 4)
    a.label(skip)

def kernel(name, body, vgpr, accum):
    return f""".text
.globl {name}
.p2align 8
.type {name},@function
{name}:
{body}{name}_end:
    s_endpgm
.section .rodata,"a"
.p2align 6
.amdhsa_kernel {name}
  .amdhsa_next_free_vgpr {vgpr}
  .amdhsa_next_free_sgpr 102
  .amdhsa_accum_offset {accum}
  .amdhsa_group_segment_fixed_size 0
  .amdhsa_kernarg_size 120
  .amdhsa_user_sgpr_count 2
  .amdhsa_user_sgpr_kernarg_segment_ptr 1
  .amdhsa_system_sgpr_workgroup_id_x 1
.end_amdhsa_kernel
"""
def header(launches):
    hdr = [l for l in open(REF).read().split("\n") if l.startswith(";") and "@launch" not in l]
    return "\n".join(hdr) + "\n" + "\n".join(launches) + '\n.amdgcn_target "amdgcn-amd-amdhsa--gfx950"\n'

def flow_split(a, hdma5, srds0, common_srds, caddr, elect, hl):
    p0_addr(a)
    a(f"s_cmp_eq_u32 s{sT2}, 0")
    a("s_cbranch_scc0 t2_path")
    a("s_waitcnt lgkmcnt(0)")
    stamp(a, 1)
    srds0(a)
    p0_issue(a, opt("p0ld", "nt"))
    srd(a, SH, 10, 11, TENS)
    common_srds(a)
    epoch_issue(a)
    stamp(a, 2)
    p1_prep_a(a)
    p0_compute(a, opt("ust", "sc1"))
    a("s_barrier")
    hdma5(a)
    stamp(a, 3)
    caddr(a)
    epoch_use(a)
    a("s_waitcnt lgkmcnt(0)")
    p1_prep_b(a)
    elect(a, 5, "t1_nosig", 1, 0, 0)
    a("s_waitcnt vmcnt(1)")
    a("s_branch t1_h")
    a.label("t1_nosig")
    a("s_waitcnt vmcnt(0)")
    a.label("t1_h")
    a.reset()
    stamp(a, 18)
    h_copies(a, vC1, [0, 1], vC2)
    p1_aload(a, range(4))
    stamp(a, 5)
    poll(a, "e1", vP1, True)
    stamp(a, 6)
    a(f"s_mov_b32 m0, s{sUB}")
    a(f"s_add_u32 s3, s90, {2*4096}")
    for q in (3, 2):
        a(f"buffer_load_dwordx4 v{vL16}, {sq(SU)}, s90 offen offset:{1024*q} sc1 lds")
    a(f"s_add_u32 s92, s{sUB}, {2*US}")
    a("s_mov_b32 m0, s92")
    a("s_nop 0")
    for q in (3, 2):
        a(f"buffer_load_dwordx4 v{vL16}, {sq(SU)}, s3 offen offset:{1024*q} sc1 lds")
    a.reset()
    h_copies(a, vC1, [2, 3])
    a("s_waitcnt vmcnt(0)")
    a("s_branch join")
    a.label("t2_path")
    a.reset()
    a(f"v_mov_b32 v56, {LDS_CTR}")
    a("v_mov_b32 v58, 0")
    a("v_mov_b32 v59, 0")
    a("ds_write_b64 v56, v[58:59]")
    p1_prep_a(a)
    a("s_waitcnt lgkmcnt(0)")
    srds0(a)
    srd(a, SH, 10, 11, TENS)
    common_srds(a)
    epoch_issue(a)
    a("s_waitcnt lgkmcnt(0)")
    epoch_use(a)
    a("s_barrier")
    hfirst = opt("hfirst", "0") == "1"
    if hfirst: hdma5(a)
    p0_issue(a, opt("p0ld", "nt"))
    if not hfirst: hdma5(a)
    stamp(a, 2)
    if hfirst:
        caddr(a)
        a.needv("h")
        stamp(a, 18)
        sv = (a.vn, a.vd, a.vt); a.reset()
        h_copies(a, vC1, [0, 1], vC2); p1_aload(a, range(4)); h_copies(a, vC1, [2, 3])
        a.vn, a.vd, a.vt = sv
    p0_compute(a, opt("ust", "sc1"), "2")
    stamp(a, 3)
    caddr(a)
    p1_prep_b(a)
    if not hfirst:
        a.needv("h")
        stamp(a, 18)
        a("s_waitcnt lgkmcnt(0)")
        a.reset()
        h_copies(a, vC1, [0, 1], vC2); p1_aload(a, range(4)); h_copies(a, vC1, [2, 3])
    elect(a, 0, "join", 1, 4, F1B)
    a.label("join")
    a("s_waitcnt lgkmcnt(0)")
    a("s_barrier")
    a.reset()
    for r in range(FE0, FE0 + 4): a(f"v_mov_b32 v{r}, -1")
    h_copies(a, vC3, [0], vC4)

def flow_unsplit(a, hdma5, srds0, common_srds, caddr, elect, hl):
    a(f"s_cmp_eq_u32 s{sW}, 3")
    a("s_cbranch_scc1 w3_path")
    p0_addr(a)
    a("s_waitcnt lgkmcnt(0)")
    stamp(a, 1)
    srds0(a)
    p0_issue(a, opt("p0ld", "nt"))
    srd(a, SH, 10, 11, TENS)
    common_srds(a)
    epoch_issue(a)
    hpos = opt("hpos", "late")
    if hpos == "early":
        a("s_barrier")
        hdma5(a)
    stamp(a, 2)
    if opt("arr", "0") == "1":
        a("s_waitcnt vmcnt(14)"); stamp(a, 19); a("s_waitcnt vmcnt(1)"); stamp(a, 15)
    p1_prep_a(a)
    p0_compute(a, opt("ust", "sc1"))
    stamp(a, 16)
    if hpos == "late":
        hdma5(a)
        a("s_barrier")
    stamp(a, 3)
    caddr(a)
    epoch_use(a)
    a("s_waitcnt lgkmcnt(0)")
    p1_prep_b(a)
    if hpos == "late":
        elect(a, 4 if opt("hdef", "0") == "1" else 5, "nosig", 2)
        a("s_waitcnt vmcnt(1)")
        a("s_branch have_h")
        a.label("nosig")
        a("s_waitcnt vmcnt(0)")
        a("s_branch have_h")
    else:
        a.reset()
        h_copies(a, vC1, [0, 1], vC2)
        p1_aload(a, range(4))
        elect(a, 0, "part2", 2)
        a("s_branch part2")
    a.reset()
    a.label("w3_path")
    if opt("il", "0").startswith("bar"):
        for k in range(int(opt("il", "0")[3:])): a("s_barrier")
    if opt("dry0", "0") == "1":
        a("s_mov_b64 exec, 0")
        a("s_branch p0_body")
        a.label("p0_dry_back")
        a("s_mov_b64 exec, -1")
    caddr(a)
    a(f"v_mov_b32 v56, {LDS_CTR}")
    a(f"ds_write_b32 v56, v{ZR}")
    p1_prep_a(a)
    a("s_waitcnt lgkmcnt(0)")
    srd(a, SH, 10, 11, TENS)
    common_srds(a)
    ntw = int(opt("tw", "0"))
    if ntw:
        a(f"s_cmp_ge_u32 s2, {ntw}")
        a("s_cbranch_scc1 no_tw")
        srd(a, SX, 14, 15, TENS)
        a(f"v_mul_u32_u24 v57, 0x12000, v{vLANE}")
        for sr in (SU, SY):
            a(f"buffer_load_dword v58, v57, {sq(sr)}, 0 offen nt")
        a(f"v_mul_u32_u24 v57, 0x9000, v{vLANE}")
        for sr in (SX, SO, SH):
            a(f"buffer_load_dword v58, v57, {sq(sr)}, 0 offen nt")
        a.label("no_tw")
    epoch_issue(a)
    a("s_waitcnt lgkmcnt(0)")
    p1_prep_b(a)
    epoch_use(a)
    a("s_waitcnt lgkmcnt(0)")
    a("s_barrier")
    hdma5(a)
    a("s_waitcnt vmcnt(0)")
    a.label("have_h")
    a.reset()
    stamp(a, 18)
    if opt("pp", "0") == "1":
        a(f"buffer_load_dword v238, v{vP1}, {sq(SF)}, 0 offen sc1")
    h_copies(a, vC1, [0, 1], vC2)
    p1_aload(a, range(4))
    a.label("part2")
    a.reset()
    pre = opt("pre", "0") == "1"
    if pre:
        h_copies(a, vC1, [2, 3])
        if opt("ein", "0") == "1" or opt("pre2", "0") == "1": p1_aload(a, range(4, 8))
    stamp(a, 5)
    if opt("clr", "fill") == "w23":
        a(f"s_cmp_lt_u32 s{sW}, 2")
        a("s_cbranch_scc1 do_poll")
        for r in range(FE0, FE0 + 4): a(f"v_mov_b32 v{r}, -1")
        a("s_sub_u32 s92, s88, 8192")
        for so in ("s92", "s88"):
            for q in range(4):
                a(f"buffer_store_dwordx4 {vr(FE0)}, v{vL16}, {sq(SY)}, {so} offen offset:{1024*q} sc1")
        a(f"buffer_store_dwordx4 {vr(FE0)}, v{vL16}, {sq(SY)}, s99 offen sc1")
        a("s_branch e1_ok")
        a.label("do_poll")
    poll(a, "e1", vP1, True)
    a("s_barrier")
    a.reset()
    stamp(a, 6)
    a(f"s_mov_b32 m0, s{sUB}")
    a("s_nop 0")
    hdef = opt("hdef", "0") == "1"
    for q in (3, 2):
        a.vm(f"buffer_load_dwordx4 v{vL16}, {sq(SU)}, s90 offen offset:{1024*q} {opt('uld', 'sc1')} lds", f"U{q}")
    if hdef:
        a(f"s_add_u32 s92, s{sHB}, {3*CS + 32}")
        a("s_mov_b32 m0, s92")
        a("s_nop 0")
        for q in (2, 3):
            a.vm(f"buffer_load_dwordx4 v{vL16}, {sq(SH)}, s98 offen offset:{1024*q} {hl} lds", "h2")
        a(f"s_mov_b32 m0, s{sUB}")
        a("s_nop 0")
    for q in (1, 0):
        a.vm(f"buffer_load_dwordx4 v{vL16}, {sq(SU)}, s90 offen offset:{1024*q} {opt('uld', 'sc1')} lds", f"U{q}")
    a("s_mov_b32 m0, s85")
    a("s_nop 0")
    a.vm(f"buffer_load_dwordx4 v{vL16}, {sq(SU)}, s91 offen {opt('uld', 'sc1')} lds", "UE")
    for r in range(FE0, FE0 + 4): a(f"v_mov_b32 v{r}, -1")
    if opt("clr", "fill") == "pre":
        for q in range(4):
            a.vm(f"buffer_store_dwordx4 {vr(FE0)}, v{vL16}, {sq(SY)}, s88 offen offset:{1024*q} sc1")
        a("s_mov_b32 exec_hi, 0")
        a.vm(f"buffer_store_dwordx4 {vr(FE0)}, v{vL16}, {sq(SY)}, s99 offen sc1")
        a("s_mov_b64 exec, -1")
    if opt("xpre", "0") == "1":
        a.vm(f"buffer_load_dwordx4 {vr(XR)}, v{vL16}, {sq(SX)}, s{sXO} offen nt")
        a.vm(f"buffer_load_dwordx4 {vr(XR+4)}, v{vL16}, {sq(SX)}, s{sXO} offen offset:{ROWB} nt")
        a.vm(f"buffer_load_ushort v{XR+8}, v{vL2}, {sq(SX)}, s{sXO} offen offset:1024 nt")
        a.vm(f"buffer_load_ushort v{XR+9}, v{vL2}, {sq(SX)}, s{sXO} offen offset:{1024+ROWB} nt", "X")
    if not pre and not hdef:
        h_copies(a, vC1, [2, 3])
        if opt("ein", "0") == "1": p1_aload(a, range(4, 8))
    if opt("ein", "0") != "1": h_copies(a, vC3, [0], vC4)

def gen_fused():
    K = NAME + "_kernel"
    sent = opt("x2", "flag") == "sent"
    NEL = 4 if sent else 3
    out = header([f"; @launch grid=(256,1,1) block=(256,1,1) lds={LDS_TOT + int(opt('ldsx', '0'))}"])
    a = A()
    hl = opt("hld", "")
    stamp(a, 0)
    if int(opt("pad", "0")):
        a("s_memrealtime s[94:95]"); a("s_waitcnt lgkmcnt(0)"); a("v_mov_b32 v255, s94")
    prologue(a, K + "_end")
    def common_srds(a):
        srd(a, SF, 20, 21, F_BYTES, F_OFF)
        srd(a, SU, 20, 21, U_BYTES, U_OFF)
        srd(a, SY, 20, 21, Y_BYTES, YM_OFF)
        srd(a, SO, 16, 17, TENS)
        a(f"s_lshr_b32 s90, s{sCH}, 1")
        a("s_lshl_b32 s90, s90, 2")
        a(f"s_lshr_b32 s91, s{sCE}, 1")
        a("s_lshl_b32 s91, s91, 2")
        a(f"s_load_dword s{sDM}, s[12:13], s90")
        a(f"s_load_dword s{sDE}, s[12:13], s91")
    tail = []
    def caddr(a):
        for r in range(ZR, ZR + 4): a(f"v_mov_b32 v{r}, 0")
        a(f"v_add_u32 v{vC1}, s{sHB}, v{vL16}")
        a(f"v_mov_b32 v{vC2}, s{sHB}")
        a(f"v_mov_b32 v{vC4}, {4*HB}")
    def hsec(a):
        a.reset()
        h_copies(a, vC1, [0, 1], vC2)
        p1_aload(a, range(4))
        h_copies(a, vC1, [2, 3])
        p1_aload(a, range(4, 8))
    def elect(a, wait, nxt, last, coff=0, foff=0):
        a(f"v_mov_b32 v238, {LDS_CTR + coff}")
        a("v_mov_b32 v239, 1")
        a(f"s_lshl_b32 s92, s{sFI}, 7")
        if foff: a(f"s_add_u32 s92, s92, {foff}")
        a(f"s_waitcnt vmcnt({wait})")
        a("s_mov_b64 exec, 1")
        a("ds_add_rtn_u32 v253, v238, v239")
        a("s_waitcnt lgkmcnt(0)")
        a("v_readfirstlane_b32 s3, v253")
        a("s_mov_b64 exec, -1")
        a(f"s_cmp_eq_u32 s3, {last}")
        a(f"s_cbranch_scc0 {nxt}")
        signal(a, 92, int(opt("rep", "1")))
        stamp(a, 4)
    def hdma5(a):
        if opt("hdef", "0") == "1":
            a(f"s_lshl_b32 s98, s{sCH}, 12")
            a(f"s_add_u32 s92, s{sHB}, {3*CS + 32}")
            a("s_mov_b32 m0, s92")
            a("s_nop 0")
            for q in range(2):
                a.vm(f"buffer_load_dwordx4 v{vL16}, {sq(SH)}, s98 offen offset:{1024*q} {hl} lds")
            a("s_mov_b64 exec, 1")
            a.vm(f"buffer_load_dwordx4 v{vL16}, {sq(SH)}, s98 offen offset:2048 {hl} lds")
            a("s_mov_b64 exec, -1")
        else:
            h_dma(a, sCH, sHB, 0, hl, None)
        a(f"s_lshl_b32 s3, s{sCE}, 12")
        a(f"s_lshl_b32 s92, s{sW}, 10")
        a("s_add_u32 s3, s3, s92")
        a(f"s_add_u32 s92, s92, {4*HB + 3*CS + 32}")
        a("s_mov_b32 m0, s92")
        a("s_nop 0")
        a.vm(f"buffer_load_dwordx4 v{vL16}, {sq(SH)}, s3 offen {hl} lds", "h")
    def srds0(a):
        srd(a, SK, 4, 5, TENS); srd(a, SV, 6, 7, TENS); srd(a, SSH, 8, 9, D * 8)
    (flow_split if SPLIT() else flow_unsplit)(a, hdma5, srds0, common_srds, caddr, elect, hl)
    p1_mfma(a, opt("yst", "sc1"), tail)
    p2_first(a)
    y_addr(a)
    if opt("dry2", "0") == "1":
        a("s_mov_b64 exec, 0")
        a("s_branch p2_body")
        a.label("p2_dry_back")
        a("s_mov_b64 exec, -1")
    a(f"s_or_b32 s3, s2, s{sW}")
    a("s_cmp_eq_u32 s3, 0")
    a("s_cbranch_scc0 no_epoch")
    a(f"s_mov_b32 s3, {EP}")
    signal(a, 3)
    a.label("no_epoch")
    stamp(a, 10)
    y_check(a)
    stamp(a, 11)
    y_write(a)
    a("s_barrier")
    stamp(a, 12)
    if opt("q", "0") == "2": stamp(a, 24, True)
    p2_rest(a, opt("ost", "sc1"))
    qstamp(a, 7, "2"); qflush(a, "2")
    if opt("q2", "0") == "1": stamp(a, 27, True)
    stamp(a, 13)
    if STAMPS: a("s_waitcnt vmcnt(0)")
    stamp(a, 14)
    if int(opt("pad", "0")):
        if opt("gpad", "0") == "1":
            srd(a, 96, 18, 19, 256)
            a("v_mov_b32 v13, 0")
            a("buffer_load_dword v12, v13, s[96:99], 0 offen sc1")
            a("s_waitcnt vmcnt(0)")
            a("v_readfirstlane_b32 s100, v12")
            a("s_not_b32 s100, s100")
        a("v_readfirstlane_b32 s100, v255")
        a.label("padl")
        a("s_memrealtime s[98:99]")
        a("s_waitcnt lgkmcnt(0)")
        a("s_sub_u32 s98, s98, s100")
        a(f"s_cmp_lt_u32 s98, {opt('pad', '0')}")
        a("s_cbranch_scc1 padl")
    stamp_flush(a)
    a("s_endpgm")
    for f in tail: f(a)
    out += kernel(K, a.text(), 512, 256)
    return out

if __name__ == "__main__":
    path = sys.argv[1]
    STAMPS = "--stamps" in sys.argv
    for x in sys.argv[2:]:
        if "=" in x:
            k_, v_ = x.split("=", 1); OPT[k_] = v_
    open(path, "w").write(gen_fused())
```

```python
import sys
NAME = "interleave_layers__ssm_conv_h3__ssm_conv_h3__prompt"
REF = f"cdna_kernels/{NAME}.s.ref"
OPT = {}
STAMPS = False
def opt(k, d): return OPT.get(k, d)
def T64(): return opt("tile", "32") == "64"
def SPLIT(): return opt("split", "0") == "1"

S, D = 2048, 576
ROWB = D * 2
TENS = S * ROWB
import os
PADS = [int(x) for x in os.environ.get("PADS", "128,384,128").split(",")]
UG, YG, YEG = 4096 + PADS[0], 16384 + PADS[1], 8192 + PADS[2]
U_OFF = 0;            U_BYTES = 2 * D * UG
YM_OFF = U_BYTES;     YM_BYTES = 256 * YG
YE_OFF = YM_BYTES;    YE_BYTES = 64 * YEG
Y_BYTES = YM_BYTES + YE_BYTES
F_OFF = YM_OFF + Y_BYTES
F2 = 0; F2A = 131072; EP = 163840; FD = 196608; F1B = 0; F_BYTES = FD + 131072
ST_OFF = 0xA00000
assert YM_OFF + YM_BYTES + YE_BYTES + 400000 < ST_OFF
CS = 4160; HB = 4 * CS
US = 4608; U_BASE = 5 * HB; UE = U_BASE + 4 * US
LDS_CTR = U_BASE + 5 * US
Y_LDS = 0; YR = 1028; YBR = 9 * YR + 12
T_LDS = LDS_CTR + 64; TR = 144
E_LDS = T_LDS + 128 * TR
R_LDS = E_LDS + 2560
LDS_TOT = R_LDS + 16384

class A:
    def __init__(self):
        self.l = []; self.reset()
    def reset(self):
        self.ln = 0; self.ld = 0; self.lt = {}
        self.vn = 0; self.vd = 0; self.vt = {}
    def __call__(self, s): self.l.append("    " + s)
    def label(self, s): self.l.append(s + ":")
    def text(self): return "\n".join(self.l) + "\n"
    def lds(self, s, tag=None):
        self(s); self.ln += 1
        if tag is not None: self.lt[tag] = self.ln
    def vm(self, s, tag=None):
        self(s); self.vn += 1
        if tag is not None: self.vt[tag] = self.vn
    def need(self, *tags):
        k = max([self.lt[t] for t in tags if t in self.lt] + [0])
        if k > self.ld:
            n = min(15, self.ln - k); self(f"s_waitcnt lgkmcnt({n})"); self.ld = self.ln - n
    def needv(self, *tags):
        k = max([self.vt[t] for t in tags] + [0])
        if k > self.vd:
            n = min(63, self.vn - k); self(f"s_waitcnt vmcnt({n})"); self.vd = self.vn - n

def srd(a, d, lo, hi, size, add=None):
    if add:
        a(f"s_add_u32 s{d}, s{lo}, {add}")
        a(f"s_addc_u32 s{d+1}, s{hi}, 0")
    else:
        a(f"s_mov_b32 s{d}, s{lo}")
        a(f"s_mov_b32 s{d+1}, s{hi}")
    a(f"s_mov_b32 s{d+2}, {size}")
    a(f"s_mov_b32 s{d+3}, 0x00020000")

SK, SV, SSH, SH, SU, SY, SX, SO, SF = 24, 28, 32, 36, 40, 44, 48, 52, 56
sX, sQ, sB, sP, sW = 60, 61, 62, 63, 64
sB0, sCF, sRB = 69, 70, 71
sCH, sCE, sJE, sHB, sUB, sDM, sDE, sFI, sHF, sTAG = 72, 73, 74, 75, 76, 77, 78, 79, 82, 83
sYM, sYE, sXO, sT2 = 80, 81, 84, 100
vLANE, vL16, vL2 = 250, 251, 252

def stamp(a, idx, cyc=False):
    if opt("padat", "x") == str(idx) and not cyc:
        a("s_memrealtime s[94:95]"); a("s_waitcnt lgkmcnt(0)"); a("v_mov_b32 v255, s94")
    if not STAMPS: return
    a(("s_memtime" if cyc else "s_memrealtime") + " s[94:95]")
    a("s_waitcnt lgkmcnt(0)")
    a(f"v_writelane_b32 v255, s94, {idx}")
def qstamp(a, i, mode="1"):
    if STAMPS and opt("q", "0") == mode: a(f"s_memtime s[{4+2*i}:{5+2*i}]")
def qflush(a, mode="1"):
    if STAMPS and opt("q", "0") == mode:
        a("s_waitcnt lgkmcnt(0)")
        for i in range(8): a(f"v_writelane_b32 v255, s{4+2*i}, {20+i if i < 4 else 24+i}")
def stamp_flush(a):
    if not STAMPS: return
    srd(a, 96, 20, 21, 0x100000, ST_OFF)
    a("s_lshl_b32 s94, s2, 2")
    a(f"s_add_u32 s94, s94, s{sW}")
    a("s_lshl_b32 s94, s94, 7")
    a(f"v_lshlrev_b32 v254, 2, v{vLANE}")
    a("s_mov_b32 exec_hi, 0")
    a("buffer_store_dword v255, v254, s[96:99], s94 offen sc1")

def vr(r, n=4): return f"v[{r}:{r+n-1}]"
def ar(r, n=4): return f"a[{r}:{r+n-1}]"
def pr(r): return f"v[{r}:{r+1}]"
def sq(r): return f"s[{r}:{r+3}]"
DPP = "row_mask:0xf bank_mask:0xf"

def prologue(a, end):
    a("s_cmp_ge_u32 s2, 256")
    a(f"s_cbranch_scc1 {end}")
    a(f"s_lshr_b32 s{sB0}, s2, 7")
    a(f"s_mul_i32 s3, s{sB0}, 48")
    a("s_add_u32 s22, s0, s3")
    a("s_addc_u32 s23, s1, 0")
    a("s_load_dwordx4 s[4:7], s[22:23], 8")
    a("s_load_dwordx2 s[8:9], s[22:23], 24")
    a(f"s_and_b32 s{sX}, s2, 7")
    a(f"s_lshr_b32 s{sQ}, s2, 3")
    a(f"s_lshr_b32 s{sB}, s{sX}, 2")
    a(f"s_mul_i32 s3, s{sB}, 48")
    a("s_add_u32 s22, s0, s3")
    a("s_addc_u32 s23, s1, 0")
    a("s_load_dwordx2 s[10:11], s[22:23], 32")
    a("s_load_dwordx2 s[12:13], s[22:23], 40")
    a("s_load_dwordx2 s[14:15], s[0:1], 0")
    a("s_load_dwordx4 s[16:19], s[0:1], 96")
    a("s_load_dwordx2 s[20:21], s[0:1], 112")
    npf = int(opt("cpf", "32"))
    if npf:
        K = NAME + "_kernel"
        spread_ = opt("cpfs", "1") == "1"
        if not spread_:
            a(f"s_cmp_ge_u32 s2, {npf}")
            a("s_cbranch_scc1 no_cpf")
        a("s_getpc_b64 s[96:97]")
        a.label("cpf_base")
        if spread_:
            a("s_lshr_b32 s3, s2, 3")
            a("s_lshl_b32 s3, s3, 10")
            a("v_and_b32 v12, 7, v0")
            a("v_lshl_add_u32 v12, v12, 7, s3")
        else:
            a("v_lshlrev_b32 v12, 7, v0")
        a(f"v_min_u32 v12, {K}_end - cpf_base, v12")
        a("v_mov_b32 v13, s97")
        a("v_add_co_u32 v12, vcc, s96, v12")
        a("v_cmp_gt_u32 s[24:25], 8, v0" if spread_ else "s_nop 0")
        a("s_nop 0")
        a("v_addc_co_u32 v13, vcc, 0, v13, vcc")
        if spread_:
            a("s_and_saveexec_b64 s[26:27], s[24:25]")
            a("s_cbranch_execz cpf_skip")
        a("global_load_dword v254, v[12:13], off")
        if spread_:
            a.label("cpf_skip")
            a("s_mov_b64 exec, s[26:27]")
        a.label("no_cpf")
    a("v_lshrrev_b32 v1, 6, v0")
    a(f"v_and_b32 v{vLANE}, 63, v0")
    a(f"v_readfirstlane_b32 s{sW}, v1")
    a(f"v_lshlrev_b32 v{vL16}, 4, v{vLANE}")
    a(f"v_lshlrev_b32 v{vL2}, 1, v{vLANE}")
    if SPLIT() or T64():
        a(f"s_and_b32 s{sCF}, s{sQ}, 3")
        a(f"s_bfe_u32 s{sRB}, s{sQ}, 0x20002")
        a(f"s_lshl_b32 s3, s{sX}, 2")
        a(f"s_add_u32 s{sRB}, s{sRB}, s3")
        a(f"s_lshl_b32 s{sFI}, s{sB0}, 7")
        a(f"s_lshl_b32 s3, s{sCF}, 5")
        a(f"s_add_u32 s{sFI}, s{sFI}, s3")
        a(f"s_add_u32 s{sFI}, s{sFI}, s{sRB}")
        a(f"s_lshr_b32 s{sT2}, s{sW}, 1")
    else:
        a(f"s_and_b32 s{sCF}, s{sQ}, 1")
        a(f"s_bfe_u32 s{sRB}, s{sQ}, 0x30001")
        a(f"s_lshl_b32 s3, s{sX}, 3")
        a(f"s_add_u32 s{sRB}, s{sRB}, s3")
        a(f"s_lshl_b32 s{sFI}, s{sB0}, 7")
        a(f"s_lshl_b32 s3, s{sCF}, 6")
        a(f"s_add_u32 s{sFI}, s{sFI}, s3")
        a(f"s_add_u32 s{sFI}, s{sFI}, s{sRB}")
    a(f"s_and_b32 s{sP}, s{sX}, 3")
    a(f"s_lshl_b32 s{sP}, s{sP}, 4")
    a(f"s_lshr_b32 s3, s{sQ}, 1")
    a(f"s_add_u32 s{sP}, s{sP}, s3")
    a(f"s_and_b32 s{sHF}, s{sQ}, 1")
    a(f"s_lshl_b32 s{sCH}, s{sP}, 3")
    a(f"s_lshl_b32 s3, s{sHF}, 2")
    a(f"s_add_u32 s{sCH}, s{sCH}, s3")
    a(f"s_add_u32 s{sCH}, s{sCH}, s{sW}")
    a(f"s_add_u32 s{sCE}, s{sP}, 512")
    a(f"s_cmp_eq_u32 s{sHF}, 0")
    a(f"s_cselect_b32 s{sJE}, 0x7520, 0x6431") if False else None
    a("s_mov_b32 s3, 0x6431")
    a(f"s_cselect_b32 s{sJE}, 0x7520, s3")
    a(f"s_lshl_b32 s3, s{sW}, 2")
    a(f"s_lshr_b32 s{sJE}, s{sJE}, s3")
    a(f"s_and_b32 s{sJE}, s{sJE}, 7")
    a(f"s_mul_i32 s{sHB}, s{sW}, {HB}")
    a(f"s_mul_i32 s{sUB}, s{sW}, {US}")
    a(f"s_add_u32 s{sUB}, s{sUB}, {U_BASE}")

def kraw(t): return 8 + 4 * t
def hraw(j): return 40 + 4 * j
def vraw(t): return 52 + 4 * t
vA1, vA2, vA3, vA4, vA7 = 242, 243, 244, 245, 246
def EXH(): return 0xf if SPLIT() else 0xffff
def p0_addr(a):
    sh, nm, rows = (3, 16, 64) if T64() else (2, 32, 32)
    a(f"v_lshrrev_b32 v247, {sh}, v{vLANE}")
    a(f"s_mul_i32 s68, s{sW}, {48 >> sh}")
    a("v_add_u32 v247, s68, v247")
    a(f"v_and_b32 v248, {(1 << sh) - 1}, v{vLANE}")
    a(f"s_mul_i32 s66, s{sCF}, {nm}")
    a(f"s_mul_i32 s67, s{sCF}, {nm // 8}")
    a(f"s_add_u32 s67, s67, {64 - nm}")
    a(f"v_cmp_gt_u32 vcc, {nm}, v247")
    a("v_add_u32 v249, s67, v247")
    a("v_add_u32 v247, s66, v247")
    a("v_cndmask_b32 v247, v249, v247, vcc")
    a(f"s_mul_i32 s65, s{sRB}, {rows*ROWB}")
    a(f"v_mul_u32_u24 v{vA1}, {8*ROWB}, v248")
    a(f"v_lshlrev_b32 v{vA7}, 4, v247")
    a(f"v_add3_u32 v{vA1}, v{vA1}, v{vA7}, s65")
    a(f"v_add_u32 v{vA2}, {4*ROWB}, v{vA1}")
    a(f"v_subrev_u32 v{vA3}, {3*ROWB}, v{vA1}")
    a("v_lshlrev_b32 v248, 4, v248")
    a("v_and_b32 v249, 48, v248")
    a(f"v_lshl_add_u32 v{vA7}, v247, 6, v249")
    a(f"s_mul_i32 s65, s{sB0}, {576*UG}")
    a("s_add_u32 s65, s65, 4080")
    a(f"s_mul_i32 s66, s{sRB}, {2*rows}")
    a("s_sub_u32 s65, s65, s66")
    a(f"v_mul_u32_u24 v{vA4}, {8*UG}, v247")
    a(f"v_sub_u32 v{vA4}, v{vA4}, v248")
    a(f"v_add_u32 v{vA4}, s65, v{vA4}")

def p0_issue(a, fl):
    def row(t): return (f"v{vA1}", t * ROWB) if t < 4 else (f"v{vA2}", (t - 4) * ROWB)
    def ldk(t):
        b, o = row(t); a.vm(f"buffer_load_dwordx4 {vr(kraw(t))}, {b}, {sq(SK)}, 0 offen offset:{o} {fl}", f"K{t}")
    def ldv(t):
        b, o = row(t); a.vm(f"buffer_load_dwordx4 {vr(vraw(t))}, {b}, {sq(SV)}, 0 offen offset:{o} {fl}", f"V{t}")
    if opt("il", "0") == "prio": a("s_setprio 3")
    a(f"s_mov_b32 exec_hi, {EXH()}")
    a.vm(f"buffer_load_dwordx4 v[84:87], v{vA7}, {sq(SSH)}, 0 offen", "W")
    for t in (5, 6, 7): ldk(t)
    HM = 0x01010101 if T64() else 0x11111111
    a(f"s_mov_b32 exec_lo, {HM}")
    a(f"s_mov_b32 exec_hi, {EXH() & HM}")
    for j in range(3):
        a.vm(f"buffer_load_dwordx4 {vr(hraw(j))}, v{vA3}, {sq(SK)}, 0 offen offset:{j*ROWB} {fl}", f"H{j}")
    a("s_mov_b32 exec_lo, -1")
    a(f"s_mov_b32 exec_hi, {EXH()}")
    il = opt("il", "0")
    def step(k):
        if il == "prio": a(f"s_setprio {3 - k}")
        if il.startswith("bar") and k <= int(il[3:]): a("s_barrier")
    step(1)
    for t in range(5):
        ldk(t); ldv(t)
        if t == 1: step(2)
        if t == 3: step(3)
    for t in (5, 6, 7): ldv(t)
    a("s_mov_b64 exec, -1")

def unpack(a, dlo, dhi, src):
    a(f"v_lshlrev_b32 v{dlo}, 16, v{src}")
    a(f"v_and_b32 v{dhi}, 0xffff0000, v{src}")

def p0_compute(a, stflag, sfx=""):
    def W(p, j): return 88 + 8 * p + 2 * j
    def Kf(j, c): return 120 + 8 * (j & 7) + c
    def U(t, c): return 184 + 8 * (t & 3) + c
    OUTS = [hraw(0), hraw(1), hraw(2), kraw(0), kraw(1), vraw(0), vraw(1), 84]
    VT = 216
    HM = 0x01010101 if T64() else 0x11111111
    HD = "row_shr:1" if T64() else "quad_perm:[0,0,1,2]"
    a(f"s_mov_b32 vcc_lo, {HM}")
    a(f"s_mov_b32 vcc_hi, {HM}")
    a("v_mov_b32 v224, 0xffff0000")
    for c in range(1, 8):
        a(f"s_mov_b32 s{3+c}, {UG*c}")
    a.label("p0_body" + sfx)
    a.needv("W")
    for c in range(8):
        p, h = c >> 1, c & 1
        for half in range(2):
            i = 2 * c + half; s_ = i >> 2; qp = f"quad_perm:[{s_},{s_},{s_},{s_}] {DPP}"
            a(f"v_cvt_f32_bf16_dpp v{W(p,2*half)+h}, v{84+(i&3)} {qp}")
            a(f"v_and_b32_dpp v{W(p,2*half+1)+h}, v{84+(i&3)}, v224 {qp}")
    for j in range(3):
        a.needv(f"H{j}")
        for p in range(4):
            a(f"v_cndmask_b32_dpp v{hraw(j)+p}, v{kraw(5+j)+p}, v{hraw(j)+p}, vcc {HD} {DPP}")
        for p in range(4): unpack(a, Kf(j, 2*p), Kf(j, 2*p+1), hraw(j) + p)
    def kun(t):
        for p in range(4): unpack(a, Kf(t+3, 2*p), Kf(t+3, 2*p+1), kraw(t) + p)
    def ksum(t):
        for p in range(4):
            a(f"v_pk_mul_f32 {pr(U(t,2*p))}, {pr(Kf(t,2*p))}, {pr(W(p,3))}")
        for jj in (2, 1, 0):
            for p in range(4):
                a(f"v_pk_fma_f32 {pr(U(t,2*p))}, {pr(Kf(t+3-jj,2*p))}, {pr(W(p,jj))}, {pr(U(t,2*p))}")
    def vmul(t):
        a.needv(f"V{t}")
        if t == 7: stamp(a, 17)
        for p in range(4): unpack(a, VT + 2*p, VT + 2*p + 1, vraw(t) + p)
        for p in range(4):
            a(f"v_pk_mul_f32 {pr(U(t,2*p))}, {pr(U(t,2*p))}, {pr(VT+2*p)}")
    def cvt(t):
        q = (7 - t) // 2
        if t == 7 and opt("dry0", "0") == "1": a("s_cbranch_execz p0_dry_back")
        if t == 7: a(f"s_mov_b32 exec_hi, {EXH()}")
        for c in range(8):
            a(f"v_cvt_pk_bf16_f32 v{OUTS[c]+q}, v{U(t, c)}, v{U(t-1, c)}")
            if t == 7:
                so = "0" if c == 0 else f"s{3+c}"
                a.vm(f"buffer_store_dwordx4 {vr(OUTS[c])}, v{vA4}, {sq(SU)}, {so} offen {stflag}", "UST")
        if t == 7: a("s_mov_b64 exec, -1")
    for t in range(5):
        a.needv(f"K{t}")
        kun(t)
        ksum(t)
        if t <= 2: kun(5 + t)
        if t == 4:
            for tt in (5, 6, 7): ksum(tt)
        vmul(t)
        if t & 1: cvt(t)
    for t in (5, 6, 7):
        vmul(t)
        if t & 1: cvt(t)

ACC, ACCE, FB, AE, FE0, PD, EV = 8, 40, 56, 120, 184, 216, 220
vTW, vTR, vFE, vEW, vER, vRW, vRR, vUD, vP1, vP2, vYM, vYE, vYG, vYR = range(224, 238)
vPB = 254
RED, UD, STG, ES, TRD, YP, XR = 120, 136, 138, 140, 144, 152, 240
TJ = ((0, 2, 5, 7), (1, 3, 4, 6))

def h_dma(a, ch, ldsbase_s, ldsconst, flag, tag):
    a(f"s_lshl_b32 s3, s{ch}, 12")
    if ldsbase_s is not None:
        a(f"s_add_u32 s92, s{ldsbase_s}, {ldsconst + 3*CS + 32}")
        a("s_mov_b32 m0, s92")
    else:
        a(f"s_mov_b32 m0, {ldsconst + 3*CS + 32}")
    a("s_nop 0")
    for q in range(4):
        a.vm(f"buffer_load_dwordx4 v{vL16}, {sq(SH)}, s3 offen offset:{1024*q} {flag} lds", tag)

hc_n = [0]
vC1, vC2, vC3, vC4, ZR = 176, 177, 178, 179, 180
def h_copy_ops(a, vR, qs, head=None):
    hc_n[0] += 1; u = hc_n[0]
    Dq = lambda i: 120 + 8 * i
    ops = []
    def L(c, s_, tag=None): ops.append((c, lambda: a.lds(s_, tag)))
    def V(s_, need=None): ops.append((4, lambda: ((a.need(need) if need else None), a(s_))))
    for i, q in enumerate(qs):
        L(6, f"ds_read_b128 {vr(Dq(i))}, v{vR} offset:{3*CS + 32 + 1024*q}")
        L(4, f"ds_read_b64 {pr(Dq(i)+4)}, v{vR} offset:{3*CS + 48 + 1024*q}", ("HC", u, i))
    if head is not None:
        L(4, f"ds_read_b64 v[138:139], v{head} offset:{3*CS + 32}", ("HH", u))
    for i, q in enumerate(qs):
        d = Dq(i); o = 16 * (i & 1); T0, T1, T2, O4 = 144 + o, 148 + o, 152 + o, 156 + o
        for k in range(4):
            V(f"v_alignbit_b32 v{T0+k}, v{d+k+1}, v{d+k}, 16", ("HC", u, i) if k == 0 else None)
        V(f"v_alignbit_b32 v{O4}, v{d+5}, v{d+4}, 16")
        V(f"v_pk_mov_b32 {pr(T1)}, {pr(d)}, {pr(d+2)} op_sel:[1,0]")
        V(f"v_pk_mov_b32 {pr(T1+2)}, {pr(d+2)}, {pr(d+4)} op_sel:[1,0]")
        V(f"v_pk_mov_b32 {pr(T2)}, {pr(T0)}, {pr(T0+2)} op_sel:[1,0]")
        V(f"v_pk_mov_b32 {pr(T2+2)}, {pr(T0+2)}, {pr(O4)} op_sel:[1,0]")
        L(8, f"ds_write_b128 v{vR}, {vr(T0)} offset:{32 + 1024*q}")
        L(8, f"ds_write_b128 v{vR}, {vr(T1)} offset:{CS + 32 + 1024*q}")
        L(8, f"ds_write_b128 v{vR}, {vr(T2)} offset:{2*CS + 32 + 1024*q}", ("HW", u))
    if head is not None:
        V(f"v_sub_u32 v137, 3, v{vLANE}")
        V("v_lshlrev_b32 v137, 4, v137")
        V("v_lshlrev_b64 v[138:139], v137, v[138:139]", ("HH", u))
        V(f"v_cmp_eq_u32 vcc, 3, v{vLANE}")
        V(f"v_mul_u32_u24 v137, {CS}, v{vLANE}")
        V(f"v_add_u32 v140, v137, v{head}")
        V("v_cndmask_b32 v138, v138, 0, vcc")
        V("v_cndmask_b32 v139, v139, 0, vcc")
        V("v_mov_b32 v136, 0")
        V("v_mov_b32 v137, 0")
        def hw():
            a("s_mov_b64 exec, 15")
            a.lds(f"ds_write_b128 v140, {vr(ZR)}")
            a.lds("ds_write_b128 v140, v[136:139] offset:16", ("HW", u))
            a("s_mov_b64 exec, -1")
        ops.append((8, hw))
    return ops, ("HW", u)
def h_copies(a, vR, qs, head=None):
    ops, tag = h_copy_ops(a, vR, qs, head)
    for c, f in ops: f()
    return tag

def p1_prep_a(a):
    a(f"v_and_b32 v1, 15, v{vLANE}")
    a(f"v_lshrrev_b32 v2, 4, v{vLANE}")
    a("v_and_b32 v3, 3, v1")
    a("v_cmp_eq_u32 vcc, 3, v3")
    a(f"v_mul_u32_u24 v3, {CS}, v3")
    a("v_and_b32 v4, 12, v1")
    a("v_lshlrev_b32 v4, 1, v4")
    a("v_add_u32 v3, v3, v4")
    a("v_cndmask_b32 v4, 0, 8, vcc")
    a("v_add_u32 v3, v3, v4")
    a("v_lshl_add_u32 v3, v2, 4, v3")
    a(f"v_add_u32 v5, s{sHB}, v3")
    a(f"s_lshl_b32 s93, s{sW}, 7")
    a(f"s_add_u32 s3, s93, {4*HB}")
    a("v_add_u32 v6, s3, v3")

def p1_prep_b(a):
    a(f"v_add_u32 v8, s{sUB}, v{vL16}")
    a(f"s_add_u32 s3, s93, {UE - 512}")
    a(f"v_add_u32 v9, s3, v{vL16}")
    a(f"v_cmp_gt_u32 vcc, 32, v{vLANE}")
    a("s_mov_b32 exec_hi, 0xff")
    a("s_nop 0")
    a("v_cndmask_b32 v8, v9, v8, vcc")
    a("ds_write_b128 v8, v[180:183] offset:4096")
    a("s_mov_b64 exec, -1")
    for ch, sv in ((sCH, sDM), (sCE, sDE)):
        a(f"s_and_b32 s3, s{ch}, 1")
        a("s_lshl_b32 s3, s3, 4")
        a(f"s_lshr_b32 s{sv}, s{sv}, s3")
        a(f"s_and_b32 s{sv}, s{sv}, 0xffff")
    a(f"s_lshl_b32 s{sDE}, s{sDE}, 16")
    a("v_lshlrev_b32 v3, 3, v2")
    a("v_add_u32 v3, v3, v1")
    a("v_sub_u32 v3, 15, v3")
    a("v_and_b32 v4, 1, v3")
    a("v_lshlrev_b32 v4, 4, v4")
    a("v_ashrrev_i32 v3, 1, v3")
    a(f"v_lshlrev_b32 v8, v4, s{sDM}")
    for q in range(4):
        a(f"v_cmp_eq_u32 vcc, {q}, v3")
        a("s_nop 1")
        a(f"v_cndmask_b32 v{PD+q}, 0, v8, vcc")
    a("v_lshlrev_b32 v3, 4, v2")
    a("v_lshlrev_b32 v4, 5, v1")
    a("v_sub_u32 v3, v3, v4")
    a("v_add_u32 v3, 480, v3")
    a(f"v_add_u32 v7, s{sUB}, v3")
    a(f"s_add_u32 s3, s93, {UE}")
    a(f"v_add_u32 v{vFE}, s3, v3")
    a("v_lshlrev_b32 v3, 3, v2")
    a("v_add_u32 v3, v3, v4")
    a(f"s_lshl_b32 s3, s{sJE}, 9")
    a(f"s_sub_u32 s3, {UE + 4088}, s3")
    a(f"v_sub_u32 v{vUD}, s3, v3")
    a(f"s_lshl_b32 s3, s{sW}, 9")
    a(f"s_add_u32 s3, s3, {E_LDS}")
    a(f"v_add_u32 v{vEW}, s3, v3")
    a(f"v_add_u32 v{vER}, s3, v{vL16}")
    a(f"s_lshl_b32 s3, s{sW}, 10")
    a(f"s_add_u32 s3, s3, {R_LDS}")
    a(f"v_add_u32 v{vRW}, s3, v{vL16}")
    a(f"s_lshl_b32 s3, s{sW}, 12")
    a(f"s_add_u32 s3, s3, {R_LDS}")
    a(f"v_add_u32 v{vRR}, s3, v{vL16}")
    a(f"v_mul_u32_u24 v{vTW}, {TR}, v1")
    a("v_lshrrev_b32 v3, 1, v2")
    a(f"v_lshl_add_u32 v{vTW}, v3, 6, v{vTW}")
    a("v_and_b32 v3, 1, v2")
    a(f"v_lshl_add_u32 v{vTW}, v3, 3, v{vTW}")
    a(f"s_lshl_b32 s3, s{sW}, 4")
    a(f"s_add_u32 s3, s3, {T_LDS}")
    a(f"v_add_u32 v{vTW}, s3, v{vTW}")
    a(f"v_lshrrev_b32 v3, 3, v{vLANE}")
    a(f"v_mul_u32_u24 v{vTR}, {TR}, v3")
    a(f"v_and_b32 v4, 7, v{vLANE}")
    a(f"v_lshl_add_u32 v{vTR}, v4, 4, v{vTR}")
    a(f"s_mul_i32 s3, s{sW}, {8*TR}")
    a(f"s_add_u32 s3, s3, {T_LDS}")
    a(f"v_add_u32 v{vTR}, s3, v{vTR}")
    a(f"v_mul_u32_u24 v{vYM}, {YR}, v4")
    a(f"v_lshl_add_u32 v{vYM}, v3, 4, v{vYM}")
    a(f"s_lshr_b32 s88, s{sW}, 1")
    a(f"s_mul_i32 s89, s88, {YBR}")
    a(f"s_and_b32 s3, s{sW}, 1")
    a("s_lshl_b32 s3, s3, 9")
    a("s_add_u32 s89, s89, s3")
    a(f"s_add_u32 s89, s89, {Y_LDS}")
    a(f"v_add_u32 v{vYM}, s89, v{vYM}")
    a(f"s_add_u32 s89, s89, {8*YR}")
    a("v_and_b32 v8, 3, v3")
    a(f"v_lshl_add_u32 v{vYE}, v8, 2, v{vL16}")
    a(f"v_xor_b32 v8, s{sW}, v8")
    a(f"v_lshl_add_u32 v{vYR}, v8, 2, v{vL16}")
    a("s_mov_b32 s98, s89")
    a(f"v_lshlrev_b32 v{vYG}, 6, v{vLANE}")
    a(f"s_mul_i32 s88, s2, {YG}")
    a(f"s_lshl_b32 s3, s{sW}, 12")
    a("s_add_u32 s88, s88, s3")
    a("s_lshr_b32 s89, s2, 2")
    a(f"s_mul_i32 s89, s89, {YEG}")
    a("s_mov_b32 s99, s89")
    a(f"s_lshl_b32 s3, s{sW}, 11")
    a("s_add_u32 s89, s89, s3")
    a("s_and_b32 s3, s2, 3")
    a("s_lshl_b32 s3, s3, 4")
    a("s_add_u32 s89, s89, s3")
    a(f"s_add_u32 s89, s89, {YE_OFF}")
    a(f"v_lshrrev_b32 v4, 2, v{vLANE}")
    a(f"v_and_b32 v8, 3, v{vLANE}")
    a("v_lshlrev_b32 v8, 4, v8")
    a(f"v_mul_u32_u24 v3, {YG}, v4")
    a("v_add_u32 v3, v3, v8")
    a(f"v_mul_u32_u24 v4, {YEG}, v4")
    a("v_add_u32 v4, v4, v8")
    a(f"s_mul_i32 s{sYM}, s{sW}, {16*YG}")
    a(f"s_lshl_b32 s3, s{sB}, 13")
    a(f"s_add_u32 s{sYM}, s{sYM}, s3")
    a(f"s_sub_u32 s3, s{sCH}, s{sW}")
    a("s_lshl_b32 s3, s3, 4")
    a(f"s_add_u32 s{sYM}, s{sYM}, s3")
    a(f"s_mul_i32 s{sYE}, s{sJE}, {8*YEG}")
    a(f"s_lshl_b32 s3, s{sB}, 12")
    a(f"s_add_u32 s{sYE}, s{sYE}, s3")
    a(f"s_lshl_b32 s3, s{sP}, 6")
    a(f"s_add_u32 s{sYE}, s{sYE}, s3")
    a(f"s_add_u32 s{sYE}, s{sYE}, {YE_OFF}")
    srd(a, SX, 14, 15, TENS)
    a(f"s_lshl_b32 s{sXO}, s2, 3")
    a(f"s_lshl_b32 s3, s{sW}, 1")
    a(f"s_add_u32 s{sXO}, s{sXO}, s3")
    a(f"s_mul_i32 s{sXO}, s{sXO}, {ROWB}")
    a(f"s_mul_i32 s3, s{sB}, 576")
    a(f"s_add_u32 s90, s3, s{sCH}")
    a(f"s_mul_i32 s90, s90, {UG}")
    a(f"s_add_u32 s91, s3, s{sCE}")
    a(f"s_mul_i32 s91, s91, {UG}")
    a(f"s_lshl_b32 s85, s{sW}, 10")
    a("s_add_u32 s91, s91, s85")
    a(f"s_add_u32 s85, s85, {UE}")
    if SPLIT():
        a(f"s_mul_i32 s92, s{sCH}, 456")
        a("s_lshr_b32 s92, s92, 16")
        a("s_lshl_b32 s92, s92, 11")
        a(f"s_lshl_b32 s3, s{sB}, 13")
        a("s_add_u32 s92, s92, s3")
        a(f"v_and_b32 v8, 31, v{vLANE}")
        a("v_lshlrev_b32 v8, 6, v8")
        a(f"v_add_u32 v{vP1}, s92, v8")
        a(f"s_add_u32 s92, s92, {F1B}")
        a(f"s_add_u32 s3, s3, {96*64}")
        a(f"s_add_u32 s93, s3, {F1B}")
        a(f"s_cmp_eq_u32 s{sW}, 1")
        a("s_cselect_b32 s3, s3, s93")
        a(f"s_cmp_eq_u32 s{sW}, 0")
        a("s_cselect_b32 s3, s92, s3")
        a(f"v_add_u32 v{vPB}, s3, v8")
    elif opt("clr", "fill") == "w23":
        a(f"s_lshl_b32 s92, s{sB}, 1")
        a(f"s_add_u32 s92, s92, s{sW}")
        a("s_lshl_b32 s92, s92, 12")
        a(f"v_add_u32 v{vP1}, s92, v{vYG}")
    else:
        a(f"s_lshl_b32 s92, s{sB}, {2 if T64() else 1}")
        a(f"s_lshr_b32 s3, s{sP}, {4 if T64() else 5}")
        a("s_add_u32 s92, s92, s3")
        if T64() and opt("p1all", "0") == "1":
            a("s_lshl_b32 s92, s92, 12")
            a(f"v_and_b32 v8, 31, v{vLANE}")
            a(f"v_lshl_add_u32 v{vP1}, v8, 7, s92")
        else:
            a("s_lshl_b32 s92, s92, 2")
            a(f"s_add_u32 s92, s92, s{sW}")
            a(f"s_lshl_b32 s92, s92, {10 if T64() else 11}")
            a(f"v_and_b32 v8, {7 if T64() else 15}, v1")
            a(f"v_lshl_add_u32 v{vP1}, v8, 7, s92")
    a(f"s_lshl_b32 s92, s{sW}, 13")
    a(f"s_add_u32 s92, s92, {F2A}")
    a(f"v_lshl_add_u32 v{vP2}, v{vLANE}, 7, s92")
    a(f"v_add_u32 v{vC1}, s{sHB}, v{vL16}")
    a(f"v_mov_b32 v{vC2}, s{sHB}")
    a(f"s_lshl_b32 s3, s{sW}, 10")
    a(f"s_add_u32 s3, s3, {4*HB}")
    a(f"v_add_u32 v{vC3}, s3, v{vL16}")
    a(f"v_mov_b32 v{vC4}, {4*HB}")
    a("s_lshl_b32 s101, s2, 7")
    a(f"s_add_u32 s101, s101, {F2A}")
    a("s_lshl_b32 s3, s2, 2")
    a(f"s_add_u32 s3, s3, s{sW}")
    a("s_lshl_b32 s3, s3, 7")
    a(f"s_add_u32 s3, s3, {FD}")
    a(f"s_cmp_eq_u32 s{sW}, 0")
    a("s_cselect_b32 s101, s101, s3")
    a("s_and_b32 s3, s2, 3")
    a("s_lshl_b32 s3, s3, 11")
    a("s_add_u32 s99, s99, s3")
    if opt("clr", "fill") == "w23":
        a(f"s_and_b32 s3, s{sW}, 1")
        a("s_lshl_b32 s3, s3, 10")
    else:
        a(f"s_lshl_b32 s3, s{sW}, 9")
    a("s_add_u32 s99, s99, s3")
    a(f"s_add_u32 s99, s99, {YE_OFF}")
    a("s_mov_b32 s97, 4096")
    a("s_mov_b32 s86, 0x3ae38e39")
    a("s_mov_b32 s87, 0x3727c5ac")

def p1_aload(a, aas):
    for r in range(8):
        for aa in aas:
            ks = 8 * aa + r
            a.lds(f"ds_read_b64 a[{4*ks}:{4*ks+1}], v5 offset:{64*ks}")
            a.lds(f"ds_read_b64 a[{4*ks+2}:{4*ks+3}], v5 offset:{64*ks+8}", ("A", ks))

def F(bank, c): return FB + 32 * bank + 4 * c
MF = "v_mfma_f32_16x16x32_bf16"

def p1_mfma(a, stflag, tail):
    inited = set()
    def mfma(acc, A_, B_, needs):
        a.need(*needs)
        c = vr(acc) if acc in inited else "0"
        inited.add(acc)
        a(f"{MF} {vr(acc)}, {A_}, {vr(B_)}, {c}")
    def L(c, s_, tag=None): return (c, lambda: a.lds(s_, tag))
    def I(s_): return (4, lambda: a(s_))
    def V(s_, tag=None): return (8, lambda: a.vm(s_, tag))
    def aeread(rp, aa, half): return L(4, f"ds_read_b64 {pr(AE+32*rp+4*aa+2*half)}, v6 offset:{512*aa + 64*rp + 8*half}", ("AE", rp, aa))
    evc = [0]
    def conv(j):
        e = EV + 2 * (evc[0] & 1); evc[0] += 1
        return [I(f"v_cvt_pk_bf16_f32 v{e}, v{ACC+4*j}, v{ACC+4*j+1}"), I(f"v_cvt_pk_bf16_f32 v{e+1}, v{ACC+4*j+2}, v{ACC+4*j+3}"),
                I(f"v_min_u32 v{e}, -2, v{e}"), I(f"v_min_u32 v{e+1}, -2, v{e+1}"),
                L(6, f"ds_write_b64 v{vTW}, {pr(e)} offset:{16*TR*j}", ("TW", j))]
    def barrier(*tags): return (8, lambda: (a.need(*tags), a("s_barrier")))
    def tread(k, reg): return L(6, f"ds_read_b128 {vr(reg)}, v{vTR} offset:{32*TR*k}", ("TRD", k))
    def tstore(k, reg):
        def f():
            a(f"s_add_u32 s3, s{sYM}, {k*64*YG}")
            a.need(("TRD", k))
            a.vm(f"buffer_store_dwordx4 {vr(reg)}, v3, {sq(SY)}, s3 offen {stflag}")
        return (8, f)
    EXP = 8 if SPLIT() else int(opt("exp", "6"))
    blocks = []
    for r in range(8): blocks.append(("a", [(c, r) for c in range(4)], (0, 1, 2, 3)))
    for r in range(8): blocks.append(("b", [(c, r) for c in range(4)], (4, 5, 6, 7)))
    for r in range(0, 8, 2): blocks.append(("c", [(4, r), (5, r), (4, r + 1), (5, r + 1)], (4, 5)))
    for r in range(8): blocks.append(("d", [(c, r) for c in range(4, 8)], (6, 7)))
    def FG(k, i): return FB + 16 * (k & 3) + 4 * i
    def fread(k, i):
        c, r = blocks[k][1][i]
        return L(6, f"ds_read_b128 {vr(FG(k,i))}, v7 offset:{64*r + 512*(7-c)}", ("F", k, i))
    def items_of(k):
        name, fr, J = blocks[k]; it = []
        order = [(i, j) for i in range(4) for j in J if j >= fr[i][0]]
        if k == len(blocks) - 1: order = [(i, j) for j in J for i in range(4) if j >= fr[i][0]]
        for i, j in order:
            c, r = fr[i]; tg = [("F", k, i), ("A", 8 * (j - c) + r)]
            if r == 0 and j == c: it.append((ACC + 4*j, vr(PD), FG(k, i), tg))
            it.append((ACC + 4*j, ar(4 * (8 * (j - c) + r)), FG(k, i), tg))
        if k > 0 and opt("w1", "0") == "1":
            allt = [t for x in it for t in x[3]]
            it[0] = it[0][:3] + (allt,)
        return it
    KE = 8 + EXP
    GE = (KE - 2) & 3
    def FEr(rp, c): return (FE0 + 4 * c) if rp == 0 else FB + 16 * GE + 4 * c
    def feread(rp, c): return L(6, f"ds_read_b128 {vr(FEr(rp,c))}, v{vFE} offset:{64*rp + 512*(7-c)}", ("FE", rp, c))
    start = []; n = 0
    for k in range(len(blocks)):
        if k == KE: E0 = n; n += 36
        start.append(n); n += len(items_of(k))
    NS = n; assert NS == 332
    plan = [[] for _ in range(NS)]; load = [0] * NS
    def pin(slot, ops):
        for i, (c, f) in enumerate(ops):
            plan[slot + i].append(f); load[slot + i] += c
    def spread(ops, lo_, hi_, cap=8):
        for cap_ in range(cap, 40, 2):
            sl = lo_; pos = []; ld = list(load)
            for c, f in ops:
                while sl <= hi_ and ld[sl] + c > cap_: sl += 1
                if sl > hi_: break
                pos.append(sl); ld[sl] += c
            if len(pos) == len(ops): break
        assert len(pos) == len(ops)
        for (c, f), p_ in zip(ops, pos): plan[p_].append(f); load[p_] += c
        return pos[-1]
    for k in range(len(blocks) - 2):
        if SPLIT() and k in (14, 15):
            pin(E0 + 8 + 4 * (k - 14), [fread(k + 2, i) for i in range(4)])
        else:
            pin(start[k], [fread(k + 2, i) for i in range(4)])
    pin(E0, [feread(1, c) for c in range(8)])
    xl = [V(f"buffer_load_dwordx4 {vr(XR)}, v{vL16}, {sq(SX)}, s{sXO} offen nt"),
          V(f"buffer_load_dwordx4 {vr(XR+4)}, v{vL16}, {sq(SX)}, s{sXO} offen offset:{ROWB} nt"),
          V(f"buffer_load_ushort v{XR+8}, v{vL2}, {sq(SX)}, s{sXO} offen offset:1024 nt"),
          V(f"buffer_load_ushort v{XR+9}, v{vL2}, {sq(SX)}, s{sXO} offen offset:{1024+ROWB} nt", "X")]
    if opt("clr", "fill") == "fill":
        clr = [V(f"buffer_store_dwordx4 {vr(FE0)}, v{vL16}, {sq(SY)}, s88 offen offset:{1024*q} sc1") for q in range(4)]
        def clre():
            a("s_mov_b32 exec_hi, 0")
            a.vm(f"buffer_store_dwordx4 {vr(FE0)}, v{vL16}, {sq(SY)}, s99 offen sc1")
            a("s_mov_b64 exec, -1")
        cs = int(opt("cs", "6")); cd = int(opt("cd", "2"))
        ncs = int(opt("ncs", "0")); clr_all = clr + [(8, clre)]
        clr_pre = clr_all[:ncs]
        for i, op in enumerate(clr_all[ncs:]): spread([op], cs + cd * i, cs + cd * i + 10)
    if opt("ein", "0") == "1":
        ops_e, hwe = h_copy_ops(a, vC3, [0], vC4)
        spread(ops_e[:3], 4, 8)
        spread(ops_e[3:], 18, 70, 6)
    else:
        hwe = ("none",)
        ao = []
        for r in range(8):
            for aa in range(4, 8):
                ks = 8 * aa + r
                ao += [L(4, f"ds_read_b64 a[{4*ks}:{4*ks+1}], v5 offset:{64*ks}"), L(4, f"ds_read_b64 a[{4*ks+2}:{4*ks+3}], v5 offset:{64*ks+8}", ("A", ks))]
        if opt("hdef", "0") == "1":
            ops_o, hwo = h_copy_ops(a, vC1, [2, 3])
            c0, f0 = ops_o[0]
            ops_o[0] = (c0, lambda: (a.needv("h2"), f0()))
            hs = int(opt("hs", "20"))
            e_ = spread(ops_o[:4], hs, hs + 10)
            e_ = spread(ops_o[4:], e_ + 8, 66, 8)
            spread(ao[:16], e_ + 1, 82, 8)
            for r in range(2, 8): spread(ao[8*r: 8*r + 8], 84, start[8 + r] - 4, 6)
        elif opt("pre2", "0") != "1": spread(ao, 4, 110, int(opt("acap", "6")))
    XA = int(opt("xa", "140" if SPLIT() else "92"))
    def xa():
        a("s_waitcnt vmcnt(0)"); a.vd = a.vn
        a.need(hwe)
        a("s_barrier")
        signal(a, 101); a.vn += 1
    def xa_split():
        a("s_waitcnt vmcnt(0)"); a.vd = a.vn
        a(f"v_cmp_ne_u32 vcc, s{sTAG}, v253")
        a(f"s_mov_b32 m0, s{sUB}")
        a("s_cbranch_vccnz t2_slow")
        a.label("t2_back")
        a("s_barrier")
        for q in (1, 0):
            a.vm(f"buffer_load_dwordx4 v{vL16}, {sq(SU)}, s90 offen offset:{1024*q} {opt('uld', 'sc1')} lds", f"U{q}")
        a("s_mov_b32 m0, s85")
        a("s_nop 0")
        a.vm(f"buffer_load_dwordx4 v{vL16}, {sq(SU)}, s91 offen {opt('uld', 'sc1')} lds", "UE")
        signal(a, 101); a.vn += 1
    def slow2(t):
        t.label("t2_slow")
        t("s_mov_b32 s92, 0x20000")
        t.label("t2_spin")
        t("s_sleep 2")
        t(f"buffer_load_dword v253, v{vPB}, {sq(SF)}, 0 offen sc1")
        t("s_waitcnt vmcnt(0)")
        t(f"v_cmp_ne_u32 vcc, s{sTAG}, v253")
        t("s_sub_u32 s92, s92, 1")
        t("s_cbranch_scc1 t2_back")
        t("s_cbranch_vccnz t2_spin")
        t("s_branch t2_back")
    if SPLIT():
        tail.append(slow2)
        pin(XA - int(opt("pbd", "44")), [V(f"buffer_load_dword v253, v{vPB}, {sq(SF)}, 0 offen sc1")])
        pin(XA, [(40, xa_split)])
        X0 = E0 - 12
        pin(X0, [(8, lambda: (a.needv("UE"), a("s_barrier")))])
        XE = int(opt("xe", "30"))
        pin(XE, [(8, lambda: a("s_barrier"))])
        for i, op in enumerate(xl): spread([op], XA + 2 + 3 * i, XA + 12 + 3 * i)
        spread([aeread(rp, aa, h) for rp in range(2) for aa in range(8) for h in range(2)], 100, E0 - 12, 6)
        spread([feread(0, c) for c in range(8)], X0 + 1, E0 - 2)
    else:
        pin(XA, [(20, xa)])
        if opt("xpre", "0") != "1":
            for i, op in enumerate(xl): spread([op], XA + 2 + 3 * i, XA + 12 + 3 * i)
        spread([aeread(rp, aa, h) for rp in range(2) for aa in range(8) for h in range(2)], XA + 1, E0 - 12, 6)
        spread([feread(0, c) for c in range(8)], E0 - 14, E0 - 2)
    B4 = E0 + 36
    if SPLIT(): spread(conv(0) + conv(1) + conv(2) + conv(3), 150, E0 - 14, 6)
    else: spread(conv(0) + conv(1) + conv(2) + conv(3), E0 + 9, B4 + 7, 6)
    e_ = spread([L(8, f"ds_write_b128 v{vRW}, {vr(ACCE+4*s_)} offset:{4096*s_}", ("RW", s_)) for s_ in range(4)], B4 + 8, B4 + 15)
    X1 = e_ + 6
    D0 = start[20]
    mx = opt("xd", "262") == "x2"
    if mx:
        e45 = spread(conv(4) + conv(5), D0 + 8, D0 + 18, 10)
        XD = e45 + 4
    else:
        XD = X1 if SPLIT() else int(opt("xd", "262"))
    if XD != X1: pin(X1, [barrier(("RW", 3), ("TW", 3))])
    pin(XD - int(opt("pcd", "44")), [V(f"buffer_load_dword v253, v{vP2}, {sq(SF)}, 0 offen sc1", "PC")])
    def xd():
        a.needv("PC")
        a(f"v_cmp_ne_u32 vcc, s{sTAG}, v253")
        a.need(("RW", 3), ("TW", 3), ("TW", 5) if mx else ("TW", 3))
        a("s_cbranch_vccnz c_slow")
        a.label("c_back")
        a("s_barrier")
    pin(XD, [(16, xd)])
    def slow(t):
        t.label("c_slow")
        t("s_mov_b32 s92, 0x20000")
        t.label("c_spin")
        t("s_sleep 4")
        t(f"buffer_load_dword v253, v{vP2}, {sq(SF)}, 0 offen sc1")
        t("s_waitcnt vmcnt(0)")
        t(f"v_cmp_ne_u32 vcc, s{sTAG}, v253")
        t("s_sub_u32 s92, s92, 1")
        t("s_cbranch_scc1 c_back")
        t("s_cbranch_vccnz c_spin")
        t("s_branch c_back")
    tail.append(slow)
    e_ = spread([tread(0, TRD), tread(1, TRD + 4)] +
                [L(6, f"ds_read_b128 {vr(RED+4*i)}, v{vRR} offset:{1024*i}", ("RR", i)) for i in range(4)] +
                [L(4, f"ds_read_b64 {pr(UD)}, v{vUD}", "UD")], X1 + 1, X1 + 16)
    t0_ = XD + (9 if XD == X1 else 1)
    spread([tstore(0, TRD)], t0_, t0_ + 8); spread([tstore(1, TRD + 4)], t0_ + 2, t0_ + 12)
    red = [(4, lambda: (a.need("UD"), a(f"v_pk_add_f32 {pr(RED)}, {pr(RED)}, {pr(RED+4)}"))), I(f"v_pk_add_f32 {pr(RED+2)}, {pr(RED+2)}, {pr(RED+6)}"),
           I(f"v_pk_add_f32 {pr(RED+8)}, {pr(RED+8)}, {pr(RED+12)}"), I(f"v_pk_add_f32 {pr(RED+10)}, {pr(RED+10)}, {pr(RED+14)}"),
           I(f"v_pk_add_f32 {pr(RED)}, {pr(RED)}, {pr(RED+8)}"), I(f"v_pk_add_f32 {pr(RED+2)}, {pr(RED+2)}, {pr(RED+10)}"),
           I(f"v_and_b32 v{RED+4}, 0xffff0000, v{UD+1}"), I(f"v_lshlrev_b32 v{RED+5}, 16, v{UD+1}"),
           I(f"v_and_b32 v{RED+6}, 0xffff0000, v{UD}"), I(f"v_lshlrev_b32 v{RED+7}, 16, v{UD}")]
    red += [I(f"v_fmac_f32 v{RED+i}, s{sDE}, v{RED+4+i}") for i in range(4)]
    red += [I(f"v_cvt_pk_bf16_f32 v{STG}, v{RED}, v{RED+1}"), I(f"v_cvt_pk_bf16_f32 v{STG+1}, v{RED+2}, v{RED+3}"),
            I(f"v_min_u32 v{STG}, -2, v{STG}"), I(f"v_min_u32 v{STG+1}, -2, v{STG+1}")]
    red += [L(6, f"ds_write_b64 v{vEW}, {pr(STG)}"), L(6, f"ds_read_b128 {vr(ES)}, v{vER}", "ES")]
    e_ = spread(red, e_ + 8, e_ + 44)
    def estore():
        a.need("ES"); a("s_mov_b32 exec_hi, 0")
        a.vm(f"buffer_store_dwordx4 {vr(ES)}, v4, {sq(SY)}, s{sYE} offen {stflag}")
        a("s_mov_b64 exec, -1")
    spread([(8, estore)], max(e_ + 6, XD + 5), max(e_ + 6, XD + 5) + 10)
    if mx:
        spread([tread(2, FE0)], XD + 1, XD + 4)
        e_ = spread([tstore(2, FE0)], XD + 9, XD + 15)
    else:
        e_ = spread(conv(4) + conv(5), D0 + 8, D0 + 22)
        pin(e_ + 5, [barrier(("TW", 5))])
        spread([tread(2, FE0)], e_ + 6, e_ + 10)
        e_ = spread([tstore(2, FE0)], max(e_ + 14, XD + 7), max(e_ + 14, XD + 7) + 6)
    if opt("ypre", "0") == "1":
        def ypre():
            a(f"s_cmp_ge_u32 s2, {opt('late', '192')}")
            a("s_cbranch_scc1 no_ypre")
            for f in y_issue_ops(a): f()
            a.vn -= 5
            a.label("no_ypre")
        pin(max(int(opt("yp", str(NS - 10))), e_ + 1), [(40, ypre)])
    if not SPLIT(): a.needv("U2")
    stamp(a, 9); stamp(a, 24, True)
    for k in range(2):
        for i in range(4): fread(k, i)[1]()
    if opt("clr", "fill") == "fill":
        for c_, f_ in clr_pre: f_()
    qs = {7: 0, 9: 1, KE - 1: 2, 15: 4, 19: 5, 23: 6, 26: 7}
    for k in range(len(blocks)):
        if k == KE:
            a(f"s_cmp_eq_u32 s{sHF}, 1")
            a("s_cbranch_scc1 ex_h1")
            save = (a.ln, a.ld, dict(a.lt), set(inited), a.vn, a.vd)
            for h in range(2):
                if h == 1:
                    a("s_branch ex_join")
                    a.label("ex_h1")
                    end0 = (a.ln, a.ld)
                    a.ln, a.ld, a.lt, inited = save[0], save[1], dict(save[2]), set(save[3])
                    vend = (a.vn, a.vd); a.vn, a.vd = save[4:6]
                its = []
                for rp in range(2):
                    for c in range(8):
                        for s_, j in enumerate(TJ[h]):
                            if j >= c:
                                its.append((ACCE + 4*s_, vr(AE + 32*rp + 4*(j - c)), FEr(rp, c), [("AE", rp, j - c), ("FE", rp, c)]))
                if opt("w1", "0") == "1":
                    its[0] = its[0][:3] + ([t for x in its[:18] for t in x[3]],)
                    its[18] = its[18][:3] + ([t for x in its[18:] for t in x[3]],)
                for i, it in enumerate(its):
                    mfma(*it)
                    for f in plan[E0 + i]: f()
            a.label("ex_join")
            assert a.ln == end0[0] and a.vn == vend[0]
            a.vd = min(a.vd, vend[1])
            a.ld = min(a.ld, end0[1])
            qstamp(a, 3)
        for i, it in enumerate(items_of(k)):
            mfma(*it)
            for f in plan[start[k] + i]: f()
        if k in qs: qstamp(a, qs[k])
    stamp(a, 7); stamp(a, 25, True)
    a("s_nop 3")
    for j in (6, 7):
        for c, f in conv(j): f()
    barrier(("TW", 7))[1]()
    tread(3, TRD + 4)[1]()
    tstore(3, TRD + 4)[1]()
    stamp(a, 8); stamp(a, 26, True)
    qflush(a)
    if "--plan" in sys.argv: print(load, XA, X1, E0, D0)

Z, YA, YB, G = 8, 26, 44, 62
SS, QQ, RS, ND, C0 = 80, 82, 84, 86, 88
YW = 96

def p2_sums(a):
    a(f"v_pk_add_f32 {pr(SS)}, {pr(Z)}, {pr(Z+2)}")
    a(f"v_pk_mul_f32 {pr(QQ)}, {pr(Z)}, {pr(Z)}")
    a(f"v_pk_fma_f32 {pr(QQ)}, {pr(Z+2)}, {pr(Z+2)}, {pr(QQ)}")
    for e in range(2, 9):
        a(f"v_pk_add_f32 {pr(SS)}, {pr(SS)}, {pr(Z+2*e)}")
        a(f"v_pk_fma_f32 {pr(QQ)}, {pr(Z+2*e)}, {pr(Z+2*e)}, {pr(QQ)}")

def p2_chain(a, fill):
    fill = list(fill)
    def gap(n):
        for _ in range(n):
            if fill: a(fill.pop(0))
            else: a("s_nop 0")
    T, Uq = 90, 91
    gap(2)
    a(f"v_permlane32_swap_b32 v{SS}, v{SS+1}")
    a(f"v_permlane32_swap_b32 v{QQ}, v{QQ+1}")
    a(f"v_add_f32 v{SS}, v{SS}, v{SS+1}")
    a(f"v_add_f32 v{QQ}, v{QQ}, v{QQ+1}")
    gap(2)
    a(f"v_permlane16_swap_b32 v{SS}, v{QQ}")
    a(f"v_add_f32 v{T}, v{SS}, v{QQ}")
    for m in ("quad_perm:[1,0,3,2]", "quad_perm:[2,3,0,1]", "row_half_mirror", "row_mirror"):
        gap(2)
        a(f"v_add_f32_dpp v{T}, v{T}, v{T} {m} {DPP}")
    a(f"v_mov_b32 v{Uq}, v{T}")
    gap(2)
    a(f"v_permlane16_swap_b32 v{T}, v{Uq}")
    a(f"v_mul_f32 v{T}, s86, v{T}")
    a(f"v_mul_f32 v{Uq}, s86, v{Uq}")
    a(f"v_fma_f32 v{Uq}, -v{T}, v{T}, v{Uq}")
    a(f"v_max_f32 v{Uq}, 0, v{Uq}")
    a(f"v_add_f32 v{Uq}, s87, v{Uq}")
    a(f"v_rsq_f32 v{RS}, v{Uq}")
    gap(1)
    a(f"v_mul_f32 v{ND}, v{RS}, v{T}")
    a(f"v_mov_b32 v{RS+1}, v{RS}")
    a(f"v_mov_b32 v{ND+1}, v{ND}")
    gap(2)
    a(f"v_permlane32_swap_b32 v{RS}, v{RS+1}")
    a(f"v_permlane32_swap_b32 v{ND}, v{ND+1}")
    while fill: a(fill.pop(0))

def p2_first(a):
    a.needv("X")
    for q in range(4):
        for row in range(2):
            a(f"v_lshlrev_b32 v{Z+4*q+row}, 16, v{XR+4*row+q}")
            a(f"v_and_b32 v{Z+4*q+2+row}, 0xffff0000, v{XR+4*row+q}")
    a(f"v_lshlrev_b32 v{Z+16}, 16, v{XR+8}")
    a(f"v_lshlrev_b32 v{Z+17}, 16, v{XR+9}")
    a(f"v_readfirstlane_b32 s92, v{Z}")
    a(f"v_readfirstlane_b32 s93, v{Z+1}")
    a("s_nop 1")
    a(f"v_mov_b32 v{C0}, s92")
    a(f"v_mov_b32 v{C0+1}, s93")
    for e in range(9):
        a(f"v_pk_add_f32 {pr(Z+2*e)}, {pr(Z+2*e)}, {pr(C0)} neg_lo:[0,1] neg_hi:[0,1]")
    p2_sums(a)
    p2_chain(a, [])

def y_ld(i):
    if i == 4: return f"buffer_load_dwordx4 {vr(YP+16)}, v{vYG}, {sq(SY)}, s89 offen {opt('yld', 'sc1')}"
    return f"buffer_load_dwordx4 {vr(YP+4*i)}, v{vL16}, {sq(SY)}, s88 offen offset:{1024*i} {opt('yld', 'sc1')}"
def y_issue_ops(a):
    def e():
        a("s_mov_b32 exec_hi, 0"); a.vm(y_ld(4)); a("s_mov_b64 exec, -1")
    return [e] + [(lambda i: lambda: a.vm(y_ld(i)))(i) for i in range(4)]

def y_write(a):
    for q in range(4):
        r = YP + 4 * q
        a(f"ds_write2_b32 v{vYM}, v{r}, v{r+1} offset0:{32*q + (0 ^ q)} offset1:{32*q + (1 ^ q)}")
        a(f"ds_write2_b32 v{vYM}, v{r+2}, v{r+3} offset0:{32*q + (2 ^ q)} offset1:{32*q + (3 ^ q)}")
    a("s_mov_b32 exec_hi, 0")
    for i in range(4):
        a(f"ds_write_b32 v{120+i}, v{YP+16+i}")
    a("s_mov_b64 exec, -1")
    a("s_waitcnt lgkmcnt(0)")

def y_addr(a):
    for i in range(4):
        a(f"v_xor_b32 v{120+i}, {4*i}, v{vYE}")
        a(f"v_add_u32 v{120+i}, s98, v{120+i}")

def y_check(a):
    M = [4, 6, 8, 10, 12]
    for i in range(4):
        a(f"s_mov_b64 s[{M[i]}:{M[i]+1}], -1")
    a("s_mov_b32 s12, -1")
    a("s_mov_b32 s13, 0")
    a("s_mov_b32 s92, 0x20000")
    if opt("ypre", "0") == "1":
        a(f"s_cmp_ge_u32 s2, {opt('late', '192')}")
        a("s_cbranch_scc1 yc_late")
        a("s_waitcnt vmcnt(1)")
        a("s_branch yc_chk")
        a.label("yc_late")
    yw = opt("ywait", "1")
    if yw == "1": a("s_waitcnt vmcnt(0)")
    if yw == "2":
        a("s_cmp_lt_u32 s2, 192")
        a("s_cbranch_scc1 yc_load")
        a("s_waitcnt vmcnt(0)")
    a("s_branch yc_load")
    a.label("yc_loop")
    a("s_waitcnt vmcnt(0)")
    a.label("yc_chk")
    for i in range(5):
        r = YP + 4 * i
        a(f"s_mov_b64 exec, s[{M[i]}:{M[i]+1}]")
        a(f"v_max3_u32 v238, v{r}, v{r+1}, v{r+2}")
        a(f"v_max_u32 v238, v238, v{r+3}")
        a(f"v_cmp_eq_u32 s[{M[i]}:{M[i]+1}], -1, v238")
    a("s_or_b64 s[14:15], s[4:5], s[6:7]")
    a("s_or_b64 s[14:15], s[14:15], s[8:9]")
    a("s_or_b64 s[14:15], s[14:15], s[10:11]")
    a("s_or_b64 s[14:15], s[14:15], s[12:13]")
    a("s_cbranch_scc0 yc_done")
    a("s_sub_u32 s92, s92, 1")
    a("s_cbranch_scc1 yc_done")
    if int(opt("ysleep", "0")): a(f"s_sleep {opt('ysleep','0')}")
    a.label("yc_load")
    for i in range(5):
        a(f"s_mov_b64 exec, s[{M[i]}:{M[i]+1}]")
        a(f"s_cbranch_execz yc_skip{i}")
        a(y_ld(i))
        a.label(f"yc_skip{i}")
    a("s_branch yc_loop")
    a.label("yc_done")
    a("s_mov_b64 exec, -1")

def p2_rest(a, stflag):
    for b in range(2):
        for e in range(9):
            a(f"ds_read_b32 v{YW + 9*b + e}, v{vYR} offset:{Y_LDS + YBR*b + YR*e}")
    a.label("p2_body")
    def unp(b, e):
        r = YW + 9 * b + e; y = (YA if b == 0 else YB) + 2 * e
        return [f"v_lshlrev_b32 v{y}, 16, v{r}", f"v_and_b32 v{y+1}, 0xffff0000, v{r}"]
    for e in range(9):
        a(f"s_waitcnt lgkmcnt({min(15, 17 - e)})")
        for s_ in unp(0, e): a(s_)
        a(f"v_pk_mul_f32 {pr(G+2*e)}, {pr(Z+2*e)}, {pr(YA+2*e)}")
    def post(Y):
        for e in range(9):
            a(f"v_pk_fma_f32 {pr(Z+2*e)}, {pr(G+2*e)}, {pr(RS)}, {pr(Z+2*e)}")
        for e in range(9):
            a(f"v_pk_fma_f32 {pr(Z+2*e)}, {pr(Y+2*e)}, {pr(ND)}, {pr(Z+2*e)} neg_lo:[0,1,0] neg_hi:[0,1,0]")
    qstamp(a, 0, "2")
    post(YA)
    qstamp(a, 1, "2")
    a("s_waitcnt lgkmcnt(0)")
    for layer, Y in ((2, YB), (3, YA), (4, YB)):
        p2_sums(a)
        if layer == 3: qstamp(a, 3, "2")
        fill = []
        for e in range(9):
            if layer == 2: fill += unp(1, e)
            fill.append(f"v_pk_mul_f32 {pr(G+2*e)}, {pr(Z+2*e)}, {pr(Y+2*e)}")
        if layer == 4:
            fill += [f"v_pk_add_f32 {pr(Z+2*e)}, {pr(Z+2*e)}, {pr(C0)}" for e in range(9)]
        p2_chain(a, fill)
        a("s_nop 0")
        if layer == 3: qstamp(a, 4, "2")
        post(Y)
        qstamp(a, {2: 2, 3: 5, 4: 6}[layer], "2")
    for row in range(2):
        for q in range(4):
            a(f"v_cvt_pk_bf16_f32 v{XR+4*row+q}, v{Z+4*q+row}, v{Z+4*q+2+row}")
    a(f"v_cvt_pk_bf16_f32 v{XR+8}, v{Z+16}, v{Z+17}")
    if opt("dry2", "0") == "1": a("s_cbranch_execz p2_dry_back")
    a(f"buffer_store_dwordx4 {vr(XR)}, v{vL16}, {sq(SO)}, s{sXO} offen {stflag}")
    a(f"buffer_store_dwordx4 {vr(XR+4)}, v{vL16}, {sq(SO)}, s{sXO} offen offset:{ROWB} {stflag}")
    a(f"buffer_store_short v{XR+8}, v{vL2}, {sq(SO)}, s{sXO} offen offset:1024 {opt('ost2', stflag)}")
    a(f"buffer_store_short_d16_hi v{XR+8}, v{vL2}, {sq(SO)}, s{sXO} offen offset:{1024+ROWB} {opt('ost2', stflag)}")

def signal(a, off_s, rep=1):
    if rep > 1: a(f"v_lshl_add_u32 v238, v{vLANE}, 15, s{off_s}")
    else: a(f"v_mov_b32 v238, s{off_s}")
    a(f"v_mov_b32 v239, s{sTAG}")
    a(f"s_mov_b64 exec, {(1 << rep) - 1}")
    a(f"buffer_store_dword v239, v238, {sq(SF)}, 0 offen sc1")
    a("s_mov_b64 exec, -1")

def poll(a, tag, vaddr, all64):
    a("s_mov_b32 s92, 0x20000")
    if not all64: a("s_mov_b32 exec_hi, 0")
    if opt("pp", "0") == "1": a(f"s_branch {tag}_chk")
    a.label(f"{tag}_poll")
    a(f"buffer_load_dword v238, v{vaddr}, {sq(SF)}, 0 offen sc1")
    a.label(f"{tag}_chk")
    a("s_waitcnt vmcnt(0)")
    a(f"v_cmp_ne_u32 vcc, s{sTAG}, v238")
    a("s_and_b64 exec, exec, vcc")
    a(f"s_cbranch_execz {tag}_ok")
    if int(opt("sleep", "2")): a(f"s_sleep {opt('sleep', '2')}")
    a("s_sub_u32 s92, s92, 1")
    a("s_cmp_lg_u32 s92, 0")
    a(f"s_cbranch_scc1 {tag}_poll")
    a.label(f"{tag}_ok")
    a("s_mov_b64 exec, -1")

def epoch_issue(a):
    a(f"v_mov_b32 v253, {EP}")
    a.vm(f"buffer_load_dword v254, v253, {sq(SF)}, 0 offen sc1", "EP")
def epoch_use(a):
    a.needv("EP")
    a(f"v_readfirstlane_b32 s{sTAG}, v254")
    a(f"s_mul_i32 s{sTAG}, s{sTAG}, 0x9E3779B1")
    a(f"s_add_u32 s{sTAG}, s{sTAG}, 0x7F4A7C15")

def elect_and_signal(a, n, skip):
    a(f"v_mov_b32 v238, {LDS_CTR}")
    a("v_mov_b32 v239, 1")
    a(f"s_lshl_b32 s90, s{sFI}, 6")
    a("s_waitcnt vmcnt(0)")
    a("s_mov_b64 exec, 1")
    a("ds_add_rtn_u32 v253, v238, v239")
    a("s_waitcnt lgkmcnt(0)")
    a("v_readfirstlane_b32 s3, v253")
    a("s_mov_b64 exec, -1")
    a(f"s_cmp_eq_u32 s3, {n-1}")
    a(f"s_cbranch_scc0 {skip}")
    signal(a, 90)
    stamp(a, 4)
    a.label(skip)

def kernel(name, body, vgpr, accum):
    return f""".text
.globl {name}
.p2align 8
.type {name},@function
{name}:
{body}{name}_end:
    s_endpgm
.section .rodata,"a"
.p2align 6
.amdhsa_kernel {name}
  .amdhsa_next_free_vgpr {vgpr}
  .amdhsa_next_free_sgpr 102
  .amdhsa_accum_offset {accum}
  .amdhsa_group_segment_fixed_size 0
  .amdhsa_kernarg_size 120
  .amdhsa_user_sgpr_count 2
  .amdhsa_user_sgpr_kernarg_segment_ptr 1
  .amdhsa_system_sgpr_workgroup_id_x 1
.end_amdhsa_kernel
"""
DOC = """;
;  P0  u = shiftconv(k) * v for a 32-row x 288-channel tile, written time-reversed as u[branch][channel][t];
;      hand-off 1: write-through stores, drained, then one flag line per workgroup. Flags carry a tag derived
;      from an epoch word in d_ws, which only tells this launch's flags from an earlier launch's.
;  P1  y = causal conv(u, ssm_k) + D * u as Toeplitz products on v_mfma_f32_16x16x32_bf16 (exact bf16 products,
;      fp32 sums): each wave one channel, plus a share of a ninth channel per workgroup pair.
;      hand-off 2: every workgroup first fills its y inbox with all-ones words (announced by a second flag),
;      producers never write that word, consumers re-read a piece until none of its words is all-ones.
;  P2  x += LN(x) * y for A, B, A, B on two rows per wave, fp32 throughout, bf16 store.
"""
def header(launches):
    hdr = [l for l in open(REF).read().split("\n") if l.startswith(";") and "@launch" not in l]
    return "\n".join(hdr) + "\n" + "\n".join(launches) + "\n" + DOC + '.amdgcn_target "amdgcn-amd-amdhsa--gfx950"\n'

def flow_split(a, hdma5, srds0, common_srds, caddr, elect, hl):
    p0_addr(a)
    a(f"s_cmp_eq_u32 s{sT2}, 0")
    a("s_cbranch_scc0 t2_path")
    a("s_waitcnt lgkmcnt(0)")
    stamp(a, 1)
    srds0(a)
    p0_issue(a, opt("p0ld", "nt"))
    srd(a, SH, 10, 11, TENS)
    common_srds(a)
    epoch_issue(a)
    stamp(a, 2)
    p1_prep_a(a)
    p0_compute(a, opt("ust", "sc1"))
    a("s_barrier")
    hdma5(a)
    stamp(a, 3)
    caddr(a)
    epoch_use(a)
    a("s_waitcnt lgkmcnt(0)")
    p1_prep_b(a)
    elect(a, 5, "t1_nosig", 1, 0, 0)
    a("s_waitcnt vmcnt(1)")
    a("s_branch t1_h")
    a.label("t1_nosig")
    a("s_waitcnt vmcnt(0)")
    a.label("t1_h")
    a.reset()
    stamp(a, 18)
    h_copies(a, vC1, [0, 1], vC2)
    p1_aload(a, range(4))
    stamp(a, 5)
    poll(a, "e1", vP1, True)
    stamp(a, 6)
    a(f"s_mov_b32 m0, s{sUB}")
    a(f"s_add_u32 s3, s90, {2*4096}")
    for q in (3, 2):
        a(f"buffer_load_dwordx4 v{vL16}, {sq(SU)}, s90 offen offset:{1024*q} sc1 lds")
    a(f"s_add_u32 s92, s{sUB}, {2*US}")
    a("s_mov_b32 m0, s92")
    a("s_nop 0")
    for q in (3, 2):
        a(f"buffer_load_dwordx4 v{vL16}, {sq(SU)}, s3 offen offset:{1024*q} sc1 lds")
    a.reset()
    h_copies(a, vC1, [2, 3])
    a("s_waitcnt vmcnt(0)")
    a("s_branch join")
    a.label("t2_path")
    a.reset()
    a(f"v_mov_b32 v56, {LDS_CTR}")
    a("v_mov_b32 v58, 0")
    a("v_mov_b32 v59, 0")
    a("ds_write_b64 v56, v[58:59]")
    p1_prep_a(a)
    a("s_waitcnt lgkmcnt(0)")
    srds0(a)
    srd(a, SH, 10, 11, TENS)
    common_srds(a)
    epoch_issue(a)
    a("s_waitcnt lgkmcnt(0)")
    epoch_use(a)
    a("s_barrier")
    hfirst = opt("hfirst", "0") == "1"
    if hfirst: hdma5(a)
    p0_issue(a, opt("p0ld", "nt"))
    if not hfirst: hdma5(a)
    stamp(a, 2)
    if hfirst:
        caddr(a)
        a.needv("h")
        stamp(a, 18)
        sv = (a.vn, a.vd, a.vt); a.reset()
        h_copies(a, vC1, [0, 1], vC2); p1_aload(a, range(4)); h_copies(a, vC1, [2, 3])
        a.vn, a.vd, a.vt = sv
    p0_compute(a, opt("ust", "sc1"), "2")
    stamp(a, 3)
    caddr(a)
    p1_prep_b(a)
    if not hfirst:
        a.needv("h")
        stamp(a, 18)
        a("s_waitcnt lgkmcnt(0)")
        a.reset()
        h_copies(a, vC1, [0, 1], vC2); p1_aload(a, range(4)); h_copies(a, vC1, [2, 3])
    elect(a, 0, "join", 1, 4, F1B)
    a.label("join")
    a("s_waitcnt lgkmcnt(0)")
    a("s_barrier")
    a.reset()
    for r in range(FE0, FE0 + 4): a(f"v_mov_b32 v{r}, -1")
    h_copies(a, vC3, [0], vC4)

def flow_unsplit(a, hdma5, srds0, common_srds, caddr, elect, hl):
    a(f"s_cmp_eq_u32 s{sW}, 3")
    a("s_cbranch_scc1 w3_path")
    p0_addr(a)
    a("s_waitcnt lgkmcnt(0)")
    stamp(a, 1)
    srds0(a)
    p0_issue(a, opt("p0ld", "nt"))
    srd(a, SH, 10, 11, TENS)
    common_srds(a)
    epoch_issue(a)
    hpos = opt("hpos", "late")
    if hpos == "early":
        a("s_barrier")
        hdma5(a)
    stamp(a, 2)
    if opt("arr", "0") == "1":
        a("s_waitcnt vmcnt(14)"); stamp(a, 19); a("s_waitcnt vmcnt(1)"); stamp(a, 15)
    p1_prep_a(a)
    p0_compute(a, opt("ust", "sc1"))
    stamp(a, 16)
    if hpos == "late":
        hdma5(a)
        a("s_barrier")
    stamp(a, 3)
    caddr(a)
    epoch_use(a)
    a("s_waitcnt lgkmcnt(0)")
    p1_prep_b(a)
    if hpos == "late":
        elect(a, 4 if opt("hdef", "0") == "1" else 5, "nosig", 2)
        a("s_waitcnt vmcnt(1)")
        a("s_branch have_h")
        a.label("nosig")
        a("s_waitcnt vmcnt(0)")
        a("s_branch have_h")
    else:
        a.reset()
        h_copies(a, vC1, [0, 1], vC2)
        p1_aload(a, range(4))
        elect(a, 0, "part2", 2)
        a("s_branch part2")
    a.reset()
    a.label("w3_path")
    if opt("il", "0").startswith("bar"):
        for k in range(int(opt("il", "0")[3:])): a("s_barrier")
    if opt("dry0", "0") == "1":
        a("s_mov_b64 exec, 0")
        a("s_branch p0_body")
        a.label("p0_dry_back")
        a("s_mov_b64 exec, -1")
    caddr(a)
    a(f"v_mov_b32 v56, {LDS_CTR}")
    a(f"ds_write_b32 v56, v{ZR}")
    p1_prep_a(a)
    a("s_waitcnt lgkmcnt(0)")
    srd(a, SH, 10, 11, TENS)
    common_srds(a)
    ntw = int(opt("tw", "0"))
    if ntw:
        a(f"s_cmp_ge_u32 s2, {ntw}")
        a("s_cbranch_scc1 no_tw")
        srd(a, SX, 14, 15, TENS)
        a(f"v_mul_u32_u24 v57, 0x12000, v{vLANE}")
        for sr in (SU, SY):
            a(f"buffer_load_dword v58, v57, {sq(sr)}, 0 offen nt")
        a(f"v_mul_u32_u24 v57, 0x9000, v{vLANE}")
        for sr in (SX, SO, SH):
            a(f"buffer_load_dword v58, v57, {sq(sr)}, 0 offen nt")
        a.label("no_tw")
    epoch_issue(a)
    a("s_waitcnt lgkmcnt(0)")
    p1_prep_b(a)
    epoch_use(a)
    a("s_waitcnt lgkmcnt(0)")
    a("s_barrier")
    hdma5(a)
    a("s_waitcnt vmcnt(0)")
    a.label("have_h")
    a.reset()
    stamp(a, 18)
    if opt("pp", "0") == "1":
        a(f"buffer_load_dword v238, v{vP1}, {sq(SF)}, 0 offen sc1")
    h_copies(a, vC1, [0, 1], vC2)
    p1_aload(a, range(4))
    a.label("part2")
    a.reset()
    pre = opt("pre", "0") == "1"
    if pre:
        h_copies(a, vC1, [2, 3])
        if opt("ein", "0") == "1" or opt("pre2", "0") == "1": p1_aload(a, range(4, 8))
    stamp(a, 5)
    if opt("clr", "fill") == "w23":
        a(f"s_cmp_lt_u32 s{sW}, 2")
        a("s_cbranch_scc1 do_poll")
        for r in range(FE0, FE0 + 4): a(f"v_mov_b32 v{r}, -1")
        a("s_sub_u32 s92, s88, 8192")
        for so in ("s92", "s88"):
            for q in range(4):
                a(f"buffer_store_dwordx4 {vr(FE0)}, v{vL16}, {sq(SY)}, {so} offen offset:{1024*q} sc1")
        a(f"buffer_store_dwordx4 {vr(FE0)}, v{vL16}, {sq(SY)}, s99 offen sc1")
        a("s_branch e1_ok")
        a.label("do_poll")
    poll(a, "e1", vP1, True)
    a("s_barrier")
    a.reset()
    stamp(a, 6)
    a(f"s_mov_b32 m0, s{sUB}")
    a("s_nop 0")
    hdef = opt("hdef", "0") == "1"
    for q in (3, 2):
        a.vm(f"buffer_load_dwordx4 v{vL16}, {sq(SU)}, s90 offen offset:{1024*q} {opt('uld', 'sc1')} lds", f"U{q}")
    if hdef:
        a(f"s_add_u32 s92, s{sHB}, {3*CS + 32}")
        a("s_mov_b32 m0, s92")
        a("s_nop 0")
        for q in (2, 3):
            a.vm(f"buffer_load_dwordx4 v{vL16}, {sq(SH)}, s98 offen offset:{1024*q} {hl} lds", "h2")
        a(f"s_mov_b32 m0, s{sUB}")
        a("s_nop 0")
    for q in (1, 0):
        a.vm(f"buffer_load_dwordx4 v{vL16}, {sq(SU)}, s90 offen offset:{1024*q} {opt('uld', 'sc1')} lds", f"U{q}")
    a("s_mov_b32 m0, s85")
    a("s_nop 0")
    a.vm(f"buffer_load_dwordx4 v{vL16}, {sq(SU)}, s91 offen {opt('uld', 'sc1')} lds", "UE")
    for r in range(FE0, FE0 + 4): a(f"v_mov_b32 v{r}, -1")
    if opt("clr", "fill") == "pre":
        for q in range(4):
            a.vm(f"buffer_store_dwordx4 {vr(FE0)}, v{vL16}, {sq(SY)}, s88 offen offset:{1024*q} sc1")
        a("s_mov_b32 exec_hi, 0")
        a.vm(f"buffer_store_dwordx4 {vr(FE0)}, v{vL16}, {sq(SY)}, s99 offen sc1")
        a("s_mov_b64 exec, -1")
    if opt("xpre", "0") == "1":
        a.vm(f"buffer_load_dwordx4 {vr(XR)}, v{vL16}, {sq(SX)}, s{sXO} offen nt")
        a.vm(f"buffer_load_dwordx4 {vr(XR+4)}, v{vL16}, {sq(SX)}, s{sXO} offen offset:{ROWB} nt")
        a.vm(f"buffer_load_ushort v{XR+8}, v{vL2}, {sq(SX)}, s{sXO} offen offset:1024 nt")
        a.vm(f"buffer_load_ushort v{XR+9}, v{vL2}, {sq(SX)}, s{sXO} offen offset:{1024+ROWB} nt", "X")
    if not pre and not hdef:
        h_copies(a, vC1, [2, 3])
        if opt("ein", "0") == "1": p1_aload(a, range(4, 8))
    if opt("ein", "0") != "1": h_copies(a, vC3, [0], vC4)

def gen_fused():
    K = NAME + "_kernel"
    sent = opt("x2", "flag") == "sent"
    NEL = 4 if sent else 3
    out = header([f"; @launch grid=(256,1,1) block=(256,1,1) lds={LDS_TOT + int(opt('ldsx', '0'))}"])
    a = A()
    hl = opt("hld", "")
    stamp(a, 0)
    if int(opt("pad", "0")):
        a("s_memrealtime s[94:95]"); a("s_waitcnt lgkmcnt(0)"); a("v_mov_b32 v255, s94")
    prologue(a, K + "_end")
    def common_srds(a):
        srd(a, SF, 20, 21, F_BYTES, F_OFF)
        srd(a, SU, 20, 21, U_BYTES, U_OFF)
        srd(a, SY, 20, 21, Y_BYTES, YM_OFF)
        srd(a, SO, 16, 17, TENS)
        a(f"s_lshr_b32 s90, s{sCH}, 1")
        a("s_lshl_b32 s90, s90, 2")
        a(f"s_lshr_b32 s91, s{sCE}, 1")
        a("s_lshl_b32 s91, s91, 2")
        a(f"s_load_dword s{sDM}, s[12:13], s90")
        a(f"s_load_dword s{sDE}, s[12:13], s91")
    tail = []
    def caddr(a):
        for r in range(ZR, ZR + 4): a(f"v_mov_b32 v{r}, 0")
        a(f"v_add_u32 v{vC1}, s{sHB}, v{vL16}")
        a(f"v_mov_b32 v{vC2}, s{sHB}")
        a(f"v_mov_b32 v{vC4}, {4*HB}")
    def hsec(a):
        a.reset()
        h_copies(a, vC1, [0, 1], vC2)
        p1_aload(a, range(4))
        h_copies(a, vC1, [2, 3])
        p1_aload(a, range(4, 8))
    def elect(a, wait, nxt, last, coff=0, foff=0):
        a(f"v_mov_b32 v238, {LDS_CTR + coff}")
        a("v_mov_b32 v239, 1")
        a(f"s_lshl_b32 s92, s{sFI}, 7")
        if foff: a(f"s_add_u32 s92, s92, {foff}")
        a(f"s_waitcnt vmcnt({wait})")
        a("s_mov_b64 exec, 1")
        a("ds_add_rtn_u32 v253, v238, v239")
        a("s_waitcnt lgkmcnt(0)")
        a("v_readfirstlane_b32 s3, v253")
        a("s_mov_b64 exec, -1")
        a(f"s_cmp_eq_u32 s3, {last}")
        a(f"s_cbranch_scc0 {nxt}")
        signal(a, 92, int(opt("rep", "1")))
        stamp(a, 4)
    def hdma5(a):
        if opt("hdef", "0") == "1":
            a(f"s_lshl_b32 s98, s{sCH}, 12")
            a(f"s_add_u32 s92, s{sHB}, {3*CS + 32}")
            a("s_mov_b32 m0, s92")
            a("s_nop 0")
            for q in range(2):
                a.vm(f"buffer_load_dwordx4 v{vL16}, {sq(SH)}, s98 offen offset:{1024*q} {hl} lds")
            a("s_mov_b64 exec, 1")
            a.vm(f"buffer_load_dwordx4 v{vL16}, {sq(SH)}, s98 offen offset:2048 {hl} lds")
            a("s_mov_b64 exec, -1")
        else:
            h_dma(a, sCH, sHB, 0, hl, None)
        a(f"s_lshl_b32 s3, s{sCE}, 12")
        a(f"s_lshl_b32 s92, s{sW}, 10")
        a("s_add_u32 s3, s3, s92")
        a(f"s_add_u32 s92, s92, {4*HB + 3*CS + 32}")
        a("s_mov_b32 m0, s92")
        a("s_nop 0")
        a.vm(f"buffer_load_dwordx4 v{vL16}, {sq(SH)}, s3 offen {hl} lds", "h")
    def srds0(a):
        srd(a, SK, 4, 5, TENS); srd(a, SV, 6, 7, TENS); srd(a, SSH, 8, 9, D * 8)
    (flow_split if SPLIT() else flow_unsplit)(a, hdma5, srds0, common_srds, caddr, elect, hl)
    p1_mfma(a, opt("yst", "sc1"), tail)
    p2_first(a)
    y_addr(a)
    if opt("dry2", "0") == "1":
        a("s_mov_b64 exec, 0")
        a("s_branch p2_body")
        a.label("p2_dry_back")
        a("s_mov_b64 exec, -1")
    a(f"s_or_b32 s3, s2, s{sW}")
    a("s_cmp_eq_u32 s3, 0")
    a("s_cbranch_scc0 no_epoch")
    a(f"s_mov_b32 s3, {EP}")
    signal(a, 3)
    a.label("no_epoch")
    stamp(a, 10)
    y_check(a)
    stamp(a, 11)
    y_write(a)
    a("s_barrier")
    stamp(a, 12)
    if opt("q", "0") == "2": stamp(a, 24, True)
    p2_rest(a, opt("ost", "sc1"))
    qstamp(a, 7, "2"); qflush(a, "2")
    if opt("q2", "0") == "1": stamp(a, 27, True)
    stamp(a, 13)
    if STAMPS: a("s_waitcnt vmcnt(0)")
    stamp(a, 14)
    if int(opt("pad", "0")):
        if opt("gpad", "0") == "1":
            srd(a, 96, 18, 19, 256)
            a("v_mov_b32 v13, 0")
            a("buffer_load_dword v12, v13, s[96:99], 0 offen sc1")
            a("s_waitcnt vmcnt(0)")
            a("v_readfirstlane_b32 s100, v12")
            a("s_not_b32 s100, s100")
        a("v_readfirstlane_b32 s100, v255")
        a.label("padl")
        a("s_memrealtime s[98:99]")
        a("s_waitcnt lgkmcnt(0)")
        a("s_sub_u32 s98, s98, s100")
        a(f"s_cmp_lt_u32 s98, {opt('pad', '0')}")
        a("s_cbranch_scc1 padl")
    stamp_flush(a)
    a("s_endpgm")
    for f in tail: f(a)
    out += kernel(K, a.text(), 512, 256)
    return out

if __name__ == "__main__":
    path = sys.argv[1]
    STAMPS = "--stamps" in sys.argv
    for x in sys.argv[2:]:
        if "=" in x:
            k_, v_ = x.split("=", 1); OPT[k_] = v_
    open(path, "w").write(gen_fused())
```
